```python
import torch

def _softmax(x, axis=-1):
    return torch.softmax(x, dim=axis)
def _gelu(x):
    return torch.nn.functional.gelu(x, approximate="tanh")
def _silu(x):
    return torch.nn.functional.silu(x)
def _sigmoid(x):
    return torch.sigmoid(x)
def _layernorm(x, axis=-1, eps=1e-5):
    m = x.mean(dim=axis, keepdim=True)
    v = x.var(dim=axis, keepdim=True, unbiased=False)
    return (x - m) / torch.sqrt(v + eps)
def _scatter_add(tgt, idx, src, axis=0):
    return tgt.clone().index_add_(axis, idx, src)
def _segment_sum(src, seg, n):
    out = torch.zeros((n,) + src.shape[1:], dtype=src.dtype)
    return out.index_add_(0, seg, src)
def _pad(x, pw):
    flat = tuple(v for pair in reversed(pw) for v in pair)
    return torch.nn.functional.pad(x, flat)

kernel_name = 'concat_heads__gqa_block_cached__gqa_block_cached__near_ridge'

def setup_inputs():

    _w = (lambda a: (lambda t: t.to(torch.bfloat16) if t.is_floating_point() else t)(torch.as_tensor(a)))
    def _A_setup():
        B, Sq, D = 16, 64, 640
        Hq, Hkv, Sk, Dh = 32, 32, 512, 192
        assert Hq % Hkv == 0, (Hq, Hkv)
        return {
            "x": _w((lambda *s: torch.randn(*s, dtype=torch.bfloat16) * 0.8)(B, Sq, D)),
            "k_cache": _w((lambda *s: torch.randn(*s, dtype=torch.bfloat16) * 0.8)(B, Hkv, Sk, Dh)),
            "v_cache": _w((lambda *s: torch.randn(*s, dtype=torch.bfloat16) * 0.05)(B, Hkv, Sk, Dh)),
            "wq": _w((lambda *s: torch.randn(*s, dtype=torch.bfloat16) * 0.8)(D, Hq * Dh) * (D ** -0.5)),
            "wo": _w((lambda *s: torch.randn(*s, dtype=torch.bfloat16) * 0.05)(Hq * Dh, D) * ((Hq * Dh) ** -0.5)),
        }
    _A_in = _A_setup()

    def _B_setup():
        B, Sq, D = 16, 64, 640
        Hq, Hkv, Sk, Dh = 32, 32, 512, 192
        assert Hq % Hkv == 0, (Hq, Hkv)
        return {
            "x": _w((lambda *s: torch.randn(*s, dtype=torch.bfloat16) * 0.8)(B, Sq, D)),
            "k_cache": _w((lambda *s: torch.randn(*s, dtype=torch.bfloat16) * 0.8)(B, Hkv, Sk, Dh)),
            "v_cache": _w((lambda *s: torch.randn(*s, dtype=torch.bfloat16) * 0.05)(B, Hkv, Sk, Dh)),
            "wq": _w((lambda *s: torch.randn(*s, dtype=torch.bfloat16) * 0.8)(D, Hq * Dh) * (D ** -0.5)),
            "wo": _w((lambda *s: torch.randn(*s, dtype=torch.bfloat16) * 0.05)(Hq * Dh, D) * ((Hq * Dh) ** -0.5)),
        }
    _B_in = _B_setup()

    return {
        "A_x": _A_in["x"],
        "A_k_cache": _A_in["k_cache"],
        "A_v_cache": _A_in["v_cache"],
        "A_wq": _A_in["wq"],
        "A_wo": _A_in["wo"],
        "B_x": _B_in["x"],
        "B_k_cache": _B_in["k_cache"],
        "B_v_cache": _B_in["v_cache"],
        "B_wq": _B_in["wq"],
        "B_wo": _B_in["wo"],
    }

def reference(A_x, A_k_cache, A_v_cache, A_wq, A_wo, B_x, B_k_cache, B_v_cache, B_wq, B_wo):
    def _A_ref(x, k_cache, v_cache, wq, wo):
        B, Sq, D = x.shape
        Hq, Dh = 32, 192
        Hkv = k_cache.shape[1]
        rep = Hq // Hkv
        q = (lambda x, *d: x.permute(*d))((x @ wq).reshape(B, Sq, Hq, Dh), 0, 2, 1, 3)
        k = (lambda x, n, axis: torch.repeat_interleave(x, n, dim=axis))(k_cache, rep, axis=1)
        v = (lambda x, n, axis: torch.repeat_interleave(x, n, dim=axis))(v_cache, rep, axis=1)
        scores = torch.einsum("bhqd,bhkd->bhqk", q, k) * (Dh ** -0.5)
        p = _softmax(scores, axis=-1)
        o = torch.einsum("bhqk,bhkd->bhqd", p, v)
        return (lambda x, *d: x.permute(*d))(o, 0, 2, 1, 3).reshape(B, Sq, Hq * Dh) @ wo

    def _B_ref(x, k_cache, v_cache, wq, wo):
        B, Sq, D = x.shape
        Hq, Dh = 32, 192
        Hkv = k_cache.shape[1]
        rep = Hq // Hkv
        q = (lambda x, *d: x.permute(*d))((x @ wq).reshape(B, Sq, Hq, Dh), 0, 2, 1, 3)
        k = (lambda x, n, axis: torch.repeat_interleave(x, n, dim=axis))(k_cache, rep, axis=1)
        v = (lambda x, n, axis: torch.repeat_interleave(x, n, dim=axis))(v_cache, rep, axis=1)
        scores = torch.einsum("bhqd,bhkd->bhqk", q, k) * (Dh ** -0.5)
        p = _softmax(scores, axis=-1)
        o = torch.einsum("bhqk,bhkd->bhqd", p, v)
        return (lambda x, *d: x.permute(*d))(o, 0, 2, 1, 3).reshape(B, Sq, Hq * Dh) @ wo

    a = _A_ref(A_x, A_k_cache, A_v_cache, A_wq, A_wo)
    b = _B_ref(B_x, B_k_cache, B_v_cache, B_wq, B_wo)
    return torch.concatenate([a, b], axis=-1)
```

```python
import re

REG = re.compile(r"^(-|\|)?([vsa])(\d+)\|?$")
RNG = re.compile(r"^(-)?([vsa])\[(\d+):(\d+)\]$")
TRANS = ("v_exp_f32", "v_log_f32", "v_rcp_f32", "v_rsq_f32", "v_sqrt_f32")
NO_DST_S = ("s_cmp", "s_waitcnt", "s_barrier", "s_branch", "s_nop", "s_cbranch", "s_setprio", "s_endpgm",
            "s_sleep", "s_bitcmp", "s_setpc")


def regs_of(op):
    op = op.strip()
    m = REG.match(op)
    if m:
        return {(m.group(2), int(m.group(3)))}
    m = RNG.match(op)
    if m:
        return {(m.group(2), i) for i in range(int(m.group(3)), int(m.group(4)) + 1)}
    if op in ("vcc", "vcc_lo", "vcc_hi"):
        return {("s", "vcc")}
    if op == "m0":
        return {("s", "m0")}
    if op in ("exec", "exec_lo", "exec_hi"):
        return {("s", "exec")}
    return set()


class Ins:
    def __init__(self, text):
        self.text = text
        parts = text.split(None, 1)
        self.op = parts[0]
        rest = parts[1] if len(parts) > 1 else ""
        ops = [o.strip() for o in re.split(r",(?![^\[]*\])", rest)] if rest else []
        if ops:
            last = ops[-1].split()
            ops[-1] = last[0] if last else ""
            self.mods = last[1:]
        else:
            self.mods = []
        self.ops = ops
        R = [regs_of(o) for o in ops]
        op = self.op
        self.w = set(); self.r = set(); self.kind = "other"; self.srcc = set(); self.ab = set(); self.data = set()
        if op.startswith("v_mfma"):
            self.kind = "mfma"; self.w = R[0]; self.ab = R[1] | R[2]; self.srcc = R[3]; self.r = self.ab | self.srcc
            self.passes = 8 if "32x32" in op else 4
        elif op.startswith("v_permlane"):
            self.kind = "valu"; self.w = R[0] | R[1]; self.r = R[0] | R[1]
        elif op.startswith("v_"):
            self.kind = "valu"; self.w = R[0]
            srcs = R[1:]
            if op.startswith(("v_add_co", "v_sub_co", "v_addc_co")):
                self.w = R[0] | R[1]; srcs = R[2:]
            for x in srcs: self.r |= x
            if op.startswith("v_fmac"): self.r |= R[0]
        elif op.startswith("ds_read"):
            self.kind = "ds"; self.w = R[0]; self.r = R[1]
        elif op.startswith("ds_write"):
            self.kind = "ds"; self.r = R[0] | R[1]
        elif op.startswith(("buffer_load", "global_load")):
            self.kind = "vmem"
            if "lds" in self.mods:
                for x in R: self.r |= x
                self.r |= {("s", "m0")}
            else:
                self.w = R[0]
                for x in R[1:]: self.r |= x
        elif op.startswith(("buffer_store", "global_store", "buffer_atomic", "global_atomic")):
            self.kind = "vmem"
            for x in R: self.r |= x
            if op.startswith("buffer_store") and ("x4" in op or "x3" in op): self.data = R[0]
            if op.startswith("buffer_atomic") and "sc0" in self.mods: self.w = R[0]
        elif op.startswith("s_"):
            self.kind = "salu"
            if op.startswith(NO_DST_S):
                for x in R: self.r |= x
            else:
                self.w = R[0] if R else set()
                for x in R[1:]: self.r |= x
                if op.startswith("s_bitset"): self.r |= self.w
        self.states = 1
        if op == "s_nop": self.states = int(ops[0]) + 1


def need(p, c):
    n = 0
    vw = {x for x in p.w if x[0] in "va"}
    sw = {x for x in p.w if x[0] == "s"}
    if p.kind == "valu":
        if c.kind == "mfma" and vw & c.r: n = max(n, 2)
        if c.op.startswith("v_permlane") and vw & c.r: n = max(n, 2)
        if "dpp" in c.op and vw & c.r: n = max(n, 2)
        if c.op.startswith(("v_readfirstlane", "v_readlane")) and vw & c.r: n = max(n, 1)
        if p.op.startswith(TRANS) and c.kind == "valu" and vw & c.r: n = max(n, 1)
        if sw & c.r:
            if c.kind in ("valu", "mfma"): n = max(n, 2)
            if c.kind == "vmem": n = max(n, 5)
            if c.kind == "salu": n = max(n, 2)
    if p.kind == "mfma":
        long_ = 12 if p.passes == 8 else 8
        if c.kind == "mfma":
            if vw & c.ab: n = max(n, long_)
            if vw & (c.srcc | c.w):
                if not (c.srcc == vw and c.w == vw and c.op == p.op): n = max(n, long_ - 2)
        elif vw & (c.r | c.w): n = max(n, long_)
        if c.kind == "valu" and p.srcc & c.w: n = max(n, 7 if p.passes == 8 else 3)
    if p.kind == "salu" and ("s", "m0") in sw and c.kind == "vmem" and ("s", "m0") in c.r: n = max(n, 1)
    if p.data and p.data & c.w: n = max(n, 2)
    return n


def worst(p):
    if p.kind == "mfma": return 12 if p.passes == 8 else 8
    if p.kind == "valu":
        return 5 if any(x[0] == "s" for x in p.w) else 2
    if p.kind == "salu" and ("s", "m0") in p.w: return 1
    if p.data: return 2
    return 0


class Asm:
    def __init__(self):
        self.lines = []
        self.hist = []
        self.ds = []
        self.nops = 0
        self.count = 0

    def raw(self, text):
        self.lines.append(text)

    def comment(self, text):
        self.lines.append("    ; " + text)

    def _push(self, ins):
        self.lines.append("    " + ins.text)
        self.count += 1
        self.hist = [(p, a + ins.states) for p, a in self.hist if a + ins.states < 13]
        if worst(ins): self.hist.append((ins, 0))

    def _nop(self, n):
        while n > 0:
            k = min(n, 16)
            self._push(Ins(f"s_nop {k-1}")); self.nops += 1
            n -= k

    def e(self, text):
        ins = Ins(text)
        if ins.op == "s_waitcnt":
            m = re.search(r"lgkmcnt\((\d+)\)", text)
            if m:
                k = int(m.group(1)); self.ds = self.ds[len(self.ds) - k:] if k else []
        else:
            touched = ins.r | ins.w
            last = -1
            for i, d in enumerate(self.ds):
                if d & touched: last = i
            if last >= 0:
                k = min(len(self.ds) - 1 - last, 15)
                self._push(Ins(f"s_waitcnt lgkmcnt({k})"))
                self.ds = self.ds[len(self.ds) - k:] if k else []
        n = 0
        for p, a in self.hist:
            n = max(n, need(p, ins) - a)
        if n > 0: self._nop(n)
        self._push(ins)
        if ins.kind == "ds": self.ds.append(set(ins.w))

    def flush(self):
        if self.ds: self.e("s_waitcnt lgkmcnt(0)")
        n = 0
        for p, a in self.hist: n = max(n, worst(p) - a)
        if n > 0: self._nop(n)
        self.hist = []

    def label(self, name):
        self.flush()
        self.lines.append(name + ":")

    def branch(self, text):
        self.flush()
        self.e(text)

    def text(self):
        return "\n".join(self.lines) + "\n"
```

```python
import sys, math, struct
from asmlib import Asm

NAME = "concat_heads__gqa_block_cached__gqa_block_cached__near_ridge"
KVB, WB, XB, LDS = 0, 49152, 131072, 155648
KV_BYTES, W_BYTES, X_BYTES = 100663296, 7864320, 1310720
OOB = 0x40000000
CSCALE = struct.unpack("<I", struct.pack("<f", math.log2(math.e) / math.sqrt(192.0)))[0]

DEFAULTS = dict(kvpol="nt", wpol="", pfpol="", xpol="", stpol="", ldpol="", pf=1, kg0=6, kg1=12, stamps=0, prio=0,
                adepth=6, pdepth=4)


def v(a, n=1):
    return f"v{a}" if n == 1 else f"v[{a}:{a+n-1}]"


def srd(a, base, src, size):
    a.e(f"s_mov_b32 s{base}, s{src}")
    a.e(f"s_and_b32 s{base+1}, s{src+1}, 0xffff")
    a.e(f"s_mov_b32 s{base+2}, {size}")
    a.e(f"s_mov_b32 s{base+3}, 0x20000")


def pipe(a, reads, mfmas, fill, depth):
    n = len(mfmas)
    for i in range(min(depth, n)):
        for t in reads[i]: a.e(t)
    done = 0
    for i in range(n):
        a.e(mfmas[i])
        if i + depth < n:
            for t in reads[i + depth]: a.e(t)
        upto = len(fill) * (i + 1) // n
        for t in fill[done:upto]: a.e(t)
        done = upto


def div24(a, dst_row, dst_rem, src, tmp):
    a.e(f"v_mul_u32_u24 {tmp}, 2731, {src}")
    a.e(f"v_lshrrev_b32 {dst_row}, 16, {tmp}")
    a.e(f"v_mul_u32_u24 {tmp}, 24, {dst_row}")
    a.e(f"v_sub_u32 {dst_rem}, {src}, {tmp}")


def pol(s):
    return (" " + s) if s else ""


S_K, S_V, S_WQ, S_WO, S_XI, S_WS = 8, 12, 16, 20, 24, 28
S_BR, S_HG, S_B, S_W = 5, 6, 7, 33
S_HALF = 4


def gen_main(a, o):
    a.raw(f".globl main_kernel\n.p2align 8\n.type main_kernel,@function\nmain_kernel:")
    a.e("s_cmp_ge_u32 s2, 256")
    a.e("s_cbranch_scc1 L_end")
    if o["stamps"]: a.e("s_memrealtime s[90:91]")
    a.e("s_load_dwordx2 s[34:35], s[0:1], 96")
    a.e("s_and_b32 s3, s2, 7")
    a.e("s_lshr_b32 s4, s2, 3")
    a.e("s_lshr_b32 s5, s3, 2")
    a.e("s_and_b32 s7, s4, 15")
    a.e("s_lshr_b32 s4, s4, 4")
    a.e("s_and_b32 s6, s3, 3")
    a.e("s_lshl_b32 s6, s6, 1")
    a.e("s_add_u32 s6, s6, s4")
    a.e("s_mul_i32 s32, s5, 40")
    a.e("s_add_u32 s0, s0, s32")
    a.e("s_addc_u32 s1, s1, 0")
    a.e("s_load_dwordx2 s[36:37], s[0:1], 0")
    a.e("s_load_dwordx4 s[40:43], s[0:1], 8")
    a.e("s_load_dwordx4 s[44:47], s[0:1], 24")
    a.e("v_lshrrev_b32 v1, 6, v0")
    a.e("v_and_b32 v0, 63, v0")
    a.e("v_readfirstlane_b32 s32, v1")
    a.e("s_waitcnt lgkmcnt(0)")
    srd(a, S_K, 40, KV_BYTES); srd(a, S_V, 42, KV_BYTES); srd(a, S_WQ, 44, W_BYTES); srd(a, S_WO, 46, W_BYTES)
    srd(a, S_XI, 36, X_BYTES); srd(a, S_WS, 34, 64 << 20)
    a.e("s_and_b32 s33, s32, 3")
    a.e("s_cmp_ge_u32 s32, 4")
    a.branch("s_cbranch_scc1 L_A")
    gen_P(a, o)
    gen_A(a, o)
    a.label("L_fin")
    if o["stamps"]:
        a.e("s_memrealtime s[92:93]")
        a.e("s_waitcnt lgkmcnt(0)")
        a.e("v_mov_b32 v4, s90"); a.e("v_mov_b32 v5, s91"); a.e("v_mov_b32 v6, s92"); a.e("v_mov_b32 v7, s93")
        a.e("s_lshl_b32 s40, s2, 3"); a.e("s_add_u32 s40, s40, s32"); a.e("s_lshl_b32 s40, s40, 4")
        a.e("s_add_u32 s40, s40, 0x2000000")
        a.e("v_mov_b32 v1, 0")
        a.e(f"buffer_store_dwordx4 v[4:7], v1, s[{S_WS}:{S_WS+3}], s40 offen")
    a.label("L_end")
    a.e("s_endpgm")


PY, PQ, PFA, PFB = 96, 48, 24, 16
P_QW, P_VQ, P_VX, P_VO, P_AQ, P_AX, P_AO, P_T0, P_T1, P_AW = 0, 1, 4, 5, 10, 12, 13, 14, 15, 44
S_C, S_MQ, S_MX, S_MO, S_OQ, S_OX, S_OO, S_T, S_P = 50, 51, 52, 53, 54, 55, 56, 57, 58


def p_burst_q(a, o, D):
    wp, xp = pol(o["wpol"]), pol(o["xpol"])
    a.e(f"s_add_u32 m0, s{S_MQ}, {D*40960}")
    a.e(f"s_add_u32 s{S_T}, s{S_OX}, {32*1280}")
    for j in range(3):
        a.e(f"buffer_load_dwordx4 v{P_VQ+j}, s[{S_WQ}:{S_WQ+3}], s{S_OQ} offen offset:{1024*j}{wp} lds")
    a.e(f"s_add_u32 m0, s{S_MX}, {D*40960}")
    a.e(f"s_add_u32 s{S_OQ}, s{S_OQ}, {32*12288}")
    a.e(f"buffer_load_dwordx4 v{P_VX}, s[{S_XI}:{S_XI+3}], s{S_OX} offen{xp} lds")
    a.e(f"s_add_u32 m0, s{S_MX}, {D*40960+4096}")
    a.e(f"s_add_u32 s{S_OX}, s{S_OX}, 128")
    a.e(f"buffer_load_dwordx4 v{P_VX}, s[{S_XI}:{S_XI+3}], s{S_T} offen{xp} lds")
    a.e(f"s_add_u32 m0, s{S_MQ}, {D*40960+20480}")
    a.e("s_nop 0")
    for j in range(3):
        a.e(f"buffer_load_dwordx4 v{P_VQ+j}, s[{S_WQ}:{S_WQ+3}], s{S_OQ} offen offset:{1024*j}{wp} lds")
    a.e(f"s_add_u32 s{S_OQ}, s{S_OQ}, {32*12288}")
    return 8


def p_burst_o(a, o, D):
    wp = pol(o["wpol"])
    for h in range(2):
        a.e(f"s_add_u32 m0, s{S_MO}, {D*40960+h*20480}")
        a.e(f"s_add_u32 s{S_T}, s{S_OO}, 4096")
        for j in range(4):
            a.e(f"buffer_load_dwordx4 v{P_VO+j}, s[{S_WO}:{S_WO+3}], s{S_OO} offen offset:{1024*j}{wp} lds")
        a.e(f"s_add_u32 m0, s{S_MO}, {D*40960+h*20480+4096}")
        a.e(f"s_add_u32 s{S_OO}, s{S_OO}, 20480")
        a.e(f"buffer_load_dwordx4 v{P_VO+4}, s[{S_WO}:{S_WO+3}], s{S_T} offen{wp} lds")
    return 10


def p_toggle(a, regs, D):
    for r in regs:
        a.e(f"v_add_u32 v{r}, 40960, v{r}" if D == 0 else f"v_subrev_u32 v{r}, 40960, v{r}")


def p_qstep(a, o, qs):
    h = qs & 1
    nb = o["pdepth"] + 1
    for ks in range(2):
        k4 = 2 * h + ks
        if k4:
            a.e(f"v_xor_b32 v{P_T0+ks}, {32*k4}, v{P_AX}")
            a.e(f"ds_read_b128 {v(PFB+4*ks,4)}, v{P_T0+ks}")
        else:
            a.e(f"ds_read_b128 {v(PFB,4)}, v{P_AX}")
    reads, mf = [], []
    i = 0
    for ks in range(2):
        for db in range(3):
            f = PFA + 4 * (i % nb)
            off = h * 20480 + ks * 6144 + (db >> 1) * 128
            reads.append([f"ds_read_b64_tr_b16 {v(f,2)}, v{P_AQ+(db&1)} offset:{off}",
                          f"ds_read_b64_tr_b16 {v(f+2,2)}, v{P_AQ+(db&1)} offset:{off+1536}"])
            acc = v(PQ + 16 * db, 16)
            c = "0" if (qs == 0 and ks == 0) else acc
            mf.append(f"v_mfma_f32_32x32x16_bf16 {acc}, {v(f,4)}, {v(PFB+4*ks,4)}, {c}")
            i += 1
    pipe(a, reads, mf, [], o["pdepth"])
    if h: p_toggle(a, [P_AQ, P_AQ + 1, P_AX], (qs >> 1) & 1)


def p_ostep(a, o, s):
    h = s & 1
    nb = o["pdepth"] + 1
    fb = PFB + 4 * h
    if s & 3:
        a.e(f"v_xor_b32 v{P_T0}, {32*(s&3)}, v{P_AO}")
        a.e(f"ds_read_b128 {v(fb,4)}, v{P_T0} offset:{(s>>2)*128}")
    else:
        a.e(f"ds_read_b128 {v(fb,4)}, v{P_AO} offset:{(s>>2)*128}")
    reads, mf = [], []
    for i in range(10):
        f = PFA + 4 * (i % nb)
        off = h * 20480 + (i >> 2) * 256
        reads.append([f"ds_read_b64_tr_b16 {v(f,2)}, v{P_AW+(i&3)} offset:{off}",
                      f"ds_read_b64_tr_b16 {v(f+2,2)}, v{P_AW+(i&3)} offset:{off+5120}"])
        acc = v(PY + 16 * i, 16)
        mf.append(f"v_mfma_f32_32x32x16_bf16 {acc}, {v(f,4)}, {v(fb,4)}, {acc}")
    pipe(a, reads, mf, [], o["pdepth"])
    if h: p_toggle(a, [P_AW + i for i in range(4)], (s >> 1) & 1)


def endstep(a, vm=None):
    if vm is None: a.e("s_waitcnt lgkmcnt(0)")
    else: a.e(f"s_waitcnt vmcnt({vm}) lgkmcnt(0)")
    a.e("s_barrier")


def p_next_head(a):
    a.e(f"s_add_u32 s{S_OQ}, s{S_OQ}, {(384 - 640*12288) & 0xffffffff}")
    a.e(f"s_sub_u32 s{S_OX}, s{S_OX}, 1280")


def p_choice(a, o, tag, D, cond, first, second):
    for t in cond: a.e(t)
    a.branch(f"s_cbranch_scc1 L_{tag}_b")
    n = first()
    a.e(f"s_waitcnt vmcnt({n})")
    a.branch(f"s_branch L_{tag}_j")
    a.label(f"L_{tag}_b")
    n = second()
    a.e(f"s_waitcnt vmcnt({n})")
    a.label(f"L_{tag}_j")
    endstep(a)


def idle(a, tag, n):
    a.e(f"s_mov_b32 s{S_T}, {n}")
    a.label(f"L_{tag}")
    a.e("s_barrier")
    a.e(f"s_sub_u32 s{S_T}, s{S_T}, 1")
    a.e(f"s_cmp_lg_u32 s{S_T}, 0")
    a.branch(f"s_cbranch_scc1 L_{tag}")


def gen_P(a, o):
    a.comment("projection waves: wave w = (qb, hf)")
    if o["prio"] == 1: a.e("s_setprio 1")
    a.e("s_lshr_b32 s48, s33, 1")
    a.e("s_and_b32 s49, s33, 1")
    T0, T1, T2, T3, T4 = "v20", "v21", "v22", "v23", "v19"
    for j in range(3):
        a.e(f"v_add_u32 {T0}, {64*j}, v0")
        div24(a, T1, T2, T0, T3)
        a.e(f"v_and_b32 {T3}, 2, {T1}")
        a.e(f"v_lshlrev_b32 {T3}, 1, {T3}")
        a.e(f"v_xor_b32 {T2}, {T2}, {T3}")
        a.e(f"v_mul_u32_u24 {T1}, 12288, {T1}")
        a.e(f"v_lshl_add_u32 {T1}, {T2}, 4, {T1}")
        a.e(f"v_subrev_u32 v{P_VQ+j}, {1024*j}, {T1}")
    a.e(f"s_lshl_b32 s{S_T}, s49, 2")
    a.e(f"v_lshrrev_b32 {T0}, 4, v0")
    a.e(f"v_or_b32 {T0}, s{S_T}, {T0}")
    a.e(f"v_and_b32 {T1}, 7, v0")
    a.e(f"v_xor_b32 {T0}, {T0}, {T1}")
    a.e(f"v_lshrrev_b32 {T1}, 3, v0")
    a.e(f"v_mul_u32_u24 {T1}, 1280, {T1}")
    a.e(f"v_lshl_add_u32 v{P_VX}, {T0}, 4, {T1}")
    for j in range(5):
        a.e(f"v_add_u32 {T0}, {64*j}, v0")
        a.e(f"v_mul_u32_u24 {T0}, 820, {T0}")
        a.e(f"v_lshrrev_b32 {T0}, 16, {T0}")
        a.e(f"v_lshlrev_b32 {T0}, 2, {T0}")
        a.e(f"v_xor_b32 {T0}, {T0}, v0")
        a.e(f"v_lshlrev_b32 v{P_VO+j}, 4, {T0}")
    a.e(f"v_lshrrev_b32 {T0}, 5, v0")
    a.e(f"v_bfe_u32 {T1}, v0, 2, 2")
    a.e(f"v_lshl_add_u32 {T2}, {T0}, 3, {T1}")
    a.e(f"v_bfe_u32 {T3}, v0, 4, 1")
    a.e(f"v_bfe_u32 {T4}, v0, 1, 1")
    a.e(f"v_lshl_add_u32 {T3}, {T3}, 1, {T4}")
    a.e(f"v_and_b32 v18, 1, v0")
    a.e(f"v_lshlrev_b32 v18, 3, v18")
    for db in range(2):
        a.e(f"s_mul_i32 s{S_T}, s49, 12")
        a.e(f"s_add_u32 s{S_T}, s{S_T}, {4*db}")
        a.e(f"v_add_u32 v16, s{S_T}, {T3}")
        a.e(f"v_and_b32 v17, 2, {T1}")
        a.e(f"v_lshlrev_b32 v17, 1, v17")
        a.e(f"v_xor_b32 v16, v16, v17")
        a.e(f"v_lshl_add_u32 v16, v16, 4, v18")
        a.e(f"v_mul_u32_u24 v17, 384, {T2}")
        a.e(f"v_add_u32 v16, v16, v17")
        a.e(f"v_add_u32 v{P_AQ+db}, {WB}, v16")
    for i in range(4):
        a.e(f"s_mul_i32 s{S_T}, s49, 40")
        a.e(f"s_add_u32 s{S_T}, s{S_T}, {4*i}")
        a.e(f"v_add_u32 v16, s{S_T}, {T3}")
        a.e(f"v_lshlrev_b32 v17, 2, {T1}")
        a.e(f"v_xor_b32 v16, v16, v17")
        a.e(f"v_lshl_add_u32 v16, v16, 4, v18")
        a.e(f"v_mul_u32_u24 v17, 1280, {T2}")
        a.e(f"v_add_u32 v16, v16, v17")
        a.e(f"v_add_u32 v{P_AW+i}, {WB}, v16")
    a.e(f"s_lshl_b32 s{S_T}, s48, 5")
    a.e(f"v_and_b32 {T1}, 31, v0")
    a.e(f"v_add_u32 {T2}, s{S_T}, {T1}")
    a.e(f"v_bfe_u32 {T3}, {T1}, 1, 3")
    a.e(f"v_xor_b32 {T3}, {T3}, {T0}")
    a.e(f"v_lshlrev_b32 {T3}, 4, {T3}")
    a.e(f"v_lshl_add_u32 {T3}, {T2}, 7, {T3}")
    a.e(f"v_add_u32 v{P_AX}, {WB+32768}, {T3}")
    a.e(f"v_mul_u32_u24 {T2}, 384, {T2}")
    a.e(f"v_add_u32 {T2}, {XB}, {T2}")
    a.e(f"v_and_b32 {T1}, 6, {T1}")
    a.e(f"v_xor_b32 {T3}, {T1}, {T0}")
    a.e(f"v_lshl_add_u32 v{P_AO}, {T3}, 4, {T2}")
    a.e(f"v_lshl_add_u32 {T2}, {T1}, 4, {T2}")
    a.e(f"v_lshl_add_u32 v{P_QW}, {T0}, 3, {T2}")
    a.e(f"s_mul_i32 s{S_MQ}, s33, 3072");  a.e(f"s_add_u32 s{S_MQ}, s{S_MQ}, {WB}")
    a.e(f"s_lshl_b32 s{S_MX}, s33, 10");   a.e(f"s_add_u32 s{S_MX}, s{S_MX}, {WB+32768}")
    a.e(f"s_mul_i32 s{S_MO}, s33, 5120");  a.e(f"s_add_u32 s{S_MO}, s{S_MO}, {WB}")
    a.e(f"s_mul_i32 s{S_OQ}, s{S_HG}, 1536"); a.e(f"s_mul_i32 s{S_T}, s33, {8*12288}"); a.e(f"s_add_u32 s{S_OQ}, s{S_OQ}, s{S_T}")
    a.e(f"s_mul_i32 s{S_OX}, s{S_B}, 81920"); a.e(f"s_mul_i32 s{S_T}, s33, {8*1280}"); a.e(f"s_add_u32 s{S_OX}, s{S_OX}, s{S_T}")
    a.e(f"s_mul_i32 s{S_OO}, s{S_HG}, {4*245760}"); a.e(f"s_mul_i32 s{S_T}, s33, 5120"); a.e(f"s_add_u32 s{S_OO}, s{S_OO}, s{S_T}")
    p_burst_q(a, o, 0)
    for i in range(160): a.e(f"v_mov_b32 v{PY+i}, 0")
    a.e(f"s_mov_b32 s{S_C}, 0")
    endstep(a, 3)
    a.branch("s_branch L_PQa")

    a.label("L_Pcyc")
    for i in range(24):
        a.e(f"v_cvt_pk_bf16_f32 v{PQ+i}, v{PQ+2*i}, v{PQ+2*i+1}")
    for db in range(3):
        for jj in range(4):
            a.e(f"s_mul_i32 s{S_T}, s49, 12")
            a.e(f"s_add_u32 s{S_T}, s{S_T}, {4*db+jj}")
            a.e(f"s_and_b32 s59, s{S_T}, 7")
            a.e(f"s_lshl_b32 s59, s59, 4")
            a.e(f"s_lshr_b32 s{S_T}, s{S_T}, 3")
            a.e(f"s_lshl_b32 s{S_T}, s{S_T}, 7")
            t = P_T0 + (jj & 1)
            a.e(f"v_xor_b32 v{t}, s59, v{P_QW}")
            a.e(f"v_add_u32 v{t}, s{S_T}, v{t}")
            a.e(f"ds_write_b64 v{t}, {v(PQ+8*db+2*jj,2)}")
    a.e("s_waitcnt lgkmcnt(0)")
    a.e(f"s_cmp_eq_u32 s{S_C}, 4")
    a.branch("s_cbranch_scc0 L_PQa")
    idle(a, "Pi4", 4)
    a.branch("s_branch L_PO")

    a.label("L_PQa")
    for qs in range(4):
        p_qstep(a, o, qs)
        if qs == 0: endstep(a, p_burst_q(a, o, 1))
        elif qs == 2:
            p_choice(a, o, "Pa", 0, [f"s_cmp_ge_u32 s{S_C}, 2"], lambda: p_burst_q(a, o, 0), lambda: p_burst_o(a, o, 0))
        else: endstep(a, 3)
    a.e(f"s_cmp_eq_u32 s{S_C}, 0")
    a.branch("s_cbranch_scc1 L_PQb")
    a.e(f"s_cmp_ge_u32 s{S_C}, 2")
    a.branch("s_cbranch_scc1 L_PO")
    idle(a, "Pi12", 12)
    a.branch("s_branch L_PQb")

    a.label("L_PO")
    for s in range(12):
        p_ostep(a, o, s)
        if s == 10:
            a.e(f"s_cmp_eq_u32 s{S_C}, 5")
            a.branch("s_cbranch_scc0 L_Po_more")
            endstep(a, 0)
            a.branch("s_branch L_Po_last")
            a.label("L_Po_more")
            p_choice(a, o, "Po", 0, [f"s_cmp_eq_u32 s{S_C}, 4"], lambda: p_burst_q(a, o, 0), lambda: p_burst_o(a, o, 0))
            a.label("L_Po_last")
        elif s == 11: endstep(a, 3)
        elif s & 1: endstep(a, 5)
        else: endstep(a, p_burst_o(a, o, ((s >> 1) + 1) & 1))
    a.e(f"s_cmp_lt_u32 s{S_C}, 4")
    a.branch("s_cbranch_scc1 L_PQb")
    a.e(f"s_cmp_eq_u32 s{S_C}, 5")
    a.branch("s_cbranch_scc1 L_Ptail")
    idle(a, "Pi18", 18)
    a.e(f"s_mov_b32 s{S_C}, 5")
    a.branch("s_branch L_PO")

    a.label("L_PQb")
    for qs in range(4, 20):
        p_qstep(a, o, qs)
        if qs == 18:
            p_next_head(a)
            p_choice(a, o, "Pb", 0, [f"s_cmp_eq_u32 s{S_C}, 3"], lambda: p_burst_q(a, o, 0), lambda: p_burst_o(a, o, 0))
        elif qs & 1: endstep(a, 3)
        else: endstep(a, p_burst_q(a, o, ((qs >> 1) + 1) & 1))
    a.e(f"s_add_u32 s{S_C}, s{S_C}, 1")
    a.branch("s_branch L_Pcyc")

    a.label("L_Ptail")
    a.e(f"v_mbcnt_lo_u32_b32 v1, -1, 0")
    a.e(f"v_mbcnt_hi_u32_b32 v1, -1, v1")
    a.e(f"v_lshlrev_b32 v1, 4, v1")
    a.e(f"s_lshl_b32 s{S_P}, s{S_BR}, 4"); a.e(f"s_add_u32 s{S_P}, s{S_P}, s{S_B}")
    a.e(f"s_lshl_b32 s{S_P}, s{S_P}, 3"); a.e(f"s_add_u32 s{S_P}, s{S_P}, s{S_HG}")
    a.e(f"s_lshl_b32 s{S_P}, s{S_P}, 2"); a.e(f"s_add_u32 s{S_P}, s{S_P}, s33")
    a.e(f"s_mul_i32 s{S_P}, s{S_P}, 20480")
    for i in range(10):
        y = PY + 16 * i
        d = 16 + 8 * (i & 1)
        for k in range(8):
            a.e(f"v_cvt_pk_bf16_f32 v{d+k}, v{y+2*k}, v{y+2*k+1}")
        for t in range(2):
            a.e(f"v_permlane32_swap_b32 v{d+4*t}, v{d+4*t+2}")
            a.e(f"v_permlane32_swap_b32 v{d+4*t+1}, v{d+4*t+3}")
        for t in range(2):
            a.e(f"buffer_store_dwordx4 {v(d+4*t,4)}, v1, s[{S_WS}:{S_WS+3}], s{S_P} offen offset:{(i&1)*2048+t*1024}{pol(o['stpol'])}")
        if i & 1: a.e(f"s_add_u32 s{S_P}, s{S_P}, 4096")
    a.branch("s_branch L_fin")


AS, AO, AQ, AF = 128, 80, 56, 24
A_VD, A_AK, A_AV, A_M, A_L, A_MC, A_T0, A_T1, A_R, A_PF, A_DUM, A_XQ, A_XO = 1, 4, 6, 10, 11, 12, 13, 14, 15, 16, 17, 18, 20
S_PER, S_MK, S_OK, S_OV, S_CS, S_PFO, S_PFS, S_PFL = 50, 51, 52, 53, 54, 55, 56, 58
S_PF = 60


def a_burst(a, o, D, srdreg, off):
    kp = pol(o["kvpol"])
    for h in range(2):
        a.e(f"s_add_u32 m0, s{S_MK}, {D*24576+h*12288}")
        if h: a.e(f"s_add_u32 s{off}, s{off}, 12288")
        else: a.e("s_nop 0")
        for j in range(3):
            a.e(f"buffer_load_dwordx4 v{A_VD+j}, s[{srdreg}:{srdreg+3}], s{off} offen offset:{1024*j}{kp} lds")
    a.e(f"s_add_u32 s{off}, s{off}, 12288")


def a_touch(a, o):
    a.e(f"buffer_load_dword v{A_DUM}, v{A_PF}, s[{S_PF}:{S_PF+3}], s{S_PFO} offen{pol(o['pfpol'])}")
    a.e(f"s_add_u32 s{S_PFO}, s{S_PFO}, s{S_PFS}")


def xlane(a, reg, op):
    for sw in ("v_permlane32_swap_b32", "v_permlane16_swap_b32"):
        a.e(f"v_mov_b32 v{A_T0}, v{reg}")
        a.e(f"{sw} v{reg}, v{A_T0}")
        a.e(f"{op} v{reg}, v{reg}, v{A_T0}")


def soft_chunk(j):
    b = AS + 8 * j
    t = []
    for i in range(8): t.append(f"v_fma_f32 v{b+i}, v{b+i}, s{S_CS}, -v{A_MC}")
    for i in range(8): t.append(f"v_exp_f32 v{b+i}, v{b+i}")
    for i in range(8):
        if j == 0 and i == 0: t.append(f"v_mov_b32 v{A_L}, v{b}")
        else: t.append(f"v_add_f32 v{A_L}, v{A_L}, v{b+i}")
    for i in range(4): t.append(f"v_cvt_pk_bf16_f32 v{b+i}, v{b+2*i}, v{b+2*i+1}")
    return t


def max_chunk(s):
    b = AS + 8 * s
    t = []
    for i in range(4):
        if s == 0 and i == 0: t.append(f"v_max_f32 v{A_M}, v{b}, v{b+1}")
        else: t.append(f"v_max3_f32 v{A_M}, v{A_M}, v{b+2*i}, v{b+2*i+1}")
    return t


def a_owrite(a):
    xlane(a, A_L, "v_add_f32")
    a.e(f"v_rcp_f32 v{A_R}, v{A_L}")
    for db in range(12):
        r = AO + 4 * db
        for i in range(4): a.e(f"v_mul_f32 v{r+i}, v{r+i}, v{A_R}")
        a.e(f"v_cvt_pk_bf16_f32 v{r}, v{r}, v{r+1}")
        a.e(f"v_cvt_pk_bf16_f32 v{r+1}, v{r+2}, v{r+3}")
        if db & 3:
            a.e(f"v_xor_b32 v{A_T0+(db&1)}, {32*(db&3)}, v{A_XO}")
            a.e(f"ds_write_b64 v{A_T0+(db&1)}, {v(r,2)} offset:{(db>>2)*128}")
        else:
            a.e(f"ds_write_b64 v{A_XO}, {v(r,2)} offset:{(db>>2)*128}")


def a_kstep(a, o, s):
    nb = 8
    reads, mf = [], []
    i = 0
    for kb in range(2):
        for ks in range(6):
            f = AF + 4 * (i % nb)
            off = (s & 3) * 12288 + kb * 6144 + (ks >> 1) * 128
            reads.append([f"ds_read_b128 {v(f,4)}, v{A_AK+(ks&1)} offset:{off}"])
            acc = v(AS + 8 * s + 4 * kb, 4)
            mf.append(f"v_mfma_f32_16x16x32_bf16 {acc}, {v(f,4)}, {v(AQ+4*ks,4)}, {'0' if ks == 0 else acc}")
            i += 1
    pipe(a, reads, mf, max_chunk(s - 1) if s else [], o["adepth"])


def a_vstep(a, o, j):
    nb = 8
    s = 16 + j
    reads, mf = [], []
    for db in range(12):
        f = AF + 4 * (db % nb)
        off = (s & 3) * 12288 + (db >> 2) * 128
        reads.append([f"ds_read_b64_tr_b16 {v(f,2)}, v{A_AV+(db&3)} offset:{off}",
                      f"ds_read_b64_tr_b16 {v(f+2,2)}, v{A_AV+(db&3)} offset:{off+6144}"])
        acc = v(AO + 4 * db, 4)
        mf.append(f"v_mfma_f32_16x16x32_bf16 {acc}, {v(f,4)}, {v(AS+8*j,4)}, {'0' if j == 0 else acc}")
    if j == 0:
        for t in reads[0] + reads[1] + reads[2] + reads[3]: a.e(t)
        reads[0:4] = [[], [], [], []]
        for t in max_chunk(15): a.e(t)
        xlane(a, A_M, "v_max_f32")
        a.e(f"v_mul_f32 v{A_MC}, s{S_CS}, v{A_M}")
        for t in soft_chunk(0): a.e(t)
    pipe(a, reads, mf, soft_chunk(j + 1) if j < 15 else [], o["adepth"])


def gen_A(a, o):
    a.label("L_A")
    if o["prio"] == 2: a.e("s_setprio 1")
    T0, T1, T2, T3 = "v24", "v25", "v26", "v27"
    a.e(f"s_and_b32 s{S_T}, s33, 1")
    a.e(f"s_lshl_b32 s{S_T}, s{S_T}, 6")
    a.e(f"v_add_u32 {T0}, s{S_T}, v0")
    a.e(f"v_mul_u32_u24 {T1}, 21846, {T0}")
    a.e(f"v_lshrrev_b32 {T1}, 16, {T1}")
    a.e(f"v_mul_u32_u24 {T2}, 3, {T1}")
    a.e(f"v_sub_u32 {T2}, {T0}, {T2}")
    a.e(f"v_mul_u32_u24 {T1}, 12288, {T1}")
    a.e(f"v_lshl_add_u32 {T1}, {T2}, 7, {T1}")
    a.e(f"v_lshlrev_b32 {T2}, 7, {T0}")
    a.e(f"s_cmp_ge_u32 s33, 2")
    a.e(f"s_cselect_b64 vcc, -1, 0")
    a.e(f"s_cselect_b32 s{S_PF}, s{S_WO}, s{S_WQ}")
    a.e(f"s_cselect_b32 s{S_PF+1}, s{S_WO+1}, s{S_WQ+1}")
    a.e(f"s_mov_b32 s{S_PFS}, 384")
    a.e(f"s_mov_b32 s{S_T}, {40*12288}")
    a.e(f"s_cselect_b32 s{S_PFS}, 245760, s{S_PFS}")
    a.e(f"s_cselect_b32 s{S_T}, 15360, s{S_T}")
    a.e(f"s_mov_b32 s{S_PF+2}, {W_BYTES}")
    a.e(f"s_mov_b32 s{S_PF+3}, 0x20000")
    a.e(f"v_cndmask_b32 {T1}, {T1}, {T2}, vcc")
    a.e(f"v_mov_b32 {T2}, {OOB}")
    a.e(f"v_cmp_gt_u32 vcc, 120, {T0}")
    a.e(f"v_cndmask_b32 v{A_PF}, {T2}, {T1}, vcc")
    a.e(f"s_mul_i32 s{S_PFO}, s{S_T}, s{S_B}")
    a.e(f"s_mul_i32 s{S_T}, s{S_PFS}, s{S_HG}")
    a.e(f"s_lshl_b32 s{S_T}, s{S_T}, 2")
    a.e(f"s_add_u32 s{S_PFO}, s{S_PFO}, s{S_T}")
    if o["pf"]:
        a.e("s_cmp_ge_u32 s33, 2")
        a.branch("s_cbranch_scc1 L_Apx")
        a_touch(a, o); a_touch(a, o)
        a.branch("s_branch L_Apj")
        a.label("L_Apx")
        a.e(f"s_mul_i32 s{S_T}, s{S_B}, 81920")
        a.e(f"s_mul_i32 s59, s{S_HALF}, 40960"); a.e(f"s_add_u32 s{S_T}, s{S_T}, s59")
        a.e(f"s_and_b32 s59, s33, 1"); a.e(f"s_mul_i32 s59, s59, 20480"); a.e(f"s_add_u32 s{S_T}, s{S_T}, s59")
        a.e(f"v_lshlrev_b32 {T0}, 7, v0")
        a.e(f"v_mov_b32 {T2}, {OOB}")
        a.e(f"v_cmp_gt_u32 vcc, 32, v0")
        a.e(f"v_cndmask_b32 {T1}, {T2}, {T0}, vcc")
        for j in range(3):
            a.e(f"buffer_load_dword v{A_DUM}, {T0 if j < 2 else T1}, s[{S_XI}:{S_XI+3}], s{S_T} offen{pol(o['pfpol'])}")
            a.e(f"s_add_u32 s{S_T}, s{S_T}, 8192")
        a.label("L_Apj")
    for j in range(3):
        a.e(f"v_add_u32 {T0}, {64*j}, v0")
        div24(a, T1, T2, T0, T3)
        a.e(f"v_and_b32 {T1}, 6, {T1}")
        a.e(f"v_xor_b32 {T1}, {T1}, v0")
        a.e(f"v_lshlrev_b32 v{A_VD+j}, 4, {T1}")
    a.e(f"v_and_b32 {T0}, 15, v0")
    a.e(f"v_lshrrev_b32 {T1}, 4, v0")
    a.e(f"v_and_b32 {T2}, 6, {T0}")
    a.e(f"v_xor_b32 {T3}, {T2}, {T1}")
    a.e(f"v_mul_u32_u24 {T0}, 384, {T0}")
    a.e(f"v_lshl_add_u32 v{A_AK}, {T3}, 4, {T0}")
    a.e(f"v_xor_b32 v{A_AK+1}, 64, v{A_AK}")
    a.e(f"s_mul_i32 s{S_T}, s33, 6144"); a.e(f"s_add_u32 s{S_T}, s{S_T}, {XB}")
    a.e(f"v_add_u32 v{A_XQ}, s{S_T}, v{A_AK}")
    a.e(f"v_add_u32 v{A_XQ+1}, s{S_T}, v{A_AK+1}")
    a.e(f"v_lshrrev_b32 {T3}, 1, {T1}")
    a.e(f"v_xor_b32 {T3}, {T3}, {T2}")
    a.e(f"v_lshl_add_u32 {T3}, {T3}, 4, {T0}")
    a.e(f"v_and_b32 {T2}, 1, {T1}")
    a.e(f"v_lshl_add_u32 {T3}, {T2}, 3, {T3}")
    a.e(f"v_add_u32 v{A_XO}, s{S_T}, {T3}")
    a.e(f"v_lshrrev_b32 {T0}, 2, v0")
    a.e(f"v_and_b32 {T1}, 6, {T0}")
    a.e(f"v_bfe_u32 {T2}, v0, 1, 1")
    a.e(f"v_xor_b32 {T1}, {T1}, {T2}")
    a.e(f"v_mul_u32_u24 {T0}, 384, {T0}")
    a.e(f"v_lshl_add_u32 {T1}, {T1}, 4, {T0}")
    a.e(f"v_and_b32 {T2}, 1, v0")
    a.e(f"v_lshl_add_u32 v{A_AV}, {T2}, 3, {T1}")
    for d in range(1, 4): a.e(f"v_xor_b32 v{A_AV+d}, {32*d}, v{A_AV}")
    a.e(f"s_mul_i32 s{S_MK}, s33, 3072")
    a.e(f"s_lshl_b32 s{S_OK}, s{S_B}, 5"); a.e(f"s_lshl_b32 s{S_T}, s{S_HG}, 2"); a.e(f"s_add_u32 s{S_OK}, s{S_OK}, s{S_T}")
    a.e(f"s_mul_i32 s{S_OK}, s{S_OK}, 196608"); a.e(f"s_add_u32 s{S_OK}, s{S_OK}, s{S_MK}")
    a.e(f"s_mov_b32 s{S_OV}, s{S_OK}")
    a.e(f"s_mov_b32 s{S_CS}, {CSCALE:#x}")
    a.e(f"s_mov_b32 s{S_PER}, 0")
    g0, g1 = o["kg0"], o["kg1"]
    idle(a, "Ai0", g0 + 1)
    a_burst(a, o, 0, S_K, S_OK)
    idle(a, "Ai1", g1 - g0)
    a_burst(a, o, 1, S_K, S_OK)
    idle(a, "Ai2", 20 - g1)
    endstep(a, 9)

    a.label("L_Aper")
    for s in range(32):
        a.comment(f"A step {s}")
        vm = 3
        if s == 0:
            a.e(f"s_cmp_eq_u32 s{S_PER}, 0")
            a.branch("s_cbranch_scc1 L_A0")
            a_burst(a, o, 1, S_K, S_OK)
            for ks in range(6):
                a.e(f"ds_read_b128 {v(AQ+4*ks,4)}, v{A_XQ+(ks&1)} offset:{(ks>>1)*128}")
            a_owrite(a)
            a.branch("s_branch L_A0j")
            a.label("L_A0")
            for ks in range(6):
                a.e(f"ds_read_b128 {v(AQ+4*ks,4)}, v{A_XQ+(ks&1)} offset:{(ks>>1)*128}")
            a.label("L_A0j")
            vm = 6
        elif s % 2 == 0:
            vm = 6
            if s == 2 and o["pf"]:
                a.e(f"s_cmp_lt_u32 s33, 2")
                a.e(f"s_cselect_b32 s{S_T}, 2, 4")
                a.e(f"s_cmp_lt_u32 s{S_PER}, s{S_T}")
                a.e(f"s_cselect_b32 s{S_PFO}, s{S_PFO}, {OOB}")
                a_touch(a, o)
                vm = 7
            if s == 30:
                a.e(f"s_cmp_eq_u32 s{S_PER}, 3")
                a.e(f"s_cselect_b32 s{S_OK}, {OOB}, s{S_OK}")
            D = ((s >> 1) + 1) & 1
            if s < 14 or s == 30: a_burst(a, o, D, S_K, S_OK)
            else: a_burst(a, o, D, S_V, S_OV)
        if s < 16: a_kstep(a, o, s)
        else: a_vstep(a, o, s - 16)
        endstep(a, vm)
    a.e(f"s_add_u32 s{S_PER}, s{S_PER}, 1")
    a.e(f"s_cmp_lt_u32 s{S_PER}, 4")
    a.branch("s_cbranch_scc1 L_Aper")
    a_owrite(a)
    endstep(a, 0)


def gen_reduce(a, o):
    a.raw(f".globl red_kernel\n.p2align 8\n.type red_kernel,@function\nred_kernel:")
    a.e("s_cmp_ge_u32 s2, 640")
    a.e("s_cbranch_scc1 L_rend")
    a.e("s_load_dwordx2 s[4:5], s[0:1], 96")
    a.e("s_load_dwordx2 s[6:7], s[0:1], 80")
    a.e("v_lshrrev_b32 v1, 6, v0")
    a.e("v_and_b32 v0, 63, v0")
    a.e("v_readfirstlane_b32 s3, v1")
    a.e("s_lshl_b32 s16, s2, 2")
    a.e("s_add_u32 s16, s16, s3")
    a.e("s_mul_i32 s17, s16, 52429")
    a.e("s_lshr_b32 s17, s17, 22")
    a.e("s_mul_i32 s18, s17, 80")
    a.e("s_sub_u32 s18, s16, s18")
    a.e("s_mul_i32 s19, s17, 655360")
    a.e("s_lshl_b32 s20, s18, 10")
    a.e("s_add_u32 s19, s19, s20")
    a.e("v_lshlrev_b32 v1, 4, v0")
    a.e("s_waitcnt lgkmcnt(0)")
    srd(a, 8, 4, 64 << 20); srd(a, 12, 6, 2621440)
    for i in range(8):
        a.e(f"buffer_load_dwordx4 {v(8+4*i,4)}, v1, s[8:11], s19 offen{pol(o['ldpol'])}")
        if i < 7: a.e("s_add_u32 s19, s19, 81920")
    a.e("s_cmp_ge_u32 s18, 40")
    a.e("s_cselect_b32 s21, 32, 0")
    a.e("s_cselect_b32 s22, 40, 0")
    a.e("s_sub_u32 s18, s18, s22")
    a.e("s_and_b32 s22, s17, 15")
    a.e("s_lshl_b32 s22, s22, 6")
    a.e("s_add_u32 s22, s22, s21")
    a.e("s_mul_i32 s22, s22, 2560")
    a.e("s_lshr_b32 s23, s17, 4")
    a.e("s_mul_i32 s23, s23, 1280")
    a.e("s_add_u32 s22, s22, s23")
    a.e("s_lshl_b32 s18, s18, 5")
    a.e("s_add_u32 s22, s22, s18")
    a.e("v_and_b32 v2, 31, v0")
    a.e("v_mul_u32_u24 v2, 2560, v2")
    a.e("v_lshrrev_b32 v3, 5, v0")
    a.e("v_lshl_add_u32 v2, v3, 4, v2")
    for i in range(8):
        a.e(f"s_waitcnt vmcnt({7-i})")
        for k in range(4):
            r = 8 + 4 * i + k
            if i == 0:
                a.e(f"v_lshlrev_b32 v{40+2*k}, 16, v{r}")
                a.e(f"v_and_b32 v{41+2*k}, 0xffff0000, v{r}")
            else:
                a.e(f"v_lshlrev_b32 v4, 16, v{r}")
                a.e(f"v_and_b32 v5, 0xffff0000, v{r}")
                a.e(f"v_add_f32 v{40+2*k}, v{40+2*k}, v4")
                a.e(f"v_add_f32 v{41+2*k}, v{41+2*k}, v5")
    for k in range(4): a.e(f"v_cvt_pk_bf16_f32 v{8+k}, v{40+2*k}, v{41+2*k}")
    a.e("buffer_store_dwordx4 v[8:11], v2, s[12:15], s22 offen")
    a.label("L_rend")
    a.e("s_endpgm")


def desc(name, vgpr, sgpr):
    return f""".amdhsa_kernel {name}
  .amdhsa_next_free_vgpr {vgpr}
  .amdhsa_next_free_sgpr {sgpr}
  .amdhsa_accum_offset {vgpr}
  .amdhsa_group_segment_fixed_size 0
  .amdhsa_kernarg_size 104
  .amdhsa_user_sgpr_count 2
  .amdhsa_user_sgpr_kernarg_segment_ptr 1
  .amdhsa_system_sgpr_workgroup_id_x 1
.end_amdhsa_kernel
"""


def gen(**kw):
    o = dict(DEFAULTS); o.update(kw)
    a = Asm()
    if o["stamps"]: a.raw("; stamps=2048 @0x2000000")
    a.raw(f"; @launch kernel=main_kernel grid=(256,1,1) block=(512,1,1) lds={LDS}")
    a.raw(f"; @launch kernel=red_kernel grid=(640,1,1) block=(256,1,1) lds=0")
    a.raw('.amdgcn_target "amdgcn-amd-amdhsa--gfx950"\n.text')
    gen_main(a, o)
    gen_reduce(a, o)
    a.raw('.section .rodata,"a"\n.p2align 6')
    a.raw(desc("main_kernel", 256, 96))
    a.raw(".p2align 6")
    a.raw(desc("red_kernel", 64, 32))
    return a.text()


if __name__ == "__main__":
    out = sys.argv[1]
    kw = {}
    for x in sys.argv[2:]:
        k, val = x.split("=")
        kw[k] = int(val) if val.lstrip("-").isdigit() else val.replace("+", " ")
    open(out, "w").write(gen(**kw))
```

```python
import sys, math, struct
from asmlib import Asm

NAME = "concat_heads__gqa_block_cached__gqa_block_cached__near_ridge"
KVB, WB, XB, LDS = 0, 49152, 131072, 155648
KV_BYTES, W_BYTES, X_BYTES = 100663296, 7864320, 1310720
OOB = 0x40000000
CSCALE = struct.unpack("<I", struct.pack("<f", math.log2(math.e) / math.sqrt(192.0)))[0]

DEFAULTS = dict(kvpol="nt", wpol="", pfpol="", xpol="", stpol="", ldpol="", pf=1, kg0=6, kg1=12, stamps=0, prio=0,
                adepth=6, pdepth=4, red=1, kvx=0, wshort=0, pdma=0, drop='', nact=256, t1=1)


def v(a, n=1):
    return f"v{a}" if n == 1 else f"v[{a}:{a+n-1}]"


def srd(a, base, src, size):
    a.e(f"s_mov_b32 s{base}, s{src}")
    a.e(f"s_and_b32 s{base+1}, s{src+1}, 0xffff")
    a.e(f"s_mov_b32 s{base+2}, {size}")
    a.e(f"s_mov_b32 s{base+3}, 0x20000")


def pipe(a, reads, mfmas, fill, depth):
    n = len(mfmas)
    for i in range(min(depth, n)):
        for t in reads[i]: a.e(t)
    done = 0
    for i in range(n):
        a.e(mfmas[i])
        if i + depth < n:
            for t in reads[i + depth]: a.e(t)
        upto = len(fill) * (i + 1) // n
        for t in fill[done:upto]: a.e(t)
        done = upto


def div24(a, dst_row, dst_rem, src, tmp):
    a.e(f"v_mul_u32_u24 {tmp}, 2731, {src}")
    a.e(f"v_lshrrev_b32 {dst_row}, 16, {tmp}")
    a.e(f"v_mul_u32_u24 {tmp}, 24, {dst_row}")
    a.e(f"v_sub_u32 {dst_rem}, {src}, {tmp}")


def stamp(a, o, k):
    if o["stamps"] < 2: return
    a.e("s_waitcnt lgkmcnt(0)")
    a.e("s_memrealtime s[94:95]")
    a.e("s_waitcnt lgkmcnt(0)")
    if isinstance(k, int): a.e(f"s_mov_b32 s{70+k}, s94")
    else:
        base, reg, n = k
        for i in range(n):
            a.e(f"s_cmp_eq_u32 s{reg}, {i}")
            a.e(f"s_cselect_b32 s{70+base+i}, s94, s{70+base+i}")


def pol(s):
    return (" " + s) if s else ""


S_K, S_V, S_WQ, S_WO, S_XI, S_WS = 8, 12, 16, 20, 24, 28
S_BR, S_HG, S_B, S_W = 5, 6, 7, 33
S_HALF = 4
S_OUT, OUT_BYTES = 64, 2621440


def gen_main(a, o):
    kn = o["kname"]
    a.raw(f".globl {kn}\n.p2align 8\n.type {kn},@function\n{kn}:")
    a.e(f"s_cmp_ge_u32 s2, {o['nact']}")
    a.e("s_cbranch_scc1 L_end")
    if o["stamps"]: a.e("s_memrealtime s[90:91]")
    if o["stamps"]: a.e("s_memtime s[86:87]")
    a.e("s_load_dwordx2 s[34:35], s[0:1], 96")
    a.e("s_load_dwordx4 s[64:67], s[0:1], 80")
    a.e("s_and_b32 s3, s2, 7")
    a.e("s_lshr_b32 s4, s2, 3")
    a.e("s_lshr_b32 s5, s3, 2")
    a.e("s_and_b32 s7, s4, 15")
    a.e("s_lshr_b32 s4, s4, 4")
    a.e("s_and_b32 s6, s3, 3")
    a.e("s_lshl_b32 s6, s6, 1")
    a.e("s_add_u32 s6, s6, s4")
    a.e("s_mul_i32 s32, s5, 40")
    a.e("s_add_u32 s0, s0, s32")
    a.e("s_addc_u32 s1, s1, 0")
    a.e("s_load_dwordx2 s[36:37], s[0:1], 0")
    a.e("s_load_dwordx4 s[40:43], s[0:1], 8")
    a.e("s_load_dwordx4 s[44:47], s[0:1], 24")
    a.e("v_lshrrev_b32 v1, 6, v0")
    a.e("v_and_b32 v0, 63, v0")
    a.e("v_readfirstlane_b32 s32, v1")
    a.e("s_waitcnt lgkmcnt(0)")
    srd(a, S_K, 40, KV_BYTES); srd(a, S_V, 42, KV_BYTES); srd(a, S_WQ, 44, W_BYTES); srd(a, S_WO, 46, W_BYTES)
    srd(a, S_XI, 36, X_BYTES); srd(a, S_WS, 34, 64 << 20)
    a.e("s_mov_b32 s38, s66"); a.e("s_mov_b32 s39, s67")
    srd(a, S_OUT, 64, OUT_BYTES)
    if o["stamps"] >= 2:
        for i in range(16): a.e(f"s_mov_b32 s{70+i}, s90")
    a.e("s_and_b32 s33, s32, 3")
    a.e("s_cmp_ge_u32 s32, 4")
    a.branch("s_cbranch_scc1 L_A")
    gen_P(a, o)
    gen_A(a, o)
    if o["t1"]: gen_tail(a, o)
    a.label("L_fin")
    if o["stamps"]:
        a.e("s_memrealtime s[92:93]")
        a.e("s_memtime s[88:89]")
        a.e("s_waitcnt lgkmcnt(0)")
        a.e("s_sub_u32 s85, s88, s86")
        a.e("v_mov_b32 v4, s90"); a.e("v_mov_b32 v5, s91"); a.e("v_mov_b32 v6, s92"); a.e("v_mov_b32 v7, s93")
        a.e("s_lshl_b32 s40, s2, 3"); a.e("s_add_u32 s40, s40, s32"); a.e("s_lshl_b32 s40, s40, 4")
        a.e("s_add_u32 s40, s40, 0x2000000")
        a.e("v_mov_b32 v1, 0")
        a.e(f"buffer_store_dwordx4 v[4:7], v1, s[{S_WS}:{S_WS+3}], s40 offen")
        if o["stamps"] >= 2:
            a.e("s_lshl_b32 s40, s2, 3"); a.e("s_add_u32 s40, s40, s32"); a.e("s_lshl_b32 s40, s40, 6")
            a.e("s_add_u32 s40, s40, 0x2100000")
            for k in range(4):
                for i in range(4): a.e(f"v_mov_b32 v{8+4*k+i}, s{70+4*k+i}")
                a.e(f"buffer_store_dwordx4 v[{8+4*k}:{11+4*k}], v1, s[{S_WS}:{S_WS+3}], s40 offen offset:{16*k}")
    a.label("L_end")
    a.e("s_endpgm")


PY, PQ, PFA, PFB = 96, 48, 24, 16
P_QW, P_VQ, P_VX, P_VO, P_AQ, P_AX, P_AO, P_T0, P_T1, P_AW = 0, 1, 4, 5, 10, 12, 13, 14, 15, 44
S_C, S_MQ, S_MX, S_MO, S_OQ, S_OX, S_OO, S_T, S_P = 50, 51, 52, 53, 54, 55, 56, 57, 58


class Rec:
    def __init__(self): self.t = []
    def e(self, x): self.t.append(x)


def as_list(fn, o, D):
    r = Rec(); n = fn(r, o, D); return r.t, n


def p_burst_q(a, o, D):
    wp, xp = pol(o["wpol"]), pol(o["xpol"])
    a.e(f"s_add_u32 m0, s{S_MQ}, {D*40960}")
    a.e(f"s_add_u32 s{S_T}, s{S_OX}, {32*1280}")
    for j in range(3):
        a.e(f"buffer_load_dwordx4 v{P_VQ+j}, s[{S_WQ}:{S_WQ+3}], s{S_OQ} offen offset:{1024*j}{wp} lds")
    a.e(f"s_add_u32 m0, s{S_MX}, {D*40960}")
    a.e(f"s_add_u32 s{S_OQ}, s{S_OQ}, {32*12288}")
    a.e(f"buffer_load_dwordx4 v{P_VX}, s[{S_XI}:{S_XI+3}], s{S_OX} offen{xp} lds")
    a.e(f"s_add_u32 m0, s{S_MX}, {D*40960+4096}")
    a.e(f"s_add_u32 s{S_OX}, s{S_OX}, 128")
    a.e(f"buffer_load_dwordx4 v{P_VX}, s[{S_XI}:{S_XI+3}], s{S_T} offen{xp} lds")
    a.e(f"s_add_u32 m0, s{S_MQ}, {D*40960+20480}")
    a.e("s_nop 0")
    for j in range(3):
        a.e(f"buffer_load_dwordx4 v{P_VQ+j}, s[{S_WQ}:{S_WQ+3}], s{S_OQ} offen offset:{1024*j}{wp} lds")
    a.e(f"s_add_u32 s{S_OQ}, s{S_OQ}, {32*12288}")
    return 8


def p_burst_o(a, o, D):
    wp = pol(o["wpol"])
    for h in range(2):
        a.e(f"s_add_u32 m0, s{S_MO}, {D*40960+h*20480}")
        a.e(f"s_add_u32 s{S_T}, s{S_OO}, 4096")
        for j in range(4):
            a.e(f"buffer_load_dwordx4 v{P_VO+j}, s[{S_WO}:{S_WO+3}], s{S_OO} offen offset:{1024*j}{wp} lds")
        a.e(f"s_add_u32 m0, s{S_MO}, {D*40960+h*20480+4096}")
        a.e(f"s_add_u32 s{S_OO}, s{S_OO}, 20480")
        a.e(f"buffer_load_dwordx4 v{P_VO+4}, s[{S_WO}:{S_WO+3}], s{S_T} offen{wp} lds")
    return 10


def p_toggle(a, regs, D):
    for r in regs:
        a.e(f"v_add_u32 v{r}, 40960, v{r}" if D == 0 else f"v_subrev_u32 v{r}, 40960, v{r}")


def p_qstep(a, o, qs, fill=()):
    h = qs & 1
    nb = o["pdepth"] + 1
    for ks in range(2):
        k4 = 2 * h + ks
        if k4:
            a.e(f"v_xor_b32 v{P_T0+ks}, {32*k4}, v{P_AX}")
            a.e(f"ds_read_b128 {v(PFB+4*ks,4)}, v{P_T0+ks}")
        else:
            a.e(f"ds_read_b128 {v(PFB,4)}, v{P_AX}")
    reads, mf = [], []
    i = 0
    for ks in range(2):
        for db in range(3):
            f = PFA + 4 * (i % nb)
            off = h * 20480 + ks * 6144 + (db >> 1) * 128
            reads.append([f"ds_read_b64_tr_b16 {v(f,2)}, v{P_AQ+(db&1)} offset:{off}",
                          f"ds_read_b64_tr_b16 {v(f+2,2)}, v{P_AQ+(db&1)} offset:{off+1536}"])
            acc = v(PQ + 16 * db, 16)
            c = "0" if (qs == 0 and ks == 0) else acc
            mf.append(f"v_mfma_f32_32x32x16_bf16 {acc}, {v(f,4)}, {v(PFB+4*ks,4)}, {c}")
            i += 1
    pipe(a, reads, mf, list(fill), o["pdepth"])
    if h: p_toggle(a, [P_AQ, P_AQ + 1, P_AX], (qs >> 1) & 1)


def p_ostep(a, o, s, fill=()):
    h = s & 1
    nb = o["pdepth"] + 1
    fb = PFB + 4 * h
    if s & 3:
        a.e(f"v_xor_b32 v{P_T0}, {32*(s&3)}, v{P_AO}")
        a.e(f"ds_read_b128 {v(fb,4)}, v{P_T0} offset:{(s>>2)*128}")
    else:
        a.e(f"ds_read_b128 {v(fb,4)}, v{P_AO} offset:{(s>>2)*128}")
    reads, mf = [], []
    for i in range(10):
        f = PFA + 4 * (i % nb)
        off = h * 20480 + (i >> 2) * 256
        reads.append([f"ds_read_b64_tr_b16 {v(f,2)}, v{P_AW+(i&3)} offset:{off}",
                      f"ds_read_b64_tr_b16 {v(f+2,2)}, v{P_AW+(i&3)} offset:{off+5120}"])
        acc = v(PY + 16 * i, 16)
        mf.append(f"v_mfma_f32_32x32x16_bf16 {acc}, {v(f,4)}, {v(fb,4)}, {acc}")
    pipe(a, reads, mf, list(fill), o["pdepth"])
    if h: p_toggle(a, [P_AW + i for i in range(4)], (s >> 1) & 1)


def p_even(a, o, step, idx, burst, D):
    t, n = as_list(burst, o, D)
    if o["pdma"] == 1:
        for x in t: a.e(x)
        step(a, o, idx)
    elif o["pdma"] == 2: step(a, o, idx, t)
    else:
        step(a, o, idx)
        for x in t: a.e(x)
    endstep(a, (3 if n == 8 else 5) if o["wshort"] else n)


def endstep(a, vm=None):
    if vm is None: a.e("s_waitcnt lgkmcnt(0)")
    else: a.e(f"s_waitcnt vmcnt({vm}) lgkmcnt(0)")
    a.e("s_barrier")


def p_next_head(a):
    a.e(f"s_add_u32 s{S_OQ}, s{S_OQ}, {(384 - 640*12288) & 0xffffffff}")
    a.e(f"s_sub_u32 s{S_OX}, s{S_OX}, 1280")


def p_choice(a, o, tag, D, cond, first, second):
    for t in cond: a.e(t)
    a.branch(f"s_cbranch_scc1 L_{tag}_b")
    n = first()
    a.e(f"s_waitcnt vmcnt({n})")
    a.branch(f"s_branch L_{tag}_j")
    a.label(f"L_{tag}_b")
    n = second()
    a.e(f"s_waitcnt vmcnt({n})")
    a.label(f"L_{tag}_j")
    endstep(a)


def idle(a, tag, n):
    a.e(f"s_mov_b32 s{S_T}, {n}")
    a.label(f"L_{tag}")
    a.e("s_barrier")
    a.e(f"s_sub_u32 s{S_T}, s{S_T}, 1")
    a.e(f"s_cmp_lg_u32 s{S_T}, 0")
    a.branch(f"s_cbranch_scc1 L_{tag}")


def gen_P(a, o):
    a.comment("projection waves: wave w = (qb, hf)")
    if o["prio"] == 1: a.e("s_setprio 1")
    a.e("s_lshr_b32 s48, s33, 1")
    a.e("s_and_b32 s49, s33, 1")
    T0, T1, T2, T3, T4 = "v20", "v21", "v22", "v23", "v19"
    for j in range(3):
        a.e(f"v_add_u32 {T0}, {64*j}, v0")
        div24(a, T1, T2, T0, T3)
        a.e(f"v_and_b32 {T3}, 2, {T1}")
        a.e(f"v_lshlrev_b32 {T3}, 1, {T3}")
        a.e(f"v_xor_b32 {T2}, {T2}, {T3}")
        a.e(f"v_mul_u32_u24 {T1}, 12288, {T1}")
        a.e(f"v_lshl_add_u32 {T1}, {T2}, 4, {T1}")
        a.e(f"v_subrev_u32 v{P_VQ+j}, {1024*j}, {T1}")
    a.e(f"s_lshl_b32 s{S_T}, s49, 2")
    a.e(f"v_lshrrev_b32 {T0}, 4, v0")
    a.e(f"v_or_b32 {T0}, s{S_T}, {T0}")
    a.e(f"v_and_b32 {T1}, 7, v0")
    a.e(f"v_xor_b32 {T0}, {T0}, {T1}")
    a.e(f"v_lshrrev_b32 {T1}, 3, v0")
    a.e(f"v_mul_u32_u24 {T1}, 1280, {T1}")
    a.e(f"v_lshl_add_u32 v{P_VX}, {T0}, 4, {T1}")
    for j in range(5):
        a.e(f"v_add_u32 {T0}, {64*j}, v0")
        a.e(f"v_mul_u32_u24 {T0}, 820, {T0}")
        a.e(f"v_lshrrev_b32 {T0}, 16, {T0}")
        a.e(f"v_lshlrev_b32 {T0}, 2, {T0}")
        a.e(f"v_xor_b32 {T0}, {T0}, v0")
        a.e(f"v_lshlrev_b32 v{P_VO+j}, 4, {T0}")
    a.e(f"v_lshrrev_b32 {T0}, 5, v0")
    a.e(f"v_bfe_u32 {T1}, v0, 2, 2")
    a.e(f"v_lshl_add_u32 {T2}, {T0}, 3, {T1}")
    a.e(f"v_bfe_u32 {T3}, v0, 4, 1")
    a.e(f"v_bfe_u32 {T4}, v0, 1, 1")
    a.e(f"v_lshl_add_u32 {T3}, {T3}, 1, {T4}")
    a.e(f"v_and_b32 v18, 1, v0")
    a.e(f"v_lshlrev_b32 v18, 3, v18")
    for db in range(2):
        a.e(f"s_mul_i32 s{S_T}, s49, 12")
        a.e(f"s_add_u32 s{S_T}, s{S_T}, {4*db}")
        a.e(f"v_add_u32 v16, s{S_T}, {T3}")
        a.e(f"v_and_b32 v17, 2, {T1}")
        a.e(f"v_lshlrev_b32 v17, 1, v17")
        a.e(f"v_xor_b32 v16, v16, v17")
        a.e(f"v_lshl_add_u32 v16, v16, 4, v18")
        a.e(f"v_mul_u32_u24 v17, 384, {T2}")
        a.e(f"v_add_u32 v16, v16, v17")
        a.e(f"v_add_u32 v{P_AQ+db}, {WB}, v16")
    for i in range(4):
        a.e(f"s_mul_i32 s{S_T}, s49, 40")
        a.e(f"s_add_u32 s{S_T}, s{S_T}, {4*i}")
        a.e(f"v_add_u32 v16, s{S_T}, {T3}")
        a.e(f"v_lshlrev_b32 v17, 2, {T1}")
        a.e(f"v_xor_b32 v16, v16, v17")
        a.e(f"v_lshl_add_u32 v16, v16, 4, v18")
        a.e(f"v_mul_u32_u24 v17, 1280, {T2}")
        a.e(f"v_add_u32 v16, v16, v17")
        a.e(f"v_add_u32 v{P_AW+i}, {WB}, v16")
    a.e(f"s_lshl_b32 s{S_T}, s48, 5")
    a.e(f"v_and_b32 {T1}, 31, v0")
    a.e(f"v_add_u32 {T2}, s{S_T}, {T1}")
    a.e(f"v_bfe_u32 {T3}, {T1}, 1, 3")
    a.e(f"v_xor_b32 {T3}, {T3}, {T0}")
    a.e(f"v_lshlrev_b32 {T3}, 4, {T3}")
    a.e(f"v_lshl_add_u32 {T3}, {T2}, 7, {T3}")
    a.e(f"v_add_u32 v{P_AX}, {WB+32768}, {T3}")
    a.e(f"v_mul_u32_u24 {T2}, 384, {T2}")
    a.e(f"v_add_u32 {T2}, {XB}, {T2}")
    a.e(f"v_and_b32 {T1}, 6, {T1}")
    a.e(f"v_xor_b32 {T3}, {T1}, {T0}")
    a.e(f"v_lshl_add_u32 v{P_AO}, {T3}, 4, {T2}")
    a.e(f"v_lshl_add_u32 {T2}, {T1}, 4, {T2}")
    a.e(f"v_lshl_add_u32 v{P_QW}, {T0}, 3, {T2}")
    a.e(f"s_mul_i32 s{S_MQ}, s33, 3072");  a.e(f"s_add_u32 s{S_MQ}, s{S_MQ}, {WB}")
    a.e(f"s_lshl_b32 s{S_MX}, s33, 10");   a.e(f"s_add_u32 s{S_MX}, s{S_MX}, {WB+32768}")
    a.e(f"s_mul_i32 s{S_MO}, s33, 5120");  a.e(f"s_add_u32 s{S_MO}, s{S_MO}, {WB}")
    a.e(f"s_mul_i32 s{S_OQ}, s{S_HG}, 1536"); a.e(f"s_mul_i32 s{S_T}, s33, {8*12288}"); a.e(f"s_add_u32 s{S_OQ}, s{S_OQ}, s{S_T}")
    a.e(f"s_mul_i32 s{S_OX}, s{S_B}, 81920"); a.e(f"s_mul_i32 s{S_T}, s33, {8*1280}"); a.e(f"s_add_u32 s{S_OX}, s{S_OX}, s{S_T}")
    a.e(f"s_mul_i32 s{S_OO}, s{S_HG}, {4*245760}"); a.e(f"s_mul_i32 s{S_T}, s33, 5120"); a.e(f"s_add_u32 s{S_OO}, s{S_OO}, s{S_T}")
    p_burst_q(a, o, 0)
    for i in range(160): a.e(f"v_mov_b32 v{PY+i}, 0")
    a.e(f"s_mov_b32 s{S_C}, 0")
    endstep(a, 3)
    stamp(a, o, 1)
    a.branch("s_branch L_PQa")

    a.label("L_Pcyc")
    for i in range(24):
        a.e(f"v_cvt_pk_bf16_f32 v{PQ+i}, v{PQ+2*i}, v{PQ+2*i+1}")
    for db in range(3):
        for jj in range(4):
            a.e(f"s_mul_i32 s{S_T}, s49, 12")
            a.e(f"s_add_u32 s{S_T}, s{S_T}, {4*db+jj}")
            a.e(f"s_and_b32 s59, s{S_T}, 7")
            a.e(f"s_lshl_b32 s59, s59, 4")
            a.e(f"s_lshr_b32 s{S_T}, s{S_T}, 3")
            a.e(f"s_lshl_b32 s{S_T}, s{S_T}, 7")
            t = P_T0 + (jj & 1)
            a.e(f"v_xor_b32 v{t}, s59, v{P_QW}")
            a.e(f"v_add_u32 v{t}, s{S_T}, v{t}")
            a.e(f"ds_write_b64 v{t}, {v(PQ+8*db+2*jj,2)}")
    a.e("s_waitcnt lgkmcnt(0)")
    a.e(f"s_cmp_eq_u32 s{S_C}, 4")
    a.branch("s_cbranch_scc0 L_PQa")
    idle(a, "Pi4", 4)
    a.branch("s_branch L_PO")

    a.label("L_PQa")
    odd = lambda n: 0 if o["wshort"] else n
    for qs in range(4):
        if qs == 0:
            p_even(a, o, p_qstep, 0, p_burst_q, 1); continue
        p_qstep(a, o, qs)
        if qs == 2:
            p_choice(a, o, "Pa", 0, [f"s_cmp_ge_u32 s{S_C}, 2"], lambda: p_burst_q(a, o, 0), lambda: p_burst_o(a, o, 0))
        else: endstep(a, odd(3))
    a.e(f"s_cmp_eq_u32 s{S_C}, 0")
    a.branch("s_cbranch_scc1 L_PQb")
    a.e(f"s_cmp_ge_u32 s{S_C}, 2")
    a.branch("s_cbranch_scc1 L_PO")
    idle(a, "Pi12", 12)
    a.branch("s_branch L_PQb")

    a.label("L_PO")
    stamp(a, o, (2, S_C, 6))
    for s in range(12):
        if s < 10 and s % 2 == 0:
            p_even(a, o, p_ostep, s, p_burst_o, ((s >> 1) + 1) & 1); continue
        p_ostep(a, o, s)
        if s == 10:
            a.e(f"s_cmp_eq_u32 s{S_C}, 5")
            a.branch("s_cbranch_scc0 L_Po_more")
            endstep(a, 0)
            a.branch("s_branch L_Po_last")
            a.label("L_Po_more")
            p_choice(a, o, "Po", 0, [f"s_cmp_eq_u32 s{S_C}, 4"], lambda: p_burst_q(a, o, 0), lambda: p_burst_o(a, o, 0))
            a.label("L_Po_last")
        elif s == 11: endstep(a, odd(3))
        else: endstep(a, odd(5))
    a.e(f"s_cmp_lt_u32 s{S_C}, 4")
    a.branch("s_cbranch_scc1 L_PQb")
    a.e(f"s_cmp_eq_u32 s{S_C}, 5")
    a.branch("s_cbranch_scc1 L_Ptail")
    idle(a, "Pi18", 18)
    a.e(f"s_mov_b32 s{S_C}, 5")
    a.branch("s_branch L_PO")

    a.label("L_PQb")
    for qs in range(4, 20):
        if qs < 18 and qs % 2 == 0:
            p_even(a, o, p_qstep, qs, p_burst_q, ((qs >> 1) + 1) & 1); continue
        p_qstep(a, o, qs)
        if qs == 18:
            p_next_head(a)
            p_choice(a, o, "Pb", 0, [f"s_cmp_eq_u32 s{S_C}, 3"], lambda: p_burst_q(a, o, 0), lambda: p_burst_o(a, o, 0))
        else: endstep(a, odd(3))
    a.e(f"s_add_u32 s{S_C}, s{S_C}, 1")
    a.branch("s_branch L_Pcyc")

    a.label("L_Ptail")
    stamp(a, o, 8)
    a.e(f"v_mbcnt_lo_u32_b32 v1, -1, 0")
    a.e(f"v_mbcnt_hi_u32_b32 v1, -1, v1")
    a.e(f"v_lshlrev_b32 v1, 4, v1")
    a.e(f"s_lshl_b32 s{S_P}, s{S_BR}, 4"); a.e(f"s_add_u32 s{S_P}, s{S_P}, s{S_B}")
    a.e(f"s_lshl_b32 s{S_P}, s{S_P}, 3"); a.e(f"s_add_u32 s{S_P}, s{S_P}, s{S_HG}")
    a.e(f"s_lshl_b32 s{S_P}, s{S_P}, 2"); a.e(f"s_add_u32 s{S_P}, s{S_P}, s33")
    a.e(f"s_mul_i32 s{S_P}, s{S_P}, 20480")
    for i in range(10):
        y = PY + 16 * i
        d = 16 + 8 * (i & 1)
        for k in range(8):
            a.e(f"v_cvt_pk_bf16_f32 v{d+k}, v{y+2*k}, v{y+2*k+1}")
        for t in range(2):
            a.e(f"v_permlane32_swap_b32 v{d+4*t}, v{d+4*t+2}")
            a.e(f"v_permlane32_swap_b32 v{d+4*t+1}, v{d+4*t+3}")
        for t in range(2):
            a.e(f"buffer_store_dwordx4 {v(d+4*t,4)}, v1, s[{S_WS}:{S_WS+3}], s{S_P} offen offset:{(i&1)*2048+t*1024}{pol(o['stpol'])}")
        if i & 1: a.e(f"s_add_u32 s{S_P}, s{S_P}, 4096")
    if o["t1"]:
        a.e("s_waitcnt vmcnt(0)")
        a.branch("s_branch L_red")
    else: a.branch("s_branch L_fin")


AS, AO, AQ, AF = 128, 80, 56, 24
A_VD, A_AK, A_AV, A_M, A_L, A_MC, A_T0, A_T1, A_R, A_PF, A_DUM, A_XQ, A_XO = 1, 4, 6, 10, 11, 12, 13, 14, 15, 16, 17, 18, 20
S_PER, S_MK, S_OK, S_OV, S_CS, S_PFO, S_PFS, S_PFL = 50, 51, 52, 53, 54, 55, 56, 58
S_PF = 60


def a_burst(a, o, D, srdreg, off):
    kp = pol(o["kvpol"])
    for h in range(2):
        a.e(f"s_add_u32 m0, s{S_MK}, {D*24576+h*12288}")
        if h: a.e(f"s_add_u32 s{off}, s{off}, 12288")
        else: a.e("s_nop 0")
        for j in range(3):
            a.e(f"buffer_load_dwordx4 v{A_VD+j}, s[{srdreg}:{srdreg+3}], s{off} offen offset:{1024*j}{kp} lds")
    a.e(f"s_add_u32 s{off}, s{off}, 12288")


def a_touch(a, o):
    a.e(f"buffer_load_dword v{A_DUM}, v{A_PF}, s[{S_PF}:{S_PF+3}], s{S_PFO} offen{pol(o['pfpol'])}")
    a.e(f"s_add_u32 s{S_PFO}, s{S_PFO}, s{S_PFS}")


def xlane(a, reg, op):
    for sw in ("v_permlane32_swap_b32", "v_permlane16_swap_b32"):
        a.e(f"v_mov_b32 v{A_T0}, v{reg}")
        a.e(f"{sw} v{reg}, v{A_T0}")
        a.e(f"{op} v{reg}, v{reg}, v{A_T0}")


def soft_chunk(j):
    b = AS + 8 * j
    t = []
    for i in range(8): t.append(f"v_fma_f32 v{b+i}, v{b+i}, s{S_CS}, -v{A_MC}")
    for i in range(8): t.append(f"v_exp_f32 v{b+i}, v{b+i}")
    for i in range(8):
        if j == 0 and i == 0: t.append(f"v_mov_b32 v{A_L}, v{b}")
        else: t.append(f"v_add_f32 v{A_L}, v{A_L}, v{b+i}")
    for i in range(4): t.append(f"v_cvt_pk_bf16_f32 v{b+i}, v{b+2*i}, v{b+2*i+1}")
    return t


def max_chunk(s):
    b = AS + 8 * s
    t = []
    for i in range(4):
        if s == 0 and i == 0: t.append(f"v_max_f32 v{A_M}, v{b}, v{b+1}")
        else: t.append(f"v_max3_f32 v{A_M}, v{A_M}, v{b+2*i}, v{b+2*i+1}")
    return t


def a_owrite(a):
    xlane(a, A_L, "v_add_f32")
    a.e(f"v_rcp_f32 v{A_R}, v{A_L}")
    for db in range(12):
        r = AO + 4 * db
        for i in range(4): a.e(f"v_mul_f32 v{r+i}, v{r+i}, v{A_R}")
        a.e(f"v_cvt_pk_bf16_f32 v{r}, v{r}, v{r+1}")
        a.e(f"v_cvt_pk_bf16_f32 v{r+1}, v{r+2}, v{r+3}")
        if db & 3:
            a.e(f"v_xor_b32 v{A_T0+(db&1)}, {32*(db&3)}, v{A_XO}")
            a.e(f"ds_write_b64 v{A_T0+(db&1)}, {v(r,2)} offset:{(db>>2)*128}")
        else:
            a.e(f"ds_write_b64 v{A_XO}, {v(r,2)} offset:{(db>>2)*128}")


def a_kstep(a, o, s):
    nb = 8
    reads, mf = [], []
    i = 0
    for kb in range(2):
        for ks in range(6):
            f = AF + 4 * (i % nb)
            off = (s & 3) * 12288 + kb * 6144 + (ks >> 1) * 128
            reads.append([f"ds_read_b128 {v(f,4)}, v{A_AK+(ks&1)} offset:{off}"])
            acc = v(AS + 8 * s + 4 * kb, 4)
            mf.append(f"v_mfma_f32_16x16x32_bf16 {acc}, {v(f,4)}, {v(AQ+4*ks,4)}, {'0' if ks == 0 else acc}")
            i += 1
    pipe(a, reads, mf, max_chunk(s - 1) if s else [], o["adepth"])


def a_vstep(a, o, j):
    nb = 8
    s = 16 + j
    reads, mf = [], []
    for db in range(12):
        f = AF + 4 * (db % nb)
        off = (s & 3) * 12288 + (db >> 2) * 128
        reads.append([f"ds_read_b64_tr_b16 {v(f,2)}, v{A_AV+(db&3)} offset:{off}",
                      f"ds_read_b64_tr_b16 {v(f+2,2)}, v{A_AV+(db&3)} offset:{off+6144}"])
        acc = v(AO + 4 * db, 4)
        mf.append(f"v_mfma_f32_16x16x32_bf16 {acc}, {v(f,4)}, {v(AS+8*j,4)}, {'0' if j == 0 else acc}")
    if j == 0:
        for t in reads[0] + reads[1] + reads[2] + reads[3]: a.e(t)
        reads[0:4] = [[], [], [], []]
        for t in max_chunk(15): a.e(t)
        xlane(a, A_M, "v_max_f32")
        a.e(f"v_mul_f32 v{A_MC}, s{S_CS}, v{A_M}")
        for t in soft_chunk(0): a.e(t)
    pipe(a, reads, mf, soft_chunk(j + 1) if j < 15 else [], o["adepth"])


def gen_A(a, o):
    a.label("L_A")
    if o["prio"] == 2: a.e("s_setprio 1")
    T0, T1, T2, T3 = "v24", "v25", "v26", "v27"
    a.e(f"s_and_b32 s{S_T}, s33, 1")
    a.e(f"s_lshl_b32 s{S_T}, s{S_T}, 6")
    a.e(f"v_add_u32 {T0}, s{S_T}, v0")
    a.e(f"v_mul_u32_u24 {T1}, 21846, {T0}")
    a.e(f"v_lshrrev_b32 {T1}, 16, {T1}")
    a.e(f"v_mul_u32_u24 {T2}, 3, {T1}")
    a.e(f"v_sub_u32 {T2}, {T0}, {T2}")
    a.e(f"v_mul_u32_u24 {T1}, 12288, {T1}")
    a.e(f"v_lshl_add_u32 {T1}, {T2}, 7, {T1}")
    a.e(f"v_lshlrev_b32 {T2}, 7, {T0}")
    a.e(f"s_cmp_ge_u32 s33, 2")
    a.e(f"s_cselect_b64 vcc, -1, 0")
    a.e(f"s_cselect_b32 s{S_PF}, s{S_WO}, s{S_WQ}")
    a.e(f"s_cselect_b32 s{S_PF+1}, s{S_WO+1}, s{S_WQ+1}")
    a.e(f"s_mov_b32 s{S_PFS}, 384")
    a.e(f"s_mov_b32 s{S_T}, {40*12288}")
    a.e(f"s_cselect_b32 s{S_PFS}, 245760, s{S_PFS}")
    a.e(f"s_cselect_b32 s{S_T}, 15360, s{S_T}")
    a.e(f"s_mov_b32 s{S_PF+2}, {W_BYTES}")
    a.e(f"s_mov_b32 s{S_PF+3}, 0x20000")
    a.e(f"v_cndmask_b32 {T1}, {T1}, {T2}, vcc")
    a.e(f"v_mov_b32 {T2}, {OOB}")
    a.e(f"v_cmp_gt_u32 vcc, 120, {T0}")
    a.e(f"v_cndmask_b32 v{A_PF}, {T2}, {T1}, vcc")
    a.e(f"s_mul_i32 s{S_PFO}, s{S_T}, s{S_B}")
    a.e(f"s_mul_i32 s{S_T}, s{S_PFS}, s{S_HG}")
    a.e(f"s_lshl_b32 s{S_T}, s{S_T}, 2")
    a.e(f"s_add_u32 s{S_PFO}, s{S_PFO}, s{S_T}")
    if o["pf"]:
        a.e("s_cmp_ge_u32 s33, 2")
        a.branch("s_cbranch_scc1 L_Apx")
        a_touch(a, o); a_touch(a, o)
        a.branch("s_branch L_Apj")
        a.label("L_Apx")
        a.e(f"s_mul_i32 s{S_T}, s{S_B}, 81920")
        a.e(f"s_mul_i32 s59, s{S_HALF}, 40960"); a.e(f"s_add_u32 s{S_T}, s{S_T}, s59")
        a.e(f"s_and_b32 s59, s33, 1"); a.e(f"s_mul_i32 s59, s59, 20480"); a.e(f"s_add_u32 s{S_T}, s{S_T}, s59")
        a.e(f"v_lshlrev_b32 {T0}, 7, v0")
        a.e(f"v_mov_b32 {T2}, {OOB}")
        a.e(f"v_cmp_gt_u32 vcc, 32, v0")
        a.e(f"v_cndmask_b32 {T1}, {T2}, {T0}, vcc")
        for j in range(3):
            a.e(f"buffer_load_dword v{A_DUM}, {T0 if j < 2 else T1}, s[{S_XI}:{S_XI+3}], s{S_T} offen{pol(o['pfpol'])}")
            a.e(f"s_add_u32 s{S_T}, s{S_T}, 8192")
        a.label("L_Apj")
    for j in range(3):
        a.e(f"v_add_u32 {T0}, {64*j}, v0")
        div24(a, T1, T2, T0, T3)
        a.e(f"v_and_b32 {T1}, 6, {T1}")
        a.e(f"v_xor_b32 {T1}, {T1}, v0")
        a.e(f"v_lshlrev_b32 v{A_VD+j}, 4, {T1}")
    a.e(f"v_and_b32 {T0}, 15, v0")
    a.e(f"v_lshrrev_b32 {T1}, 4, v0")
    a.e(f"v_and_b32 {T2}, 6, {T0}")
    a.e(f"v_xor_b32 {T3}, {T2}, {T1}")
    a.e(f"v_mul_u32_u24 {T0}, 384, {T0}")
    a.e(f"v_lshl_add_u32 v{A_AK}, {T3}, 4, {T0}")
    a.e(f"v_xor_b32 v{A_AK+1}, 64, v{A_AK}")
    a.e(f"s_mul_i32 s{S_T}, s33, 6144"); a.e(f"s_add_u32 s{S_T}, s{S_T}, {XB}")
    a.e(f"v_add_u32 v{A_XQ}, s{S_T}, v{A_AK}")
    a.e(f"v_add_u32 v{A_XQ+1}, s{S_T}, v{A_AK+1}")
    a.e(f"v_lshrrev_b32 {T3}, 1, {T1}")
    a.e(f"v_xor_b32 {T3}, {T3}, {T2}")
    a.e(f"v_lshl_add_u32 {T3}, {T3}, 4, {T0}")
    a.e(f"v_and_b32 {T2}, 1, {T1}")
    a.e(f"v_lshl_add_u32 {T3}, {T2}, 3, {T3}")
    a.e(f"v_add_u32 v{A_XO}, s{S_T}, {T3}")
    a.e(f"v_lshrrev_b32 {T0}, 2, v0")
    a.e(f"v_and_b32 {T1}, 6, {T0}")
    a.e(f"v_bfe_u32 {T2}, v0, 1, 1")
    a.e(f"v_xor_b32 {T1}, {T1}, {T2}")
    a.e(f"v_mul_u32_u24 {T0}, 384, {T0}")
    a.e(f"v_lshl_add_u32 {T1}, {T1}, 4, {T0}")
    a.e(f"v_and_b32 {T2}, 1, v0")
    a.e(f"v_lshl_add_u32 v{A_AV}, {T2}, 3, {T1}")
    for d in range(1, 4): a.e(f"v_xor_b32 v{A_AV+d}, {32*d}, v{A_AV}")
    a.e(f"s_mul_i32 s{S_MK}, s33, 3072")
    a.e(f"s_lshl_b32 s{S_OK}, s{S_B}, 5"); a.e(f"s_lshl_b32 s{S_T}, s{S_HG}, 2"); a.e(f"s_add_u32 s{S_OK}, s{S_OK}, s{S_T}")
    a.e(f"s_mul_i32 s{S_OK}, s{S_OK}, 196608"); a.e(f"s_add_u32 s{S_OK}, s{S_OK}, s{S_MK}")
    a.e(f"s_mov_b32 s{S_OV}, s{S_OK}")
    a.e(f"s_mov_b32 s{S_CS}, {CSCALE:#x}")
    a.e(f"s_mov_b32 s{S_PER}, 0")
    g0, g1 = o["kg0"], o["kg1"]
    idle(a, "Ai0", g0 + 1)
    a_burst(a, o, 0, S_K, S_OK)
    idle(a, "Ai1", g1 - g0)
    a_burst(a, o, 1, S_K, S_OK)
    idle(a, "Ai2", 20 - g1)
    endstep(a, 9)

    a.label("L_Aper")
    stamp(a, o, (1, S_PER, 4))
    for s in range(32):
        a.comment(f"A step {s}")
        if s == 16: stamp(a, o, (5, S_PER, 4))
        vm = 3
        if s == 0:
            a.e(f"s_cmp_eq_u32 s{S_PER}, 0")
            a.branch("s_cbranch_scc1 L_A0")
            a_burst(a, o, 1, S_K, S_OK)
            for ks in range(6):
                a.e(f"ds_read_b128 {v(AQ+4*ks,4)}, v{A_XQ+(ks&1)} offset:{(ks>>1)*128}")
            a_owrite(a)
            a.branch("s_branch L_A0j")
            a.label("L_A0")
            for ks in range(6):
                a.e(f"ds_read_b128 {v(AQ+4*ks,4)}, v{A_XQ+(ks&1)} offset:{(ks>>1)*128}")
            a.label("L_A0j")
            vm = 6
        elif s % 2 == 0:
            vm = 6
            if s == 2 and o["pf"]:
                a.e(f"s_cmp_lt_u32 s33, 2")
                a.e(f"s_cselect_b32 s{S_T}, 2, 4")
                a.e(f"s_cmp_lt_u32 s{S_PER}, s{S_T}")
                a.e(f"s_cselect_b32 s{S_PFO}, s{S_PFO}, {OOB}")
                a_touch(a, o)
                vm = 7
            if s == 30:
                a.e(f"s_cmp_eq_u32 s{S_PER}, 3")
                a.e(f"s_cselect_b32 s{S_OK}, {OOB}, s{S_OK}")
            D = ((s >> 1) + 1) & 1
            if s < 14 or s == 30: a_burst(a, o, D, S_K, S_OK)
            else: a_burst(a, o, D, S_V, S_OV)
        if s < 16: a_kstep(a, o, s)
        else: a_vstep(a, o, s - 16)
        endstep(a, vm + o["kvx"])
    a.e(f"s_add_u32 s{S_PER}, s{S_PER}, 1")
    a.e(f"s_cmp_lt_u32 s{S_PER}, 4")
    a.branch("s_cbranch_scc1 L_Aper")
    stamp(a, o, 9)
    a_owrite(a)
    endstep(a, 0)
    if o["t1"]: idle(a, "Ai3", 12)


def reduce_chunk(a, o, src, srdw, rem, G, srdo):
    for i in range(8):
        a.e(f"buffer_load_dwordx4 {v(8+4*i,4)}, v1, s[{srdw}:{srdw+3}], s{src} offen{pol(o['ldpol'])}")
        if i < 7: a.e(f"s_add_u32 s{src}, s{src}, 81920")
    a.e(f"s_cmp_ge_u32 s{rem}, 40")
    a.e("s_cselect_b32 s41, 32, 0")
    a.e("s_cselect_b32 s42, 40, 0")
    a.e(f"s_sub_u32 s43, s{rem}, s42")
    a.e(f"s_and_b32 s42, s{G}, 15")
    a.e("s_lshl_b32 s42, s42, 6")
    a.e("s_add_u32 s42, s42, s41")
    a.e("s_mul_i32 s42, s42, 2560")
    a.e(f"s_lshr_b32 s41, s{G}, 4")
    a.e("s_mul_i32 s41, s41, 1280")
    a.e("s_add_u32 s42, s42, s41")
    a.e("s_lshl_b32 s43, s43, 5")
    a.e("s_add_u32 s42, s42, s43")
    a.e("v_and_b32 v2, 31, v0")
    a.e("v_mul_u32_u24 v2, 2560, v2")
    a.e("v_lshrrev_b32 v3, 5, v0")
    a.e("v_lshl_add_u32 v2, v3, 4, v2")
    for i in range(8):
        a.e(f"s_waitcnt vmcnt({7-i})")
        for k in range(4):
            r = 8 + 4 * i + k
            if i == 0:
                a.e(f"v_lshlrev_b32 v{40+2*k}, 16, v{r}")
                a.e(f"v_and_b32 v{41+2*k}, 0xffff0000, v{r}")
            else:
                a.e(f"v_lshlrev_b32 v4, 16, v{r}")
                a.e(f"v_and_b32 v5, 0xffff0000, v{r}")
                a.e(f"v_add_f32 v{40+2*k}, v{40+2*k}, v4")
                a.e(f"v_add_f32 v{41+2*k}, v{41+2*k}, v5")
    for k in range(4): a.e(f"v_cvt_pk_bf16_f32 v{48+k}, v{40+2*k}, v{41+2*k}")
    a.e(f"buffer_store_dwordx4 v[48:51], v2, s[{srdo}:{srdo+3}], s42 offen")


def gen_tail(a, o):
    a.label("L_red")
    a.e("s_barrier")
    stamp(a, o, 10)
    a.e(f"s_lshl_b32 s44, s{S_BR}, 4")
    a.e(f"s_add_u32 s44, s44, s{S_B}")
    a.e("v_mbcnt_lo_u32_b32 v0, -1, 0")
    a.e("v_mbcnt_hi_u32_b32 v0, -1, v0")
    a.e("v_lshlrev_b32 v1, 4, v0")
    a.e("s_cmp_lg_u32 s32, 0")
    a.branch("s_cbranch_scc1 L_go")
    a.e("s_lshl_b32 s45, s44, 3")
    a.e("v_mov_b32 v2, s45")
    a.e("v_mov_b32 v3, 1")
    a.e("s_mov_b64 exec, 1")
    a.e("global_atomic_add v2, v3, s[38:39]")
    a.e("s_mov_b32 s46, 0")
    a.label("L_poll")
    a.e("global_load_dword v4, v2, s[38:39] sc1")
    a.e("s_add_u32 s46, s46, 1")
    a.e("s_waitcnt vmcnt(0)")
    a.e("v_readfirstlane_b32 s47, v4")
    a.e("s_cmp_ge_u32 s47, 8")
    a.branch("s_cbranch_scc1 L_seen")
    a.e("s_cmp_lt_u32 s46, 0x20000")
    a.branch("s_cbranch_scc1 L_poll")
    a.label("L_seen")
    a.e("s_mov_b64 exec, -1")
    a.label("L_go")
    a.e("s_barrier")
    stamp(a, o, 11)
    a.e(f"s_mul_i32 s45, s{S_HG}, 10")
    a.e("s_add_u32 s45, s45, s32")
    a.label("L_task")
    a.e("s_mul_i32 s40, s44, 655360")
    a.e("s_lshl_b32 s41, s45, 10")
    a.e("s_add_u32 s40, s40, s41")
    reduce_chunk(a, o, 40, S_WS, 45, 44, S_OUT)
    a.e("s_add_u32 s45, s45, 8")
    a.e(f"s_mul_i32 s41, s{S_HG}, 10")
    a.e("s_add_u32 s41, s41, 10")
    a.e("s_cmp_lt_u32 s45, s41")
    a.e("s_waitcnt vmcnt(0)")
    a.branch("s_cbranch_scc1 L_task")


def gen_reduce(a, o):
    a.raw(f".globl red_kernel\n.p2align 8\n.type red_kernel,@function\nred_kernel:")
    a.e("s_cmp_ge_u32 s2, 640")
    a.e("s_cbranch_scc1 L_rend")
    a.e("s_load_dwordx2 s[4:5], s[0:1], 96")
    a.e("s_load_dwordx2 s[6:7], s[0:1], 80")
    a.e("v_lshrrev_b32 v1, 6, v0")
    a.e("v_and_b32 v0, 63, v0")
    a.e("v_readfirstlane_b32 s3, v1")
    a.e("s_lshl_b32 s16, s2, 2")
    a.e("s_add_u32 s16, s16, s3")
    a.e("s_mul_i32 s17, s16, 52429")
    a.e("s_lshr_b32 s17, s17, 22")
    a.e("s_mul_i32 s18, s17, 80")
    a.e("s_sub_u32 s18, s16, s18")
    a.e("s_mul_i32 s19, s17, 655360")
    a.e("s_lshl_b32 s20, s18, 10")
    a.e("s_add_u32 s19, s19, s20")
    a.e("v_lshlrev_b32 v1, 4, v0")
    a.e("s_waitcnt lgkmcnt(0)")
    srd(a, 8, 4, 64 << 20); srd(a, 12, 6, 2621440)
    for i in range(8):
        a.e(f"buffer_load_dwordx4 {v(8+4*i,4)}, v1, s[8:11], s19 offen{pol(o['ldpol'])}")
        if i < 7: a.e("s_add_u32 s19, s19, 81920")
    a.e("s_cmp_ge_u32 s18, 40")
    a.e("s_cselect_b32 s21, 32, 0")
    a.e("s_cselect_b32 s22, 40, 0")
    a.e("s_sub_u32 s18, s18, s22")
    a.e("s_and_b32 s22, s17, 15")
    a.e("s_lshl_b32 s22, s22, 6")
    a.e("s_add_u32 s22, s22, s21")
    a.e("s_mul_i32 s22, s22, 2560")
    a.e("s_lshr_b32 s23, s17, 4")
    a.e("s_mul_i32 s23, s23, 1280")
    a.e("s_add_u32 s22, s22, s23")
    a.e("s_lshl_b32 s18, s18, 5")
    a.e("s_add_u32 s22, s22, s18")
    a.e("v_and_b32 v2, 31, v0")
    a.e("v_mul_u32_u24 v2, 2560, v2")
    a.e("v_lshrrev_b32 v3, 5, v0")
    a.e("v_lshl_add_u32 v2, v3, 4, v2")
    for i in range(8):
        a.e(f"s_waitcnt vmcnt({7-i})")
        for k in range(4):
            r = 8 + 4 * i + k
            if i == 0:
                a.e(f"v_lshlrev_b32 v{40+2*k}, 16, v{r}")
                a.e(f"v_and_b32 v{41+2*k}, 0xffff0000, v{r}")
            else:
                a.e(f"v_lshlrev_b32 v4, 16, v{r}")
                a.e(f"v_and_b32 v5, 0xffff0000, v{r}")
                a.e(f"v_add_f32 v{40+2*k}, v{40+2*k}, v4")
                a.e(f"v_add_f32 v{41+2*k}, v{41+2*k}, v5")
    for k in range(4): a.e(f"v_cvt_pk_bf16_f32 v{8+k}, v{40+2*k}, v{41+2*k}")
    a.e("buffer_store_dwordx4 v[8:11], v2, s[12:15], s22 offen")
    a.label("L_rend")
    a.e("s_endpgm")


def desc(name, vgpr, sgpr):
    return f""".amdhsa_kernel {name}
  .amdhsa_next_free_vgpr {vgpr}
  .amdhsa_next_free_sgpr {sgpr}
  .amdhsa_accum_offset {vgpr}
  .amdhsa_group_segment_fixed_size 0
  .amdhsa_kernarg_size 104
  .amdhsa_user_sgpr_count 2
  .amdhsa_user_sgpr_kernarg_segment_ptr 1
  .amdhsa_system_sgpr_workgroup_id_x 1
.end_amdhsa_kernel
"""


def gen(**kw):
    o = dict(DEFAULTS); o.update(kw)
    if o["t1"]:
        o["red"] = 0
        o["stpol"] = kw.get("stpol", "sc1"); o["ldpol"] = kw.get("ldpol", "sc1")
    o["kname"] = "main_kernel" if o["red"] else NAME + "_kernel"
    a = Asm()
    if o["stamps"]: a.raw(f"; stamps={8*o['nact']} @0x2000000")
    a.raw(f"; @launch {'kernel=main_kernel ' if o['red'] else ''}grid=(256,1,1) block=(512,1,1) lds={LDS}")
    if o["red"]: a.raw(f"; @launch kernel=red_kernel grid=(640,1,1) block=(256,1,1) lds=0")
    a.raw('.amdgcn_target "amdgcn-amd-amdhsa--gfx950"\n.text')
    gen_main(a, o)
    if o["red"]: gen_reduce(a, o)
    a.raw('.section .rodata,"a"\n.p2align 6')
    a.raw(desc(o["kname"], 256, 96))
    if o["red"]:
        a.raw(".p2align 6")
        a.raw(desc("red_kernel", 64, 32))
    t = a.text()
    if o["drop"]:
        keep = []
        role = ""
        for l in t.split("\n"):
            if l.startswith("L_PQa") or l.startswith("L_Pcyc"): role = "P"
            if l.startswith("L_Ptail") or l.startswith("L_fin"): role = ""
            if l.startswith("L_A:"): role = "a"
            if l.startswith("L_Aper"): role = "A"
            x = l.strip()
            d = o["drop"]
            if "k" in d and role in ("A", "a") and x.startswith("buffer_load"): continue
            if "w" in d and role == "P" and x.startswith("buffer_load"): continue
            if "a" in d and role == "A" and x.startswith(("v_", "ds_")): continue
            if "p" in d and role == "P" and x.startswith(("v_", "ds_")): continue
            if "m" in d and role in "AP" and role and x.startswith("v_mfma"): continue
            if "r" in d and role in "AP" and role and x.startswith("ds_read"): continue
            keep.append(l)
        t = "\n".join(keep)
    return t


if __name__ == "__main__":
    out = sys.argv[1]
    kw = {}
    for x in sys.argv[2:]:
        k, val = x.split("=")
        kw[k] = int(val) if val.lstrip("-").isdigit() else val.replace("+", " ")
    open(out, "w").write(gen(**kw))
```

```python
import sys, math, struct, re
from asmlib import Asm

NAME = "concat_heads__gqa_block_cached__gqa_block_cached__near_ridge"
KN = NAME + "_kernel"
WB, XB, LDS = 49152, 131072, 155648
KV_BYTES, W_BYTES, X_BYTES, OUT_BYTES, WS_BYTES = 100663296, 7864320, 1310720, 2621440, 64 << 20
OOB = 0x40000000
FLAGS = 0x1800000
CSCALE = struct.unpack("<I", struct.pack("<f", math.log2(math.e) / math.sqrt(192.0)))[0]

DEFAULTS = dict(kvpol="nt", wpol="", pfpol="", xpol="", stpol="sc1", ldpol="sc1", outpol="", stamps=0, prio=0,
                adepth=6, pdepth=4, pdma=2, drop="", nact=256, k0=-1, k1=10, kt=8, codepf=1, pfstep=2, kvx=0, warm=65536)

S_HALF, S_BR, S_HG, S_B = 4, 5, 6, 7
S_K, S_V, S_WQ, S_WO, S_XI, S_WS, S_OUT = 8, 12, 16, 20, 24, 28, 64
S_WAVE, S_W, S_DBG, S_T, S_T2 = 32, 33, 38, 57, 59


def v(a, n=1):
    return f"v{a}" if n == 1 else f"v[{a}:{a+n-1}]"


def sq(a):
    return f"s[{a}:{a+3}]"


def pol(s):
    return (" " + s) if s else ""


class Rec:
    def __init__(self): self.t = []
    def e(self, x): self.t.append(x)


def rec(fn, *args):
    r = Rec(); fn(r, *args); return r.t


def srd(a, base, src, size):
    if src != base: a.e(f"s_mov_b32 s{base}, s{src}")
    a.e(f"s_and_b32 s{base+1}, s{src+1}, 0xffff")
    a.e(f"s_mov_b32 s{base+2}, {size}")
    a.e(f"s_mov_b32 s{base+3}, 0x20000")


def build_srds(a):
    a.e("s_waitcnt lgkmcnt(0)")
    srd(a, S_WQ, 44, W_BYTES); srd(a, S_XI, 36, X_BYTES); srd(a, S_WO, 46, W_BYTES)
    srd(a, S_K, 40, KV_BYTES); srd(a, S_V, 42, KV_BYTES); srd(a, S_WS, 34, WS_BYTES)
    a.e(f"s_mov_b32 s{S_DBG}, s66"); a.e(f"s_mov_b32 s{S_DBG+1}, s67")
    srd(a, S_OUT, 64, OUT_BYTES)


def pipe(a, reads, mfmas, fill, depth):
    n = len(mfmas)
    for i in range(min(depth, n)):
        for t in reads[i]: a.e(t)
    done = 0
    for i in range(n):
        a.e(mfmas[i])
        if i + depth < n:
            for t in reads[i + depth]: a.e(t)
        upto = len(fill) * (i + 1) // n
        for t in fill[done:upto]: a.e(t)
        done = upto


def interleave(a, chains):
    for i in range(max(map(len, chains))):
        for c in chains:
            if i < len(c): a.e(c[i])


def div24(a, dst_row, dst_rem, src, tmp):
    a.e(f"v_mul_u32_u24 {tmp}, 2731, {src}")
    a.e(f"v_lshrrev_b32 {dst_row}, 16, {tmp}")
    a.e(f"v_mul_u32_u24 {tmp}, 24, {dst_row}")
    a.e(f"v_sub_u32 {dst_rem}, {src}, {tmp}")


def stamp(a, o, k, tag=''):
    if {2: "", 3: "pro", 4: "tail", 5: "start"}.get(o["stamps"]) != tag: return
    a.e("s_waitcnt lgkmcnt(0)")
    a.e("s_memrealtime s[94:95]")
    a.e("s_waitcnt lgkmcnt(0)")
    if isinstance(k, int): a.e(f"s_mov_b32 s{70+k}, s94")
    else:
        base, reg, n = k
        for i in range(n):
            a.e(f"s_cmp_eq_u32 s{reg}, {i}")
            a.e(f"s_cselect_b32 s{70+base+i}, s94, s{70+base+i}")


def endstep(a, vm=None):
    a.e("s_waitcnt lgkmcnt(0)" if vm is None else f"s_waitcnt vmcnt({vm}) lgkmcnt(0)")
    a.e("s_barrier")


def idle(a, tag, n):
    if n <= 2:
        for _ in range(n): a.e("s_barrier")
        return
    a.e(f"s_mov_b32 s{S_T}, {n}")
    a.label(f"L_{tag}")
    a.e("s_barrier")
    a.e(f"s_sub_u32 s{S_T}, s{S_T}, 1")
    a.e(f"s_cmp_lg_u32 s{S_T}, 0")
    a.branch(f"s_cbranch_scc1 L_{tag}")


def lane_id(a, r):
    a.e(f"v_mbcnt_lo_u32_b32 v{r}, -1, 0")
    a.e(f"v_mbcnt_hi_u32_b32 v{r}, -1, v{r}")


def dma_offsets_q(a, vq, vx, t):
    chains = []
    for j in range(3):
        r = Rec()
        T0, T1, T2, T3 = (f"v{t+4*j+k}" for k in range(4))
        r.e(f"v_add_u32 {T0}, {64*j}, v0")
        div24(r, T1, T2, T0, T3)
        r.e(f"v_and_b32 {T3}, 2, {T1}")
        r.e(f"v_lshlrev_b32 {T3}, 1, {T3}")
        r.e(f"v_xor_b32 {T2}, {T2}, {T3}")
        r.e(f"v_mul_u32_u24 {T1}, 12288, {T1}")
        r.e(f"v_lshl_add_u32 {T1}, {T2}, 4, {T1}")
        r.e(f"v_subrev_u32 v{vq+j}, {1024*j}, {T1}")
        chains.append(r.t)
    T0, T1 = f"v{t+12}", f"v{t+13}"
    a.e(f"s_and_b32 s{S_T}, s{S_W}, 1")
    a.e(f"s_lshl_b32 s{S_T}, s{S_T}, 2")
    chains.append([f"v_lshrrev_b32 {T0}, 4, v0", f"v_or_b32 {T0}, s{S_T}, {T0}", f"v_and_b32 {T1}, 7, v0",
                   f"v_xor_b32 {T0}, {T0}, {T1}", f"v_lshrrev_b32 {T1}, 3, v0", f"v_mul_u32_u24 {T1}, 1280, {T1}",
                   f"v_lshl_add_u32 v{vx}, {T0}, 4, {T1}"])
    interleave(a, chains)


def wq_share(a, dst, T0, T1, T2):
    a.e(f"s_and_b32 s{S_T}, s{S_W}, 1")
    a.e(f"s_lshl_b32 s{S_T}, s{S_T}, 6")
    a.e(f"v_add_u32 {T0}, s{S_T}, v0")
    a.e(f"v_mul_u32_u24 {T1}, 21846, {T0}")
    a.e(f"v_lshrrev_b32 {T1}, 16, {T1}")
    a.e(f"v_mul_u32_u24 {T2}, 3, {T1}")
    a.e(f"v_sub_u32 {T2}, {T0}, {T2}")
    a.e(f"v_mul_u32_u24 {T1}, 12288, {T1}")
    a.e(f"v_lshl_add_u32 {dst}, {T2}, 7, {T1}")


def scalars_q(a, mq, mx, oq, ox, head):
    a.e(f"s_mul_i32 s{mq}, s{S_W}, 3072")
    a.e(f"s_lshl_b32 s{mx}, s{S_W}, 10")
    a.e(f"s_mul_i32 s{oq}, s{S_HG}, 1536")
    a.e(f"s_mul_i32 s{S_T}, s{S_W}, {8*12288}")
    a.e(f"s_add_u32 s{oq}, s{oq}, s{S_T}")
    if head: a.e(f"s_add_u32 s{oq}, s{oq}, {384*head}")
    a.e(f"s_mul_i32 s{ox}, s{S_B}, 81920")
    a.e(f"s_mul_i32 s{S_T}, s{S_W}, {8*1280}")
    a.e(f"s_add_u32 s{ox}, s{ox}, s{S_T}")


def burst_q(a, o, R, la, lx, lb):
    vq, vx, mq, mx, oq, ox = R
    wp, xp = pol(o["wpol"]), pol(o["xpol"])
    a.e(f"s_add_u32 m0, s{mq}, {la}")
    a.e(f"s_add_u32 s{S_T}, s{ox}, {32*1280}")
    for j in range(3):
        a.e(f"buffer_load_dwordx4 v{vq+j}, {sq(S_WQ)}, s{oq} offen offset:{1024*j}{wp} lds")
    a.e(f"s_add_u32 m0, s{mx}, {lx}")
    a.e(f"s_add_u32 s{oq}, s{oq}, {32*12288}")
    a.e(f"buffer_load_dwordx4 v{vx}, {sq(S_XI)}, s{ox} offen{xp} lds")
    a.e(f"s_add_u32 m0, s{mx}, {lx+4096}")
    a.e(f"s_add_u32 s{ox}, s{ox}, 128")
    a.e(f"buffer_load_dwordx4 v{vx}, {sq(S_XI)}, s{S_T} offen{xp} lds")
    a.e(f"s_add_u32 m0, s{mq}, {lb}")
    a.e("s_nop 0")
    for j in range(3):
        a.e(f"buffer_load_dwordx4 v{vq+j}, {sq(S_WQ)}, s{oq} offen offset:{1024*j}{wp} lds")
    a.e(f"s_add_u32 s{oq}, s{oq}, {32*12288}")


def tail_slot(n):
    k = n % 5
    return WB + k * 24576 if k < 3 else (k - 3) * 24576


def tail_offsets(a, vt, mt, ot, lane, T):
    T0, T1 = T
    a.e(f"v_bfe_u32 {T0}, {lane}, 4, 1")
    a.e(f"v_lshlrev_b32 {T0}, 2, {T0}")
    a.e(f"v_and_b32 {T1}, 7, {lane}")
    a.e(f"v_xor_b32 {T0}, {T0}, {T1}")
    a.e(f"v_lshrrev_b32 {T1}, 3, {lane}")
    a.e(f"v_mul_u32_u24 {T1}, 1280, {T1}")
    a.e(f"v_lshl_add_u32 v{vt}, {T0}, 4, {T1}")
    a.e(f"s_mul_i32 s{mt}, s{S_W}, 6144")
    a.e(f"s_mul_i32 s{ot}, s{S_HG}, {4*245760}")
    a.e(f"s_mul_i32 s{S_T2}, s{S_W}, {48*1280}")
    a.e(f"s_add_u32 s{ot}, s{ot}, s{S_T2}")
    a.e(f"s_add_u32 s{ot}, s{ot}, {3*245760}")


def tail_tile(a, o, vt, mt, ot, n):
    for j in range(6):
        a.e(f"s_add_u32 m0, s{mt}, {tail_slot(n) + 1024*j}")
        a.e(f"s_add_u32 s{S_T2}, s{ot}, {128*n + 8*1280*j}")
        a.e(f"buffer_load_dwordx4 v{vt}, {sq(S_WO)}, s{S_T2} offen{pol(o['wpol'])} lds")


def pro_slot(n):
    return (n + 2) % 3


PY, PQ, PFA, PFB = 96, 48, 24, 16
P_QW, P_VQ, P_VX, P_VO, P_AQ, P_AX, P_AO, P_T0, P_T1, P_AW = 0, 1, 4, 5, 10, 12, 13, 14, 15, 44
S_QB, S_HF, S_C, S_MQ, S_MX, S_MO, S_OQ, S_OX, S_OO, S_P = 48, 49, 50, 51, 52, 53, 54, 55, 56, 58
PR = (P_VQ, P_VX, S_MQ, S_MX, S_OQ, S_OX)


def p_burst_q(a, o, D):
    b = WB + D * 40960
    burst_q(a, o, PR, b, b + 32768, b + 20480)
    return 8


def p_burst_o(a, o, D):
    wp = pol(o["wpol"])
    for h in range(2):
        b = WB + D * 40960 + h * 20480
        a.e(f"s_add_u32 m0, s{S_MO}, {b}")
        a.e(f"s_add_u32 s{S_T}, s{S_OO}, 4096")
        for j in range(4):
            a.e(f"buffer_load_dwordx4 v{P_VO+j}, {sq(S_WO)}, s{S_OO} offen offset:{1024*j}{wp} lds")
        a.e(f"s_add_u32 m0, s{S_MO}, {b+4096}")
        a.e(f"s_add_u32 s{S_OO}, s{S_OO}, 20480")
        a.e(f"buffer_load_dwordx4 v{P_VO+4}, {sq(S_WO)}, s{S_T} offen{wp} lds")
    return 10


def p_toggle(a, regs, D):
    for r in regs:
        a.e(f"v_add_u32 v{r}, 40960, v{r}" if D == 0 else f"v_subrev_u32 v{r}, 40960, v{r}")


def tr_pair(f, addr, off, delta):
    return [f"ds_read_b64_tr_b16 {v(f,2)}, v{addr} offset:{off}", f"ds_read_b64_tr_b16 {v(f+2,2)}, v{addr} offset:{off+delta}"]


def mfma32(acc, fa, fb, zero=False):
    return f"v_mfma_f32_32x32x16_bf16 {v(acc,16)}, {v(fa,4)}, {v(fb,4)}, {'0' if zero else v(acc,16)}"


def p_qstep(a, o, qs, fill=()):
    h = qs & 1
    nb = o["pdepth"] + 1
    for ks in range(2):
        k4 = 2 * h + ks
        if k4:
            a.e(f"v_xor_b32 v{P_T0+ks}, {32*k4}, v{P_AX}")
            a.e(f"ds_read_b128 {v(PFB+4*ks,4)}, v{P_T0+ks}")
        else:
            a.e(f"ds_read_b128 {v(PFB,4)}, v{P_AX}")
    reads, mf = [], []
    for i in range(6):
        ks, db = divmod(i, 3)
        f = PFA + 4 * (i % nb)
        reads.append(tr_pair(f, P_AQ + (db & 1), h * 20480 + ks * 6144 + (db >> 1) * 128, 1536))
        mf.append(mfma32(PQ + 16 * db, f, PFB + 4 * ks, qs == 0 and ks == 0))
    pipe(a, reads, mf, list(fill), o["pdepth"])
    if h: p_toggle(a, [P_AQ, P_AQ + 1, P_AX], (qs >> 1) & 1)


def p_ostep(a, o, s, fill=()):
    h = s & 1
    nb = o["pdepth"] + 1
    fb = PFB + 4 * h
    if s & 3:
        a.e(f"v_xor_b32 v{P_T0}, {32*(s&3)}, v{P_AO}")
        a.e(f"ds_read_b128 {v(fb,4)}, v{P_T0} offset:{(s>>2)*128}")
    else:
        a.e(f"ds_read_b128 {v(fb,4)}, v{P_AO} offset:{(s>>2)*128}")
    reads, mf = [], []
    for i in range(10):
        f = PFA + 4 * (i % nb)
        reads.append(tr_pair(f, P_AW + (i & 1), h * 20480 + (i >> 1) * 256, 5120))
        mf.append(mfma32(PY + 16 * i, f, fb))
    pipe(a, reads, mf, list(fill), o["pdepth"])
    if h: p_toggle(a, [P_AW, P_AW + 1], (s >> 1) & 1)


def p_even(a, o, step, idx, burst, D):
    r = Rec(); n = burst(r, o, D)
    if o["pdma"] == 1:
        for x in r.t: a.e(x)
        step(a, o, idx)
    elif o["pdma"] == 2: step(a, o, idx, r.t)
    else:
        step(a, o, idx)
        for x in r.t: a.e(x)
    endstep(a, n)


def p_choice(a, tag, cond, first, second):
    a.e(cond)
    a.branch(f"s_cbranch_scc1 L_{tag}_b")
    a.e(f"s_waitcnt vmcnt({first()})")
    a.branch(f"s_branch L_{tag}_j")
    a.label(f"L_{tag}_b")
    a.e(f"s_waitcnt vmcnt({second()})")
    a.label(f"L_{tag}_j")
    endstep(a)


def p_pro_tick(a, o, n, fill):
    XF, F, AQ2, AX = 96, 112, 144, 146
    s = pro_slot(n)
    for k4 in range(4):
        a.e(f"ds_read_b128 {v(XF+4*k4,4)}, v{AX+k4-1 if k4 else P_AX} offset:{40960 + s*8192}")
    reads, mf = [], []
    for i in range(12):
        k4, db = divmod(i, 3)
        f = F + 4 * (i % 8)
        addr = (AQ2 if s == 2 else P_AQ) + (db & 1)
        reads.append(tr_pair(f, addr, (24576 if s == 1 else 0) + k4 * 6144 + (db >> 1) * 128, 1536))
        mf.append(mfma32(PQ + 16 * db, f, XF + 4 * k4, n == 0 and k4 == 0))
    pipe(a, reads, mf, fill, 5)


def p_pack_block(a, i):
    y = PY + 16 * i
    for k in range(8): a.e(f"v_cvt_pk_bf16_f32 v{y+k}, v{y+2*k}, v{y+2*k+1}")
    for t in range(2):
        a.e(f"v_permlane32_swap_b32 v{y+4*t}, v{y+4*t+2}")
        a.e(f"v_permlane32_swap_b32 v{y+4*t+1}, v{y+4*t+3}")


def p_store_block(a, o, i):
    for t in range(2):
        a.e(f"buffer_store_dwordx4 {v(PY+16*i+4*t,4)}, v1, {sq(S_WS)}, s{S_P} offen offset:{t*1024}{pol(o['stpol'])}")
    a.e(f"s_add_u32 s{S_P}, s{S_P}, 4096")


def tr_lane_parts(a, lane, HH, RR, ROW, C2, B8, T):
    a.e(f"v_lshrrev_b32 {HH}, 5, {lane}")
    a.e(f"v_bfe_u32 {RR}, {lane}, 2, 2")
    a.e(f"v_lshl_add_u32 {ROW}, {HH}, 3, {RR}")
    a.e(f"v_bfe_u32 {C2}, {lane}, 4, 1")
    a.e(f"v_bfe_u32 {T}, {lane}, 1, 1")
    a.e(f"v_lshl_add_u32 {C2}, {C2}, 1, {T}")
    a.e(f"v_and_b32 {B8}, 1, {lane}")
    a.e(f"v_lshlrev_b32 {B8}, 3, {B8}")


def gen_P(a, o):
    a.label("L_P")
    if o["prio"] == 1: a.e("s_setprio 1")
    a.e(f"s_lshr_b32 s{S_QB}, s{S_W}, 1")
    a.e(f"s_and_b32 s{S_HF}, s{S_W}, 1")
    T0, T1, T2, T3, T4 = "v20", "v21", "v22", "v23", "v19"
    wq_share(a, T3, T0, T1, T2)
    a.e(f"v_mov_b32 {T2}, {OOB}")
    a.e(f"v_cmp_gt_u32 vcc, 120, {T0}")
    a.e(f"v_cndmask_b32 {T3}, {T2}, {T3}, vcc")
    a.e(f"v_mul_u32_u24 {T1}, {o['warm']}, v0")
    a.e(f"v_cmp_gt_u32 s[62:63], {786432 // o['warm']}, v0")
    a.e(f"v_cndmask_b32 {T1}, {T2}, {T1}, s[62:63]")
    a.e(f"s_mul_i32 s{S_OQ}, s{S_B}, {40*12288}")
    a.e(f"s_mul_i32 s{S_T}, s{S_HG}, 1536")
    a.e(f"s_add_u32 s{S_OQ}, s{S_OQ}, s{S_T}")
    a.e(f"s_lshl_b32 s{S_OX}, s{S_B}, 3"); a.e(f"s_add_u32 s{S_OX}, s{S_OX}, s{S_HG}")
    a.e(f"s_mul_i32 s{S_OX}, s{S_OX}, 786432")
    build_srds(a)
    a.e(f"s_cmp_ge_u32 s{S_W}, 2")
    a.branch("s_cbranch_scc1 L_Pw")
    a.e(f"buffer_load_dword v47, {T3}, {sq(S_WQ)}, s{S_OQ} offen{pol(o['pfpol'])}")
    a.branch("s_branch L_Pwj")
    a.label("L_Pw")
    a.e(f"s_cmp_eq_u32 s{S_W}, 2")
    a.e(f"s_cselect_b32 s60, s{S_K}, s{S_V}")
    a.e(f"s_cselect_b32 s61, s{S_K+1}, s{S_V+1}")
    a.e(f"s_mov_b32 s62, {KV_BYTES}")
    a.e(f"s_mov_b32 s63, 0x20000")
    a.e(f"buffer_load_dword v47, {T1}, s[60:63], s{S_OX} offen nt")
    a.label("L_Pwj")
    tr_lane_parts(a, "v0", T0, T1, T2, T3, "v18", T4)
    for db in range(2):
        a.e(f"s_mul_i32 s{S_T}, s{S_HF}, 12")
        a.e(f"s_add_u32 s{S_T}, s{S_T}, {4*db}")
        a.e(f"v_add_u32 v16, s{S_T}, {T3}")
        a.e(f"v_and_b32 v17, 2, {T1}")
        a.e(f"v_lshlrev_b32 v17, 1, v17")
        a.e(f"v_xor_b32 v16, v16, v17")
        a.e(f"v_lshl_add_u32 v16, v16, 4, v18")
        a.e(f"v_mul_u32_u24 v17, 384, {T2}")
        a.e(f"v_add_u32 v16, v16, v17")
        a.e(f"v_add_u32 v{P_AQ+db}, {WB}, v16")
        a.e(f"v_add_u32 v{144+db}, {WB+49152}, v16")
    for i in range(2):
        a.e(f"s_lshl_b32 s{S_T}, s{S_HF}, 2")
        a.e(f"s_add_u32 s{S_T}, s{S_T}, {8*i}")
        a.e(f"v_add_u32 v16, s{S_T}, {T3}")
        a.e(f"v_lshlrev_b32 v17, 2, {T1}")
        a.e(f"v_xor_b32 v16, v16, v17")
        a.e(f"v_lshl_add_u32 v16, v16, 4, v18")
        a.e(f"v_mul_u32_u24 v17, 1280, {T2}")
        a.e(f"v_add_u32 v16, v16, v17")
        a.e(f"v_add_u32 v{P_AW+i}, {WB}, v16")
    a.e(f"s_lshl_b32 s{S_T}, s{S_QB}, 5")
    a.e(f"v_and_b32 {T1}, 31, v0")
    a.e(f"v_add_u32 {T2}, s{S_T}, {T1}")
    a.e(f"v_bfe_u32 {T3}, {T1}, 1, 3")
    a.e(f"v_xor_b32 {T3}, {T3}, {T0}")
    a.e(f"v_lshlrev_b32 {T3}, 4, {T3}")
    a.e(f"v_lshl_add_u32 {T3}, {T2}, 7, {T3}")
    a.e(f"v_add_u32 v{P_AX}, {WB+32768}, {T3}")
    for k4 in range(1, 4): a.e(f"v_xor_b32 v{145+k4}, {32*k4}, v{P_AX}")
    a.e(f"v_mul_u32_u24 {T2}, 384, {T2}")
    a.e(f"v_add_u32 {T2}, {XB}, {T2}")
    a.e(f"v_and_b32 {T1}, 6, {T1}")
    a.e(f"v_xor_b32 {T3}, {T1}, {T0}")
    a.e(f"v_lshl_add_u32 v{P_AO}, {T3}, 4, {T2}")
    a.e(f"v_lshl_add_u32 {T2}, {T1}, 4, {T2}")
    a.e(f"v_lshl_add_u32 v24, {T0}, 3, {T2}")
    dma_offsets_q(a, P_VQ, P_VX, 28)
    for j in range(5):
        a.e(f"v_add_u32 {T0}, {64*j}, v0")
        a.e(f"v_mul_u32_u24 {T0}, 820, {T0}")
        a.e(f"v_lshrrev_b32 {T0}, 16, {T0}")
        a.e(f"v_lshlrev_b32 {T0}, 2, {T0}")
        a.e(f"v_xor_b32 {T0}, {T0}, v0")
        a.e(f"v_lshlrev_b32 v{P_VO+j}, 4, {T0}")
    a.e(f"v_mov_b32 v{P_QW}, v24")
    scalars_q(a, S_MQ, S_MX, S_OQ, S_OX, 1)
    a.e(f"s_mul_i32 s{S_MO}, s{S_W}, 5120")
    a.e(f"s_mul_i32 s{S_OO}, s{S_HG}, {4*245760}")
    a.e(f"s_add_u32 s{S_OO}, s{S_OO}, s{S_MO}")
    a.e(f"s_mov_b32 s{S_C}, 1")
    a.e("s_barrier")
    stamp(a, o, 1)
    a.raw("L_Ppro:")
    for n in range(10):
        p_pro_tick(a, o, n, [])
        endstep(a)

    a.label("L_Pcyc")
    for i in range(24):
        a.e(f"v_cvt_pk_bf16_f32 v{PQ+i}, v{PQ+2*i}, v{PQ+2*i+1}")
    for db in range(3):
        for jj in range(4):
            a.e(f"s_mul_i32 s{S_T}, s{S_HF}, 12")
            a.e(f"s_add_u32 s{S_T}, s{S_T}, {4*db+jj}")
            a.e(f"s_and_b32 s{S_T2}, s{S_T}, 7")
            a.e(f"s_lshl_b32 s{S_T2}, s{S_T2}, 4")
            a.e(f"s_lshr_b32 s{S_T}, s{S_T}, 3")
            a.e(f"s_lshl_b32 s{S_T}, s{S_T}, 7")
            t = P_T0 + (jj & 1)
            a.e(f"v_xor_b32 v{t}, s{S_T2}, v{P_QW}")
            a.e(f"v_add_u32 v{t}, s{S_T}, v{t}")
            a.e(f"ds_write_b64 v{t}, {v(PQ+8*db+2*jj,2)}")
    a.e("s_waitcnt lgkmcnt(0)")
    a.e(f"s_cmp_eq_u32 s{S_C}, 4")
    a.branch("s_cbranch_scc0 L_Pc3")
    idle(a, "Pi4", 4)
    a.branch("s_branch L_PO")
    a.label("L_Pc3")
    a.e(f"s_cmp_eq_u32 s{S_C}, 1")
    a.branch("s_cbranch_scc0 L_PQa")
    a.e("s_barrier")
    p_burst_q(a, o, 0)
    endstep(a, 3)

    a.label("L_PQa")
    for qs in range(4):
        if qs == 0:
            p_even(a, o, p_qstep, 0, p_burst_q, 1); continue
        p_qstep(a, o, qs)
        if qs == 2: p_choice(a, "Pa", f"s_cmp_ge_u32 s{S_C}, 2", lambda: p_burst_q(a, o, 0), lambda: p_burst_o(a, o, 0))
        else: endstep(a, 3)
    a.e(f"s_cmp_ge_u32 s{S_C}, 2")
    a.branch("s_cbranch_scc1 L_PO")
    for i in range(160): a.e(f"v_mov_b32 v{PY+i}, 0")
    idle(a, "Pi10", 10)
    a.branch("s_branch L_PQb")

    a.label("L_PO")
    stamp(a, o, (2, S_C, 5))
    for s in range(12):
        if s < 10 and s % 2 == 0:
            p_even(a, o, p_ostep, s, p_burst_o, ((s >> 1) + 1) & 1); continue
        p_ostep(a, o, s)
        if s == 10: p_choice(a, "Po", f"s_cmp_eq_u32 s{S_C}, 4", lambda: p_burst_q(a, o, 0), lambda: 0)
        elif s == 11: endstep(a, 3)
        else: endstep(a, 5)
    a.e(f"s_cmp_eq_u32 s{S_C}, 4")
    a.branch("s_cbranch_scc1 L_Ptail")

    a.label("L_PQb")
    for qs in range(4, 20):
        if qs < 18 and qs % 2 == 0:
            p_even(a, o, p_qstep, qs, p_burst_q, ((qs >> 1) + 1) & 1); continue
        p_qstep(a, o, qs)
        if qs == 18:
            a.e(f"s_add_u32 s{S_OQ}, s{S_OQ}, {(384 - 640*12288) & 0xffffffff}")
            a.e(f"s_sub_u32 s{S_OX}, s{S_OX}, 1280")
            p_choice(a, "Pb", f"s_cmp_eq_u32 s{S_C}, 3", lambda: p_burst_q(a, o, 0), lambda: p_burst_o(a, o, 0))
        else: endstep(a, 3)
    a.e(f"s_add_u32 s{S_C}, s{S_C}, 1")
    a.branch("s_branch L_Pcyc")

    a.label("L_Ptail")
    VT, TA = 2, 3
    lane_id(a, 4)
    tail_offsets(a, VT, S_MO, S_OO, "v4", ("v5", "v6"))
    tr_lane_parts(a, "v4", "v5", "v6", "v7", "v8", "v9", "v10")
    a.e(f"s_lshl_b32 s{S_T}, s{S_HF}, 2")
    a.e(f"v_add_u32 v8, s{S_T}, v8")
    a.e("v_and_b32 v6, 2, v6")
    a.e("v_lshlrev_b32 v6, 1, v6")
    a.e("v_xor_b32 v8, v8, v6")
    a.e("v_lshl_add_u32 v8, v8, 4, v9")
    a.e(f"v_lshl_add_u32 v{TA}, v7, 7, v8")
    a.e("v_lshlrev_b32 v1, 4, v4")
    a.e(f"s_lshl_b32 s{S_P}, s{S_BR}, 4"); a.e(f"s_add_u32 s{S_P}, s{S_P}, s{S_B}")
    a.e(f"s_lshl_b32 s{S_P}, s{S_P}, 3"); a.e(f"s_add_u32 s{S_P}, s{S_P}, s{S_HG}")
    a.e(f"s_lshl_b32 s{S_P}, s{S_P}, 1"); a.e(f"s_add_u32 s{S_P}, s{S_P}, s{S_QB}")
    a.e(f"s_mul_i32 s{S_P}, s{S_P}, 40960")
    a.e(f"s_lshl_b32 s{S_T}, s{S_HF}, 11"); a.e(f"s_add_u32 s{S_P}, s{S_P}, s{S_T}")
    for n in range(3):
        tail_tile(a, o, VT, S_MO, S_OO, n)
        idle(a, "", 2)
    idle(a, "Pi9", 9)
    tail_tile(a, o, VT, S_MO, S_OO, 3)
    idle(a, "", 2)
    tail_tile(a, o, VT, S_MO, S_OO, 4)
    endstep(a, 6)
    stamp(a, o, 7)
    for s in range(12):
        if s & 3:
            a.e(f"v_xor_b32 v{P_T0+(s&1)}, {32*(s&3)}, v{P_AO}")
            a.e(f"ds_read_b128 {v(PQ+4*s,4)}, v{P_T0+(s&1)} offset:{(s>>2)*128}")
        else:
            a.e(f"ds_read_b128 {v(PQ+4*s,4)}, v{P_AO} offset:{(s>>2)*128}")
    reads, mf = [], []
    for n in range(10):
        for s in range(12):
            f = PFA + 4 * (len(mf) % 6)
            pre = [f"v_add_u32 v{4+(n&1)}, {tail_slot(n)}, v{TA}"] if s == 0 else []
            reads.append(pre + tr_pair(f, 4 + (n & 1), s * 2048, 512))
            mf.append(mfma32(PY + 16 * n, f, PQ + 4 * s))
    fills = [rec(p_pack_block, n - 1) if n else [] for n in range(10)]
    for n, ms in TAIL_STORES.items():
        for m in ms: fills[n] += rec(p_store_block, o, m)
    bars = {n: ["s_barrier"] for n in range(8)}
    bars[1] = ["s_waitcnt vmcnt(0)", "s_barrier"]
    pipe_groups(a, reads, mf, fills, 5, bars)
    stamp(a, o, 8)
    p_pack_block(a, 9)
    p_store_block(a, o, 9)
    a.e("s_waitcnt vmcnt(0)")
    a.branch("s_branch L_red")


TAIL_STORES = {6: [0, 1, 2], 7: [3, 4, 5], 8: [6, 7], 9: [8]}


def pipe_groups(a, reads, mfmas, fills, depth, after):
    n = len(mfmas)
    for i in range(min(depth, n)):
        for t in reads[i]: a.e(t)
    for i in range(n):
        a.e(mfmas[i])
        f, r = fills[i // 12], i % 12
        if r == 11:
            for t in after.get(i // 12, []): a.e(t)
        if i + depth < n:
            for t in reads[i + depth]: a.e(t)
        if r >= 2:
            for t in f[len(f) * (r - 2) // 10:len(f) * (r - 1) // 10]: a.e(t)


AS, AO, AQ, AF = 128, 80, 56, 24
A_VD, A_AK, A_AV, A_M, A_L, A_MC, A_T0, A_T1, A_R, A_PF, A_DUM, A_XQ, A_XO = 1, 4, 6, 10, 11, 12, 13, 14, 15, 16, 17, 18, 20
A_FI, A_FO = 21, 22
S_PER, S_MK, S_OK, S_OV, S_CS, S_PFO, S_PFS, S_PF = 50, 51, 52, 53, 54, 55, 56, 60
AR = (128, 131, 68, 69, 96, 97)


def a_burst(a, o, D, srdreg, off):
    kp = pol(o["kvpol"])
    for h in range(2):
        a.e(f"s_add_u32 m0, s{S_MK}, {D*24576+h*12288}")
        if h: a.e(f"s_add_u32 s{off}, s{off}, 12288")
        else: a.e("s_nop 0")
        for j in range(3):
            a.e(f"buffer_load_dwordx4 v{A_VD+j}, {sq(srdreg)}, s{off} offen offset:{1024*j}{kp} lds")
    a.e(f"s_add_u32 s{off}, s{off}, 12288")


def a_touch(a, o):
    a.e(f"buffer_load_dword v{A_DUM}, v{A_PF}, {sq(S_PF)}, s{S_PFO} offen{pol(o['pfpol'])}")
    a.e(f"s_add_u32 s{S_PFO}, s{S_PFO}, s{S_PFS}")


def xlane(a, reg, op):
    for sw in ("v_permlane32_swap_b32", "v_permlane16_swap_b32"):
        a.e(f"v_mov_b32 v{A_T0}, v{reg}")
        a.e(f"{sw} v{reg}, v{A_T0}")
        a.e(f"{op} v{reg}, v{reg}, v{A_T0}")


def soft_chunk(j):
    b = AS + 8 * j
    t = []
    for i in range(8): t.append(f"v_fma_f32 v{b+i}, v{b+i}, s{S_CS}, -v{A_MC}")
    for i in range(8): t.append(f"v_exp_f32 v{b+i}, v{b+i}")
    for i in range(8):
        if j == 0 and i == 0: t.append(f"v_mov_b32 v{A_L}, v{b}")
        else: t.append(f"v_add_f32 v{A_L}, v{A_L}, v{b+i}")
    for i in range(4): t.append(f"v_cvt_pk_bf16_f32 v{b+i}, v{b+2*i}, v{b+2*i+1}")
    return t


def max_chunk(s):
    b = AS + 8 * s
    t = []
    for i in range(4):
        if s == 0 and i == 0: t.append(f"v_max_f32 v{A_M}, v{b}, v{b+1}")
        else: t.append(f"v_max3_f32 v{A_M}, v{A_M}, v{b+2*i}, v{b+2*i+1}")
    return t


def a_rowsum(a):
    xlane(a, A_L, "v_add_f32")
    a.e(f"v_rcp_f32 v{A_R}, v{A_L}")


def a_owrite(a):
    for db in range(12):
        r = AO + 4 * db
        for i in range(4): a.e(f"v_mul_f32 v{r+i}, v{r+i}, v{A_R}")
        a.e(f"v_cvt_pk_bf16_f32 v{r}, v{r}, v{r+1}")
        a.e(f"v_cvt_pk_bf16_f32 v{r+1}, v{r+2}, v{r+3}")
        if db & 3:
            a.e(f"v_xor_b32 v{A_T0+(db&1)}, {32*(db&3)}, v{A_XO}")
            a.e(f"ds_write_b64 v{A_T0+(db&1)}, {v(r,2)} offset:{(db>>2)*128}")
        else:
            a.e(f"ds_write_b64 v{A_XO}, {v(r,2)} offset:{(db>>2)*128}")


def mfma16(acc, fa, fb, zero=False):
    return f"v_mfma_f32_16x16x32_bf16 {v(acc,4)}, {v(fa,4)}, {v(fb,4)}, {'0' if zero else v(acc,4)}"


def a_kstep(a, o, s):
    reads, mf = [], []
    for i in range(12):
        kb, ks = divmod(i, 6)
        f = AF + 4 * (i % 8)
        reads.append([f"ds_read_b128 {v(f,4)}, v{A_AK+(ks&1)} offset:{(s&3)*12288 + kb*6144 + (ks>>1)*128}"])
        mf.append(mfma16(AS + 8 * s + 4 * kb, f, AQ + 4 * ks, ks == 0))
    pipe(a, reads, mf, max_chunk(s - 1) if s else [], o["adepth"])


def a_vstep(a, o, j):
    s = 16 + j
    reads, mf = [], []
    for db in range(12):
        f = AF + 4 * (db % 8)
        reads.append(tr_pair(f, A_AV + (db & 3), (s & 3) * 12288 + (db >> 2) * 128, 6144))
        mf.append(mfma16(AO + 4 * db, f, AS + 8 * j, j == 0))
    if j == 0:
        for t in reads[0] + reads[1] + reads[2] + reads[3]: a.e(t)
        reads[0:4] = [[], [], [], []]
        for t in max_chunk(15): a.e(t)
        xlane(a, A_M, "v_max_f32")
        a.e(f"v_mul_f32 v{A_MC}, s{S_CS}, v{A_M}")
        for t in soft_chunk(0): a.e(t)
    pipe(a, reads, mf, soft_chunk(j + 1) if j < 15 else rec(a_rowsum), o["adepth"])


def a_qread(a):
    for ks in range(6):
        a.e(f"ds_read_b128 {v(AQ+4*ks,4)}, v{A_XQ+(ks&1)} offset:{(ks>>1)*128}")


def spin(a, tag, load, test):
    a.e("s_mov_b32 s40, 0")
    a.label(f"L_{tag}")
    a.e(load)
    a.e("s_add_u32 s40, s40, 1")
    a.e("s_waitcnt vmcnt(0)")
    for t in test: a.e(t)
    a.branch(f"s_cbranch_scc1 L_{tag}_ok")
    a.e("s_cmp_lt_u32 s40, 0x20000")
    a.branch(f"s_cbranch_scc1 L_{tag}")
    a.label(f"L_{tag}_ok")


def gen_A(a, o):
    a.comment("attention waves: 16 query rows each; they also feed the first and the last projection")
    if o["prio"] == 2: a.e("s_setprio 1")
    T0, T1, T2, T3 = "v24", "v25", "v26", "v27"
    dma_offsets_q(a, AR[0], AR[1], 32)
    scalars_q(a, *AR[2:], 0)
    chains = []
    for j in range(3):
        r = Rec()
        U0, U1, U2, U3 = (f"v{32+4*j+k}" for k in range(4))
        r.e(f"v_add_u32 {U0}, {64*j}, v0")
        r.e(f"v_mul_u32_u24 {U1}, 2731, {U0}")
        r.e(f"v_lshrrev_b32 {U1}, 16, {U1}")
        r.e(f"v_and_b32 {U1}, 6, {U1}")
        r.e(f"v_xor_b32 {U1}, {U1}, v0")
        r.e(f"v_lshlrev_b32 v{A_VD+j}, 4, {U1}")
        chains.append(r.t)
    kv_offsets = chains
    a.e(f"s_mul_i32 s98, s{S_B}, 81920")
    a.e(f"s_mul_i32 s{S_T}, s{S_HALF}, 40960"); a.e(f"s_add_u32 s98, s98, s{S_T}")
    a.e(f"s_mul_i32 s{S_T}, s{S_W}, 10240"); a.e(f"s_add_u32 s98, s98, s{S_T}")
    a.e(f"v_lshlrev_b32 v28, 7, v0")
    a.e(f"v_add_u32 v29, 8192, v28")
    a.e(f"v_mov_b32 {T2}, {OOB}")
    a.e(f"v_cmp_gt_u32 vcc, 16, v0")
    a.e(f"v_cndmask_b32 v29, {T2}, v29, vcc")
    stamp(a, o, 2, "start")
    build_srds(a)
    pp = pol(o["pfpol"])
    vm = []

    def W(n):
        s = pro_slot(n)
        burst_q(a, o, AR, WB + s * 24576, WB + 73728 + s * 8192, WB + s * 24576 + 12288)
        vm.extend([("W", n)] * 8)

    def K0():
        a_burst(a, o, 0, S_K, S_OK); vm.extend([("K", 0)] * 3 + [("K", 1)] * 3)

    def late_touches():
        a.e(f"s_cmp_ge_u32 s{S_W}, 2")
        a.e(f"s_cselect_b32 s{S_T}, {OOB}, s{S_PFO}")
        a.e(f"buffer_load_dword v{A_DUM}, v{A_PF}, {sq(S_PF)}, s{S_T} offen{pp}"); vm.append("t")
        a.e(f"s_add_u32 s{S_PFO}, s{S_PFO}, s99")
        a.e(f"s_cmp_eq_u32 s{S_W}, 0")
        a.e(f"s_cselect_b32 s{S_T}, s46, {OOB}")
        a.e(f"s_cselect_b32 s{S_T2}, s47, {OOB}")
        a.e(f"buffer_load_dword v{A_FI}, v28, {sq(S_WS)}, s{S_T} offen sc1"); vm.append("f")
        a.e(f"buffer_load_dword v{A_FO}, v29, {sq(S_WS)}, s{S_T2} offen sc1"); vm.append("f")

    def wait_for(tag):
        last = max(i for i, x in enumerate(vm) if x == tag)
        return min(63, len(vm) - 1 - last)

    stamp(a, o, 3, "start")
    W(0)
    stamp(a, o, 4, "start")
    interleave(a, kv_offsets)
    a.e(f"s_mul_i32 s{S_MK}, s{S_W}, 3072")
    a.e(f"s_lshl_b32 s{S_OK}, s{S_B}, 3"); a.e(f"s_add_u32 s{S_OK}, s{S_OK}, s{S_HG}")
    a.e(f"s_mul_i32 s{S_OK}, s{S_OK}, 786432"); a.e(f"s_add_u32 s{S_OK}, s{S_OK}, s{S_MK}")
    a.e(f"s_mov_b32 s{S_OV}, s{S_OK}")
    a.e(f"buffer_load_dword v{A_DUM}, v28, {sq(S_XI)}, s98 offen{pp}"); vm.append("t")
    a.e(f"buffer_load_dword v{A_DUM}, v29, {sq(S_XI)}, s98 offen{pp}"); vm.append("t")
    stamp(a, o, 5, "start")
    if o["k0"] < 0: K0()
    W(1)
    stamp(a, o, 6, "start")
    if o["codepf"]:
        a.e("s_getpc_b64 s[100:101]")
        a.raw("L_pc:")
        a.e(f"s_sub_u32 s100, s100, L_pc-{KN}")
        a.e("s_subb_u32 s101, s101, 0")
        a.e("s_lshr_b32 s98, s2, 3")
        a.e(f"s_lshl_b32 s98, s98, 2")
        a.e(f"s_add_u32 s98, s98, s{S_W}")
        a.e(f"s_lshl_b32 s98, s98, 9")
        a.e("v_and_b32 v30, 3, v0")
        a.e("v_lshlrev_b32 v30, 7, v30")
        a.e("v_add_u32 v30, s98, v30")
        a.e(f"v_min_u32 v30, L_end-{KN}, v30")
        a.e(f"global_load_dword v{A_DUM}, v30, s[100:101]"); vm.append("t")
    a.e(f"s_lshl_b32 s44, s{S_BR}, 4")
    a.e(f"s_add_u32 s44, s44, s{S_B}")
    a.e("s_lshl_b32 s45, s44, 10")
    a.e(f"s_add_u32 s45, s45, {FLAGS}")
    a.e(f"s_lshl_b32 s46, s{S_HG}, 7")
    a.e(f"s_add_u32 s46, s46, s45")
    a.e(f"s_lshl_b32 s47, s{S_HG}, 2")
    a.e(f"s_add_u32 s47, s47, s45")
    wq_share(a, T1, T0, T1, T2)
    a.e(f"v_lshlrev_b32 {T2}, 7, {T0}")
    a.e(f"s_mov_b32 s{S_PFS}, 384")
    a.e(f"s_mov_b32 s{S_T}, {40*12288}")
    a.e(f"s_cmp_ge_u32 s{S_W}, 2")
    a.e(f"s_cselect_b64 vcc, -1, 0")
    a.e(f"s_cselect_b32 s{S_PFS}, 245760, s{S_PFS}")
    a.e(f"s_cselect_b32 s{S_T}, 15360, s{S_T}")
    a.e(f"s_cselect_b32 s{S_PF}, s{S_WO}, s{S_WQ}")
    a.e(f"s_cselect_b32 s{S_PF+1}, s{S_WO+1}, s{S_WQ+1}")
    a.e(f"s_cselect_b32 s99, 0, 384")
    a.e(f"s_mov_b32 s{S_PF+2}, {W_BYTES}")
    a.e(f"s_mov_b32 s{S_PF+3}, 0x20000")
    a.e(f"v_cndmask_b32 {T1}, {T1}, {T2}, vcc")
    a.e(f"v_mov_b32 {T2}, {OOB}")
    a.e(f"v_cmp_gt_u32 vcc, 120, {T0}")
    a.e(f"v_cndmask_b32 v{A_PF}, {T2}, {T1}, vcc")
    a.e(f"s_mul_i32 s{S_PFO}, s{S_T}, s{S_B}")
    a.e(f"s_mul_i32 s{S_T}, s{S_PFS}, s{S_HG}")
    a.e(f"s_lshl_b32 s{S_T}, s{S_T}, 2")
    a.e(f"s_add_u32 s{S_PFO}, s{S_PFO}, s{S_T}")
    a.e(f"s_add_u32 s{S_PFO}, s{S_PFO}, s99")
    a.e(f"v_and_b32 {T0}, 15, v0")
    a.e(f"v_lshrrev_b32 {T1}, 4, v0")
    a.e(f"v_and_b32 {T2}, 6, {T0}")
    a.e(f"v_xor_b32 {T3}, {T2}, {T1}")
    a.e(f"v_mul_u32_u24 {T0}, 384, {T0}")
    a.e(f"v_lshl_add_u32 v{A_AK}, {T3}, 4, {T0}")
    a.e(f"v_xor_b32 v{A_AK+1}, 64, v{A_AK}")
    a.e(f"s_mul_i32 s{S_T}, s{S_W}, 6144"); a.e(f"s_add_u32 s{S_T}, s{S_T}, {XB}")
    a.e(f"v_add_u32 v{A_XQ}, s{S_T}, v{A_AK}")
    a.e(f"v_add_u32 v{A_XQ+1}, s{S_T}, v{A_AK+1}")
    a.e(f"v_lshrrev_b32 {T3}, 1, {T1}")
    a.e(f"v_xor_b32 {T3}, {T3}, {T2}")
    a.e(f"v_lshl_add_u32 {T3}, {T3}, 4, {T0}")
    a.e(f"v_and_b32 {T2}, 1, {T1}")
    a.e(f"v_lshl_add_u32 {T3}, {T2}, 3, {T3}")
    a.e(f"v_add_u32 v{A_XO}, s{S_T}, {T3}")
    a.e(f"v_lshrrev_b32 {T0}, 2, v0")
    a.e(f"v_and_b32 {T1}, 6, {T0}")
    a.e(f"v_bfe_u32 {T2}, v0, 1, 1")
    a.e(f"v_xor_b32 {T1}, {T1}, {T2}")
    a.e(f"v_mul_u32_u24 {T0}, 384, {T0}")
    a.e(f"v_lshl_add_u32 {T1}, {T1}, 4, {T0}")
    a.e(f"v_and_b32 {T2}, 1, v0")
    a.e(f"v_lshl_add_u32 v{A_AV}, {T2}, 3, {T1}")
    for d in range(1, 4): a.e(f"v_xor_b32 v{A_AV+d}, {32*d}, v{A_AV}")
    a.e("v_and_b32 v28, 7, v0")
    a.e("v_lshlrev_b32 v29, 7, v28")
    a.e("v_lshlrev_b32 v28, 2, v28")
    a.e(f"s_mov_b32 s{S_CS}, {CSCALE:#x}")
    a.e(f"s_mov_b32 s{S_PER}, 0")
    stamp(a, o, 12, "pro")
    stamp(a, o, 7, "start")
    endstep(a, wait_for(("W", 0)))
    stamp(a, o, 8, "start")
    stamp(a, o, 1, "pro")
    a.raw("L_Apro:")
    for n in range(10):
        if n + 2 < 10: W(n + 2)
        if n == o["kt"]: late_touches()
        if n == o["k0"]: K0()
        if n == o["k1"]:
            a_burst(a, o, 1, S_K, S_OK); vm.extend([("K", 2)] * 3 + [("K", 3)] * 3)
        endstep(a, wait_for(("W", n + 1)) if n < 9 else None)
        stamp(a, o, n + 2, "pro")
    if o["k1"] == 10:
        a_burst(a, o, 1, S_K, S_OK); vm.extend([("K", 2)] * 3 + [("K", 3)] * 3)
    endstep(a, wait_for(("K", 0)))
    first = dict(s0=wait_for(("K", 1)), s1=wait_for(("K", 2)))

    a.label("L_Aper")
    stamp(a, o, (1, S_PER, 4))
    for s in range(32):
        a.comment(f"A step {s}")
        if s == 16: stamp(a, o, (5, S_PER, 4))
        vmw = 3
        if s == 0:
            a.e(f"s_cmp_eq_u32 s{S_PER}, 0")
            a.branch("s_cbranch_scc1 L_A0")
            a_burst(a, o, 1, S_K, S_OK)
            a_qread(a)
            a_owrite(a)
            a.branch("s_branch L_A0j")
            a.label("L_A0")
            a_qread(a)
            a.label("L_A0j")
            vmw = min(6, first["s0"])
        elif s == 1:
            vmw = min(3, first["s1"])
        elif s == 30:
            a.e(f"s_cmp_eq_u32 s{S_PER}, 3")
            a.branch("s_cbranch_scc1 L_A30")
            a_burst(a, o, 0, S_K, S_OK)
            a.label("L_A30")
            vmw = 6
        elif s % 2 == 0:
            vmw = 6
            if s == o["pfstep"]:
                a.e(f"s_cmp_lt_u32 s{S_W}, 2")
                a.e(f"s_cselect_b32 s{S_T}, 2, 4")
                a.e(f"s_cmp_lt_u32 s{S_PER}, s{S_T}")
                a.e(f"s_cselect_b32 s{S_PFO}, s{S_PFO}, {OOB}")
                a_touch(a, o)
                vmw = 7
            D = ((s >> 1) + 1) & 1
            if s < 14: a_burst(a, o, D, S_K, S_OK)
            else: a_burst(a, o, D, S_V, S_OV)
        if s == 5:
            a.comment("the entry reads have landed: count this workgroup in (d_debug word of the group)")
            a.e(f"s_and_b32 s{S_T}, s{S_HG}, 3")
            a.e(f"s_xor_b32 s{S_T}, s{S_T}, s{S_PER}")
            a.e(f"s_or_b32 s{S_T}, s{S_T}, s{S_W}")
            a.branch("s_cbranch_scc1 L_sy1")
            a.e("s_lshl_b32 s45, s44, 3")
            a.e(f"v_mov_b32 v{A_T0}, s45")
            a.e(f"v_mov_b32 v{A_T1}, 1")
            a.e("s_mov_b64 exec, 1")
            a.e(f"global_atomic_add v{A_T0}, v{A_T1}, s[{S_DBG}:{S_DBG+1}]")
            a.e("s_mov_b64 exec, -1")
            a.label("L_sy1")
        if s < 16: a_kstep(a, o, s)
        else: a_vstep(a, o, s - 16)
        if s == 30:
            a.e(f"s_cmp_eq_u32 s{S_PER}, 3")
            a.branch("s_cbranch_scc0 L_A30j")
            a.e("s_waitcnt vmcnt(0)")
            a.label("L_A30j")
        endstep(a, vmw + o["kvx"])
    a.e(f"s_add_u32 s{S_PER}, s{S_PER}, 1")
    a.e(f"s_cmp_lt_u32 s{S_PER}, 4")
    a.branch("s_cbranch_scc1 L_Aper")
    a.label("L_Aend")
    stamp(a, o, 9)
    stamp(a, o, 1, "tail")
    a_owrite(a)
    tail_offsets(a, 128, S_MK, S_OK, "v0", (T0, T1))
    endstep(a)
    stamp(a, o, 2, "tail")
    for n in range(8):
        if n >= 3: a.e(f"s_waitcnt vmcnt({6 * min(2, 7 - n)})")
        a.e("s_barrier")
        stamp(a, o, n + 3, "tail")
        if n < 5: tail_tile(a, o, 128, S_MK, S_OK, n + 5)
    a.e(f"s_cmp_lg_u32 s{S_W}, 0")
    a.branch("s_cbranch_scc1 L_red")
    a.e("s_lshl_b32 s45, s44, 3")
    a.e("v_mov_b32 v28, s45")
    spin(a, "in", f"global_load_dword v29, v28, s[{S_DBG}:{S_DBG+1}] sc1", ["v_readfirstlane_b32 s41, v29", "s_cmp_ge_u32 s41, 8"])


def reduce_loads(a, o, src, base):
    for i in range(8):
        a.e(f"buffer_load_dwordx4 {v(base+4*i,4)}, v1, {sq(S_WS)}, s{src} offen{pol(o['ldpol'])}")
        if i < 7: a.e(f"s_add_u32 s{src}, s{src}, 81920")


def reduce_sum(a, o, rem, G, base, after):
    a.e(f"s_cmp_ge_u32 s{rem}, 40")
    a.e("s_cselect_b32 s41, 32, 0")
    a.e("s_cselect_b32 s42, 40, 0")
    a.e(f"s_sub_u32 s43, s{rem}, s42")
    a.e(f"s_and_b32 s42, s{G}, 15")
    a.e("s_lshl_b32 s42, s42, 6")
    a.e("s_add_u32 s42, s42, s41")
    a.e("s_mul_i32 s42, s42, 2560")
    a.e(f"s_lshr_b32 s41, s{G}, 4")
    a.e("s_mul_i32 s41, s41, 1280")
    a.e("s_add_u32 s42, s42, s41")
    a.e("s_lshl_b32 s43, s43, 5")
    a.e("s_add_u32 s42, s42, s43")
    ac = base + 32
    for i in range(8):
        a.e(f"s_waitcnt vmcnt({7-i+after})")
        for k in range(4):
            r = base + 4 * i + k
            if i == 0:
                a.e(f"v_lshlrev_b32 v{ac+2*k}, 16, v{r}")
                a.e(f"v_and_b32 v{ac+1+2*k}, 0xffff0000, v{r}")
            else:
                a.e(f"v_lshlrev_b32 v4, 16, v{r}")
                a.e(f"v_and_b32 v5, 0xffff0000, v{r}")
                a.e(f"v_add_f32 v{ac+2*k}, v{ac+2*k}, v4")
                a.e(f"v_add_f32 v{ac+1+2*k}, v{ac+1+2*k}, v5")
    for k in range(4): a.e(f"v_cvt_pk_bf16_f32 v{base+k}, v{ac+2*k}, v{ac+1+2*k}")
    a.e(f"buffer_store_dwordx4 {v(base,4)}, v2, {sq(S_OUT)}, s42 offen{pol(o['outpol'])}")


def gen_tail(a, o):
    a.label("L_red")
    lane_id(a, 0)
    a.e("v_and_b32 v28, 7, v0")
    a.e("v_lshlrev_b32 v29, 7, v28")
    a.e("v_lshlrev_b32 v28, 2, v28")
    a.e(f"s_cmp_lg_u32 s{S_WAVE}, 4")
    a.e("s_barrier")
    a.branch("s_cbranch_scc1 L_go")
    stamp(a, o, 10)
    a.e(f"v_add_u32 v{A_FO}, 1, v{A_FO}")
    a.e("s_mov_b64 exec, 0xff")
    a.e(f"buffer_store_dword v{A_FO}, v29, {sq(S_WS)}, s47 offen sc1")
    spin(a, "poll", f"buffer_load_dword v30, v28, {sq(S_WS)}, s46 offen sc1",
         [f"v_cmp_eq_u32 vcc, v30, v{A_FI}", "s_cmp_eq_u64 vcc, 0"])
    a.e("s_mov_b64 exec, -1")
    a.label("L_go")
    a.e(f"s_lshl_b32 s44, s{S_BR}, 4")
    a.e(f"s_add_u32 s44, s44, s{S_B}")
    a.e(f"s_mul_i32 s45, s{S_HG}, 10")
    a.e(f"s_add_u32 s45, s45, s{S_WAVE}")
    a.e("s_mul_i32 s40, s44, 655360")
    a.e("s_lshl_b32 s41, s45, 10")
    a.e("s_add_u32 s40, s40, s41")
    a.e("s_add_u32 s47, s40, 8192")
    a.e("v_lshlrev_b32 v1, 4, v0")
    a.e("v_and_b32 v2, 31, v0")
    a.e("v_mul_u32_u24 v2, 2560, v2")
    a.e("v_lshrrev_b32 v3, 5, v0")
    a.e("v_lshl_add_u32 v2, v3, 4, v2")
    a.e(f"s_cmp_lt_u32 s{S_WAVE}, 2")
    a.e("s_barrier")
    a.branch("s_cbranch_scc1 L_two")
    stamp(a, o, 11)
    reduce_loads(a, o, 40, 8)
    reduce_sum(a, o, 45, 44, 8, 0)
    a.branch("s_branch L_fin")
    a.label("L_two")
    stamp(a, o, 11)
    reduce_loads(a, o, 40, 8)
    reduce_loads(a, o, 47, 48)
    reduce_sum(a, o, 45, 44, 8, 8)
    a.e("s_add_u32 s45, s45, 8")
    reduce_sum(a, o, 45, 44, 48, 1)


def gen_main(a, o):
    a.raw(f".globl {KN}\n.p2align 8\n.type {KN},@function\n{KN}:")
    a.e(f"s_cmp_ge_u32 s2, {o['nact']}")
    a.e("s_cbranch_scc1 L_end")
    if o["stamps"]:
        a.e("s_memrealtime s[90:91]")
        a.e("s_memtime s[86:87]")
    a.e("s_load_dwordx2 s[34:35], s[0:1], 96")
    a.e("s_load_dwordx4 s[64:67], s[0:1], 80")
    a.e("s_and_b32 s3, s2, 7")
    a.e("s_lshr_b32 s5, s3, 2")
    a.e("s_mul_i32 s32, s5, 40")
    a.e("s_add_u32 s0, s0, s32")
    a.e("s_addc_u32 s1, s1, 0")
    a.e("s_load_dwordx4 s[44:47], s[0:1], 24")
    a.e("s_load_dwordx2 s[36:37], s[0:1], 0")
    a.e("s_load_dwordx4 s[40:43], s[0:1], 8")
    a.e("v_lshrrev_b32 v1, 6, v0")
    a.e("v_and_b32 v0, 63, v0")
    a.e("v_readfirstlane_b32 s32, v1")
    a.e("s_lshr_b32 s4, s2, 3")
    a.e("s_and_b32 s7, s4, 15")
    a.e("s_lshr_b32 s4, s4, 4")
    a.e("s_and_b32 s6, s3, 3")
    a.e("s_lshl_b32 s6, s6, 1")
    a.e("s_add_u32 s6, s6, s4")
    if o["stamps"] >= 2:
        a.e("s_waitcnt lgkmcnt(0)")
        for i in range(16): a.e(f"s_mov_b32 s{70+i}, s90")
        stamp(a, o, 1, "start")
    a.e("s_and_b32 s33, s32, 3")
    a.e("s_cmp_lt_u32 s32, 4")
    a.branch("s_cbranch_scc1 L_P")
    gen_A(a, o)
    gen_tail(a, o)
    a.label("L_fin")
    if o["stamps"]:
        a.e("s_memrealtime s[92:93]")
        a.e("s_memtime s[88:89]")
        a.e("s_waitcnt lgkmcnt(0)")
        a.e("s_sub_u32 s85, s88, s86")
        a.e("v_mov_b32 v4, s90"); a.e("v_mov_b32 v5, s91"); a.e("v_mov_b32 v6, s92"); a.e("v_mov_b32 v7, s93")
        a.e("s_lshl_b32 s40, s2, 3"); a.e("s_add_u32 s40, s40, s32"); a.e("s_lshl_b32 s40, s40, 4")
        a.e("s_add_u32 s40, s40, 0x2000000")
        a.e("v_mov_b32 v1, 0")
        a.e(f"buffer_store_dwordx4 v[4:7], v1, {sq(S_WS)}, s40 offen")
        if o["stamps"] >= 2:
            a.e("s_lshl_b32 s40, s2, 3"); a.e("s_add_u32 s40, s40, s32"); a.e("s_lshl_b32 s40, s40, 6")
            a.e("s_add_u32 s40, s40, 0x2100000")
            for k in range(4):
                for i in range(4): a.e(f"v_mov_b32 v{8+4*k+i}, s{70+4*k+i}")
                a.e(f"buffer_store_dwordx4 v[{8+4*k}:{11+4*k}], v1, {sq(S_WS)}, s40 offen offset:{16*k}")
    a.e("s_endpgm")
    gen_P(a, o)
    a.label("L_end")
    a.e("s_endpgm")


def droppings(t, d):
    keep = []; cnt = cnt2 = cnt3 = 0; role = ""
    for l in t.split("\n"):
        if l.startswith(("L_PQa", "L_PO:", "L_PQb")): role = "P"
        if l.startswith(("L_Ptail", "L_Aend", "L_Pcyc")): role = ""
        if l.startswith("L_Aper"): role = "A"
        if l.startswith("L_Ppro"): role = "p"
        if l.startswith("L_Apro"): role = "a"
        if "x" in d and role == "p" and l.strip().startswith(("v_", "ds_")): continue
        if "y" in d and role == "a" and l.strip().startswith("buffer_load_dwordx4") and "s[8:11]" not in l: continue
        if "z" in d and role == "a" and l.strip().startswith("buffer_load_dwordx4") and "s[8:11]" in l: continue
        x = l.strip()
        if "k" in d and role == "A" and x.startswith("buffer_load"): continue
        if "w" in d and role == "P" and x.startswith("buffer_load"): continue
        if "a" in d and role == "A" and x.startswith(("v_", "ds_")): continue
        if "p" in d and role == "P" and x.startswith(("v_", "ds_")): continue
        if "m" in d and role in ("A", "P") and x.startswith("v_mfma"): continue
        if "r" in d and role in ("A", "P") and x.startswith("ds_read"): continue
        if "h" in d and role == "A" and x.startswith("ds_read"):
            cnt += 1
            if (cnt // (2 if "tr" in x else 1)) % 2: continue
        if "g" in d and role == "P" and x.startswith("ds_read_b64_tr"):
            cnt2 += 1
            if (cnt2 // 2) % 2: continue
        if "s" in d and role == "P" and x.startswith("v_mfma_f32_32x32x16"):
            m = re.match(r"v_mfma_f32_32x32x16_bf16 v\[(\d+):\d+\], (v\[\d+:\d+\]), (v\[\d+:\d+\]), (.*)", x)
            cnt3 += 1
            for k in range(2):
                b = int(m.group(1)) + 4 * k + 8 * (cnt3 & 1)
                keep.append(f"    v_mfma_f32_16x16x32_bf16 v[{b}:{b+3}], {m.group(2)}, {m.group(3)}, v[{b}:{b+3}]")
            continue
        keep.append(l)
    return "\n".join(keep)


def gen(**kw):
    o = dict(DEFAULTS); o.update(kw)
    a = Asm()
    if o["stamps"]: a.raw(f"; stamps={8*o['nact']} @0x2000000")
    a.raw(f"; @launch grid=(256,1,1) block=(512,1,1) lds={LDS}")
    a.raw('.amdgcn_target "amdgcn-amd-amdhsa--gfx950"\n.text')
    gen_main(a, o)
    a.raw(f""".section .rodata,"a"
.p2align 6
.amdhsa_kernel {KN}
  .amdhsa_next_free_vgpr 256
  .amdhsa_next_free_sgpr 102
  .amdhsa_accum_offset 256
  .amdhsa_group_segment_fixed_size 0
  .amdhsa_kernarg_size 104
  .amdhsa_user_sgpr_count 2
  .amdhsa_user_sgpr_kernarg_segment_ptr 1
  .amdhsa_system_sgpr_workgroup_id_x 1
.end_amdhsa_kernel""")
    t = a.text()
    return droppings(t, o["drop"]) if o["drop"] else t


if __name__ == "__main__":
    out = sys.argv[1]
    kw = {}
    for x in sys.argv[2:]:
        k, val = x.split("=")
        kw[k] = int(val) if val.lstrip("-").isdigit() else val.replace("+", " ")
    open(out, "w").write(gen(**kw))
```

```python
import sys, math, struct, re
from asmlib import Asm

NAME = "concat_heads__gqa_block_cached__gqa_block_cached__near_ridge"
KN = NAME + "_kernel"
WB, XB, EB, LDS = 49152, 131072, 155648, 163840
KV_BYTES, W_BYTES, X_BYTES, OUT_BYTES, WS_BYTES = 100663296, 7864320, 1310720, 2621440, 64 << 20
OOB = 0x40000000
FLAGS = 0x1800000
CSCALE = struct.unpack("<I", struct.pack("<f", math.log2(math.e) / math.sqrt(192.0)))[0]

DEFAULTS = dict(kvpol="nt", wpol="", pfpol="", xpol="", stpol="sc1", ldpol="sc1", outpol="", stamps=0, prio=0,
                adepth=8, pq=12, po=9, pdma=1, drop="", nact=256, k0=-1, k1=10, kt=8, codepf=1, pfstep=2, kvx=0, warm=65536, xbar=11, vspan=9, adma=0)

S_HALF, S_BR, S_HG, S_B = 4, 5, 6, 7
S_K, S_V, S_WQ, S_WO, S_XI, S_WS, S_OUT = 8, 12, 16, 20, 24, 28, 64
S_WAVE, S_W, S_DBG, S_T, S_T2 = 32, 33, 38, 57, 59


def v(a, n=1):
    return f"v{a}" if n == 1 else f"v[{a}:{a+n-1}]"


def sq(a):
    return f"s[{a}:{a+3}]"


def pol(s):
    return (" " + s) if s else ""


class Rec:
    def __init__(self): self.t = []
    def e(self, x): self.t.append(x)


def rec(fn, *args):
    r = Rec(); fn(r, *args); return r.t


def srd(a, base, src, size):
    if src != base: a.e(f"s_mov_b32 s{base}, s{src}")
    a.e(f"s_and_b32 s{base+1}, s{src+1}, 0xffff")
    a.e(f"s_mov_b32 s{base+2}, {size}")
    a.e(f"s_mov_b32 s{base+3}, 0x20000")


def build_srds(a):
    a.e("s_waitcnt lgkmcnt(0)")
    srd(a, S_WQ, 44, W_BYTES); srd(a, S_XI, 36, X_BYTES); srd(a, S_WO, 46, W_BYTES)
    srd(a, S_K, 40, KV_BYTES); srd(a, S_V, 42, KV_BYTES); srd(a, S_WS, 34, WS_BYTES)
    a.e(f"s_mov_b32 s{S_DBG}, s66"); a.e(f"s_mov_b32 s{S_DBG+1}, s67")
    srd(a, S_OUT, 64, OUT_BYTES)


def pipe(a, reads, mfmas, fill, depth, span=None, skip=0):
    n = len(mfmas)
    span = span or n
    for i in range(min(depth, n)):
        for t in reads[i]: a.e(t)
    done = 0
    for i in range(n):
        for t in ([mfmas[i]] if isinstance(mfmas[i], str) else mfmas[i]): a.e(t)
        if i + depth < n:
            for t in reads[i + depth]: a.e(t)
        upto = len(fill) * max(min(i + 1, span) - skip, 0) // (span - skip)
        for t in fill[done:upto]: a.e(t)
        done = upto


def interleave(a, chains):
    for i in range(max(map(len, chains))):
        for c in chains:
            if i < len(c): a.e(c[i])


def div24(a, dst_row, dst_rem, src, tmp):
    a.e(f"v_mul_u32_u24 {tmp}, 2731, {src}")
    a.e(f"v_lshrrev_b32 {dst_row}, 16, {tmp}")
    a.e(f"v_mul_u32_u24 {tmp}, 24, {dst_row}")
    a.e(f"v_sub_u32 {dst_rem}, {src}, {tmp}")


def stamp(a, o, k, tag=''):
    if {2: "", 3: "pro", 4: "tail", 5: "start"}.get(o["stamps"]) != tag: return
    a.e("s_waitcnt lgkmcnt(0)")
    a.e("s_memrealtime s[94:95]")
    a.e("s_waitcnt lgkmcnt(0)")
    if isinstance(k, int): a.e(f"s_mov_b32 s{70+k}, s94")
    else:
        base, reg, n = k
        for i in range(n):
            a.e(f"s_cmp_eq_u32 s{reg}, {i}")
            a.e(f"s_cselect_b32 s{70+base+i}, s94, s{70+base+i}")


def endstep(a, vm=None):
    a.e("s_waitcnt lgkmcnt(0)" if vm is None else f"s_waitcnt vmcnt({vm}) lgkmcnt(0)")
    a.e("s_barrier")


def idle(a, tag, n):
    if n <= 2:
        for _ in range(n): a.e("s_barrier")
        return
    a.e(f"s_mov_b32 s{S_T}, {n}")
    a.label(f"L_{tag}")
    a.e("s_barrier")
    a.e(f"s_sub_u32 s{S_T}, s{S_T}, 1")
    a.e(f"s_cmp_lg_u32 s{S_T}, 0")
    a.branch(f"s_cbranch_scc1 L_{tag}")


def lane_id(a, r):
    a.e(f"v_mbcnt_lo_u32_b32 v{r}, -1, 0")
    a.e(f"v_mbcnt_hi_u32_b32 v{r}, -1, v{r}")


def dma_offsets_q(a, vq, vx, t):
    chains = []
    for j in range(3):
        r = Rec()
        T0, T1, T2, T3 = (f"v{t+4*j+k}" for k in range(4))
        r.e(f"v_add_u32 {T0}, {64*j}, v0")
        div24(r, T1, T2, T0, T3)
        r.e(f"v_and_or_b32 {T3}, {T1}, 2, s{S_T}")
        r.e(f"v_xor_b32 {T2}, {T2}, {T3}")
        r.e(f"v_mul_u32_u24 {T1}, 12288, {T1}")
        r.e(f"v_lshl_add_u32 {T1}, {T2}, 4, {T1}")
        r.e(f"v_subrev_u32 v{vq+j}, {1024*j}, {T1}")
        chains.append(r.t)
    T0, T1 = f"v{t+12}", f"v{t+13}"
    a.e(f"s_and_b32 s{S_T}, s{S_W}, 1")
    a.e(f"s_lshl_b32 s{S_T}, s{S_T}, 2")
    chains.append([f"v_lshrrev_b32 {T0}, 3, v0", f"v_and_b32 {T0}, 6, {T0}", f"v_and_b32 {T1}, 7, v0",
                   f"v_xor_b32 {T0}, {T0}, {T1}", f"v_lshrrev_b32 {T1}, 3, v0", f"v_mul_u32_u24 {T1}, 1280, {T1}",
                   f"v_lshl_add_u32 v{vx}, {T0}, 4, {T1}"])
    interleave(a, chains)


def wq_share(a, dst, T0, T1, T2):
    a.e(f"s_and_b32 s{S_T}, s{S_W}, 1")
    a.e(f"s_lshl_b32 s{S_T}, s{S_T}, 6")
    a.e(f"v_add_u32 {T0}, s{S_T}, v0")
    a.e(f"v_mul_u32_u24 {T1}, 21846, {T0}")
    a.e(f"v_lshrrev_b32 {T1}, 16, {T1}")
    a.e(f"v_mul_u32_u24 {T2}, 3, {T1}")
    a.e(f"v_sub_u32 {T2}, {T0}, {T2}")
    a.e(f"v_mul_u32_u24 {T1}, 12288, {T1}")
    a.e(f"v_lshl_add_u32 {dst}, {T2}, 7, {T1}")


def scalars_q(a, mq, mx, oq, ox, head):
    a.e(f"s_mul_i32 s{mq}, s{S_W}, 3072")
    a.e(f"s_lshl_b32 s{mx}, s{S_W}, 10")
    a.e(f"s_mul_i32 s{oq}, s{S_HG}, 1536")
    a.e(f"s_mul_i32 s{S_T}, s{S_W}, {8*12288}")
    a.e(f"s_add_u32 s{oq}, s{oq}, s{S_T}")
    if head: a.e(f"s_add_u32 s{oq}, s{oq}, {384*head}")
    a.e(f"s_mul_i32 s{ox}, s{S_B}, 81920")
    a.e(f"s_mul_i32 s{S_T}, s{S_W}, {8*1280}")
    a.e(f"s_add_u32 s{ox}, s{ox}, s{S_T}")


def burst_q(a, o, R, la, lx, lb):
    vq, vx, mq, mx, oq, ox = R
    wp, xp = pol(o["wpol"]), pol(o["xpol"])
    a.e(f"s_add_u32 m0, s{mq}, {la}")
    a.e(f"s_add_u32 s{S_T}, s{ox}, {32*1280}")
    for j in range(3):
        a.e(f"buffer_load_dwordx4 v{vq+j}, {sq(S_WQ)}, s{oq} offen offset:{1024*j}{wp} lds")
    a.e(f"s_add_u32 m0, s{mx}, {lx}")
    a.e(f"s_add_u32 s{oq}, s{oq}, {32*12288}")
    a.e(f"buffer_load_dwordx4 v{vx}, {sq(S_XI)}, s{ox} offen{xp} lds")
    a.e(f"s_add_u32 m0, s{mx}, {lx+4096}")
    a.e(f"s_add_u32 s{ox}, s{ox}, 128")
    a.e(f"buffer_load_dwordx4 v{vx}, {sq(S_XI)}, s{S_T} offen{xp} lds")
    a.e(f"s_add_u32 m0, s{mq}, {lb}")
    a.e("s_nop 0")
    for j in range(3):
        a.e(f"buffer_load_dwordx4 v{vq+j}, {sq(S_WQ)}, s{oq} offen offset:{1024*j}{wp} lds")
    a.e(f"s_add_u32 s{oq}, s{oq}, {32*12288}")


def tail_slot(n):
    k = n % 5
    return WB + k * 24576 if k < 3 else (k - 3) * 24576


def tail_offsets(a, vt, mt, ot, lane, T):
    T0, T1 = T
    a.e(f"v_lshrrev_b32 {T0}, 3, {lane}")
    a.e(f"v_and_b32 {T0}, 2, {T0}")
    a.e(f"v_and_b32 {T1}, 7, {lane}")
    a.e(f"v_xor_b32 {T0}, {T0}, {T1}")
    a.e(f"v_lshrrev_b32 {T1}, 3, {lane}")
    a.e(f"v_mul_u32_u24 {T1}, 1280, {T1}")
    a.e(f"v_lshl_add_u32 v{vt}, {T0}, 4, {T1}")
    a.e(f"v_xor_b32 v{vt+1}, 64, v{vt}")
    a.e(f"s_mul_i32 s{mt}, s{S_W}, 6144")
    a.e(f"s_mul_i32 s{ot}, s{S_HG}, {4*245760}")
    a.e(f"s_mul_i32 s{S_T2}, s{S_W}, {48*1280}")
    a.e(f"s_add_u32 s{ot}, s{ot}, s{S_T2}")
    a.e(f"s_add_u32 s{ot}, s{ot}, {3*245760}")


def tail_tile(a, o, vt, mt, ot, n):
    for j in range(6):
        a.e(f"s_add_u32 m0, s{mt}, {tail_slot(n) + 1024*j}")
        a.e(f"s_add_u32 s{S_T2}, s{ot}, {128*n + 8*1280*j}")
        a.e(f"buffer_load_dwordx4 v{vt+(j&1)}, {sq(S_WO)}, s{S_T2} offen{pol(o['wpol'])} lds")


def pro_slot(n):
    return (n + 2) % 3


PY, PQ, PFA, PFB = 96, 48, 36, 20
P_T0, P_VQ, P_VX, P_VO, P_AQ, P_AW, P_AX, P_AO, P_T1, P_QW, P_DUM = 0, 1, 4, 5, 10, 13, 15, 16, 17, 18, 19
S_C, S_MQ, S_MX, S_MO, S_OQ, S_OX, S_OO, S_P = 50, 51, 52, 53, 54, 55, 56, 58
PR = (P_VQ, P_VX, S_MQ, S_MX, S_OQ, S_OX)


def p_burst_q(a, o, D):
    b = WB + D * 40960
    burst_q(a, o, PR, b, b + 32768, b + 20480)
    return 8


def p_burst_o(a, o, D):
    wp = pol(o["wpol"])
    for h in range(2):
        b = WB + D * 40960 + h * 20480
        a.e(f"s_add_u32 m0, s{S_MO}, {b}")
        a.e(f"s_add_u32 s{S_T}, s{S_OO}, 4096")
        for j in range(4):
            a.e(f"buffer_load_dwordx4 v{P_VO+j}, {sq(S_WO)}, s{S_OO} offen offset:{1024*j}{wp} lds")
        a.e(f"s_add_u32 m0, s{S_MO}, {b+4096}")
        a.e(f"s_add_u32 s{S_OO}, s{S_OO}, 20480")
        a.e(f"buffer_load_dwordx4 v{P_VO+4}, {sq(S_WO)}, s{S_T} offen{wp} lds")
    return 10


def p_toggle(a, regs, D):
    for r in regs:
        a.e(f"v_add_u32 v{r}, 40960, v{r}" if D == 0 else f"v_subrev_u32 v{r}, 40960, v{r}")


def tr_pair(f, addr, off, delta):
    return [f"ds_read_b64_tr_b16 {v(f,2)}, v{addr} offset:{off}", f"ds_read_b64_tr_b16 {v(f+2,2)}, v{addr} offset:{off+delta}"]


def mfma16(acc, fa, fb, zero=False):
    return f"v_mfma_f32_16x16x32_bf16 {v(acc,4)}, {v(fa,4)}, {v(fb,4)}, {'0' if zero else v(acc,4)}"


def quad(reads, mf, rd, acc, f, fb, zero=False):
    for qs in range(4):
        reads.append(rd if qs == 0 else [])
        mf.append(mfma16(acc + 4 * qs, f, fb + 4 * qs, zero))


def p_qstep(a, o, qs, fill=()):
    h = qs & 1
    reads, mf = [], []
    for i in range(3):
        quad(reads, mf, tr_pair(PFA + 4 * i, P_AQ + i, h * 20480, 1536), PQ + 16 * i, PFA + 4 * i, PFB, qs == 0)
    ax = P_AX
    if h:
        a.e(f"v_xor_b32 v{P_T0}, 64, v{P_AX}"); ax = P_T0
    xr = [f"ds_read_b128 {v(PFB+4*k,4)}, v{ax} offset:{2048*k}" for k in range(4)]
    reads[0] = xr[:1] + reads[0] + xr[1:]
    if qs == 5: mf[o["xbar"]] = [mf[o["xbar"]], "s_barrier"]
    pipe(a, reads, mf, list(fill), o["pq"])
    if h: p_toggle(a, [P_AQ, P_AQ + 1, P_AQ + 2, P_AX], (qs >> 1) & 1)


def p_oreads(a, dst, tau, tmp):
    ao = P_AO
    if tau & 1:
        a.e(f"v_xor_b32 v{tmp}, 64, v{P_AO}"); ao = tmp
    return [f"ds_read_b128 {v(dst+4*k,4)}, v{ao} offset:{6144*k + (tau>>1)*128}" for k in range(4)]


def p_ostep(a, o, s, fill=()):
    h = s & 1
    reads, mf = [], []
    for i in range(5):
        T = 5 * h + i
        f = PFA + 4 * (i % 3)
        quad(reads, mf, tr_pair(f, P_AW + (T & 1), (T >> 1) * 256, 5120), PY + 16 * T, f, PFB)
    if not h:
        xr = p_oreads(a, PFB, s >> 1, P_T0)
        reads[0] = xr[:1] + reads[0] + xr[1:]
    pipe(a, reads, mf, list(fill), o["po"])
    if h: p_toggle(a, [P_AW, P_AW + 1], (s >> 1) & 1)


def p_even(a, o, step, idx, burst, D):
    r = Rec(); n = burst(r, o, D)
    if o["pdma"] == 1:
        for x in r.t: a.e(x)
        step(a, o, idx)
    elif o["pdma"] == 2: step(a, o, idx, r.t)
    else:
        step(a, o, idx)
        for x in r.t: a.e(x)
    endstep(a, n)


def p_choice(a, tag, cond, first, second):
    a.e(cond)
    a.branch(f"s_cbranch_scc1 L_{tag}_b")
    a.e(f"s_waitcnt vmcnt({first()})")
    a.branch(f"s_branch L_{tag}_j")
    a.label(f"L_{tag}_b")
    a.e(f"s_waitcnt vmcnt({second()})")
    a.label(f"L_{tag}_j")
    endstep(a)


def p_pro_tick(a, o, n):
    XF, F, AQ2, AX1 = 96, 128, 152, 155
    s = pro_slot(n)
    reads, mf = [], []
    for h in range(2):
        xr = [f"ds_read_b128 {v(XF+16*h+4*k,4)}, v{AX1 if h else P_AX} offset:{40960 + s*8192 + 2048*k}" for k in range(4)]
        for i in range(3):
            f = F + 4 * (3 * h + i)
            rd = tr_pair(f, (AQ2 if s == 2 else P_AQ) + i, (24576 if s == 1 else 0) + h * 12288, 1536)
            if i == 0: rd = xr[:1] + rd + xr[1:]
            quad(reads, mf, rd, PQ + 16 * i, f, XF + 16 * h, n == 0 and h == 0)
    pipe(a, reads, mf, [], 10)


def p_pack_block(a, i):
    y = PY + 16 * i
    for k in range(8): a.e(f"v_cvt_pk_bf16_f32 v{y+k}, v{y+2*k}, v{y+2*k+1}")
    for t in range(2):
        a.e(f"v_permlane16_swap_b32 v{y+4*t}, v{y+4*t+2}")
        a.e(f"v_permlane16_swap_b32 v{y+4*t+1}, v{y+4*t+3}")


def p_store_block(a, o, i):
    for t in range(2):
        a.e(f"buffer_store_dwordx4 {v(PY+16*i+4*t,4)}, v1, {sq(S_WS)}, s{S_P} offen offset:{t*1024}{pol(o['stpol'])}")
    a.e(f"s_add_u32 s{S_P}, s{S_P}, 8192")


def tr_lane_parts(a, lane, G1, RR, ROW, C1, B8):
    a.e(f"v_lshrrev_b32 {ROW}, 4, {lane}")
    a.e(f"v_and_b32 {G1}, 1, {ROW}")
    a.e(f"v_bfe_u32 {RR}, {lane}, 2, 2")
    a.e(f"v_lshl_add_u32 {ROW}, {ROW}, 3, {RR}")
    a.e(f"v_bfe_u32 {C1}, {lane}, 1, 1")
    a.e(f"v_and_b32 {B8}, 1, {lane}")
    a.e(f"v_lshlrev_b32 {B8}, 3, {B8}")


def gen_P(a, o):
    a.label("L_P")
    if o["prio"] == 1: a.e("s_setprio 1")
    T0, T1, T2, T3, T4, T5, T6 = (f"v{20+k}" for k in range(7))
    wq_share(a, T3, T0, T1, T2)
    a.e(f"v_mov_b32 {T2}, {OOB}")
    a.e(f"v_cmp_gt_u32 vcc, 120, {T0}")
    a.e(f"v_cndmask_b32 {T3}, {T2}, {T3}, vcc")
    a.e(f"v_mul_u32_u24 {T1}, {o['warm']}, v0")
    a.e(f"v_cmp_gt_u32 s[62:63], {786432 // o['warm']}, v0")
    a.e(f"v_cndmask_b32 {T1}, {T2}, {T1}, s[62:63]")
    a.e(f"s_mul_i32 s{S_OQ}, s{S_B}, {40*12288}")
    a.e(f"s_mul_i32 s{S_T}, s{S_HG}, 1536")
    a.e(f"s_add_u32 s{S_OQ}, s{S_OQ}, s{S_T}")
    a.e(f"s_lshl_b32 s{S_OX}, s{S_B}, 3"); a.e(f"s_add_u32 s{S_OX}, s{S_OX}, s{S_HG}")
    a.e(f"s_mul_i32 s{S_OX}, s{S_OX}, 786432")
    build_srds(a)
    a.e(f"s_cmp_ge_u32 s{S_W}, 2")
    a.branch("s_cbranch_scc1 L_Pw")
    a.e(f"buffer_load_dword v{P_DUM}, {T3}, {sq(S_WQ)}, s{S_OQ} offen{pol(o['pfpol'])}")
    a.branch("s_branch L_Pwj")
    a.label("L_Pw")
    a.e(f"s_cmp_eq_u32 s{S_W}, 2")
    a.e(f"s_cselect_b32 s60, s{S_K}, s{S_V}")
    a.e(f"s_cselect_b32 s61, s{S_K+1}, s{S_V+1}")
    a.e(f"s_mov_b32 s62, {KV_BYTES}")
    a.e(f"s_mov_b32 s63, 0x20000")
    a.e(f"buffer_load_dword v{P_DUM}, {T1}, s[60:63], s{S_OX} offen nt")
    a.label("L_Pwj")
    G1, RR, ROW, C1, B8 = T0, T1, T2, T3, T4
    tr_lane_parts(a, "v0", G1, RR, ROW, C1, B8)
    a.e(f"v_and_b32 {T5}, 2, {RR}")
    a.e(f"v_lshl_or_b32 {T5}, {G1}, 2, {T5}")
    a.e(f"v_mul_u32_u24 v27, 384, {ROW}")
    a.e(f"v_add_u32 v27, v27, {B8}")
    for i in range(3):
        a.e(f"s_mul_i32 s{S_T}, s{S_W}, 6")
        a.e(f"s_add_u32 s{S_T}, s{S_T}, {2*i}")
        a.e(f"v_add_u32 {T6}, s{S_T}, {C1}")
        a.e(f"v_xor_b32 {T6}, {T6}, {T5}")
        a.e(f"v_lshl_add_u32 {T6}, {T6}, 4, v27")
        a.e(f"v_add_u32 v{P_AQ+i}, {WB}, {T6}")
        a.e(f"v_add_u32 v{152+i}, {WB+49152}, {T6}")
    a.e(f"v_lshl_or_b32 {T5}, {G1}, 2, {RR}")
    a.e(f"v_lshlrev_b32 {T5}, 1, {T5}")
    a.e(f"v_mul_u32_u24 v27, 1280, {ROW}")
    a.e(f"v_add_u32 v27, v27, {B8}")
    a.e(f"s_lshl_b32 s{S_T}, s{S_W}, 1")
    a.e(f"v_add_u32 {T6}, s{S_T}, {C1}")
    a.e(f"v_xor_b32 {T6}, {T6}, {T5}")
    a.e(f"v_lshl_add_u32 {T6}, {T6}, 4, v27")
    a.e(f"v_add_u32 v{P_AW}, {WB}, {T6}")
    a.e(f"v_xor_b32 v{P_AW+1}, 128, v{P_AW}")
    a.e(f"v_and_b32 {T0}, 15, v0")
    a.e(f"v_lshrrev_b32 {T1}, 4, v0")
    a.e(f"v_and_b32 {T2}, 6, {T0}")
    a.e(f"v_xor_b32 {T3}, {T2}, {T1}")
    a.e(f"v_lshlrev_b32 {T3}, 4, {T3}")
    a.e(f"v_lshl_add_u32 {T4}, {T0}, 7, {T3}")
    a.e(f"v_add_u32 v{P_AX}, {WB+32768}, {T4}")
    a.e(f"v_xor_b32 v155, 64, v{P_AX}")
    a.e(f"v_mul_u32_u24 {T0}, 384, {T0}")
    a.e(f"v_add_u32 {T0}, {XB}, {T0}")
    a.e(f"v_add_u32 v{P_AO}, {T0}, {T3}")
    a.e(f"v_lshrrev_b32 {T3}, 1, {T1}")
    a.e(f"v_xor_b32 {T3}, {T3}, {T2}")
    a.e(f"v_lshl_add_u32 {T3}, {T3}, 4, {T0}")
    a.e(f"v_and_b32 {T1}, 1, {T1}")
    a.e(f"v_lshl_add_u32 v{P_QW}, {T1}, 3, {T3}")
    dma_offsets_q(a, P_VQ, P_VX, 28)
    a.e(f"s_lshr_b32 s{S_T}, s{S_W}, 1")
    a.e(f"s_lshl_b32 s{S_T}, s{S_T}, 2")
    for j in range(5):
        a.e(f"v_add_u32 {T0}, {64*j}, v0")
        a.e(f"v_mul_u32_u24 {T0}, 820, {T0}")
        a.e(f"v_lshrrev_b32 {T0}, 16, {T0}")
        a.e(f"v_or_b32 {T0}, s{S_T}, {T0}")
        a.e(f"v_lshlrev_b32 {T0}, 1, {T0}")
        a.e(f"v_xor_b32 {T0}, {T0}, v0")
        a.e(f"v_lshlrev_b32 v{P_VO+j}, 4, {T0}")
    scalars_q(a, S_MQ, S_MX, S_OQ, S_OX, 1)
    a.e(f"s_mul_i32 s{S_MO}, s{S_W}, 5120")
    a.e(f"s_mul_i32 s{S_OO}, s{S_HG}, {4*245760}")
    a.e(f"s_add_u32 s{S_OO}, s{S_OO}, s{S_MO}")
    a.e(f"s_mov_b32 s{S_C}, 1")
    a.e("s_barrier")
    stamp(a, o, 1)
    a.raw("L_Ppro:")
    for n in range(10):
        p_pro_tick(a, o, n)
        endstep(a)

    a.label("L_Pcyc")
    for i in range(24):
        a.e(f"v_cvt_pk_bf16_f32 v{PQ+i}, v{PQ+2*i}, v{PQ+2*i+1}")
    for i in range(3):
        a.e(f"s_mul_i32 s{S_T}, s{S_W}, 3")
        a.e(f"s_add_u32 s{S_T}, s{S_T}, {i}")
        a.e(f"s_and_b32 s{S_T2}, s{S_T}, 3")
        a.e(f"s_lshl_b32 s{S_T2}, s{S_T2}, 5")
        a.e(f"s_lshr_b32 s{S_T}, s{S_T}, 2")
        a.e(f"s_lshl_b32 s{S_T}, s{S_T}, 7")
        t = (P_T0, P_T1)[i & 1]
        a.e(f"v_xor_b32 v{t}, s{S_T2}, v{P_QW}")
        a.e(f"v_add_u32 v{t}, s{S_T}, v{t}")
        for k in range(4):
            a.e(f"ds_write_b64 v{t}, {v(PQ+8*i+2*k,2)} offset:{6144*k}")
    a.e("s_waitcnt lgkmcnt(0)")
    a.e(f"s_cmp_eq_u32 s{S_C}, 4")
    a.branch("s_cbranch_scc0 L_Pc3")
    idle(a, "Pi4", 4)
    a.branch("s_branch L_PO")
    a.label("L_Pc3")
    a.e(f"s_cmp_eq_u32 s{S_C}, 1")
    a.branch("s_cbranch_scc0 L_PQa")
    a.e("s_barrier")
    p_burst_q(a, o, 0)
    endstep(a, 3)

    a.label("L_PQa")
    for qs in range(4):
        if qs == 0:
            p_even(a, o, p_qstep, 0, p_burst_q, 1); continue
        p_qstep(a, o, qs)
        if qs == 2: p_choice(a, "Pa", f"s_cmp_ge_u32 s{S_C}, 2", lambda: p_burst_q(a, o, 0), lambda: p_burst_o(a, o, 0))
        else: endstep(a, 3 if qs == 1 else 0)
    a.e(f"s_cmp_ge_u32 s{S_C}, 2")
    a.branch("s_cbranch_scc1 L_PO")
    for i in range(160): a.e(f"v_mov_b32 v{PY+i}, 0")
    idle(a, "Pi10", 10)
    a.branch("s_branch L_PQb")

    a.label("L_PO")
    stamp(a, o, (2, S_C, 5))
    for s in range(12):
        if s < 10 and s % 2 == 0:
            p_even(a, o, p_ostep, s, p_burst_o, ((s >> 1) + 1) & 1); continue
        p_ostep(a, o, s)
        if s == 10: p_choice(a, "Po", f"s_cmp_eq_u32 s{S_C}, 4", lambda: p_burst_q(a, o, 0), lambda: 0)
        elif s == 11: endstep(a, 3)
        else: endstep(a, 0)
    a.e(f"s_cmp_eq_u32 s{S_C}, 4")
    a.branch("s_cbranch_scc1 L_Ptail")

    a.label("L_PQb")
    for qs in range(4, 20):
        if qs < 18 and qs % 2 == 0:
            p_even(a, o, p_qstep, qs, p_burst_q, ((qs >> 1) + 1) & 1); continue
        p_qstep(a, o, qs)
        if qs == 18:
            a.e(f"s_add_u32 s{S_OQ}, s{S_OQ}, {(384 - 640*12288) & 0xffffffff}")
            a.e(f"s_sub_u32 s{S_OX}, s{S_OX}, 1280")
            p_choice(a, "Pb", f"s_cmp_eq_u32 s{S_C}, 3", lambda: p_burst_q(a, o, 0), lambda: p_burst_o(a, o, 0))
        else: endstep(a, 0 if qs == 19 else 3)
    a.e(f"s_add_u32 s{S_C}, s{S_C}, 1")
    a.branch("s_branch L_Pcyc")

    a.label("L_Ptail")
    VT, TA = 2, 4
    lane_id(a, 5)
    tail_offsets(a, VT, S_MO, S_OO, "v5", ("v6", "v7"))
    tr_lane_parts(a, "v5", "v6", "v7", "v8", "v9", "v10")
    a.e("v_and_b32 v7, 2, v7")
    a.e("v_lshl_or_b32 v7, v6, 2, v7")
    a.e(f"s_lshl_b32 s{S_T}, s{S_W}, 1")
    a.e(f"v_add_u32 v9, s{S_T}, v9")
    a.e("v_xor_b32 v9, v9, v7")
    a.e("v_lshl_add_u32 v9, v9, 4, v10")
    a.e(f"v_lshl_add_u32 v{TA}, v8, 7, v9")
    a.e("v_lshlrev_b32 v1, 4, v5")
    a.e(f"s_lshl_b32 s{S_P}, s{S_BR}, 4"); a.e(f"s_add_u32 s{S_P}, s{S_P}, s{S_B}")
    a.e(f"s_lshl_b32 s{S_P}, s{S_P}, 3"); a.e(f"s_add_u32 s{S_P}, s{S_P}, s{S_HG}")
    a.e(f"s_mul_i32 s{S_P}, s{S_P}, 81920")
    a.e(f"s_lshl_b32 s{S_T}, s{S_W}, 11"); a.e(f"s_add_u32 s{S_P}, s{S_P}, s{S_T}")
    for n in range(3):
        tail_tile(a, o, VT, S_MO, S_OO, n)
        idle(a, "", 2)
    idle(a, "Pj10", 10)
    tail_tile(a, o, VT, S_MO, S_OO, 3)
    idle(a, "", 2)
    tail_tile(a, o, VT, S_MO, S_OO, 4)
    endstep(a, 6)
    stamp(a, o, 7)
    SB, F = 8, 24
    a.e(f"v_xor_b32 v{P_T0}, 64, v{P_AO}")
    a.e(f"v_mov_b32 v7, v{P_AO}")
    ob = lambda dst, tau: [f"ds_read_b128 {v(dst+4*k,4)}, v{P_T0 if tau & 1 else 7} offset:{6144*k + (tau>>1)*128}" for k in range(4)]
    order = (3, 0, 4, 1, 5, 2)
    for t in ob(SB, 3): a.e(t)
    for p in range(5):
        for k in range(2): a.e(f"v_add_u32 v{5+k}, {tail_slot(2*p+k)}, v{TA}")
        reads, mf = [], []
        for gi, tau in enumerate(order):
            for k in range(2):
                f = F + 4 * ((len(mf) // 4) % 6)
                rd = tr_pair(f, 5 + k, tau * 4096, 512)
                if p == 0 and tau < 3 and k == 0: rd = ob(PQ + 16 * tau, tau) + rd
                quad(reads, mf, rd, PY + 16 * (2 * p + k), f, PQ + 16 * tau if tau < 3 else SB)
            if tau >= 3 and not (p == 4 and tau == 5):
                mf[-1] = [mf[-1]] + ob(SB, 3 if tau == 5 else tau + 1)
        fill = []
        if p: fill = rec(p_pack_block, 2 * p - 2) + rec(p_pack_block, 2 * p - 1)
        for m in TAIL_STORES.get(p, []): fill += rec(p_store_block, o, m)
        for n in range(4):
            for t in reads[n]: a.e(t)
            reads[n] = []
        pipe(a, reads, mf, fill, 16, skip=6)
        if p == 0: a.e("s_waitcnt vmcnt(0)")
        if p < 4: a.e("s_barrier")
    stamp(a, o, 8)
    for m in (8, 9):
        p_pack_block(a, m)
        p_store_block(a, o, m)
    a.e("s_waitcnt vmcnt(0)")
    a.branch("s_branch L_red")


TAIL_STORES = {3: [0, 1, 2, 3, 4, 5], 4: [6, 7]}


AS, AR_, AP, AF = 128, 80, 56, 24
A_VD, A_AK, A_AV, A_M, A_L, A_R, A_T0, A_T1, A_PF, A_DUM = 1, 4, 6, 14, 16, 18, 20, 21, 22, 23
A_XQ, A_XO, A_EW, A_ER, A_FI, A_FO = 48, 50, 52, 53, 54, 55
S_SP, S_PER, S_MK, S_OK, S_OV, S_CS, S_PFO, S_PFS, S_PF = 49, 50, 51, 52, 53, 54, 55, 56, 60
AR = (128, 131, 68, 69, 96, 97)


def a_burst(a, o, D, srdreg, off):
    kp = pol(o["kvpol"])
    for h in range(2):
        a.e(f"s_add_u32 m0, s{S_MK}, {D*24576+h*12288}")
        if h: a.e(f"s_add_u32 s{off}, s{off}, 12288")
        else: a.e("s_nop 0")
        for j in range(3):
            a.e(f"buffer_load_dwordx4 v{A_VD+j}, {sq(srdreg)}, s{off} offen offset:{1024*j}{kp} lds")
    a.e(f"s_add_u32 s{off}, s{off}, 12288")


def a_touch(a, o):
    a.e(f"buffer_load_dword v{A_DUM}, v{A_PF}, {sq(S_PF)}, s{S_PFO} offen{pol(o['pfpol'])}")
    a.e(f"s_add_u32 s{S_PFO}, s{S_PFO}, s{S_PFS}")


def soft_chunk(j):
    b = AS + 8 * j
    t = []
    for i in range(8): t.append(f"v_fma_f32 v{b+i}, v{b+i}, s{S_CS}, -v{A_M+(i>>2)}")
    for i in range(8): t.append(f"v_exp_f32 v{b+i}, v{b+i}")
    for i in (0, 4, 1, 5, 2, 6, 3, 7):
        if j == 0 and i % 4 == 0: t.append(f"v_mov_b32 v{A_L+(i>>2)}, v{b+i}")
        else: t.append(f"v_add_f32 v{A_L+(i>>2)}, v{A_L+(i>>2)}, v{b+i}")
    for qs in range(2):
        for i in range(2): t.append(f"v_cvt_pk_bf16_f32 v{b+4*qs+i}, v{b+4*qs+2*i}, v{b+4*qs+2*i+1}")
    for qs in range(2):
        t.append(f"ds_write_b64 v{A_EW}, {v(b+4*qs,2)} offset:{(j&1)*4096 + qs*512}")
    return t


def max_chunk(s):
    b = AS + 8 * s
    t = []
    for i in range(2):
        for qs in range(2):
            r = b + 4 * qs + 2 * i
            if s == 0 and i == 0: t.append(f"v_max_f32 v{A_M+qs}, v{r}, v{r+1}")
            else: t.append(f"v_max3_f32 v{A_M+qs}, v{A_M+qs}, v{r}, v{r+1}")
    return t


def xlane2(a, reg, op):
    for sw in ("v_permlane32_swap_b32", "v_permlane16_swap_b32"):
        for k in range(2): a.e(f"v_mov_b32 v{A_T0+k}, v{reg+k}")
        for k in range(2): a.e(f"{sw} v{reg+k}, v{A_T0+k}")
        for k in range(2): a.e(f"{op} v{reg+k}, v{reg+k}, v{A_T0+k}")


def a_rowsum(a):
    xlane2(a, A_L, "v_add_f32")
    a.e(f"ds_write_b64 v{A_EW}, {v(A_L,2)}")


def a_qread(ks):
    return [f"ds_read_b128 {v(AR_+8*ks+4*qs,4)}, v{A_XQ+(ks&1)} offset:{qs*6144 + (ks>>1)*128}" for qs in range(2)]


def a_owrite(i):
    t = [f"v_xor_b32 v{A_T0+(i&1)}, {32*(i&3)}, v{A_XO+(1 if i in (2, 3) else 0)}"]
    for qs in range(2):
        t.append(f"ds_write_b64 v{A_T0+(i&1)}, {v(AP+4*i+2*qs,2)} offset:{qs*6144 + (i>>2)*128}")
    return t


def a_onorm(a, after):
    a.e(f"ds_read_b64 {v(A_T0,2)}, v{A_ER}")
    for k in range(2): a.e(f"v_add_f32 v{A_L+k}, v{A_L+k}, v{A_T0+k}")
    for k in range(2): a.e(f"v_rcp_f32 v{A_R+k}, v{A_L+k}")
    for i in range(6):
        for qs in range(2):
            r = AR_ + 8 * i + 4 * qs
            for k in range(4): a.e(f"v_mul_f32 v{r+k}, v{r+k}, v{A_R+qs}")
        for qs in range(2):
            r = AR_ + 8 * i + 4 * qs
            for k in range(2): a.e(f"v_cvt_pk_bf16_f32 v{AP+4*i+2*qs+k}, v{r+2*k}, v{r+2*k+1}")
        for t in after(i): a.e(t)


def hoist(a, reads, depth, pre):
    if not pre: return
    for i in range(min(depth, len(reads))):
        for t in reads[i]: a.e(t)
        reads[i] = []
    for t in pre: a.e(t)


def a_kstep(a, o, s, extra=(), pre=()):
    reads, mf = [], []
    for i in range(12):
        ks, qs = divmod(i, 2)
        f = AF + 4 * ks
        reads.append([] if qs else [f"ds_read_b128 {v(f,4)}, v{A_AK+(ks&1)} offset:{(s&3)*12288 + (ks>>1)*128}"])
        mf.append(mfma16(AS + 8 * s + 4 * qs, f, AR_ + 8 * ks + 4 * qs, ks == 0))
    hoist(a, reads, o["adepth"], pre)
    pipe(a, reads, mf, (max_chunk(s - 1) if s else []) + list(extra), o["adepth"])
    if s == 15:
        for t in max_chunk(15): a.e(t)
        xlane2(a, A_M, "v_max_f32")
        a.e(f"ds_write_b64 v{A_EW}, {v(A_M,2)} offset:4096")


def a_vstep(a, o, j, pre=()):
    s = 16 + j
    b = AS + 8 * j
    reads, mf = [], []
    for n in range(12):
        i, qs = divmod(n, 2)
        f = AF + 4 * i
        off = (s & 3) * 12288 + (i >> 2) * 128
        reads.append([] if qs else [f"ds_read_b64_tr_b16 {v(f,2)}, v{A_AV+(i&3)} offset:{off}",
                                    f"ds_read_b64_tr_b16 {v(f+2,2)}, v{A_AV+4+(i&3)} offset:{off}"])
        mf.append(mfma16(AR_ + 8 * i + 4 * qs, f, b + 4 * qs, j == 0))
    if j == 0:
        a.e(f"ds_read_b64 {v(A_T0,2)}, v{A_ER} offset:4096")
        for n in range(0, 12, 2):
            for t in reads[n]: a.e(t)
            reads[n] = []
        for k in range(2): a.e(f"v_max_f32 v{A_M+k}, v{A_M+k}, v{A_T0+k}")
        for k in range(2): a.e(f"v_mul_f32 v{A_M+k}, s{S_CS}, v{A_M+k}")
        for t in soft_chunk(0): a.e(t)
        endstep(a)
    for qs in range(2):
        a.e(f"ds_read_b64 {v(b+4*qs+2,2)}, v{A_ER} offset:{(j&1)*4096 + qs*512}")
    hoist(a, reads, o["adepth"], pre)
    pipe(a, reads, mf, soft_chunk(j + 1) if j < 15 else rec(a_rowsum), o["adepth"], o["vspan"])


def spin(a, tag, load, test):
    a.e("s_mov_b32 s40, 0")
    a.label(f"L_{tag}")
    a.e(load)
    a.e("s_add_u32 s40, s40, 1")
    a.e("s_waitcnt vmcnt(0)")
    for t in test: a.e(t)
    a.branch(f"s_cbranch_scc1 L_{tag}_ok")
    a.e("s_cmp_lt_u32 s40, 0x20000")
    a.branch(f"s_cbranch_scc1 L_{tag}")
    a.label(f"L_{tag}_ok")


def gen_A(a, o):
    a.comment("attention waves: 16 query rows each; they also feed the first and the last projection")
    if o["prio"] == 2: a.e("s_setprio 1")
    T0, T1, T2, T3 = "v24", "v25", "v26", "v27"
    dma_offsets_q(a, AR[0], AR[1], 32)
    scalars_q(a, *AR[2:], 0)
    chains = []
    for j in range(3):
        r = Rec()
        U0, U1, U2, U3 = (f"v{32+4*j+k}" for k in range(4))
        r.e(f"v_add_u32 {U0}, {64*j}, v0")
        r.e(f"v_mul_u32_u24 {U1}, 2731, {U0}")
        r.e(f"v_lshrrev_b32 {U1}, 16, {U1}")
        r.e(f"v_and_b32 {U1}, 6, {U1}")
        r.e(f"v_xor_b32 {U1}, {U1}, v0")
        r.e(f"v_lshlrev_b32 v{A_VD+j}, 4, {U1}")
        chains.append(r.t)
    kv_offsets = chains
    a.e(f"s_mul_i32 s98, s{S_B}, 81920")
    a.e(f"s_mul_i32 s{S_T}, s{S_HALF}, 40960"); a.e(f"s_add_u32 s98, s98, s{S_T}")
    a.e(f"s_mul_i32 s{S_T}, s{S_W}, 10240"); a.e(f"s_add_u32 s98, s98, s{S_T}")
    a.e(f"v_lshlrev_b32 v28, 7, v0")
    a.e(f"v_add_u32 v29, 8192, v28")
    a.e(f"v_mov_b32 {T2}, {OOB}")
    a.e(f"v_cmp_gt_u32 vcc, 16, v0")
    a.e(f"v_cndmask_b32 v29, {T2}, v29, vcc")
    stamp(a, o, 2, "start")
    build_srds(a)
    pp = pol(o["pfpol"])
    vm = []

    def W(n):
        s = pro_slot(n)
        burst_q(a, o, AR, WB + s * 24576, WB + 73728 + s * 8192, WB + s * 24576 + 12288)
        vm.extend([("W", n)] * 8)

    def K0():
        a_burst(a, o, 0, S_K, S_OK); vm.extend([("K", 0)] * 3 + [("K", 1)] * 3)

    def late_touches():
        a.e(f"s_cmp_ge_u32 s{S_W}, 2")
        a.e(f"s_cselect_b32 s{S_T}, {OOB}, s{S_PFO}")
        a.e(f"buffer_load_dword v{A_DUM}, v{A_PF}, {sq(S_PF)}, s{S_T} offen{pp}"); vm.append("t")
        a.e(f"s_add_u32 s{S_PFO}, s{S_PFO}, s99")
        a.e(f"s_cmp_eq_u32 s{S_W}, 0")
        a.e(f"s_cselect_b32 s{S_T}, s46, {OOB}")
        a.e(f"s_cselect_b32 s{S_T2}, s47, {OOB}")
        a.e(f"buffer_load_dword v{A_FI}, v28, {sq(S_WS)}, s{S_T} offen sc1"); vm.append("f")
        a.e(f"buffer_load_dword v{A_FO}, v29, {sq(S_WS)}, s{S_T2} offen sc1"); vm.append("f")

    def wait_for(tag):
        last = max(i for i, x in enumerate(vm) if x == tag)
        return min(63, len(vm) - 1 - last)

    stamp(a, o, 3, "start")
    W(0)
    stamp(a, o, 4, "start")
    interleave(a, kv_offsets)
    a.e(f"s_mul_i32 s{S_MK}, s{S_W}, 3072")
    a.e(f"s_lshl_b32 s{S_OK}, s{S_B}, 3"); a.e(f"s_add_u32 s{S_OK}, s{S_OK}, s{S_HG}")
    a.e(f"s_mul_i32 s{S_OK}, s{S_OK}, 786432"); a.e(f"s_add_u32 s{S_OK}, s{S_OK}, s{S_MK}")
    a.e(f"s_mov_b32 s{S_OV}, s{S_OK}")
    a.e(f"buffer_load_dword v{A_DUM}, v28, {sq(S_XI)}, s98 offen{pp}"); vm.append("t")
    a.e(f"buffer_load_dword v{A_DUM}, v29, {sq(S_XI)}, s98 offen{pp}"); vm.append("t")
    stamp(a, o, 5, "start")
    if o["k0"] < 0: K0()
    W(1)
    stamp(a, o, 6, "start")
    if o["codepf"]:
        a.e("s_getpc_b64 s[100:101]")
        a.raw("L_pc:")
        a.e(f"s_sub_u32 s100, s100, L_pc-{KN}")
        a.e("s_subb_u32 s101, s101, 0")
        a.e("s_lshr_b32 s98, s2, 3")
        a.e(f"s_lshl_b32 s98, s98, 2")
        a.e(f"s_add_u32 s98, s98, s{S_W}")
        a.e(f"s_lshl_b32 s98, s98, 9")
        a.e("v_and_b32 v30, 3, v0")
        a.e("v_lshlrev_b32 v30, 7, v30")
        a.e("v_add_u32 v30, s98, v30")
        a.e(f"v_min_u32 v30, L_end-{KN}, v30")
        a.e(f"global_load_dword v{A_DUM}, v30, s[100:101]"); vm.append("t")
    a.e(f"s_lshl_b32 s44, s{S_BR}, 4")
    a.e(f"s_add_u32 s44, s44, s{S_B}")
    a.e("s_lshl_b32 s45, s44, 10")
    a.e(f"s_add_u32 s45, s45, {FLAGS}")
    a.e(f"s_lshl_b32 s46, s{S_HG}, 7")
    a.e(f"s_add_u32 s46, s46, s45")
    a.e(f"s_lshl_b32 s47, s{S_HG}, 2")
    a.e(f"s_add_u32 s47, s47, s45")
    wq_share(a, T1, T0, T1, T2)
    a.e(f"v_lshlrev_b32 {T2}, 7, {T0}")
    a.e(f"s_mov_b32 s{S_PFS}, 384")
    a.e(f"s_mov_b32 s{S_T}, {40*12288}")
    a.e(f"s_cmp_ge_u32 s{S_W}, 2")
    a.e(f"s_cselect_b64 vcc, -1, 0")
    a.e(f"s_cselect_b32 s{S_PFS}, 245760, s{S_PFS}")
    a.e(f"s_cselect_b32 s{S_T}, 15360, s{S_T}")
    a.e(f"s_cselect_b32 s{S_PF}, s{S_WO}, s{S_WQ}")
    a.e(f"s_cselect_b32 s{S_PF+1}, s{S_WO+1}, s{S_WQ+1}")
    a.e(f"s_cselect_b32 s99, 0, 384")
    a.e(f"s_mov_b32 s{S_PF+2}, {W_BYTES}")
    a.e(f"s_mov_b32 s{S_PF+3}, 0x20000")
    a.e(f"v_cndmask_b32 {T1}, {T1}, {T2}, vcc")
    a.e(f"v_mov_b32 {T2}, {OOB}")
    a.e(f"v_cmp_gt_u32 vcc, 120, {T0}")
    a.e(f"v_cndmask_b32 v{A_PF}, {T2}, {T1}, vcc")
    a.e(f"s_mul_i32 s{S_PFO}, s{S_T}, s{S_B}")
    a.e(f"s_mul_i32 s{S_T}, s{S_PFS}, s{S_HG}")
    a.e(f"s_lshl_b32 s{S_T}, s{S_T}, 2")
    a.e(f"s_add_u32 s{S_PFO}, s{S_PFO}, s{S_T}")
    a.e(f"s_add_u32 s{S_PFO}, s{S_PFO}, s99")
    a.e(f"s_and_b32 s{S_SP}, s{S_W}, 1")
    a.e(f"s_lshr_b32 s{S_T2}, s{S_W}, 1")
    a.e(f"s_mul_i32 s{S_T2}, s{S_T2}, 12288")
    a.e(f"s_add_u32 s{S_T2}, s{S_T2}, {XB}")
    a.e(f"s_mul_i32 s{S_T}, s{S_SP}, 6144")
    a.e(f"v_and_b32 {T0}, 15, v0")
    a.e(f"v_lshrrev_b32 {T1}, 4, v0")
    a.e(f"v_and_b32 {T2}, 6, {T0}")
    a.e(f"v_xor_b32 {T3}, {T2}, {T1}")
    a.e(f"v_mul_u32_u24 {T0}, 384, {T0}")
    a.e(f"v_lshl_add_u32 {T3}, {T3}, 4, {T0}")
    a.e(f"v_add_u32 v{A_AK}, s{S_T}, {T3}")
    a.e(f"v_xor_b32 v{A_AK+1}, 64, v{A_AK}")
    a.e(f"v_add_u32 v{A_XQ}, s{S_T2}, {T3}")
    a.e(f"v_xor_b32 v{A_XQ+1}, 64, v{A_XQ}")
    a.e(f"v_lshrrev_b32 {T3}, 1, {T1}")
    a.e(f"v_xor_b32 {T3}, {T3}, {T2}")
    a.e(f"v_lshl_add_u32 {T3}, {T3}, 4, {T0}")
    a.e(f"v_and_b32 {T2}, 1, {T1}")
    a.e(f"v_lshl_add_u32 {T3}, {T2}, 3, {T3}")
    a.e(f"v_add_u32 {T3}, s{S_T2}, {T3}")
    a.e(f"s_lshl_b32 s{S_T2}, s{S_SP}, 6")
    a.e(f"v_xor_b32 {T3}, s{S_T2}, {T3}")
    a.e(f"s_lshl_b32 s{S_T2}, s{S_SP}, 7")
    a.e(f"v_add_u32 v{A_XO}, s{S_T2}, {T3}")
    a.e(f"v_add_u32 v{A_XO+1}, s{S_T2}, v{A_XO}")
    a.e(f"v_lshrrev_b32 {T0}, 2, v0")
    a.e(f"v_and_b32 {T1}, 6, {T0}")
    a.e(f"v_bfe_u32 {T2}, v0, 1, 1")
    a.e(f"v_xor_b32 {T1}, {T1}, {T2}")
    a.e(f"v_mul_u32_u24 {T0}, 384, {T0}")
    a.e(f"v_lshl_add_u32 {T1}, {T1}, 4, {T0}")
    a.e(f"v_and_b32 {T2}, 1, v0")
    a.e(f"v_lshl_add_u32 {T1}, {T2}, 3, {T1}")
    a.e(f"s_lshl_b32 s{S_T2}, s{S_SP}, 6")
    a.e(f"v_xor_b32 {T1}, s{S_T2}, {T1}")
    for d in range(4):
        a.e(f"v_xor_b32 {T2}, {32*d}, {T1}")
        a.e(f"s_lshl_b32 s{S_T2}, s{S_SP}, {8 if d >= 2 else 7}")
        a.e(f"v_add_u32 {T2}, s{S_T2}, {T2}")
        a.e(f"v_add_u32 v{A_AV+d}, s{S_T}, {T2}")
        a.e(f"s_sub_u32 s{S_T2}, 6144, s{S_T}")
        a.e(f"v_add_u32 v{A_AV+4+d}, s{S_T2}, {T2}")
    a.e(f"v_lshlrev_b32 {T0}, 3, v0")
    a.e(f"s_lshl_b32 s{S_T}, s{S_W}, 10")
    a.e(f"s_add_u32 s{S_T}, s{S_T}, {EB}")
    a.e(f"v_add_u32 v{A_EW}, s{S_T}, {T0}")
    a.e(f"v_xor_b32 v{A_ER}, 1024, v{A_EW}")
    a.e("v_and_b32 v28, 7, v0")
    a.e("v_lshlrev_b32 v29, 7, v28")
    a.e("v_lshlrev_b32 v28, 2, v28")
    a.e(f"s_mov_b32 s{S_CS}, {CSCALE:#x}")
    a.e(f"s_mov_b32 s{S_PER}, 0")
    stamp(a, o, 12, "pro")
    stamp(a, o, 7, "start")
    endstep(a, wait_for(("W", 0)))
    stamp(a, o, 8, "start")
    stamp(a, o, 1, "pro")
    a.raw("L_Apro:")
    for n in range(10):
        if n + 2 < 10: W(n + 2)
        if n == o["kt"]: late_touches()
        if n == o["k0"]: K0()
        if n == o["k1"]:
            a_burst(a, o, 1, S_K, S_OK); vm.extend([("K", 2)] * 3 + [("K", 3)] * 3)
        endstep(a, wait_for(("W", n + 1)) if n < 9 else None)
        stamp(a, o, n + 2, "pro")
    if o["k1"] == 10:
        a_burst(a, o, 1, S_K, S_OK); vm.extend([("K", 2)] * 3 + [("K", 3)] * 3)
    endstep(a, wait_for(("K", 0)))
    first = dict(s0=wait_for(("K", 1)), s1=wait_for(("K", 2)))

    a.label("L_Aper")
    stamp(a, o, (1, S_PER, 4))
    for s in range(32):
        a.comment(f"A step {s}")
        if s == 16: stamp(a, o, (5, S_PER, 4))
        vmw = 3
        bt = []
        if s == 0:
            a.e(f"s_cmp_eq_u32 s{S_PER}, 0")
            a.branch("s_cbranch_scc1 L_A0")
            a_burst(a, o, 1, S_K, S_OK)
            a_onorm(a, a_qread)
            a.branch("s_branch L_A0j")
            a.label("L_A0")
            for ks in range(6):
                for t in a_qread(ks): a.e(t)
            a.label("L_A0j")
            vmw = min(6, first["s0"])
        elif s == 1:
            vmw = min(3, first["s1"])
        elif s == 30:
            a.e(f"s_cmp_eq_u32 s{S_PER}, 3")
            a.branch("s_cbranch_scc1 L_A30")
            a_burst(a, o, 0, S_K, S_OK)
            a.label("L_A30")
            vmw = 6
        elif s % 2 == 0:
            vmw = 6
            if s == o["pfstep"]:
                a.e(f"s_cmp_lt_u32 s{S_W}, 2")
                a.e(f"s_cselect_b32 s{S_T}, 2, 4")
                a.e(f"s_cmp_lt_u32 s{S_PER}, s{S_T}")
                a.e(f"s_cselect_b32 s{S_PFO}, s{S_PFO}, {OOB}")
                a_touch(a, o)
                vmw = 7
            D = ((s >> 1) + 1) & 1
            bt = rec(a_burst, o, D, *((S_K, S_OK) if s < 14 else (S_V, S_OV)))
            if o["adma"] == 0 or s == 16:
                for t in bt: a.e(t)
                bt = []
        if s == 5:
            a.comment("the entry reads have landed: count this workgroup in (d_debug word of the group)")
            a.e(f"s_and_b32 s{S_T}, s{S_HG}, 3")
            a.e(f"s_xor_b32 s{S_T}, s{S_T}, s{S_PER}")
            a.e(f"s_or_b32 s{S_T}, s{S_T}, s{S_W}")
            a.branch("s_cbranch_scc1 L_sy1")
            a.e("s_lshl_b32 s45, s44, 3")
            a.e(f"v_mov_b32 v{A_T0}, s45")
            a.e(f"v_mov_b32 v{A_T1}, 1")
            a.e("s_mov_b64 exec, 1")
            a.e(f"global_atomic_add v{A_T0}, v{A_T1}, s[{S_DBG}:{S_DBG+1}]")
            a.e("s_mov_b64 exec, -1")
            a.label("L_sy1")
        if s == 1: a_kstep(a, o, s, sum((a_owrite(i) for i in range(6)), []))
        elif s < 16: a_kstep(a, o, s, pre=bt)
        else: a_vstep(a, o, s - 16, pre=bt)
        if s == 30:
            a.e(f"s_cmp_eq_u32 s{S_PER}, 3")
            a.branch("s_cbranch_scc0 L_A30j")
            a.e("s_waitcnt vmcnt(0)")
            a.label("L_A30j")
        endstep(a, vmw + o["kvx"])
    a.e(f"s_add_u32 s{S_PER}, s{S_PER}, 1")
    a.e(f"s_cmp_lt_u32 s{S_PER}, 4")
    a.branch("s_cbranch_scc1 L_Aper")
    a.label("L_Aend")
    stamp(a, o, 9)
    stamp(a, o, 1, "tail")
    a_onorm(a, a_owrite)
    tail_offsets(a, 128, S_MK, S_OK, "v0", (T0, T1))
    endstep(a)
    stamp(a, o, 2, "tail")
    for p in range(4):
        if p: a.e(f"s_waitcnt vmcnt({6 if p < 3 else 0})")
        a.e("s_barrier")
        stamp(a, o, p + 3, "tail")
        for n in ([5, 6], [7, 8], [9], [])[p]: tail_tile(a, o, 128, S_MK, S_OK, n)
    a.e(f"s_cmp_lg_u32 s{S_W}, 0")
    a.branch("s_cbranch_scc1 L_red")
    a.e("s_lshl_b32 s45, s44, 3")
    a.e("v_mov_b32 v28, s45")
    spin(a, "in", f"global_load_dword v29, v28, s[{S_DBG}:{S_DBG+1}] sc1", ["v_readfirstlane_b32 s41, v29", "s_cmp_ge_u32 s41, 8"])


def reduce_loads(a, o, src, base):
    for i in range(8):
        a.e(f"buffer_load_dwordx4 {v(base+4*i,4)}, v1, {sq(S_WS)}, s{src} offen{pol(o['ldpol'])}")
        if i < 7: a.e(f"s_add_u32 s{src}, s{src}, 81920")


def reduce_sum(a, o, rem, G, base, after):
    a.e(f"s_and_b32 s41, s{rem}, 1")
    a.e("s_lshl_b32 s41, s41, 5")
    a.e(f"s_lshr_b32 s43, s{rem}, 1")
    a.e(f"s_and_b32 s42, s{G}, 15")
    a.e("s_lshl_b32 s42, s42, 6")
    a.e("s_add_u32 s42, s42, s41")
    a.e("s_mul_i32 s42, s42, 2560")
    a.e(f"s_lshr_b32 s41, s{G}, 4")
    a.e("s_mul_i32 s41, s41, 1280")
    a.e("s_add_u32 s42, s42, s41")
    a.e("s_lshl_b32 s43, s43, 5")
    a.e("s_add_u32 s42, s42, s43")
    ac = base + 32
    for i in range(8):
        a.e(f"s_waitcnt vmcnt({7-i+after})")
        for k in range(4):
            r = base + 4 * i + k
            if i == 0:
                a.e(f"v_lshlrev_b32 v{ac+2*k}, 16, v{r}")
                a.e(f"v_and_b32 v{ac+1+2*k}, 0xffff0000, v{r}")
            else:
                a.e(f"v_lshlrev_b32 v4, 16, v{r}")
                a.e(f"v_and_b32 v5, 0xffff0000, v{r}")
                a.e(f"v_add_f32 v{ac+2*k}, v{ac+2*k}, v4")
                a.e(f"v_add_f32 v{ac+1+2*k}, v{ac+1+2*k}, v5")
    for k in range(4): a.e(f"v_cvt_pk_bf16_f32 v{base+k}, v{ac+2*k}, v{ac+1+2*k}")
    a.e(f"buffer_store_dwordx4 {v(base,4)}, v2, {sq(S_OUT)}, s42 offen{pol(o['outpol'])}")


def gen_tail(a, o):
    a.label("L_red")
    lane_id(a, 0)
    a.e("v_and_b32 v28, 7, v0")
    a.e("v_lshlrev_b32 v29, 7, v28")
    a.e("v_lshlrev_b32 v28, 2, v28")
    a.e(f"s_cmp_lg_u32 s{S_WAVE}, 4")
    a.e("s_barrier")
    a.branch("s_cbranch_scc1 L_go")
    stamp(a, o, 10)
    a.e(f"v_add_u32 v{A_FO}, 1, v{A_FO}")
    a.e("s_mov_b64 exec, 0xff")
    a.e(f"buffer_store_dword v{A_FO}, v29, {sq(S_WS)}, s47 offen sc1")
    spin(a, "poll", f"buffer_load_dword v30, v28, {sq(S_WS)}, s46 offen sc1",
         [f"v_cmp_eq_u32 vcc, v30, v{A_FI}", "s_cmp_eq_u64 vcc, 0"])
    a.e("s_mov_b64 exec, -1")
    a.label("L_go")
    a.e(f"s_lshl_b32 s44, s{S_BR}, 4")
    a.e(f"s_add_u32 s44, s44, s{S_B}")
    a.e(f"s_mul_i32 s45, s{S_HG}, 10")
    a.e(f"s_add_u32 s45, s45, s{S_WAVE}")
    a.e("s_mul_i32 s40, s44, 655360")
    a.e("s_lshl_b32 s41, s45, 10")
    a.e("s_add_u32 s40, s40, s41")
    a.e("s_add_u32 s47, s40, 8192")
    a.e("v_lshlrev_b32 v1, 4, v0")
    a.e("v_and_b32 v2, 31, v0")
    a.e("v_mul_u32_u24 v2, 2560, v2")
    a.e("v_lshrrev_b32 v3, 5, v0")
    a.e("v_lshl_add_u32 v2, v3, 4, v2")
    a.e(f"s_cmp_lt_u32 s{S_WAVE}, 2")
    a.e("s_barrier")
    a.branch("s_cbranch_scc1 L_two")
    stamp(a, o, 11)
    reduce_loads(a, o, 40, 8)
    reduce_sum(a, o, 45, 44, 8, 0)
    a.branch("s_branch L_fin")
    a.label("L_two")
    stamp(a, o, 11)
    reduce_loads(a, o, 40, 8)
    reduce_loads(a, o, 47, 48)
    reduce_sum(a, o, 45, 44, 8, 8)
    a.e("s_add_u32 s45, s45, 8")
    reduce_sum(a, o, 45, 44, 48, 1)


def gen_main(a, o):
    a.raw(f".globl {KN}\n.p2align 8\n.type {KN},@function\n{KN}:")
    a.e(f"s_cmp_ge_u32 s2, {o['nact']}")
    a.e("s_cbranch_scc1 L_end")
    if o["stamps"]:
        a.e("s_memrealtime s[90:91]")
        a.e("s_memtime s[86:87]")
    a.e("s_load_dwordx2 s[34:35], s[0:1], 96")
    a.e("s_load_dwordx4 s[64:67], s[0:1], 80")
    a.e("s_and_b32 s3, s2, 7")
    a.e("s_lshr_b32 s5, s3, 2")
    a.e("s_mul_i32 s32, s5, 40")
    a.e("s_add_u32 s0, s0, s32")
    a.e("s_addc_u32 s1, s1, 0")
    a.e("s_load_dwordx4 s[44:47], s[0:1], 24")
    a.e("s_load_dwordx2 s[36:37], s[0:1], 0")
    a.e("s_load_dwordx4 s[40:43], s[0:1], 8")
    a.e("v_lshrrev_b32 v1, 6, v0")
    a.e("v_and_b32 v0, 63, v0")
    a.e("v_readfirstlane_b32 s32, v1")
    a.e("s_lshr_b32 s4, s2, 3")
    a.e("s_and_b32 s7, s4, 15")
    a.e("s_lshr_b32 s4, s4, 4")
    a.e("s_and_b32 s6, s3, 3")
    a.e("s_lshl_b32 s6, s6, 1")
    a.e("s_add_u32 s6, s6, s4")
    if o["stamps"] >= 2:
        a.e("s_waitcnt lgkmcnt(0)")
        for i in range(16): a.e(f"s_mov_b32 s{70+i}, s90")
        stamp(a, o, 1, "start")
    a.e("s_and_b32 s33, s32, 3")
    a.e("s_cmp_lt_u32 s32, 4")
    a.branch("s_cbranch_scc1 L_P")
    gen_A(a, o)
    gen_tail(a, o)
    a.label("L_fin")
    if o["stamps"]:
        a.e("s_memrealtime s[92:93]")
        a.e("s_memtime s[88:89]")
        a.e("s_waitcnt lgkmcnt(0)")
        a.e("s_sub_u32 s85, s88, s86")
        a.e("v_mov_b32 v4, s90"); a.e("v_mov_b32 v5, s91"); a.e("v_mov_b32 v6, s92"); a.e("v_mov_b32 v7, s93")
        a.e("s_lshl_b32 s40, s2, 3"); a.e("s_add_u32 s40, s40, s32"); a.e("s_lshl_b32 s40, s40, 4")
        a.e("s_add_u32 s40, s40, 0x2000000")
        a.e("v_mov_b32 v1, 0")
        a.e(f"buffer_store_dwordx4 v[4:7], v1, {sq(S_WS)}, s40 offen")
        if o["stamps"] >= 2:
            a.e("s_lshl_b32 s40, s2, 3"); a.e("s_add_u32 s40, s40, s32"); a.e("s_lshl_b32 s40, s40, 6")
            a.e("s_add_u32 s40, s40, 0x2100000")
            for k in range(4):
                for i in range(4): a.e(f"v_mov_b32 v{8+4*k+i}, s{70+4*k+i}")
                a.e(f"buffer_store_dwordx4 v[{8+4*k}:{11+4*k}], v1, {sq(S_WS)}, s40 offen offset:{16*k}")
    a.e("s_endpgm")
    gen_P(a, o)
    a.label("L_end")
    a.e("s_endpgm")


def droppings(t, d):
    keep = []; cnt = cnt2 = cnt3 = 0; role = ""
    for l in t.split("\n"):
        if l.startswith(("L_PQa", "L_PO:", "L_PQb")): role = "P"
        if l.startswith(("L_Ptail", "L_Aend", "L_Pcyc")): role = ""
        if l.startswith("L_Aper"): role = "A"
        if l.startswith("L_Ppro"): role = "p"
        if l.startswith("L_Apro"): role = "a"
        if "x" in d and role == "p" and l.strip().startswith(("v_", "ds_")): continue
        if "y" in d and role == "a" and l.strip().startswith("buffer_load_dwordx4") and "s[8:11]" not in l: continue
        if "z" in d and role == "a" and l.strip().startswith("buffer_load_dwordx4") and "s[8:11]" in l: continue
        x = l.strip()
        if "k" in d and role == "A" and x.startswith("buffer_load"): continue
        if "w" in d and role == "P" and x.startswith("buffer_load"): continue
        if "a" in d and role == "A" and x.startswith(("v_", "ds_")): continue
        if "p" in d and role == "P" and x.startswith(("v_", "ds_")): continue
        if "m" in d and role in ("A", "P") and x.startswith("v_mfma"): continue
        if "r" in d and role in ("A", "P") and x.startswith("ds_read"): continue
        if "h" in d and role == "A" and x.startswith("ds_read"):
            cnt += 1
            if (cnt // (2 if "tr" in x else 1)) % 2: continue
        if "g" in d and role == "P" and x.startswith("ds_read_b64_tr"):
            cnt2 += 1
            if (cnt2 // 2) % 2: continue
        if "v" in d and role == "A" and x.startswith(("v_exp", "v_fma", "v_add_f32", "v_max3")): continue
        if "A" in d and role == "A" and x.startswith("v_mfma"): continue
        if "P" in d and role == "P" and x.startswith("v_mfma"): continue
        if ("s" in d or "S" in d) and role == "P" and x.startswith("v_mfma_f32_32x32x16"):
            m = re.match(r"v_mfma_f32_32x32x16_bf16 v\[(\d+):\d+\], (v\[\d+:\d+\]), (v\[\d+:\d+\]), (.*)", x)
            cnt3 += 1
            for k in range(2):
                b = int(m.group(1)) + 4 * k + 8 * (cnt3 & 1)
                bo = m.group(3) if (k == 0 or "S" not in d) else {"v[16:19]": "v[20:23]", "v[20:23]": "v[16:19]"}[m.group(3)]
                keep.append(f"    v_mfma_f32_16x16x32_bf16 v[{b}:{b+3}], {m.group(2)}, {bo}, v[{b}:{b+3}]")
            continue
        keep.append(l)
    return "\n".join(keep)


def gen(**kw):
    o = dict(DEFAULTS); o.update(kw)
    a = Asm()
    if o["stamps"]: a.raw(f"; stamps={8*o['nact']} @0x2000000")
    a.raw(f"; @launch grid=(256,1,1) block=(512,1,1) lds={LDS}")
    a.raw('.amdgcn_target "amdgcn-amd-amdhsa--gfx950"\n.text')
    gen_main(a, o)
    a.raw(f""".section .rodata,"a"
.p2align 6
.amdhsa_kernel {KN}
  .amdhsa_next_free_vgpr 256
  .amdhsa_next_free_sgpr 102
  .amdhsa_accum_offset 256
  .amdhsa_group_segment_fixed_size 0
  .amdhsa_kernarg_size 104
  .amdhsa_user_sgpr_count 2
  .amdhsa_user_sgpr_kernarg_segment_ptr 1
  .amdhsa_system_sgpr_workgroup_id_x 1
.end_amdhsa_kernel""")
    t = a.text()
    return droppings(t, o["drop"]) if o["drop"] else t


if __name__ == "__main__":
    out = sys.argv[1]
    kw = {}
    for x in sys.argv[2:]:
        k, val = x.split("=")
        kw[k] = int(val) if val.lstrip("-").isdigit() else val.replace("+", " ")
    open(out, "w").write(gen(**kw))
```

```python
import sys, math, struct, re
from asmlib import Asm

NAME = "concat_heads__gqa_block_cached__gqa_block_cached__near_ridge"
KN = NAME + "_kernel"
WB, XB, EB, LDS = 49152, 131072, 155648, 163840
KV_BYTES, W_BYTES, X_BYTES, OUT_BYTES, WS_BYTES = 100663296, 7864320, 1310720, 2621440, 64 << 20
OOB = 0x40000000
FLAGS = 0x1800000
CSCALE = struct.unpack("<I", struct.pack("<f", math.log2(math.e) / math.sqrt(192.0)))[0]

DEFAULTS = dict(kvpol="nt", wpol="", pfpol="", xpol="", stpol="sc1", ldpol="sc1", outpol="", stamps=0, prio=0,
                adepth=8, pq=12, po=9, pdma=1, drop="", nact=256, k0=6, k1=10, kt=8, codepf=1, pf0=8, pf1=26, pfb=4, kvx=0, warm=65536, xbar=11, vspan=9, adma=0, sprio=0, nap=8, tst=0, rot=0)

S_HALF, S_BR, S_HG, S_B = 4, 5, 6, 7
S_K, S_V, S_WQ, S_WO, S_XI, S_WS, S_OUT = 8, 12, 16, 20, 24, 28, 64
S_WAVE, S_W, S_DBG, S_T, S_T2 = 32, 33, 36, 57, 59


def v(a, n=1):
    return f"v{a}" if n == 1 else f"v[{a}:{a+n-1}]"


def sq(a):
    return f"s[{a}:{a+3}]"


def pol(s):
    return (" " + s) if s else ""


class Rec:
    def __init__(self): self.t = []
    def e(self, x): self.t.append(x)


def rec(fn, *args):
    r = Rec(); fn(r, *args); return r.t


def srd(a, base, src, size):
    if src != base: a.e(f"s_mov_b32 s{base}, s{src}")
    a.e(f"s_and_b32 s{base+1}, s{src+1}, 0xffff")
    a.e(f"s_mov_b32 s{base+2}, {size}")
    a.e(f"s_mov_b32 s{base+3}, 0x20000")


def build_srds(a):
    a.e("s_waitcnt lgkmcnt(0)")
    srd(a, S_WQ, 44, W_BYTES); srd(a, S_XI, 36, X_BYTES); srd(a, S_WO, 46, W_BYTES)
    srd(a, S_K, 40, KV_BYTES); srd(a, S_V, 42, KV_BYTES); srd(a, S_WS, 34, WS_BYTES)
    srd(a, S_DBG, 66, 256)
    srd(a, S_OUT, 64, OUT_BYTES)


def pipe(a, reads, mfmas, fill, depth, span=None, skip=0):
    n = len(mfmas)
    span = span or n
    for i in range(min(depth, n)):
        for t in reads[i]: a.e(t)
    done = 0
    for i in range(n):
        for t in ([mfmas[i]] if isinstance(mfmas[i], str) else mfmas[i]): a.e(t)
        if i + depth < n:
            for t in reads[i + depth]: a.e(t)
        upto = len(fill) * max(min(i + 1, span) - skip, 0) // (span - skip)
        for t in fill[done:upto]: a.e(t)
        done = upto


def interleave(a, chains):
    for i in range(max(map(len, chains))):
        for c in chains:
            if i < len(c): a.e(c[i])


def div24(a, dst_row, dst_rem, src, tmp):
    a.e(f"v_mul_u32_u24 {tmp}, 2731, {src}")
    a.e(f"v_lshrrev_b32 {dst_row}, 16, {tmp}")
    a.e(f"v_mul_u32_u24 {tmp}, 24, {dst_row}")
    a.e(f"v_sub_u32 {dst_rem}, {src}, {tmp}")


def stamp(a, o, k, tag=''):
    if {2: "", 3: "pro", 4: "tail", 5: "start"}.get(o["stamps"]) != tag: return
    a.e("s_waitcnt lgkmcnt(0)")
    a.e("s_memrealtime s[94:95]")
    a.e("s_waitcnt lgkmcnt(0)")
    if isinstance(k, int): a.e(f"s_mov_b32 s{70+k}, s94")
    else:
        base, reg, n = k
        for i in range(n):
            a.e(f"s_cmp_eq_u32 s{reg}, {i}")
            a.e(f"s_cselect_b32 s{70+base+i}, s94, s{70+base+i}")


def endstep(a, vm=None):
    a.e("s_waitcnt lgkmcnt(0)" if vm is None else f"s_waitcnt vmcnt({vm}) lgkmcnt(0)")
    a.e("s_barrier")


def idle(a, tag, n):
    if n <= 2:
        for _ in range(n): a.e("s_barrier")
        return
    a.e(f"s_mov_b32 s{S_T}, {n}")
    a.label(f"L_{tag}")
    a.e("s_barrier")
    a.e(f"s_sub_u32 s{S_T}, s{S_T}, 1")
    a.e(f"s_cmp_lg_u32 s{S_T}, 0")
    a.branch(f"s_cbranch_scc1 L_{tag}")


def idle_steps(a, o, tag, r0, r1):
    n = sum(1 + (r == 17) + (o["pdma"] == 3 and r % 2 == 0) for r in range(r0, r1))
    idle(a, tag, n)


def lane_id(a, r):
    a.e(f"v_mbcnt_lo_u32_b32 v{r}, -1, 0")
    a.e(f"v_mbcnt_hi_u32_b32 v{r}, -1, v{r}")


def dma_offsets_q(a, vq, vx, t):
    chains = []
    for j in range(3):
        r = Rec()
        T0, T1, T2, T3 = (f"v{t+4*j+k}" for k in range(4))
        r.e(f"v_add_u32 {T0}, {64*j}, v0")
        div24(r, T1, T2, T0, T3)
        r.e(f"v_and_or_b32 {T3}, {T1}, 2, s{S_T}")
        r.e(f"v_xor_b32 {T2}, {T2}, {T3}")
        r.e(f"v_mul_u32_u24 {T1}, 12288, {T1}")
        r.e(f"v_lshl_add_u32 {T1}, {T2}, 4, {T1}")
        r.e(f"v_subrev_u32 v{vq+j}, {1024*j}, {T1}")
        chains.append(r.t)
    T0, T1 = f"v{t+12}", f"v{t+13}"
    a.e(f"s_and_b32 s{S_T}, s{S_W}, 1")
    a.e(f"s_lshl_b32 s{S_T}, s{S_T}, 2")
    chains.append([f"v_lshrrev_b32 {T0}, 3, v0", f"v_and_b32 {T0}, 6, {T0}", f"v_and_b32 {T1}, 7, v0",
                   f"v_xor_b32 {T0}, {T0}, {T1}", f"v_lshrrev_b32 {T1}, 3, v0", f"v_mul_u32_u24 {T1}, 1280, {T1}",
                   f"v_lshl_add_u32 v{vx}, {T0}, 4, {T1}"])
    interleave(a, chains)


def wq_share(a, dst, T0, T1, T2):
    a.e(f"s_and_b32 s{S_T}, s{S_W}, 1")
    a.e(f"s_lshl_b32 s{S_T}, s{S_T}, 6")
    a.e(f"v_add_u32 {T0}, s{S_T}, v0")
    a.e(f"v_mul_u32_u24 {T1}, 21846, {T0}")
    a.e(f"v_lshrrev_b32 {T1}, 16, {T1}")
    a.e(f"v_mul_u32_u24 {T2}, 3, {T1}")
    a.e(f"v_sub_u32 {T2}, {T0}, {T2}")
    a.e(f"v_mul_u32_u24 {T1}, 12288, {T1}")
    a.e(f"v_lshl_add_u32 {dst}, {T2}, 7, {T1}")


def scalars_q(a, mq, mx, oq, ox, head):
    a.e(f"s_mul_i32 s{mq}, s{S_W}, 3072")
    a.e(f"s_lshl_b32 s{mx}, s{S_W}, 10")
    a.e(f"s_mul_i32 s{oq}, s{S_HG}, 1536")
    a.e(f"s_mul_i32 s{S_T}, s{S_W}, {8*12288}")
    a.e(f"s_add_u32 s{oq}, s{oq}, s{S_T}")
    if head: a.e(f"s_add_u32 s{oq}, s{oq}, {384*head}")
    a.e(f"s_mul_i32 s{ox}, s{S_B}, 81920")
    a.e(f"s_mul_i32 s{S_T}, s{S_W}, {8*1280}")
    a.e(f"s_add_u32 s{ox}, s{ox}, s{S_T}")


def burst_q(a, o, R, la, lx, lb):
    vq, vx, mq, mx, oq, ox = R
    wp, xp = pol(o["wpol"]), pol(o["xpol"])
    a.e(f"s_add_u32 m0, s{mq}, {la}")
    a.e(f"s_add_u32 s{S_T}, s{ox}, {32*1280}")
    for j in range(3):
        a.e(f"buffer_load_dwordx4 v{vq+j}, {sq(S_WQ)}, s{oq} offen offset:{1024*j}{wp} lds")
    a.e(f"s_add_u32 m0, s{mx}, {lx}")
    a.e(f"s_add_u32 s{oq}, s{oq}, {32*12288}")
    a.e(f"buffer_load_dwordx4 v{vx}, {sq(S_XI)}, s{ox} offen{xp} lds")
    a.e(f"s_add_u32 m0, s{mx}, {lx+4096}")
    a.e(f"s_add_u32 s{ox}, s{ox}, 128")
    a.e(f"buffer_load_dwordx4 v{vx}, {sq(S_XI)}, s{S_T} offen{xp} lds")
    a.e(f"s_add_u32 m0, s{mq}, {lb}")
    a.e("s_nop 0")
    for j in range(3):
        a.e(f"buffer_load_dwordx4 v{vq+j}, {sq(S_WQ)}, s{oq} offen offset:{1024*j}{wp} lds")
    a.e(f"s_add_u32 s{oq}, s{oq}, {32*12288}")


def tail_slot(n):
    k = n % 5
    return WB + k * 24576 if k < 3 else (k - 3) * 24576


def tail_offsets(a, vt, mt, ot, lane, T):
    T0, T1 = T
    a.e(f"v_lshrrev_b32 {T0}, 3, {lane}")
    a.e(f"v_and_b32 {T0}, 2, {T0}")
    a.e(f"v_and_b32 {T1}, 7, {lane}")
    a.e(f"v_xor_b32 {T0}, {T0}, {T1}")
    a.e(f"v_lshrrev_b32 {T1}, 3, {lane}")
    a.e(f"v_mul_u32_u24 {T1}, 1280, {T1}")
    a.e(f"v_lshl_add_u32 v{vt}, {T0}, 4, {T1}")
    a.e(f"v_xor_b32 v{vt+1}, 64, v{vt}")
    a.e(f"s_mul_i32 s{mt}, s{S_W}, 6144")
    a.e(f"s_mul_i32 s{ot}, s{S_HG}, {4*245760}")
    a.e(f"s_mul_i32 s{S_T2}, s{S_W}, {48*1280}")
    a.e(f"s_add_u32 s{ot}, s{ot}, s{S_T2}")
    a.e(f"s_add_u32 s{ot}, s{ot}, {3*245760}")


def tail_tile(a, o, vt, mt, ot, n):
    for j in range(6):
        a.e(f"s_add_u32 m0, s{mt}, {tail_slot(n) + 1024*j}")
        a.e(f"s_add_u32 s{S_T2}, s{ot}, {128*n + 8*1280*j}")
        a.e(f"buffer_load_dwordx4 v{vt+(j&1)}, {sq(S_WO)}, s{S_T2} offen{pol(o['wpol'])} lds")


def pro_slot(n):
    return (n + 2) % 3


PY, PQ, PFA, PFB = 96, 48, 36, 20
P_T0, P_VQ, P_VX, P_VO, P_AQ, P_AW, P_AX, P_AO, P_T1, P_QW, P_DUM = 0, 1, 4, 5, 10, 13, 15, 16, 17, 18, 19
S_C, S_MQ, S_MX, S_MO, S_OQ, S_OX, S_OO, S_P, S_OWN = 50, 51, 52, 53, 54, 55, 56, 58, 49
PR = (P_VQ, P_VX, S_MQ, S_MX, S_OQ, S_OX)


def p_burst_q(a, o, D):
    b = WB + D * 40960
    burst_q(a, o, PR, b, b + 32768, b + 20480)
    return 8


def p_burst_o(a, o, D):
    wp = pol(o["wpol"])
    for h in range(2):
        b = WB + D * 40960 + h * 20480
        a.e(f"s_add_u32 m0, s{S_MO}, {b}")
        a.e(f"s_add_u32 s{S_T}, s{S_OO}, 4096")
        for j in range(4):
            a.e(f"buffer_load_dwordx4 v{P_VO+j}, {sq(S_WO)}, s{S_OO} offen offset:{1024*j}{wp} lds")
        a.e(f"s_add_u32 m0, s{S_MO}, {b+4096}")
        a.e(f"s_add_u32 s{S_OO}, s{S_OO}, 20480")
        a.e(f"buffer_load_dwordx4 v{P_VO+4}, {sq(S_WO)}, s{S_T} offen{wp} lds")
    return 10


def p_toggle(a, regs, D):
    for r in regs:
        a.e(f"v_add_u32 v{r}, 40960, v{r}" if D == 0 else f"v_subrev_u32 v{r}, 40960, v{r}")


def tr_pair(f, addr, off, delta):
    return [f"ds_read_b64_tr_b16 {v(f,2)}, v{addr} offset:{off}", f"ds_read_b64_tr_b16 {v(f+2,2)}, v{addr} offset:{off+delta}"]


def mfma16(acc, fa, fb, zero=False):
    return f"v_mfma_f32_16x16x32_bf16 {v(acc,4)}, {v(fa,4)}, {v(fb,4)}, {'0' if zero else v(acc,4)}"


def quad(reads, mf, rd, acc, f, fb, zero=False):
    for qs in range(4):
        reads.append(rd if qs == 0 else [])
        mf.append(mfma16(acc + 4 * qs, f, fb + 4 * qs, zero))


def p_qstep(a, o, qs, fill=()):
    h = qs & 1
    reads, mf = [], []
    for i in range(3):
        quad(reads, mf, tr_pair(PFA + 4 * i, P_AQ + i, h * 20480, 1536), PQ + 16 * i, PFA + 4 * i, PFB, qs == 0)
    ax = P_AX
    if h:
        a.e(f"v_xor_b32 v{P_T0}, 64, v{P_AX}"); ax = P_T0
    xr = [f"ds_read_b128 {v(PFB+4*k,4)}, v{ax} offset:{2048*k}" for k in range(4)]
    reads[0] = xr[:1] + reads[0] + xr[1:]
    if qs == 5: mf[o["xbar"]] = [mf[o["xbar"]], "s_barrier"]
    pipe(a, reads, mf, list(fill), o["pq"])
    if h: p_toggle(a, [P_AQ, P_AQ + 1, P_AQ + 2, P_AX], (qs >> 1) & 1)


def p_oreads(a, dst, tau, tmp):
    ao = P_AO
    if tau & 1:
        a.e(f"v_xor_b32 v{tmp}, 64, v{P_AO}"); ao = tmp
    return [f"ds_read_b128 {v(dst+4*k,4)}, v{ao} offset:{6144*k + (tau>>1)*128}" for k in range(4)]


def p_ostep(a, o, s, fill=()):
    h = s & 1
    reads, mf = [], []
    for i in range(5):
        T = 5 * h + i
        f = PFA + 4 * (i % 3)
        quad(reads, mf, tr_pair(f, P_AW + (T & 1), (T >> 1) * 256, 5120), PY + 16 * T, f, PFB)
    if not h:
        xr = p_oreads(a, PFB, s >> 1, P_T0)
        reads[0] = xr[:1] + reads[0] + xr[1:]
    pipe(a, reads, mf, list(fill), o["po"])
    if h: p_toggle(a, [P_AW, P_AW + 1], (s >> 1) & 1)


def p_even(a, o, step, idx, burst, D):
    r = Rec(); n = burst(r, o, D)
    if o["pdma"] == 1:
        for x in r.t: a.e(x)
        step(a, o, idx)
    elif o["pdma"] == 2: step(a, o, idx, r.t)
    else:
        step(a, o, idx)
        if o["pdma"] == 3: a.e("s_barrier")
        for x in r.t: a.e(x)
    endstep(a, n)


def p_choice(a, o, tag, cond, first, second):
    if o["pdma"] == 3: a.e("s_barrier")
    a.e(cond)
    a.branch(f"s_cbranch_scc1 L_{tag}_b")
    a.e(f"s_waitcnt vmcnt({first()})")
    a.branch(f"s_branch L_{tag}_j")
    a.label(f"L_{tag}_b")
    a.e(f"s_waitcnt vmcnt({second()})")
    a.label(f"L_{tag}_j")
    endstep(a)


def p_pro_tick(a, o, n):
    XF, F, AQ2, AX1 = 96, 128, 152, 155
    s = pro_slot(n)
    reads, mf = [], []
    for h in range(2):
        xr = [f"ds_read_b128 {v(XF+16*h+4*k,4)}, v{AX1 if h else P_AX} offset:{40960 + s*8192 + 2048*k}" for k in range(4)]
        for i in range(3):
            f = F + 4 * (3 * h + i)
            rd = tr_pair(f, (AQ2 if s == 2 else P_AQ) + i, (24576 if s == 1 else 0) + h * 12288, 1536)
            if i == 0: rd = xr[:1] + rd + xr[1:]
            quad(reads, mf, rd, PQ + 16 * i, f, XF + 16 * h, n == 0 and h == 0)
    pipe(a, reads, mf, [], 10)


def p_pack_block(a, i):
    y = PY + 16 * i
    for k in range(8): a.e(f"v_cvt_pk_bf16_f32 v{y+k}, v{y+2*k}, v{y+2*k+1}")
    for t in range(2):
        a.e(f"v_permlane16_swap_b32 v{y+4*t}, v{y+4*t+2}")
        a.e(f"v_permlane16_swap_b32 v{y+4*t+1}, v{y+4*t+3}")


def p_store_block(a, o, i):
    a.e(f"s_add_u32 s{S_T}, s{S_OWN}, {4*i}")
    a.e(f"s_cmp_lt_u32 s{S_T}, 5")
    a.e(f"s_cselect_b32 s{S_T}, {OOB}, s{S_P}")
    for t in range(2):
        a.e(f"buffer_store_dwordx4 {v(PY+16*i+4*t,4)}, v1, {sq(S_WS)}, s{S_T} offen offset:{t*1024}{pol(o['stpol'])}")
    a.e(f"s_add_u32 s{S_P}, s{S_P}, 8192")


def p_keep_block(a, i):
    a.e(f"s_add_u32 s{S_T}, s{S_OWN}, {4*i}")
    a.e(f"s_cmp_lt_u32 s{S_T}, 5")
    a.branch(f"s_cbranch_scc0 L_keep{i}")
    a.e(f"s_lshl_b32 s{S_T}, s{S_T}, 11")
    a.e(f"v_add_u32 v3, s{S_T}, v2")
    for t in range(2):
        a.e(f"ds_write_b128 v3, {v(PY+16*i+4*t,4)} offset:{t*1024}")
    a.label(f"L_keep{i}")


def tr_lane_parts(a, lane, G1, RR, ROW, C1, B8):
    a.e(f"v_lshrrev_b32 {ROW}, 4, {lane}")
    a.e(f"v_and_b32 {G1}, 1, {ROW}")
    a.e(f"v_bfe_u32 {RR}, {lane}, 2, 2")
    a.e(f"v_lshl_add_u32 {ROW}, {ROW}, 3, {RR}")
    a.e(f"v_bfe_u32 {C1}, {lane}, 1, 1")
    a.e(f"v_and_b32 {B8}, 1, {lane}")
    a.e(f"v_lshlrev_b32 {B8}, 3, {B8}")


def gen_P(a, o):
    a.label("L_P")
    if o["prio"] == 1: a.e("s_setprio 1")
    T0, T1, T2, T3, T4, T5, T6 = (f"v{20+k}" for k in range(7))
    wq_share(a, T3, T0, T1, T2)
    a.e(f"v_mov_b32 {T2}, {OOB}")
    a.e(f"v_cmp_gt_u32 vcc, 120, {T0}")
    a.e(f"v_cndmask_b32 {T3}, {T2}, {T3}, vcc")
    a.e(f"v_mul_u32_u24 {T1}, {o['warm']}, v0")
    a.e(f"v_cmp_gt_u32 s[62:63], {786432 // o['warm']}, v0")
    a.e(f"v_cndmask_b32 {T1}, {T2}, {T1}, s[62:63]")
    a.e(f"s_mul_i32 s{S_OQ}, s{S_B}, {40*12288}")
    a.e(f"s_mul_i32 s{S_T}, s{S_HG}, 1536")
    a.e(f"s_add_u32 s{S_OQ}, s{S_OQ}, s{S_T}")
    a.e(f"s_lshl_b32 s{S_OX}, s{S_B}, 3"); a.e(f"s_add_u32 s{S_OX}, s{S_OX}, s{S_HG}")
    a.e(f"s_mul_i32 s{S_OX}, s{S_OX}, 786432")
    build_srds(a)
    a.e(f"s_cmp_ge_u32 s{S_W}, 2")
    a.branch("s_cbranch_scc1 L_Pw")
    a.e(f"buffer_load_dword v{P_DUM}, {T3}, {sq(S_WQ)}, s{S_OQ} offen{pol(o['pfpol'])}")
    a.branch("s_branch L_Pwj")
    a.label("L_Pw")
    a.e(f"s_cmp_eq_u32 s{S_W}, 2")
    a.e(f"s_cselect_b32 s60, s{S_K}, s{S_V}")
    a.e(f"s_cselect_b32 s61, s{S_K+1}, s{S_V+1}")
    a.e(f"s_mov_b32 s62, {KV_BYTES}")
    a.e(f"s_mov_b32 s63, 0x20000")
    a.e(f"buffer_load_dword v{P_DUM}, {T1}, s[60:63], s{S_OX} offen nt")
    a.label("L_Pwj")
    G1, RR, ROW, C1, B8 = T0, T1, T2, T3, T4
    tr_lane_parts(a, "v0", G1, RR, ROW, C1, B8)
    a.e(f"v_and_b32 {T5}, 2, {RR}")
    a.e(f"v_lshl_or_b32 {T5}, {G1}, 2, {T5}")
    a.e(f"v_mul_u32_u24 v27, 384, {ROW}")
    a.e(f"v_add_u32 v27, v27, {B8}")
    for i in range(3):
        a.e(f"s_mul_i32 s{S_T}, s{S_W}, 6")
        a.e(f"s_add_u32 s{S_T}, s{S_T}, {2*i}")
        a.e(f"v_add_u32 {T6}, s{S_T}, {C1}")
        a.e(f"v_xor_b32 {T6}, {T6}, {T5}")
        a.e(f"v_lshl_add_u32 {T6}, {T6}, 4, v27")
        a.e(f"v_add_u32 v{P_AQ+i}, {WB}, {T6}")
        a.e(f"v_add_u32 v{152+i}, {WB+49152}, {T6}")
    a.e(f"v_lshl_or_b32 {T5}, {G1}, 2, {RR}")
    a.e(f"v_lshlrev_b32 {T5}, 1, {T5}")
    a.e(f"v_mul_u32_u24 v27, 1280, {ROW}")
    a.e(f"v_add_u32 v27, v27, {B8}")
    a.e(f"s_lshl_b32 s{S_T}, s{S_W}, 1")
    a.e(f"v_add_u32 {T6}, s{S_T}, {C1}")
    a.e(f"v_xor_b32 {T6}, {T6}, {T5}")
    a.e(f"v_lshl_add_u32 {T6}, {T6}, 4, v27")
    a.e(f"v_add_u32 v{P_AW}, {WB}, {T6}")
    a.e(f"v_xor_b32 v{P_AW+1}, 128, v{P_AW}")
    a.e(f"v_and_b32 {T0}, 15, v0")
    a.e(f"v_lshrrev_b32 {T1}, 4, v0")
    a.e(f"v_and_b32 {T2}, 6, {T0}")
    a.e(f"v_xor_b32 {T3}, {T2}, {T1}")
    a.e(f"v_lshlrev_b32 {T3}, 4, {T3}")
    a.e(f"v_lshl_add_u32 {T4}, {T0}, 7, {T3}")
    a.e(f"v_add_u32 v{P_AX}, {WB+32768}, {T4}")
    a.e(f"v_xor_b32 v155, 64, v{P_AX}")
    a.e(f"v_mul_u32_u24 {T0}, 384, {T0}")
    a.e(f"v_add_u32 {T0}, {XB}, {T0}")
    a.e(f"v_add_u32 v{P_AO}, {T0}, {T3}")
    a.e(f"v_lshrrev_b32 {T3}, 1, {T1}")
    a.e(f"v_xor_b32 {T3}, {T3}, {T2}")
    a.e(f"v_lshl_add_u32 {T3}, {T3}, 4, {T0}")
    a.e(f"v_and_b32 {T1}, 1, {T1}")
    a.e(f"v_lshl_add_u32 v{P_QW}, {T1}, 3, {T3}")
    dma_offsets_q(a, P_VQ, P_VX, 28)
    a.e(f"s_lshr_b32 s{S_T}, s{S_W}, 1")
    a.e(f"s_lshl_b32 s{S_T}, s{S_T}, 2")
    for j in range(5):
        a.e(f"v_add_u32 {T0}, {64*j}, v0")
        a.e(f"v_mul_u32_u24 {T0}, 820, {T0}")
        a.e(f"v_lshrrev_b32 {T0}, 16, {T0}")
        a.e(f"v_or_b32 {T0}, s{S_T}, {T0}")
        a.e(f"v_lshlrev_b32 {T0}, 1, {T0}")
        a.e(f"v_xor_b32 {T0}, {T0}, v0")
        a.e(f"v_lshlrev_b32 v{P_VO+j}, 4, {T0}")
    scalars_q(a, S_MQ, S_MX, S_OQ, S_OX, 1)
    a.e(f"s_mul_i32 s{S_MO}, s{S_W}, 5120")
    a.e(f"s_mul_i32 s{S_OO}, s{S_HG}, {4*245760}")
    a.e(f"s_add_u32 s{S_OO}, s{S_OO}, s{S_MO}")
    a.e(f"s_mov_b32 s{S_C}, 1")
    a.e("s_barrier")
    stamp(a, o, 1)
    a.raw("L_Ppro:")
    for n in range(10):
        p_pro_tick(a, o, n)
        endstep(a)

    a.label("L_Pcyc")
    for i in range(24):
        a.e(f"v_cvt_pk_bf16_f32 v{PQ+i}, v{PQ+2*i}, v{PQ+2*i+1}")
    for i in range(3):
        a.e(f"s_mul_i32 s{S_T}, s{S_W}, 3")
        a.e(f"s_add_u32 s{S_T}, s{S_T}, {i}")
        a.e(f"s_and_b32 s{S_T2}, s{S_T}, 3")
        a.e(f"s_lshl_b32 s{S_T2}, s{S_T2}, 5")
        a.e(f"s_lshr_b32 s{S_T}, s{S_T}, 2")
        a.e(f"s_lshl_b32 s{S_T}, s{S_T}, 7")
        t = (P_T0, P_T1)[i & 1]
        a.e(f"v_xor_b32 v{t}, s{S_T2}, v{P_QW}")
        a.e(f"v_add_u32 v{t}, s{S_T}, v{t}")
        for k in range(4):
            a.e(f"ds_write_b64 v{t}, {v(PQ+8*i+2*k,2)} offset:{6144*k}")
    a.e("s_waitcnt lgkmcnt(0)")
    a.e(f"s_cmp_eq_u32 s{S_C}, 4")
    a.branch("s_cbranch_scc0 L_Pc3")
    idle_steps(a, o, "Pi4", 0, 4)
    a.branch("s_branch L_PO")
    a.label("L_Pc3")
    a.e(f"s_cmp_eq_u32 s{S_C}, 1")
    a.branch("s_cbranch_scc0 L_PQa")
    a.e("s_barrier")
    p_burst_q(a, o, 0)
    endstep(a, 3)

    a.label("L_PQa")
    for qs in range(4):
        if qs == 0:
            p_even(a, o, p_qstep, 0, p_burst_q, 1); continue
        p_qstep(a, o, qs)
        if qs == 2: p_choice(a, o, "Pa", f"s_cmp_ge_u32 s{S_C}, 2", lambda: p_burst_q(a, o, 0), lambda: p_burst_o(a, o, 0))
        else: endstep(a, 3 if qs == 1 else 0)
    a.e(f"s_cmp_ge_u32 s{S_C}, 2")
    a.branch("s_cbranch_scc1 L_PO")
    for i in range(160): a.e(f"v_mov_b32 v{PY+i}, 0")
    idle_steps(a, o, "Pi10", 6, 16)
    a.branch("s_branch L_PQb")

    a.label("L_PO")
    stamp(a, o, (2, S_C, 5))
    for s in range(12):
        if s < 10 and s % 2 == 0:
            p_even(a, o, p_ostep, s, p_burst_o, ((s >> 1) + 1) & 1); continue
        p_ostep(a, o, s)
        if s == 10: p_choice(a, o, "Po", f"s_cmp_eq_u32 s{S_C}, 4", lambda: p_burst_q(a, o, 0), lambda: 0)
        elif s == 11: endstep(a, 3)
        else: endstep(a, 0)
    a.e(f"s_cmp_eq_u32 s{S_C}, 4")
    a.branch("s_cbranch_scc1 L_Ptail")

    a.label("L_PQb")
    for qs in range(4, 20):
        if qs < 18 and qs % 2 == 0:
            p_even(a, o, p_qstep, qs, p_burst_q, ((qs >> 1) + 1) & 1); continue
        p_qstep(a, o, qs)
        if qs == 18:
            a.e(f"s_add_u32 s{S_OQ}, s{S_OQ}, {(384 - 640*12288) & 0xffffffff}")
            a.e(f"s_sub_u32 s{S_OX}, s{S_OX}, 1280")
            p_choice(a, o, "Pb", f"s_cmp_eq_u32 s{S_C}, 3", lambda: p_burst_q(a, o, 0), lambda: p_burst_o(a, o, 0))
        else: endstep(a, 0 if qs == 19 else 3)
    a.e(f"s_add_u32 s{S_C}, s{S_C}, 1")
    a.branch("s_branch L_Pcyc")

    a.label("L_Ptail")
    VT, TA = 2, 4
    lane_id(a, 5)
    tail_offsets(a, VT, S_MO, S_OO, "v5", ("v6", "v7"))
    tr_lane_parts(a, "v5", "v6", "v7", "v8", "v9", "v10")
    a.e("v_and_b32 v7, 2, v7")
    a.e("v_lshl_or_b32 v7, v6, 2, v7")
    a.e(f"s_lshl_b32 s{S_T}, s{S_W}, 1")
    a.e(f"v_add_u32 v9, s{S_T}, v9")
    a.e("v_xor_b32 v9, v9, v7")
    a.e("v_lshl_add_u32 v9, v9, 4, v10")
    a.e(f"v_lshl_add_u32 v{TA}, v8, 7, v9")
    a.e("v_lshlrev_b32 v1, 4, v5")
    a.e(f"s_lshl_b32 s{S_P}, s{S_BR}, 4"); a.e(f"s_add_u32 s{S_P}, s{S_P}, s{S_B}")
    a.e(f"s_lshl_b32 s{S_P}, s{S_P}, 3"); a.e(f"s_add_u32 s{S_P}, s{S_P}, s{S_HG}")
    a.e(f"s_mul_i32 s{S_P}, s{S_P}, 81920")
    a.e(f"s_lshl_b32 s{S_T}, s{S_W}, 11"); a.e(f"s_add_u32 s{S_P}, s{S_P}, s{S_T}")
    a.e(f"s_mul_i32 s{S_T}, s{S_HG}, 5"); a.e(f"s_sub_u32 s{S_OWN}, s{S_W}, s{S_T}")
    for n in range(3):
        tail_tile(a, o, VT, S_MO, S_OO, n)
        idle_steps(a, o, f"Pt{n}", 16 + 2 * n, 18 + 2 * n)
    idle_steps(a, o, "Pt3", 22, 31)
    tail_tile(a, o, VT, S_MO, S_OO, 3)
    idle_steps(a, o, "Pt4", 31, 33)
    tail_tile(a, o, VT, S_MO, S_OO, 4)
    endstep(a, 6)
    stamp(a, o, 7)
    SB, F = 8, 24
    a.e(f"v_xor_b32 v{P_T0}, 64, v{P_AO}")
    a.e(f"v_mov_b32 v7, v{P_AO}")
    ob = lambda dst, tau: [f"ds_read_b128 {v(dst+4*k,4)}, v{P_T0 if tau & 1 else 7} offset:{6144*k + (tau>>1)*128}" for k in range(4)]
    order = (3, 0, 4, 1, 5, 2)
    for t in ob(SB, 3): a.e(t)
    for p in range(5):
        for k in range(2): a.e(f"v_add_u32 v{5+k}, {tail_slot(2*p+k)}, v{TA}")
        reads, mf = [], []
        for gi, tau in enumerate(order):
            for k in range(2):
                f = F + 4 * ((len(mf) // 4) % 6)
                rd = tr_pair(f, 5 + k, tau * 4096, 512)
                if p == 0 and tau < 3 and k == 0: rd = ob(PQ + 16 * tau, tau) + rd
                quad(reads, mf, rd, PY + 16 * (2 * p + k), f, PQ + 16 * tau if tau < 3 else SB)
            if tau >= 3 and not (p == 4 and tau == 5):
                mf[-1] = [mf[-1]] + ob(SB, 3 if tau == 5 else tau + 1)
        fill = []
        if p: fill = rec(p_pack_block, 2 * p - 2) + rec(p_pack_block, 2 * p - 1)
        for m in TAIL_STORES[o["tst"]].get(p, []): fill += rec(p_store_block, o, m)
        for n in range(4):
            for t in reads[n]: a.e(t)
            reads[n] = []
        pipe(a, reads, mf, fill, 16, skip=6)
        if p == 0: a.e("s_waitcnt vmcnt(0)")
        if p < 4: a.e("s_barrier")
    stamp(a, o, 8)
    for m in TAIL_STORES[o["tst"]][5]:
        if m >= 8: p_pack_block(a, m)
        p_store_block(a, o, m)
    a.e(f"s_mul_i32 s{S_T}, s{S_HG}, 10240")
    a.e(f"s_add_u32 s{S_T}, s{S_T}, {WB}")
    a.e(f"v_add_u32 v2, s{S_T}, v1")
    for m in range(10): p_keep_block(a, m)
    a.e("s_waitcnt vmcnt(0)")
    a.branch("s_branch L_red")


TAIL_STORES = [{3: [0, 1, 2, 3, 4, 5], 4: [6, 7], 5: [8, 9]},
               {3: [0, 1, 2], 4: [3, 4, 5, 6], 5: [7, 8, 9]},
               {2: [0, 1], 3: [2, 3, 4], 4: [5, 6, 7], 5: [8, 9]},
               {1: [0, 1], 2: [2, 3], 3: [4, 5], 4: [6, 7], 5: [8, 9]}]


AS, AR_, AP, AF = 128, 80, 56, 24
A_VD, A_AK, A_AV, A_M, A_L, A_R, A_T0, A_T1, A_PF, A_DUM = 1, 4, 6, 14, 16, 18, 20, 21, 22, 23
A_XQ, A_XO, A_EW, A_ER, A_FI, A_FO = 48, 50, 52, 53, 54, 55
S_SP, S_PER, S_MK, S_OK, S_OV, S_CS, S_PFO, S_PFS, S_PF = 49, 50, 51, 52, 53, 54, 55, 56, 60
AR = (128, 131, 68, 69, 96, 97)
S_PFM = 100
S_LK, S_LV = 48, 58
PF_LOW, PF_HIGH = (1, 3, 6, 8, 10, 12), (2, 4, 7, 9, 11, 13)


def a_burst(a, o, D, srdreg, off, last=False):
    kp = pol(o["kvpol"])
    for h in range(2):
        a.e(f"s_add_u32 m0, s{S_MK}, {D*24576+h*12288}")
        if h: a.e(f"s_add_u32 s{off}, s{off}, 12288")
        else: a.e("s_nop 0")
        for j in range(3):
            a.e(f"buffer_load_dwordx4 v{A_VD+j}, {sq(srdreg)}, s{off} offen offset:{1024*j}{kp} lds")
    a.e(f"s_add_u32 s{off}, s{off}, 12288")
    if o["rot"]:
        lim = S_LK if off == S_OK else S_LV
        a.e(f"s_cmp_eq_u32 s{off}, s{lim}")
        a.e(f"s_cselect_b32 s{S_T}, 196608, 0")
        a.e(f"s_sub_u32 s{off}, s{off}, s{S_T}")
        if last:
            a.e(f"s_add_u32 s{off}, s{off}, 196608")
            a.e(f"s_add_u32 s{lim}, s{lim}, 196608")


def soft_chunk(j):
    b = AS + 8 * j
    t = []
    for i in range(8): t.append(f"v_fma_f32 v{b+i}, v{b+i}, s{S_CS}, -v{A_M+(i>>2)}")
    for i in range(8): t.append(f"v_exp_f32 v{b+i}, v{b+i}")
    for i in (0, 4, 1, 5, 2, 6, 3, 7):
        if j == 0 and i % 4 == 0: t.append(f"v_mov_b32 v{A_L+(i>>2)}, v{b+i}")
        else: t.append(f"v_add_f32 v{A_L+(i>>2)}, v{A_L+(i>>2)}, v{b+i}")
    for qs in range(2):
        for i in range(2): t.append(f"v_cvt_pk_bf16_f32 v{b+4*qs+i}, v{b+4*qs+2*i}, v{b+4*qs+2*i+1}")
    for qs in range(2):
        t.append(f"ds_write_b64 v{A_EW}, {v(b+4*qs,2)} offset:{(j&1)*4096 + qs*512}")
    return t


def max_chunk(s):
    b = AS + 8 * s
    t = []
    for i in range(2):
        for qs in range(2):
            r = b + 4 * qs + 2 * i
            if s == 0 and i == 0: t.append(f"v_max_f32 v{A_M+qs}, v{r}, v{r+1}")
            else: t.append(f"v_max3_f32 v{A_M+qs}, v{A_M+qs}, v{r}, v{r+1}")
    return t


def xlane2(a, reg, op):
    for sw in ("v_permlane32_swap_b32", "v_permlane16_swap_b32"):
        for k in range(2): a.e(f"v_mov_b32 v{A_T0+k}, v{reg+k}")
        for k in range(2): a.e(f"{sw} v{reg+k}, v{A_T0+k}")
        for k in range(2): a.e(f"{op} v{reg+k}, v{reg+k}, v{A_T0+k}")


def a_rowsum(a):
    xlane2(a, A_L, "v_add_f32")
    a.e(f"ds_write_b64 v{A_EW}, {v(A_L,2)}")


def a_qread(ks):
    return [f"ds_read_b128 {v(AR_+8*ks+4*qs,4)}, v{A_XQ+(ks&1)} offset:{qs*6144 + (ks>>1)*128}" for qs in range(2)]


def a_owrite(i):
    t = [f"v_xor_b32 v{A_T0+(i&1)}, {32*(i&3)}, v{A_XO+(1 if i in (2, 3) else 0)}"]
    for qs in range(2):
        t.append(f"ds_write_b64 v{A_T0+(i&1)}, {v(AP+4*i+2*qs,2)} offset:{qs*6144 + (i>>2)*128}")
    return t


def a_onorm(a, after):
    a.e(f"ds_read_b64 {v(A_T0,2)}, v{A_ER}")
    for k in range(2): a.e(f"v_add_f32 v{A_L+k}, v{A_L+k}, v{A_T0+k}")
    for k in range(2): a.e(f"v_rcp_f32 v{A_R+k}, v{A_L+k}")
    for i in range(6):
        for qs in range(2):
            r = AR_ + 8 * i + 4 * qs
            for k in (0, 2):
                a.e(f"v_pk_mul_f32 {v(r+k,2)}, {v(r+k,2)}, {v(A_R,2)} op_sel:[0,{qs}] op_sel_hi:[1,{qs}]")
        for qs in range(2):
            r = AR_ + 8 * i + 4 * qs
            for k in range(2): a.e(f"v_cvt_pk_bf16_f32 v{AP+4*i+2*qs+k}, v{r+2*k}, v{r+2*k+1}")
        for t in after(i): a.e(t)


def hoist(a, reads, depth, pre):
    if not pre: return
    for i in range(min(depth, len(reads))):
        for t in reads[i]: a.e(t)
        reads[i] = []
    for t in pre: a.e(t)


def a_kstep(a, o, s, extra=(), pre=()):
    reads, mf = [], []
    for i in range(12):
        ks, qs = divmod(i, 2)
        f = AF + 4 * ks
        reads.append([] if qs else [f"ds_read_b128 {v(f,4)}, v{A_AK+(ks&1)} offset:{(s&3)*12288 + (ks>>1)*128}"])
        mf.append(mfma16(AS + 8 * s + 4 * qs, f, AR_ + 8 * ks + 4 * qs, ks == 0))
    hoist(a, reads, o["adepth"], pre)
    pipe(a, reads, mf, (max_chunk(s - 1) if s else []) + list(extra), o["adepth"])
    if s == 15:
        for t in max_chunk(15): a.e(t)
        xlane2(a, A_M, "v_max_f32")
        a.e(f"ds_write_b64 v{A_EW}, {v(A_M,2)} offset:4096")


def a_vstep(a, o, j, pre=()):
    s = 16 + j
    b = AS + 8 * j
    reads, mf = [], []
    for n in range(12):
        i, qs = divmod(n, 2)
        f = AF + 4 * i
        off = (s & 3) * 12288 + (i >> 2) * 128
        reads.append([] if qs else [f"ds_read_b64_tr_b16 {v(f,2)}, v{A_AV+(i&3)} offset:{off}",
                                    f"ds_read_b64_tr_b16 {v(f+2,2)}, v{A_AV+4+(i&3)} offset:{off}"])
        mf.append(mfma16(AR_ + 8 * i + 4 * qs, f, b + 4 * qs, j == 0))
    if j == 0:
        a.e(f"ds_read_b64 {v(A_T0,2)}, v{A_ER} offset:4096")
        for n in range(0, 12, 2):
            for t in reads[n]: a.e(t)
            reads[n] = []
        for k in range(2): a.e(f"v_max_f32 v{A_M+k}, v{A_M+k}, v{A_T0+k}")
        for k in range(2): a.e(f"v_mul_f32 v{A_M+k}, s{S_CS}, v{A_M+k}")
        for t in soft_chunk(0): a.e(t)
        endstep(a)
    for qs in range(2):
        a.e(f"ds_read_b64 {v(b+4*qs+2,2)}, v{A_ER} offset:{(j&1)*4096 + qs*512}")
    hoist(a, reads, o["adepth"], pre)
    pipe(a, reads, mf, soft_chunk(j + 1) if j < 15 else rec(a_rowsum), o["adepth"], o["vspan"])


def spin(a, tag, load, test, nap=0, bound=0x20000):
    a.e("s_mov_b32 s40, 0")
    a.label(f"L_{tag}")
    a.e(load)
    a.e("s_add_u32 s40, s40, 1")
    a.e("s_waitcnt vmcnt(0) lgkmcnt(0)")
    for t in test: a.e(t)
    a.branch(f"s_cbranch_scc1 L_{tag}_ok")
    if nap: a.e(f"s_sleep {nap}")
    a.e(f"s_cmp_lt_u32 s40, {bound}")
    a.branch(f"s_cbranch_scc1 L_{tag}")
    a.label(f"L_{tag}_ok")


def gen_A(a, o):
    a.comment("attention waves: 16 query rows each; they also feed the first and the last projection")
    if o["prio"] == 2: a.e("s_setprio 1")
    if o["sprio"]: a.e("s_setprio 3")
    T0, T1, T2, T3 = "v24", "v25", "v26", "v27"
    dma_offsets_q(a, AR[0], AR[1], 32)
    scalars_q(a, *AR[2:], 0)
    chains = []
    for j in range(3):
        r = Rec()
        U0, U1, U2, U3 = (f"v{32+4*j+k}" for k in range(4))
        r.e(f"v_add_u32 {U0}, {64*j}, v0")
        r.e(f"v_mul_u32_u24 {U1}, 2731, {U0}")
        r.e(f"v_lshrrev_b32 {U1}, 16, {U1}")
        r.e(f"v_and_b32 {U1}, 6, {U1}")
        r.e(f"v_xor_b32 {U1}, {U1}, v0")
        r.e(f"v_lshlrev_b32 v{A_VD+j}, 4, {U1}")
        chains.append(r.t)
    kv_offsets = chains
    a.e(f"s_mul_i32 s98, s{S_B}, 81920")
    a.e(f"s_mul_i32 s{S_T}, s{S_HALF}, 40960"); a.e(f"s_add_u32 s98, s98, s{S_T}")
    a.e(f"s_mul_i32 s{S_T}, s{S_W}, 10240"); a.e(f"s_add_u32 s98, s98, s{S_T}")
    a.e(f"v_lshlrev_b32 v28, 7, v0")
    a.e(f"v_add_u32 v29, 8192, v28")
    a.e(f"v_mov_b32 {T2}, {OOB}")
    a.e(f"v_cmp_gt_u32 vcc, 16, v0")
    a.e(f"v_cndmask_b32 v29, {T2}, v29, vcc")
    stamp(a, o, 2, "start")
    build_srds(a)
    pp = pol(o["pfpol"])
    vm = []

    def W(n):
        s = pro_slot(n)
        burst_q(a, o, AR, WB + s * 24576, WB + 73728 + s * 8192, WB + s * 24576 + 12288)
        vm.extend([("W", n)] * 8)

    def K0():
        a_burst(a, o, 0, S_K, S_OK); vm.extend([("K", 0)] * 3 + [("K", 1)] * 3)

    def late_touches():
        a.e(f"s_cmp_eq_u32 s99, 0")
        a.e(f"s_cselect_b32 s{S_T}, {OOB}, s{S_PFO}")
        a.e(f"buffer_load_dword v{A_DUM}, v{A_PF}, {sq(S_PF)}, s{S_T} offen{pp}"); vm.append("t")
        a.e(f"s_add_u32 s{S_PFO}, s{S_PFO}, s99")
        a.e(f"s_cmp_eq_u32 s{S_W}, 0")
        a.e(f"s_cselect_b32 s{S_T}, s46, {OOB}")
        a.e(f"s_cselect_b32 s{S_T2}, s47, {OOB}")
        a.e(f"buffer_load_dword v{A_FI}, v28, {sq(S_WS)}, s{S_T} offen sc1"); vm.append("f")
        a.e(f"buffer_load_dword v{A_FO}, v29, {sq(S_WS)}, s{S_T2} offen sc1"); vm.append("f")

    def wait_for(tag):
        last = max(i for i, x in enumerate(vm) if x == tag)
        return min(63, len(vm) - 1 - last)

    stamp(a, o, 3, "start")
    W(0)
    stamp(a, o, 4, "start")
    if o["sprio"]: a.e(f"s_setprio {1 if o['prio'] == 2 else 0}")
    interleave(a, kv_offsets)
    a.e(f"s_mul_i32 s{S_MK}, s{S_W}, 3072")
    a.e(f"s_lshl_b32 s{S_OK}, s{S_B}, 3"); a.e(f"s_add_u32 s{S_OK}, s{S_OK}, s{S_HG}")
    a.e(f"s_mul_i32 s{S_OK}, s{S_OK}, 786432"); a.e(f"s_add_u32 s{S_OK}, s{S_OK}, s{S_MK}")
    if o["rot"]:
        a.e(f"s_add_u32 s{S_LK}, s{S_OK}, 196608")
        a.e(f"s_mov_b32 s{S_LV}, s{S_LK}")
        a.e(f"s_mul_i32 s{S_T}, s2, {o['rot']}")
        a.e(f"s_lshr_b32 s{S_T}, s{S_T}, 3")
        a.e(f"s_add_u32 s{S_T}, s{S_T}, s2")
        a.e(f"s_and_b32 s{S_T}, s{S_T}, 7")
        a.e(f"s_mul_i32 s{S_T}, s{S_T}, 24576")
        a.e(f"s_add_u32 s{S_OK}, s{S_OK}, s{S_T}")
    a.e(f"s_mov_b32 s{S_OV}, s{S_OK}")
    a.e(f"buffer_load_dword v{A_DUM}, v28, {sq(S_XI)}, s98 offen{pp}"); vm.append("t")
    a.e(f"buffer_load_dword v{A_DUM}, v29, {sq(S_XI)}, s98 offen{pp}"); vm.append("t")
    stamp(a, o, 5, "start")
    if o["k0"] < 0: K0()
    if o["codepf"]:
        a.e("s_getpc_b64 s[100:101]")
        a.raw("L_pc:")
        a.e(f"s_sub_u32 s100, s100, L_pc-{KN}")
        a.e("s_subb_u32 s101, s101, 0")
        a.e("s_lshr_b32 s98, s2, 3")
        a.e(f"s_lshl_b32 s98, s98, 2")
        a.e(f"s_add_u32 s98, s98, s{S_W}")
        a.e(f"s_lshl_b32 s98, s98, 9")
        a.e("v_and_b32 v30, 3, v0")
        a.e("v_lshlrev_b32 v30, 7, v30")
        a.e("v_add_u32 v30, s98, v30")
        a.e(f"v_min_u32 v30, L_end-{KN}, v30")
        a.e(f"global_load_dword v{A_DUM}, v30, s[100:101]"); vm.append("t")
    a.e(f"s_lshl_b32 s44, s{S_BR}, 4")
    a.e(f"s_add_u32 s44, s44, s{S_B}")
    a.e("s_lshl_b32 s45, s44, 10")
    a.e(f"s_add_u32 s45, s45, {FLAGS}")
    a.e(f"s_lshl_b32 s46, s{S_HG}, 7")
    a.e(f"s_add_u32 s46, s46, s45")
    a.e(f"s_lshl_b32 s47, s{S_HG}, 2")
    a.e(f"s_add_u32 s47, s47, s45")
    wq_share(a, T1, T0, T1, T2)
    a.e(f"v_lshlrev_b32 {T2}, 7, {T0}")
    a.e(f"s_mov_b32 s{S_PFS}, 384")
    a.e(f"s_mov_b32 s{S_T}, {40*12288}")
    a.e(f"s_cmp_ge_u32 s{S_W}, 2")
    a.e(f"s_cselect_b64 vcc, -1, 0")
    a.e(f"s_cselect_b32 s{S_PFS}, 245760, s{S_PFS}")
    a.e(f"s_cselect_b32 s{S_T}, 15360, s{S_T}")
    a.e(f"s_cselect_b32 s{S_PF}, s{S_WO}, s{S_WQ}")
    a.e(f"s_cselect_b32 s{S_PF+1}, s{S_WO+1}, s{S_WQ+1}")
    a.e(f"s_cselect_b32 s99, 0, 384")
    a.e(f"s_mov_b32 s{S_PF+2}, {W_BYTES}")
    a.e(f"s_mov_b32 s{S_PF+3}, 0x20000")
    a.e(f"v_cndmask_b32 {T1}, {T1}, {T2}, vcc")
    a.e(f"v_mov_b32 {T2}, {OOB}")
    a.e(f"v_cmp_gt_u32 vcc, 120, {T0}")
    a.e(f"v_cndmask_b32 v{A_PF}, {T2}, {T1}, vcc")
    a.e(f"s_mul_i32 s{S_PFO}, s{S_T}, s{S_B}")
    a.e(f"s_mul_i32 s{S_T}, s{S_PFS}, s{S_HG}")
    a.e(f"s_lshl_b32 s{S_T}, s{S_T}, 2")
    a.e(f"s_add_u32 s{S_PFO}, s{S_PFO}, s{S_T}")
    a.e(f"s_add_u32 s{S_PFO}, s{S_PFO}, s99")
    bits = lambda *pp_: sum(3 << (16 * p + k) for p, k in pp_)
    mA, mB, mO = bits((0, 6), (1, 6)), bits((0, 1), (1, 1), (2, 1)), bits((0, 10), (1, 10), (2, 10), (3, 1))
    a.e(f"s_mov_b32 s{S_PFM}, {mB & 0xffffffff}")
    a.e(f"s_mov_b32 s{S_PFM+1}, {mB >> 32}")
    a.e(f"s_cmp_lt_u32 s{S_B}, {o['pfb']}")
    a.e(f"s_cselect_b32 s{S_PFM}, {mA & 0xffffffff}, s{S_PFM}")
    a.e(f"s_cselect_b32 s{S_PFM+1}, {mA >> 32}, s{S_PFM+1}")
    a.e(f"s_cselect_b32 s99, s99, 0")
    a.e(f"s_cmp_ge_u32 s{S_W}, 2")
    a.e(f"s_cselect_b32 s{S_PFM}, {mO & 0xffffffff}, s{S_PFM}")
    a.e(f"s_cselect_b32 s{S_PFM+1}, {mO >> 32}, s{S_PFM+1}")
    a.e(f"s_and_b32 s{S_T}, s{S_W}, 1")
    a.e(f"s_lshl_b32 s{S_T}, s{S_T}, 1")
    a.e(f"s_lshl_b64 s[{S_PFM}:{S_PFM+1}], s[{S_PFM}:{S_PFM+1}], s{S_T}")
    a.e(f"s_and_b32 s{S_SP}, s{S_W}, 1")
    a.e(f"s_lshr_b32 s{S_T2}, s{S_W}, 1")
    a.e(f"s_mul_i32 s{S_T2}, s{S_T2}, 12288")
    a.e(f"s_add_u32 s{S_T2}, s{S_T2}, {XB}")
    a.e(f"s_mul_i32 s{S_T}, s{S_SP}, 6144")
    a.e(f"v_and_b32 {T0}, 15, v0")
    a.e(f"v_lshrrev_b32 {T1}, 4, v0")
    a.e(f"v_and_b32 {T2}, 6, {T0}")
    a.e(f"v_xor_b32 {T3}, {T2}, {T1}")
    a.e(f"v_mul_u32_u24 {T0}, 384, {T0}")
    a.e(f"v_lshl_add_u32 {T3}, {T3}, 4, {T0}")
    a.e(f"v_add_u32 v{A_AK}, s{S_T}, {T3}")
    a.e(f"v_xor_b32 v{A_AK+1}, 64, v{A_AK}")
    a.e(f"v_add_u32 v{A_XQ}, s{S_T2}, {T3}")
    a.e(f"v_xor_b32 v{A_XQ+1}, 64, v{A_XQ}")
    a.e(f"v_lshrrev_b32 {T3}, 1, {T1}")
    a.e(f"v_xor_b32 {T3}, {T3}, {T2}")
    a.e(f"v_lshl_add_u32 {T3}, {T3}, 4, {T0}")
    a.e(f"v_and_b32 {T2}, 1, {T1}")
    a.e(f"v_lshl_add_u32 {T3}, {T2}, 3, {T3}")
    a.e(f"v_add_u32 {T3}, s{S_T2}, {T3}")
    a.e(f"s_lshl_b32 s{S_T2}, s{S_SP}, 6")
    a.e(f"v_xor_b32 {T3}, s{S_T2}, {T3}")
    a.e(f"s_lshl_b32 s{S_T2}, s{S_SP}, 7")
    a.e(f"v_add_u32 v{A_XO}, s{S_T2}, {T3}")
    a.e(f"v_add_u32 v{A_XO+1}, s{S_T2}, v{A_XO}")
    a.e(f"v_lshrrev_b32 {T0}, 2, v0")
    a.e(f"v_and_b32 {T1}, 6, {T0}")
    a.e(f"v_bfe_u32 {T2}, v0, 1, 1")
    a.e(f"v_xor_b32 {T1}, {T1}, {T2}")
    a.e(f"v_mul_u32_u24 {T0}, 384, {T0}")
    a.e(f"v_lshl_add_u32 {T1}, {T1}, 4, {T0}")
    a.e(f"v_and_b32 {T2}, 1, v0")
    a.e(f"v_lshl_add_u32 {T1}, {T2}, 3, {T1}")
    a.e(f"s_lshl_b32 s{S_T2}, s{S_SP}, 6")
    a.e(f"v_xor_b32 {T1}, s{S_T2}, {T1}")
    for d in range(4):
        a.e(f"v_xor_b32 {T2}, {32*d}, {T1}")
        a.e(f"s_lshl_b32 s{S_T2}, s{S_SP}, {8 if d >= 2 else 7}")
        a.e(f"v_add_u32 {T2}, s{S_T2}, {T2}")
        a.e(f"v_add_u32 v{A_AV+d}, s{S_T}, {T2}")
        a.e(f"s_sub_u32 s{S_T2}, 6144, s{S_T}")
        a.e(f"v_add_u32 v{A_AV+4+d}, s{S_T2}, {T2}")
    a.e(f"v_lshlrev_b32 {T0}, 3, v0")
    a.e(f"s_lshl_b32 s{S_T}, s{S_W}, 10")
    a.e(f"s_add_u32 s{S_T}, s{S_T}, {EB}")
    a.e(f"v_add_u32 v{A_EW}, s{S_T}, {T0}")
    a.e(f"v_xor_b32 v{A_ER}, 1024, v{A_EW}")
    a.e("v_and_b32 v28, 7, v0")
    a.e("v_lshlrev_b32 v29, 7, v28")
    a.e("v_lshlrev_b32 v28, 2, v28")
    a.e(f"s_mov_b32 s{S_CS}, {CSCALE:#x}")
    a.e(f"s_mov_b32 s{S_PER}, 0")
    stamp(a, o, 6, "start")
    W(1)
    stamp(a, o, 12, "pro")
    stamp(a, o, 7, "start")
    endstep(a, wait_for(("W", 0)))
    stamp(a, o, 8, "start")
    stamp(a, o, 1, "pro")
    a.raw("L_Apro:")
    for n in range(10):
        if n + 2 < 10: W(n + 2)
        if n == o["kt"]: late_touches()
        if n == o["k0"]: K0()
        if n == o["k1"]:
            a_burst(a, o, 1, S_K, S_OK); vm.extend([("K", 2)] * 3 + [("K", 3)] * 3)
        endstep(a, wait_for(("W", n + 1)) if n < 9 else None)
        stamp(a, o, n + 2, "pro")
    if o["k1"] == 10:
        a_burst(a, o, 1, S_K, S_OK); vm.extend([("K", 2)] * 3 + [("K", 3)] * 3)
    endstep(a, wait_for(("K", 0)))
    first = dict(s0=wait_for(("K", 1)), s1=wait_for(("K", 2)))

    a.label("L_Aper")
    stamp(a, o, (1, S_PER, 4))
    for s in range(32):
        a.comment(f"A step {s}")
        if s == 16: stamp(a, o, (5, S_PER, 4))
        vmw = 4 if ((s - 1) >> 1) in PF_LOW + PF_HIGH else 3
        bt = []
        if s == 0:
            a.e(f"s_cmp_eq_u32 s{S_PER}, 0")
            a.branch("s_cbranch_scc1 L_A0")
            a_burst(a, o, 1, S_K, S_OK)
            a_onorm(a, a_qread)
            a.branch("s_branch L_A0j")
            a.label("L_A0")
            for ks in range(6):
                for t in a_qread(ks): a.e(t)
            a.label("L_A0j")
            vmw = min(6, first["s0"])
        elif s == 1:
            vmw = min(3, first["s1"])
        elif s == 30:
            a.e(f"s_cmp_eq_u32 s{S_PER}, 3")
            a.branch("s_cbranch_scc1 L_A30")
            a_burst(a, o, 0, S_K, S_OK)
            a.label("L_A30")
            vmw = 6
        elif s % 2 == 0:
            vmw = 6
            D = ((s >> 1) + 1) & 1
            bt = rec(a_burst, o, D, *((S_K, S_OK) if s < 14 else (S_V, S_OV)), s in (12, 28))
            if (s >> 1) in PF_LOW + PF_HIGH:
                high = (s >> 1) in PF_HIGH
                bt.append(f"s_lshl_b32 s{S_T}, s{S_PER}, 4")
                bt.append(f"s_add_u32 s{S_T}, s{S_T}, {s>>1}")
                bt.append(f"s_bitcmp1_b64 s[{S_PFM}:{S_PFM+1}], s{S_T}")
                bt.append(f"s_cselect_b32 s{S_T}, s{S_PFO}, {OOB}")
                if high: bt.append(f"s_cselect_b32 s{S_T2}, s{S_PFS}, 0")
                bt.append(f"s_mov_b32 {'exec_lo' if high else 'exec_hi'}, 0")
                bt.append(f"buffer_load_dword v{A_DUM}, v{A_PF}, {sq(S_PF)}, s{S_T} offen{pp}")
                bt.append("s_mov_b64 exec, -1")
                if high: bt.append(f"s_add_u32 s{S_PFO}, s{S_PFO}, s{S_T2}")
                vmw = 7
            if o["adma"] == 0 or s == 16:
                for t in bt: a.e(t)
                bt = []
        if s == 5:
            a.comment("the entry reads have landed: count this workgroup in (d_debug word of the group)")
            a.e(f"s_and_b32 s{S_T}, s{S_HG}, 3")
            a.e(f"s_xor_b32 s{S_T}, s{S_T}, s{S_PER}")
            a.e(f"s_or_b32 s{S_T}, s{S_T}, s{S_W}")
            a.branch("s_cbranch_scc1 L_sy1")
            a.e("s_lshl_b32 s45, s44, 3")
            a.e(f"v_mov_b32 v{A_T0}, s45")
            a.e(f"v_mov_b32 v{A_T1}, 1")
            a.e("s_mov_b64 exec, 1")
            a.e(f"buffer_atomic_add v{A_T1}, v{A_T0}, {sq(S_DBG)}, 0 offen")
            a.e("s_mov_b64 exec, -1")
            a.label("L_sy1")
        if o["pdma"] == 3 and s % 2: bt = ["s_barrier"]
        if s == 1: a_kstep(a, o, s, sum((a_owrite(i) for i in range(6)), []), pre=bt)
        elif s < 16: a_kstep(a, o, s, pre=bt)
        else: a_vstep(a, o, s - 16, pre=bt)
        if s == 30:
            a.e(f"s_cmp_eq_u32 s{S_PER}, 3")
            a.branch("s_cbranch_scc0 L_A30j")
            a.e("s_waitcnt vmcnt(0)")
            a.label("L_A30j")
        endstep(a, vmw + o["kvx"])
    a.e(f"s_add_u32 s{S_PER}, s{S_PER}, 1")
    a.e(f"s_cmp_lt_u32 s{S_PER}, 4")
    a.branch("s_cbranch_scc1 L_Aper")
    a.label("L_Aend")
    stamp(a, o, 9)
    stamp(a, o, 1, "tail")
    a_onorm(a, a_owrite)
    endstep(a)
    tail_offsets(a, 128, S_MK, S_OK, "v0", (T0, T1))
    stamp(a, o, 2, "tail")
    for p in range(4):
        if p: a.e(f"s_waitcnt vmcnt({6 if p < 3 else 0})")
        a.e("s_barrier")
        stamp(a, o, p + 3, "tail")
        for n in ([5, 6], [7, 8], [9], [])[p]: tail_tile(a, o, 128, S_MK, S_OK, n)
    a.e(f"s_cmp_lg_u32 s{S_W}, 0")
    a.branch("s_cbranch_scc1 L_red")
    a.e("s_lshl_b32 s45, s44, 3")
    a.e("v_mov_b32 v28, s45")
    spin(a, "in", f"buffer_load_dword v29, v28, {sq(S_DBG)}, 0 offen sc1", ["v_readfirstlane_b32 s41, v29", "s_cmp_ge_u32 s41, 8"])
    a.e("v_lshlrev_b32 v28, 2, v0")
    a.e(f"v_add_u32 v28, {EB}, v28")
    a.e(f"ds_write_b32 v28, v{A_FI}")
    a.e("v_mov_b32 v29, 0")
    a.e("ds_write_b32 v28, v29 offset:256")


def reduce_chunk(a, o, k, base):
    a.e(f"s_lshl_b32 s41, s{k}, 10")
    a.e(f"s_add_u32 s41, s41, {WB}")
    a.e(f"v_add_u32 v3, s41, v1")
    a.e(f"v_add_u32 v6, 40960, v3")
    for i in range(8):
        a.e(f"ds_read_b128 {v(base+4*i,4)}, v{3 if i < 4 else 6} offset:{(i&3)*10240}")
    a.e(f"s_mul_i32 s43, s{S_HG}, 10")
    a.e(f"s_add_u32 s43, s43, s{k}")
    a.e("s_and_b32 s41, s43, 1")
    a.e("s_lshl_b32 s41, s41, 5")
    a.e("s_lshr_b32 s43, s43, 1")
    a.e(f"s_lshl_b32 s42, s{S_B}, 6")
    a.e("s_add_u32 s42, s42, s41")
    a.e("s_mul_i32 s42, s42, 2560")
    a.e(f"s_mul_i32 s41, s{S_BR}, 1280")
    a.e("s_add_u32 s42, s42, s41")
    a.e("s_lshl_b32 s43, s43, 5")
    a.e("s_add_u32 s42, s42, s43")
    ac = base + 32
    for i in range(8):
        for n in range(4):
            r = base + 4 * i + n
            if i == 0:
                a.e(f"v_lshlrev_b32 v{ac+2*n}, 16, v{r}")
                a.e(f"v_and_b32 v{ac+1+2*n}, 0xffff0000, v{r}")
            else:
                a.e(f"v_lshlrev_b32 v4, 16, v{r}")
                a.e(f"v_and_b32 v5, 0xffff0000, v{r}")
                a.e(f"v_pk_add_f32 {v(ac+2*n,2)}, {v(ac+2*n,2)}, v[4:5]")
    for n in range(4): a.e(f"v_cvt_pk_bf16_f32 v{base+n}, v{ac+2*n}, v{ac+1+2*n}")
    a.e(f"buffer_store_dwordx4 {v(base,4)}, v2, {sq(S_OUT)}, s42 offen{pol(o['outpol'])}")


def gen_tail(a, o):
    a.label("L_red")
    lane_id(a, 0)
    a.e(f"s_lshl_b32 s44, s{S_BR}, 4")
    a.e(f"s_add_u32 s44, s44, s{S_B}")
    a.e("s_lshl_b32 s45, s44, 10")
    a.e(f"s_add_u32 s45, s45, {FLAGS}")
    a.e(f"s_lshl_b32 s46, s{S_HG}, 7")
    a.e("s_add_u32 s46, s46, s45")
    a.e(f"s_lshl_b32 s40, s{S_WAVE}, 2")
    a.e(f"s_add_u32 s40, s40, {EB}")
    a.e("v_mov_b32 v3, s40")
    a.e("v_and_b32 v28, 7, v0")
    a.e("v_lshlrev_b32 v29, 7, v28")
    a.e("v_lshlrev_b32 v1, 4, v0")
    a.e("v_lshlrev_b32 v28, 2, v28")
    a.e(f"s_cmp_lg_u32 s{S_WAVE}, 4")
    a.e("s_barrier")
    a.branch("s_cbranch_scc1 L_go")
    stamp(a, o, 10)
    a.e(f"v_add_u32 v{A_FO}, 1, v{A_FO}")
    a.e("s_mov_b64 exec, 0xff")
    a.e(f"buffer_store_dword v{A_FO}, v29, {sq(S_WS)}, s47 offen sc1")
    a.e("s_mov_b64 exec, -1")
    a.label("L_go")
    a.e(f"s_cmp_eq_u32 s{S_WAVE}, s{S_HG}")
    a.branch("s_cbranch_scc0 L_fetch")
    a.e(f"v_add_u32 v5, {EB}, v28")
    a.e("ds_read_b32 v4, v5")
    a.e("s_mov_b64 exec, 0xff")
    spin(a, "poll", f"buffer_load_dword v30, v28, {sq(S_WS)}, s46 offen sc1",
         ["v_cmp_ne_u32 vcc, v30, v4", "v_cndmask_b32 v6, 0, 1, vcc", "ds_write_b32 v5, v6 offset:256",
          f"s_bitset1_b32 vcc_lo, s{S_HG}", "s_cmp_eq_u32 vcc_lo, 0xff"], o["nap"])
    a.e("s_mov_b64 exec, -1")
    a.branch("s_branch L_staged")
    a.label("L_fetch")
    a.e("s_lshl_b32 s45, s44, 3")
    a.e(f"s_add_u32 s45, s45, s{S_WAVE}")
    a.e("s_mul_i32 s45, s45, 81920")
    a.e(f"s_mul_i32 s43, s{S_HG}, 10240")
    a.e("s_add_u32 s45, s45, s43")
    a.e(f"s_mul_i32 s43, s{S_WAVE}, 10240")
    a.e(f"s_add_u32 s43, s43, {WB}")
    spin(a, "seen", "ds_read_b32 v4, v3 offset:256", ["v_readfirstlane_b32 s41, v4", "s_cmp_lg_u32 s41, 0"], 1, 0x400000)
    a.e("v_add_u32 v3, s43, v1")
    for k in range(10):
        a.e(f"buffer_load_dwordx4 {v(8+4*k,4)}, v1, {sq(S_WS)}, s45 offen offset:{(k&3)*1024}{pol(o['ldpol'])}")
        if k & 3 == 3: a.e("s_add_u32 s45, s45, 4096")
    for k in range(10):
        a.e(f"s_waitcnt vmcnt({9-k})")
        a.e(f"ds_write_b128 v3, {v(8+4*k,4)} offset:{k*1024}")
    a.label("L_staged")
    a.e("v_and_b32 v2, 31, v0")
    a.e("v_mul_u32_u24 v2, 2560, v2")
    a.e("v_lshrrev_b32 v3, 5, v0")
    a.e("v_lshl_add_u32 v2, v3, 4, v2")
    a.e(f"s_mov_b32 s45, s{S_WAVE}")
    a.e("s_barrier")
    stamp(a, o, 11)
    reduce_chunk(a, o, 45, 8)
    a.e(f"s_cmp_lt_u32 s{S_WAVE}, 2")
    a.branch("s_cbranch_scc0 L_fin")
    a.e("s_add_u32 s45, s45, 8")
    reduce_chunk(a, o, 45, 48)


def gen_main(a, o):
    a.raw(f".globl {KN}\n.p2align 8\n.type {KN},@function\n{KN}:")
    a.e(f"s_cmp_ge_u32 s2, {o['nact']}")
    a.e("s_cbranch_scc1 L_end")
    if o["stamps"]:
        a.e("s_memrealtime s[90:91]")
        a.e("s_memtime s[86:87]")
    a.e("s_load_dwordx2 s[34:35], s[0:1], 96")
    a.e("s_load_dwordx4 s[64:67], s[0:1], 80")
    a.e("s_and_b32 s3, s2, 7")
    a.e("s_lshr_b32 s5, s3, 2")
    a.e("s_mul_i32 s32, s5, 40")
    a.e("s_add_u32 s0, s0, s32")
    a.e("s_addc_u32 s1, s1, 0")
    a.e("s_load_dwordx4 s[44:47], s[0:1], 24")
    a.e("s_load_dwordx2 s[36:37], s[0:1], 0")
    a.e("s_load_dwordx4 s[40:43], s[0:1], 8")
    a.e("v_lshrrev_b32 v1, 6, v0")
    a.e("v_and_b32 v0, 63, v0")
    a.e("v_readfirstlane_b32 s32, v1")
    a.e("s_lshr_b32 s4, s2, 3")
    a.e("s_and_b32 s7, s4, 15")
    a.e("s_lshr_b32 s4, s4, 4")
    a.e("s_and_b32 s6, s3, 3")
    a.e("s_lshl_b32 s6, s6, 1")
    a.e("s_add_u32 s6, s6, s4")
    if o["stamps"] >= 2:
        a.e("s_waitcnt lgkmcnt(0)")
        for i in range(16): a.e(f"s_mov_b32 s{70+i}, s90")
        stamp(a, o, 1, "start")
    a.e("s_and_b32 s33, s32, 3")
    a.e("s_cmp_lt_u32 s32, 4")
    a.branch("s_cbranch_scc1 L_P")
    gen_A(a, o)
    gen_tail(a, o)
    a.label("L_fin")
    if o["stamps"]:
        a.e("s_memrealtime s[92:93]")
        a.e("s_memtime s[88:89]")
        a.e("s_waitcnt lgkmcnt(0)")
        a.e("s_sub_u32 s85, s88, s86")
        a.e("s_getreg_b32 s84, hwreg(HW_REG_XCC_ID, 0, 4)")
        a.e("s_getreg_b32 s83, hwreg(HW_REG_HW_ID)")
        a.e("v_mov_b32 v4, s90"); a.e("v_mov_b32 v5, s91"); a.e("v_mov_b32 v6, s92"); a.e("v_mov_b32 v7, s93")
        a.e("s_lshl_b32 s40, s2, 3"); a.e("s_add_u32 s40, s40, s32"); a.e("s_lshl_b32 s40, s40, 4")
        a.e("s_add_u32 s40, s40, 0x2000000")
        a.e("v_mov_b32 v1, 0")
        a.e(f"buffer_store_dwordx4 v[4:7], v1, {sq(S_WS)}, s40 offen")
        if o["stamps"] >= 2:
            a.e("s_lshl_b32 s40, s2, 3"); a.e("s_add_u32 s40, s40, s32"); a.e("s_lshl_b32 s40, s40, 6")
            a.e("s_add_u32 s40, s40, 0x2100000")
            for k in range(4):
                for i in range(4): a.e(f"v_mov_b32 v{8+4*k+i}, s{70+4*k+i}")
                a.e(f"buffer_store_dwordx4 v[{8+4*k}:{11+4*k}], v1, {sq(S_WS)}, s40 offen offset:{16*k}")
    a.e("s_endpgm")
    gen_P(a, o)
    a.label("L_end")
    a.e("s_endpgm")


def droppings(t, d):
    keep = []; cnt = cnt2 = cnt3 = 0; role = ""
    for l in t.split("\n"):
        if l.startswith(("L_PQa", "L_PO:", "L_PQb")): role = "P"
        if l.startswith(("L_Ptail", "L_Aend", "L_Pcyc")): role = ""
        if l.startswith("L_Aper"): role = "A"
        if l.startswith("L_Ppro"): role = "p"
        if l.startswith("L_Apro"): role = "a"
        if "x" in d and role == "p" and l.strip().startswith(("v_", "ds_")): continue
        if "y" in d and role == "a" and l.strip().startswith("buffer_load_dwordx4") and "s[8:11]" not in l: continue
        if "z" in d and role == "a" and l.strip().startswith("buffer_load_dwordx4") and "s[8:11]" in l: continue
        x = l.strip()
        if "k" in d and role == "A" and x.startswith("buffer_load"): continue
        if "w" in d and role == "P" and x.startswith("buffer_load"): continue
        if "a" in d and role == "A" and x.startswith(("v_", "ds_")) and not x.startswith("v_mov_b32"): continue
        if "p" in d and role == "P" and x.startswith(("v_", "ds_")): continue
        if "m" in d and role in ("A", "P") and x.startswith("v_mfma"): continue
        if "r" in d and role in ("A", "P") and x.startswith("ds_read"): continue
        if "h" in d and role == "A" and x.startswith("ds_read"):
            cnt += 1
            if (cnt // (2 if "tr" in x else 1)) % 2: continue
        if "g" in d and role == "P" and x.startswith("ds_read_b64_tr"):
            cnt2 += 1
            if (cnt2 // 2) % 2: continue
        if "T" in d and x.startswith("buffer_store_dwordx4") and "s[28:31]" in x and "sc1" in x: continue
        if "L" in d and x.startswith("buffer_load_dwordx4") and "s[28:31]" in x: continue
        if "v" in d and role == "A" and x.startswith(("v_exp", "v_fma", "v_add_f32", "v_max3")): continue
        if "A" in d and role == "A" and x.startswith("v_mfma"): continue
        if "P" in d and role == "P" and x.startswith("v_mfma"): continue
        if ("s" in d or "S" in d) and role == "P" and x.startswith("v_mfma_f32_32x32x16"):
            m = re.match(r"v_mfma_f32_32x32x16_bf16 v\[(\d+):\d+\], (v\[\d+:\d+\]), (v\[\d+:\d+\]), (.*)", x)
            cnt3 += 1
            for k in range(2):
                b = int(m.group(1)) + 4 * k + 8 * (cnt3 & 1)
                bo = m.group(3) if (k == 0 or "S" not in d) else {"v[16:19]": "v[20:23]", "v[20:23]": "v[16:19]"}[m.group(3)]
                keep.append(f"    v_mfma_f32_16x16x32_bf16 v[{b}:{b+3}], {m.group(2)}, {bo}, v[{b}:{b+3}]")
            continue
        keep.append(l)
    return "\n".join(keep)


def gen(**kw):
    o = dict(DEFAULTS); o.update(kw)
    a = Asm()
    if o["stamps"]: a.raw(f"; stamps={8*o['nact']} @0x2000000")
    a.raw(f"; @launch grid=(256,1,1) block=(512,1,1) lds={LDS}")
    a.raw('.amdgcn_target "amdgcn-amd-amdhsa--gfx950"\n.text')
    gen_main(a, o)
    a.raw(f""".section .rodata,"a"
.p2align 6
.amdhsa_kernel {KN}
  .amdhsa_next_free_vgpr 256
  .amdhsa_next_free_sgpr 102
  .amdhsa_accum_offset 256
  .amdhsa_group_segment_fixed_size 0
  .amdhsa_kernarg_size 104
  .amdhsa_user_sgpr_count 2
  .amdhsa_user_sgpr_kernarg_segment_ptr 1
  .amdhsa_system_sgpr_workgroup_id_x 1
.end_amdhsa_kernel""")
    t = a.text()
    return droppings(t, o["drop"]) if o["drop"] else t


if __name__ == "__main__":
    out = sys.argv[1]
    kw = {}
    for x in sys.argv[2:]:
        k, val = x.split("=")
        kw[k] = int(val) if val.lstrip("-").isdigit() else val.replace("+", " ")
    open(out, "w").write(gen(**kw))
```

```python
import sys, math, struct, re
from asmlib import Asm

NAME = "concat_heads__gqa_block_cached__gqa_block_cached__near_ridge"
KN = NAME + "_kernel"
WB, XB, EB, LDS = 49152, 131072, 155648, 163840
KV_BYTES, W_BYTES, X_BYTES, OUT_BYTES, WS_BYTES = 100663296, 7864320, 1310720, 2621440, 64 << 20
OOB = 0x40000000
FLAGS = 0x1800000
CSCALE = struct.unpack("<I", struct.pack("<f", math.log2(math.e) / math.sqrt(192.0)))[0]

DEFAULTS = dict(kvpol="nt", wpol="", pfpol="", xpol="", stpol="sc1", ldpol="sc1", outpol="", stamps=0, prio=0,
                adepth=8, pq=12, po=9, pdma=1, drop="", nact=256, k0=6, k1=10, kt=7, prod=12, codepf=0, pf0=8, pf1=26, pfb=4, kvx=0, warm=65536, xbar=11, vspan=9, adma=0, sprio=0, nap=8, tst=0, rot=0, kord=0)

S_HALF, S_BR, S_HG, S_B = 4, 5, 6, 7
S_K, S_V, S_WQ, S_WO, S_XI, S_WS, S_OUT = 8, 12, 16, 20, 24, 28, 64
S_WAVE, S_W, S_DBG, S_T, S_T2 = 32, 33, 36, 57, 59


def v(a, n=1):
    return f"v{a}" if n == 1 else f"v[{a}:{a+n-1}]"


def sq(a):
    return f"s[{a}:{a+3}]"


def pol(s):
    return (" " + s) if s else ""


class Rec:
    def __init__(self): self.t = []
    def e(self, x): self.t.append(x)


def rec(fn, *args):
    r = Rec(); fn(r, *args); return r.t


def srd(a, base, src, size):
    if src != base: a.e(f"s_mov_b32 s{base}, s{src}")
    a.e(f"s_and_b32 s{base+1}, s{src+1}, 0xffff")
    a.e(f"s_mov_b32 s{base+2}, {size}")
    a.e(f"s_mov_b32 s{base+3}, 0x20000")


def entry_touches(a, o):
    pp = pol(o["pfpol"])
    a.e(f"s_lshl_b32 s{S_T}, s{S_WAVE}, 4")
    a.e(f"v_add_u32 v2, s{S_T}, v0")
    a.e("v_mul_u32_u24 v3, 21846, v2")
    a.e("v_mul_u32_u24 v6, 1280, v0")
    a.e("v_lshrrev_b32 v3, 16, v3")
    a.e(f"v_mul_u32_u24 v7, {o['warm']}, v0")
    a.e("v_mul_u32_u24 v4, 3, v3")
    a.e("v_mul_u32_u24 v3, 12288, v3")
    a.e("v_sub_u32 v4, v2, v4")
    a.e(f"s_mul_i32 s48, s{S_B}, {40*12288}")
    a.e("v_lshl_add_u32 v3, v4, 7, v3")
    a.e(f"s_mul_i32 s{S_T}, s{S_HG}, 1536")
    a.e(f"s_add_u32 s48, s48, s{S_T}")
    a.e(f"s_cmp_eq_u32 s{S_WAVE}, 7")
    a.e("s_cselect_b32 s49, 8, 16")
    a.e("s_bfm_b32 s49, s49, 0")
    a.e(f"s_mul_i32 s50, s{S_B}, 81920")
    a.e(f"s_lshl_b32 s51, s{S_B}, 3"); a.e(f"s_add_u32 s51, s51, s{S_HG}")
    a.e(f"s_mul_i32 s51, s51, 786432")
    a.e(f"s_cmp_eq_u32 s{S_WAVE}, 0"); a.e(f"s_cselect_b32 s50, s50, {OOB}")
    a.e(f"s_cmp_eq_u32 s{S_WAVE}, 1"); a.e(f"s_cselect_b32 s52, s51, {OOB}")
    a.e(f"s_cmp_eq_u32 s{S_WAVE}, 2"); a.e(f"s_cselect_b32 s53, s51, {OOB}")
    a.e("s_mov_b32 exec_hi, 0")
    a.e("s_mov_b32 exec_lo, s49")
    a.e("s_waitcnt lgkmcnt(0)")
    srd(a, S_WQ, 44, W_BYTES)
    a.e(f"buffer_load_dword v255, v3, {sq(S_WQ)}, s48 offen{pp}")
    a.e("s_mov_b64 exec, -1")
    srd(a, S_XI, 36, X_BYTES)
    a.e(f"buffer_load_dword v255, v6, {sq(S_XI)}, s50 offen{pp}")
    a.e(f"s_mov_b64 exec, {(1 << (786432 // o['warm'])) - 1}")
    srd(a, S_K, 40, KV_BYTES)
    a.e(f"buffer_load_dword v255, v7, {sq(S_K)}, s52 offen nt")
    srd(a, S_V, 42, KV_BYTES)
    a.e(f"buffer_load_dword v255, v7, {sq(S_V)}, s53 offen nt")
    a.e("s_mov_b64 exec, -1")
    srd(a, S_WO, 46, W_BYTES); srd(a, S_WS, 34, WS_BYTES)
    srd(a, S_DBG, 66, 256)
    srd(a, S_OUT, 64, OUT_BYTES)


def pipe(a, reads, mfmas, fill, depth, span=None, skip=0):
    n = len(mfmas)
    span = span or n
    for i in range(min(depth, n)):
        for t in reads[i]: a.e(t)
    done = 0
    for i in range(n):
        for t in ([mfmas[i]] if isinstance(mfmas[i], str) else mfmas[i]): a.e(t)
        if i + depth < n:
            for t in reads[i + depth]: a.e(t)
        upto = len(fill) * max(min(i + 1, span) - skip, 0) // (span - skip)
        for t in fill[done:upto]: a.e(t)
        done = upto


def interleave(a, chains):
    for i in range(max(map(len, chains))):
        for c in chains:
            if i < len(c): a.e(c[i])


def div24(a, dst_row, dst_rem, src, tmp):
    a.e(f"v_mul_u32_u24 {tmp}, 2731, {src}")
    a.e(f"v_lshrrev_b32 {dst_row}, 16, {tmp}")
    a.e(f"v_mul_u32_u24 {tmp}, 24, {dst_row}")
    a.e(f"v_sub_u32 {dst_rem}, {src}, {tmp}")


def stamp(a, o, k, tag=''):
    if {2: "", 3: "pro", 4: "tail", 5: "start"}.get(o["stamps"]) != tag: return
    a.e("s_waitcnt lgkmcnt(0)")
    a.e("s_memrealtime s[94:95]")
    a.e("s_waitcnt lgkmcnt(0)")
    if isinstance(k, int): a.e(f"s_mov_b32 s{70+k}, s94")
    else:
        base, reg, n = k
        for i in range(n):
            a.e(f"s_cmp_eq_u32 s{reg}, {i}")
            a.e(f"s_cselect_b32 s{70+base+i}, s94, s{70+base+i}")


def endstep(a, vm=None):
    a.e("s_waitcnt lgkmcnt(0)" if vm is None else f"s_waitcnt vmcnt({vm}) lgkmcnt(0)")
    a.e("s_barrier")


def idle(a, tag, n):
    if n <= 2:
        for _ in range(n): a.e("s_barrier")
        return
    a.e(f"s_mov_b32 s{S_T}, {n}")
    a.label(f"L_{tag}")
    a.e("s_barrier")
    a.e(f"s_sub_u32 s{S_T}, s{S_T}, 1")
    a.e(f"s_cmp_lg_u32 s{S_T}, 0")
    a.branch(f"s_cbranch_scc1 L_{tag}")


def idle_steps(a, o, tag, r0, r1):
    n = sum(1 + (r == 17) + (o["pdma"] == 3 and r % 2 == 0) for r in range(r0, r1))
    idle(a, tag, n)


def lane_id(a, r):
    a.e(f"v_mbcnt_lo_u32_b32 v{r}, -1, 0")
    a.e(f"v_mbcnt_hi_u32_b32 v{r}, -1, v{r}")


def dma_offsets_q(a, vq, vx, t):
    chains = []
    for j in range(3):
        r = Rec()
        T0, T1, T2, T3 = (f"v{t+4*j+k}" for k in range(4))
        r.e(f"v_add_u32 {T0}, {64*j}, v0")
        div24(r, T1, T2, T0, T3)
        r.e(f"v_and_or_b32 {T3}, {T1}, 2, s{S_T}")
        r.e(f"v_xor_b32 {T2}, {T2}, {T3}")
        r.e(f"v_mul_u32_u24 {T1}, 12288, {T1}")
        r.e(f"v_lshl_add_u32 {T1}, {T2}, 4, {T1}")
        r.e(f"v_subrev_u32 v{vq+j}, {1024*j}, {T1}")
        chains.append(r.t)
    T0, T1 = f"v{t+12}", f"v{t+13}"
    a.e(f"s_and_b32 s{S_T}, s{S_W}, 1")
    a.e(f"s_lshl_b32 s{S_T}, s{S_T}, 2")
    chains.append([f"v_lshrrev_b32 {T0}, 3, v0", f"v_and_b32 {T0}, 6, {T0}", f"v_and_b32 {T1}, 7, v0",
                   f"v_xor_b32 {T0}, {T0}, {T1}", f"v_lshrrev_b32 {T1}, 3, v0", f"v_mul_u32_u24 {T1}, 1280, {T1}",
                   f"v_lshl_add_u32 v{vx}, {T0}, 4, {T1}"])
    interleave(a, chains)


def wq_share(a, dst, T0, T1, T2):
    a.e(f"s_and_b32 s{S_T}, s{S_W}, 1")
    a.e(f"s_lshl_b32 s{S_T}, s{S_T}, 6")
    a.e(f"v_add_u32 {T0}, s{S_T}, v0")
    a.e(f"v_mul_u32_u24 {T1}, 21846, {T0}")
    a.e(f"v_lshrrev_b32 {T1}, 16, {T1}")
    a.e(f"v_mul_u32_u24 {T2}, 3, {T1}")
    a.e(f"v_sub_u32 {T2}, {T0}, {T2}")
    a.e(f"v_mul_u32_u24 {T1}, 12288, {T1}")
    a.e(f"v_lshl_add_u32 {dst}, {T2}, 7, {T1}")


def scalars_q(a, mq, mx, oq, ox, head):
    a.e(f"s_mul_i32 s{mq}, s{S_W}, 3072")
    a.e(f"s_lshl_b32 s{mx}, s{S_W}, 10")
    a.e(f"s_mul_i32 s{oq}, s{S_HG}, 1536")
    a.e(f"s_mul_i32 s{S_T}, s{S_W}, {8*12288}")
    a.e(f"s_add_u32 s{oq}, s{oq}, s{S_T}")
    if head: a.e(f"s_add_u32 s{oq}, s{oq}, {384*head}")
    a.e(f"s_mul_i32 s{ox}, s{S_B}, 81920")
    a.e(f"s_mul_i32 s{S_T}, s{S_W}, {8*1280}")
    a.e(f"s_add_u32 s{ox}, s{ox}, s{S_T}")


def burst_q(a, o, R, la, lx, lb):
    vq, vx, mq, mx, oq, ox = R
    wp, xp = pol(o["wpol"]), pol(o["xpol"])
    a.e(f"s_add_u32 m0, s{mq}, {la}")
    a.e(f"s_add_u32 s{S_T}, s{ox}, {32*1280}")
    for j in range(3):
        a.e(f"buffer_load_dwordx4 v{vq+j}, {sq(S_WQ)}, s{oq} offen offset:{1024*j}{wp} lds")
    a.e(f"s_add_u32 m0, s{mx}, {lx}")
    a.e(f"s_add_u32 s{oq}, s{oq}, {32*12288}")
    a.e(f"buffer_load_dwordx4 v{vx}, {sq(S_XI)}, s{ox} offen{xp} lds")
    a.e(f"s_add_u32 m0, s{mx}, {lx+4096}")
    a.e(f"s_add_u32 s{ox}, s{ox}, 128")
    a.e(f"buffer_load_dwordx4 v{vx}, {sq(S_XI)}, s{S_T} offen{xp} lds")
    a.e(f"s_add_u32 m0, s{mq}, {lb}")
    a.e("s_nop 0")
    for j in range(3):
        a.e(f"buffer_load_dwordx4 v{vq+j}, {sq(S_WQ)}, s{oq} offen offset:{1024*j}{wp} lds")
    a.e(f"s_add_u32 s{oq}, s{oq}, {32*12288}")


def tail_slot(n):
    k = n % 5
    return WB + k * 24576 if k < 3 else (k - 3) * 24576


def tail_offsets(a, vt, mt, ot, lane, T):
    T0, T1 = T
    a.e(f"v_lshrrev_b32 {T0}, 3, {lane}")
    a.e(f"v_and_b32 {T0}, 2, {T0}")
    a.e(f"v_and_b32 {T1}, 7, {lane}")
    a.e(f"v_xor_b32 {T0}, {T0}, {T1}")
    a.e(f"v_lshrrev_b32 {T1}, 3, {lane}")
    a.e(f"v_mul_u32_u24 {T1}, 1280, {T1}")
    a.e(f"v_lshl_add_u32 v{vt}, {T0}, 4, {T1}")
    a.e(f"v_xor_b32 v{vt+1}, 64, v{vt}")
    a.e(f"s_mul_i32 s{mt}, s{S_W}, 6144")
    a.e(f"s_mul_i32 s{ot}, s{S_HG}, {4*245760}")
    a.e(f"s_mul_i32 s{S_T2}, s{S_W}, {48*1280}")
    a.e(f"s_add_u32 s{ot}, s{ot}, s{S_T2}")
    a.e(f"s_add_u32 s{ot}, s{ot}, {3*245760}")


def tail_tile(a, o, vt, mt, ot, n):
    for j in range(6):
        a.e(f"s_add_u32 m0, s{mt}, {tail_slot(n) + 1024*j}")
        a.e(f"s_add_u32 s{S_T2}, s{ot}, {128*n + 8*1280*j}")
        a.e(f"buffer_load_dwordx4 v{vt+(j&1)}, {sq(S_WO)}, s{S_T2} offen{pol(o['wpol'])} lds")


PRO_W, PRO_X = 24576, 122880


PY, PQ, PFA, PFB = 96, 48, 36, 20
P_T0, P_VQ, P_VX, P_VO, P_AQ, P_AW, P_AX, P_AO, P_T1, P_QW, P_DUM = 0, 1, 4, 5, 10, 13, 15, 16, 17, 18, 19
S_C, S_MQ, S_MX, S_MO, S_OQ, S_OX, S_OO, S_P, S_OWN = 50, 51, 52, 53, 54, 55, 56, 58, 49
PR = (P_VQ, P_VX, S_MQ, S_MX, S_OQ, S_OX)


def p_burst_q(a, o, D):
    b = WB + D * 40960
    burst_q(a, o, PR, b, b + 32768, b + 20480)
    return 8


def p_burst_o(a, o, D):
    wp = pol(o["wpol"])
    for h in range(2):
        b = WB + D * 40960 + h * 20480
        a.e(f"s_add_u32 m0, s{S_MO}, {b}")
        a.e(f"s_add_u32 s{S_T}, s{S_OO}, 4096")
        for j in range(4):
            a.e(f"buffer_load_dwordx4 v{P_VO+j}, {sq(S_WO)}, s{S_OO} offen offset:{1024*j}{wp} lds")
        a.e(f"s_add_u32 m0, s{S_MO}, {b+4096}")
        a.e(f"s_add_u32 s{S_OO}, s{S_OO}, 20480")
        a.e(f"buffer_load_dwordx4 v{P_VO+4}, {sq(S_WO)}, s{S_T} offen{wp} lds")
    return 10


def p_toggle(a, regs, D):
    for r in regs:
        a.e(f"v_add_u32 v{r}, 40960, v{r}" if D == 0 else f"v_subrev_u32 v{r}, 40960, v{r}")


def tr_pair(f, addr, off, delta):
    return [f"ds_read_b64_tr_b16 {v(f,2)}, v{addr} offset:{off}", f"ds_read_b64_tr_b16 {v(f+2,2)}, v{addr} offset:{off+delta}"]


def mfma16(acc, fa, fb, zero=False):
    return f"v_mfma_f32_16x16x32_bf16 {v(acc,4)}, {v(fa,4)}, {v(fb,4)}, {'0' if zero else v(acc,4)}"


def quad(reads, mf, rd, acc, f, fb, zero=False):
    for qs in range(4):
        reads.append(rd if qs == 0 else [])
        mf.append(mfma16(acc + 4 * qs, f, fb + 4 * qs, zero))


def p_qstep(a, o, qs, fill=()):
    h = qs & 1
    reads, mf = [], []
    for i in range(3):
        quad(reads, mf, tr_pair(PFA + 4 * i, P_AQ + i, h * 20480, 1536), PQ + 16 * i, PFA + 4 * i, PFB, qs == 0)
    ax = P_AX
    if h:
        a.e(f"v_xor_b32 v{P_T0}, 64, v{P_AX}"); ax = P_T0
    xr = [f"ds_read_b128 {v(PFB+4*k,4)}, v{ax} offset:{2048*k}" for k in range(4)]
    reads[0] = xr[:1] + reads[0] + xr[1:]
    if qs == 5: mf[o["xbar"]] = [mf[o["xbar"]], "s_barrier"]
    pipe(a, reads, mf, list(fill), o["pq"])
    if h: p_toggle(a, [P_AQ, P_AQ + 1, P_AQ + 2, P_AX], (qs >> 1) & 1)


def p_oreads(a, dst, tau, tmp):
    ao = P_AO
    if tau & 1:
        a.e(f"v_xor_b32 v{tmp}, 64, v{P_AO}"); ao = tmp
    return [f"ds_read_b128 {v(dst+4*k,4)}, v{ao} offset:{6144*k + (tau>>1)*128}" for k in range(4)]


def p_ostep(a, o, s, fill=()):
    h = s & 1
    reads, mf = [], []
    for i in range(5):
        T = 5 * h + i
        f = PFA + 4 * (i % 3)
        quad(reads, mf, tr_pair(f, P_AW + (T & 1), (T >> 1) * 256, 5120), PY + 16 * T, f, PFB)
    if not h:
        xr = p_oreads(a, PFB, s >> 1, P_T0)
        reads[0] = xr[:1] + reads[0] + xr[1:]
    pipe(a, reads, mf, list(fill), o["po"])
    if h: p_toggle(a, [P_AW, P_AW + 1], (s >> 1) & 1)


def p_even(a, o, step, idx, burst, D):
    r = Rec(); n = burst(r, o, D)
    if o["pdma"] == 1:
        for x in r.t: a.e(x)
        step(a, o, idx)
    elif o["pdma"] == 2: step(a, o, idx, r.t)
    else:
        step(a, o, idx)
        if o["pdma"] == 3: a.e("s_barrier")
        for x in r.t: a.e(x)
    endstep(a, n)


def p_choice(a, o, tag, cond, first, second):
    if o["pdma"] == 3: a.e("s_barrier")
    a.e(cond)
    a.branch(f"s_cbranch_scc1 L_{tag}_b")
    a.e(f"s_waitcnt vmcnt({first()})")
    a.branch(f"s_branch L_{tag}_j")
    a.label(f"L_{tag}_b")
    a.e(f"s_waitcnt vmcnt({second()})")
    a.label(f"L_{tag}_j")
    endstep(a)


PRO_AQ, PRO_AX = 168, 174


def p_prologue(a, o):
    XF, F = 96, 144
    reads, mf = [], []
    for n in range(10):
        s = n & 3
        for h in range(2):
            xf = XF + 16 * ((2 * n + h) % 3)
            xr = [f"ds_read_b128 {v(xf+4*k,4)}, v{PRO_AX+h} offset:{s*8192 + 2048*k}" for k in range(4)]
            for i in range(3):
                f = F + 4 * ((len(mf) // 4) % 6)
                rd = tr_pair(f, PRO_AQ + 3 * (s >> 1) + i, (s & 1) * 24576 + h * 12288, 1536)
                if i == 0: rd = xr[:1] + rd + xr[1:]
                if i == 0 and h == 0 and n: rd = ["s_barrier"] + rd
                quad(reads, mf, rd, PQ + 16 * i, f, xf, n == 0 and h == 0)
    pipe(a, reads, mf, [], o["prod"])
    endstep(a)


def p_pack_block(a, i):
    y = PY + 16 * i
    for k in range(8): a.e(f"v_cvt_pk_bf16_f32 v{y+k}, v{y+2*k}, v{y+2*k+1}")
    for t in range(2):
        a.e(f"v_permlane16_swap_b32 v{y+4*t}, v{y+4*t+2}")
        a.e(f"v_permlane16_swap_b32 v{y+4*t+1}, v{y+4*t+3}")


def p_store_block(a, o, i):
    a.e(f"s_add_u32 s{S_T}, s{S_OWN}, {4*i}")
    a.e(f"s_cmp_lt_u32 s{S_T}, 5")
    a.e(f"s_cselect_b32 s{S_T}, {OOB}, s{S_P}")
    for t in range(2):
        a.e(f"buffer_store_dwordx4 {v(PY+16*i+4*t,4)}, v1, {sq(S_WS)}, s{S_T} offen offset:{t*1024}{pol(o['stpol'])}")
    a.e(f"s_add_u32 s{S_P}, s{S_P}, 8192")


def p_keep_block(a, i):
    a.e(f"s_add_u32 s{S_T}, s{S_OWN}, {4*i}")
    a.e(f"s_cmp_lt_u32 s{S_T}, 5")
    a.branch(f"s_cbranch_scc0 L_keep{i}")
    a.e(f"s_lshl_b32 s{S_T}, s{S_T}, 11")
    a.e(f"v_add_u32 v3, s{S_T}, v2")
    for t in range(2):
        a.e(f"ds_write_b128 v3, {v(PY+16*i+4*t,4)} offset:{t*1024}")
    a.label(f"L_keep{i}")


def tr_lane_parts(a, lane, G1, RR, ROW, C1, B8):
    a.e(f"v_lshrrev_b32 {ROW}, 4, {lane}")
    a.e(f"v_and_b32 {G1}, 1, {ROW}")
    a.e(f"v_bfe_u32 {RR}, {lane}, 2, 2")
    a.e(f"v_lshl_add_u32 {ROW}, {ROW}, 3, {RR}")
    a.e(f"v_bfe_u32 {C1}, {lane}, 1, 1")
    a.e(f"v_and_b32 {B8}, 1, {lane}")
    a.e(f"v_lshlrev_b32 {B8}, 3, {B8}")


def gen_P(a, o):
    a.label("L_P")
    if o["prio"] == 1: a.e("s_setprio 1")
    T0, T1, T2, T3, T4, T5, T6 = (f"v{20+k}" for k in range(7))
    stamp(a, o, 2, "start")
    G1, RR, ROW, C1, B8 = T0, T1, T2, T3, T4
    tr_lane_parts(a, "v0", G1, RR, ROW, C1, B8)
    a.e(f"v_and_b32 {T5}, 2, {RR}")
    a.e(f"v_lshl_or_b32 {T5}, {G1}, 2, {T5}")
    a.e(f"v_mul_u32_u24 v27, 384, {ROW}")
    a.e(f"v_add_u32 v27, v27, {B8}")
    for i in range(3):
        a.e(f"s_mul_i32 s{S_T}, s{S_W}, 6")
        a.e(f"s_add_u32 s{S_T}, s{S_T}, {2*i}")
        a.e(f"v_add_u32 {T6}, s{S_T}, {C1}")
        a.e(f"v_xor_b32 {T6}, {T6}, {T5}")
        a.e(f"v_lshl_add_u32 {T6}, {T6}, 4, v27")
        a.e(f"v_add_u32 v{P_AQ+i}, {WB}, {T6}")
        a.e(f"v_add_u32 v{PRO_AQ+i}, {PRO_W}, {T6}")
        a.e(f"v_add_u32 v{PRO_AQ+3+i}, {PRO_W+49152}, {T6}")
    a.e(f"v_lshl_or_b32 {T5}, {G1}, 2, {RR}")
    a.e(f"v_lshlrev_b32 {T5}, 1, {T5}")
    a.e(f"v_mul_u32_u24 v27, 1280, {ROW}")
    a.e(f"v_add_u32 v27, v27, {B8}")
    a.e(f"s_lshl_b32 s{S_T}, s{S_W}, 1")
    a.e(f"v_add_u32 {T6}, s{S_T}, {C1}")
    a.e(f"v_xor_b32 {T6}, {T6}, {T5}")
    a.e(f"v_lshl_add_u32 {T6}, {T6}, 4, v27")
    a.e(f"v_add_u32 v{P_AW}, {WB}, {T6}")
    a.e(f"v_xor_b32 v{P_AW+1}, 128, v{P_AW}")
    a.e(f"v_and_b32 {T0}, 15, v0")
    a.e(f"v_lshrrev_b32 {T1}, 4, v0")
    a.e(f"v_and_b32 {T2}, 6, {T0}")
    a.e(f"v_xor_b32 {T3}, {T2}, {T1}")
    a.e(f"v_lshlrev_b32 {T3}, 4, {T3}")
    a.e(f"v_lshl_add_u32 {T4}, {T0}, 7, {T3}")
    a.e(f"v_add_u32 v{P_AX}, {WB+32768}, {T4}")
    a.e(f"v_add_u32 v{PRO_AX}, {PRO_X}, {T4}")
    a.e(f"v_xor_b32 v{PRO_AX+1}, 64, v{PRO_AX}")
    a.e(f"v_mul_u32_u24 {T0}, 384, {T0}")
    a.e(f"v_add_u32 {T0}, {XB}, {T0}")
    a.e(f"v_add_u32 v{P_AO}, {T0}, {T3}")
    a.e(f"v_lshrrev_b32 {T3}, 1, {T1}")
    a.e(f"v_xor_b32 {T3}, {T3}, {T2}")
    a.e(f"v_lshl_add_u32 {T3}, {T3}, 4, {T0}")
    a.e(f"v_and_b32 {T1}, 1, {T1}")
    a.e(f"v_lshl_add_u32 v{P_QW}, {T1}, 3, {T3}")
    dma_offsets_q(a, P_VQ, P_VX, 28)
    a.e(f"s_lshr_b32 s{S_T}, s{S_W}, 1")
    a.e(f"s_lshl_b32 s{S_T}, s{S_T}, 2")
    for j in range(5):
        a.e(f"v_add_u32 {T0}, {64*j}, v0")
        a.e(f"v_mul_u32_u24 {T0}, 820, {T0}")
        a.e(f"v_lshrrev_b32 {T0}, 16, {T0}")
        a.e(f"v_or_b32 {T0}, s{S_T}, {T0}")
        a.e(f"v_lshlrev_b32 {T0}, 1, {T0}")
        a.e(f"v_xor_b32 {T0}, {T0}, v0")
        a.e(f"v_lshlrev_b32 v{P_VO+j}, 4, {T0}")
    scalars_q(a, S_MQ, S_MX, S_OQ, S_OX, 1)
    a.e(f"s_mul_i32 s{S_MO}, s{S_W}, 5120")
    a.e(f"s_mul_i32 s{S_OO}, s{S_HG}, {4*245760}")
    a.e(f"s_add_u32 s{S_OO}, s{S_OO}, s{S_MO}")
    a.e(f"s_mov_b32 s{S_C}, 1")
    stamp(a, o, 3, "start")
    a.e("s_barrier")
    stamp(a, o, 1)
    a.raw("L_Ppro:")
    p_prologue(a, o)

    a.label("L_Pcyc")
    for i in range(24):
        a.e(f"v_cvt_pk_bf16_f32 v{PQ+i}, v{PQ+2*i}, v{PQ+2*i+1}")
    for i in range(3):
        a.e(f"s_mul_i32 s{S_T}, s{S_W}, 3")
        a.e(f"s_add_u32 s{S_T}, s{S_T}, {i}")
        a.e(f"s_and_b32 s{S_T2}, s{S_T}, 3")
        a.e(f"s_lshl_b32 s{S_T2}, s{S_T2}, 5")
        a.e(f"s_lshr_b32 s{S_T}, s{S_T}, 2")
        a.e(f"s_lshl_b32 s{S_T}, s{S_T}, 7")
        t = (P_T0, P_T1)[i & 1]
        a.e(f"v_xor_b32 v{t}, s{S_T2}, v{P_QW}")
        a.e(f"v_add_u32 v{t}, s{S_T}, v{t}")
        for k in range(4):
            a.e(f"ds_write_b64 v{t}, {v(PQ+8*i+2*k,2)} offset:{6144*k}")
    a.e("s_waitcnt lgkmcnt(0)")
    a.e(f"s_cmp_eq_u32 s{S_C}, 4")
    a.branch("s_cbranch_scc0 L_Pc3")
    idle_steps(a, o, "Pi4", 0, 4)
    a.branch("s_branch L_PO")
    a.label("L_Pc3")
    a.e(f"s_cmp_eq_u32 s{S_C}, 1")
    a.branch("s_cbranch_scc0 L_PQa")
    a.e("s_barrier")
    p_burst_q(a, o, 0)
    endstep(a, 3)

    a.label("L_PQa")
    for qs in range(4):
        if qs == 0:
            p_even(a, o, p_qstep, 0, p_burst_q, 1); continue
        p_qstep(a, o, qs)
        if qs == 2: p_choice(a, o, "Pa", f"s_cmp_ge_u32 s{S_C}, 2", lambda: p_burst_q(a, o, 0), lambda: p_burst_o(a, o, 0))
        else: endstep(a, 3 if qs == 1 else 0)
    a.e(f"s_cmp_ge_u32 s{S_C}, 2")
    a.branch("s_cbranch_scc1 L_PO")
    for i in range(160): a.e(f"v_mov_b32 v{PY+i}, 0")
    idle_steps(a, o, "Pi10", 6, 16)
    a.branch("s_branch L_PQb")

    a.label("L_PO")
    stamp(a, o, (2, S_C, 5))
    for s in range(12):
        if s < 10 and s % 2 == 0:
            p_even(a, o, p_ostep, s, p_burst_o, ((s >> 1) + 1) & 1); continue
        p_ostep(a, o, s)
        if s == 10: p_choice(a, o, "Po", f"s_cmp_eq_u32 s{S_C}, 4", lambda: p_burst_q(a, o, 0), lambda: 0)
        elif s == 11: endstep(a, 3)
        else: endstep(a, 0)
    a.e(f"s_cmp_eq_u32 s{S_C}, 4")
    a.branch("s_cbranch_scc1 L_Ptail")

    a.label("L_PQb")
    for qs in range(4, 20):
        if qs < 18 and qs % 2 == 0:
            p_even(a, o, p_qstep, qs, p_burst_q, ((qs >> 1) + 1) & 1); continue
        p_qstep(a, o, qs)
        if qs == 18:
            a.e(f"s_add_u32 s{S_OQ}, s{S_OQ}, {(384 - 640*12288) & 0xffffffff}")
            a.e(f"s_sub_u32 s{S_OX}, s{S_OX}, 1280")
            p_choice(a, o, "Pb", f"s_cmp_eq_u32 s{S_C}, 3", lambda: p_burst_q(a, o, 0), lambda: p_burst_o(a, o, 0))
        else: endstep(a, 0 if qs == 19 else 3)
    a.e(f"s_add_u32 s{S_C}, s{S_C}, 1")
    a.branch("s_branch L_Pcyc")

    a.label("L_Ptail")
    VT, TA = 2, 4
    lane_id(a, 5)
    tail_offsets(a, VT, S_MO, S_OO, "v5", ("v6", "v7"))
    tr_lane_parts(a, "v5", "v6", "v7", "v8", "v9", "v10")
    a.e("v_and_b32 v7, 2, v7")
    a.e("v_lshl_or_b32 v7, v6, 2, v7")
    a.e(f"s_lshl_b32 s{S_T}, s{S_W}, 1")
    a.e(f"v_add_u32 v9, s{S_T}, v9")
    a.e("v_xor_b32 v9, v9, v7")
    a.e("v_lshl_add_u32 v9, v9, 4, v10")
    a.e(f"v_lshl_add_u32 v{TA}, v8, 7, v9")
    a.e("v_lshlrev_b32 v1, 4, v5")
    a.e(f"s_lshl_b32 s{S_P}, s{S_BR}, 4"); a.e(f"s_add_u32 s{S_P}, s{S_P}, s{S_B}")
    a.e(f"s_lshl_b32 s{S_P}, s{S_P}, 3"); a.e(f"s_add_u32 s{S_P}, s{S_P}, s{S_HG}")
    a.e(f"s_mul_i32 s{S_P}, s{S_P}, 81920")
    a.e(f"s_lshl_b32 s{S_T}, s{S_W}, 11"); a.e(f"s_add_u32 s{S_P}, s{S_P}, s{S_T}")
    a.e(f"s_mul_i32 s{S_T}, s{S_HG}, 5"); a.e(f"s_sub_u32 s{S_OWN}, s{S_W}, s{S_T}")
    for n in range(3):
        tail_tile(a, o, VT, S_MO, S_OO, n)
        idle_steps(a, o, f"Pt{n}", 16 + 2 * n, 18 + 2 * n)
    idle_steps(a, o, "Pt3", 22, 31)
    tail_tile(a, o, VT, S_MO, S_OO, 3)
    idle_steps(a, o, "Pt4", 31, 33)
    tail_tile(a, o, VT, S_MO, S_OO, 4)
    endstep(a, 6)
    stamp(a, o, 7)
    SB, F = 8, 24
    a.e(f"v_xor_b32 v{P_T0}, 64, v{P_AO}")
    a.e(f"v_mov_b32 v7, v{P_AO}")
    ob = lambda dst, tau: [f"ds_read_b128 {v(dst+4*k,4)}, v{P_T0 if tau & 1 else 7} offset:{6144*k + (tau>>1)*128}" for k in range(4)]
    order = (3, 0, 4, 1, 5, 2)
    for t in ob(SB, 3): a.e(t)
    for p in range(5):
        for k in range(2): a.e(f"v_add_u32 v{5+k}, {tail_slot(2*p+k)}, v{TA}")
        reads, mf = [], []
        for gi, tau in enumerate(order):
            for k in range(2):
                f = F + 4 * ((len(mf) // 4) % 6)
                rd = tr_pair(f, 5 + k, tau * 4096, 512)
                if p == 0 and tau < 3 and k == 0: rd = ob(PQ + 16 * tau, tau) + rd
                quad(reads, mf, rd, PY + 16 * (2 * p + k), f, PQ + 16 * tau if tau < 3 else SB)
            if tau >= 3 and not (p == 4 and tau == 5):
                mf[-1] = [mf[-1]] + ob(SB, 3 if tau == 5 else tau + 1)
        fill = []
        if p: fill = rec(p_pack_block, 2 * p - 2) + rec(p_pack_block, 2 * p - 1)
        for m in TAIL_STORES[o["tst"]].get(p, []): fill += rec(p_store_block, o, m)
        for n in range(4):
            for t in reads[n]: a.e(t)
            reads[n] = []
        pipe(a, reads, mf, fill, 16, skip=6)
        if p == 0: a.e("s_waitcnt vmcnt(0)")
        if p < 4: a.e("s_barrier")
    stamp(a, o, 8)
    for m in TAIL_STORES[o["tst"]][5]:
        if m >= 8: p_pack_block(a, m)
        p_store_block(a, o, m)
    a.e(f"s_mul_i32 s{S_T}, s{S_HG}, 10240")
    a.e(f"s_add_u32 s{S_T}, s{S_T}, {WB}")
    a.e(f"v_add_u32 v2, s{S_T}, v1")
    for m in range(10): p_keep_block(a, m)
    a.e("s_waitcnt vmcnt(0)")
    a.branch("s_branch L_red")


TAIL_STORES = [{3: [0, 1, 2, 3, 4, 5], 4: [6, 7], 5: [8, 9]},
               {3: [0, 1, 2], 4: [3, 4, 5, 6], 5: [7, 8, 9]},
               {2: [0, 1], 3: [2, 3, 4], 4: [5, 6, 7], 5: [8, 9]},
               {1: [0, 1], 2: [2, 3], 3: [4, 5], 4: [6, 7], 5: [8, 9]}]


AS, AR_, AP, AF = 128, 80, 56, 24
A_VD, A_AK, A_AV, A_M, A_L, A_R, A_T0, A_T1, A_PF, A_DUM = 1, 4, 6, 14, 16, 18, 20, 21, 22, 23
A_XQ, A_XO, A_EW, A_ER, A_FI, A_FO = 48, 50, 52, 53, 54, 55
S_SP, S_PER, S_MK, S_OK, S_OV, S_CS, S_PFO, S_PFS, S_PF = 49, 50, 51, 52, 53, 54, 55, 56, 60
AR = (128, 131, 68, 69, 96, 97)
S_PFM = 100
S_LK, S_LV = 48, 58
PF_LOW, PF_HIGH = (1, 3, 6, 8, 10, 12), (2, 4, 7, 9, 11, 13)


def a_burst(a, o, D, srdreg, off, last=False):
    kp = pol(o["kvpol"])
    for h in range(2):
        a.e(f"s_add_u32 m0, s{S_MK}, {D*24576+h*12288}")
        if h: a.e(f"s_add_u32 s{off}, s{off}, 12288")
        else: a.e("s_nop 0")
        for j in range(3):
            a.e(f"buffer_load_dwordx4 v{A_VD+j}, {sq(srdreg)}, s{off} offen offset:{1024*j}{kp} lds")
    a.e(f"s_add_u32 s{off}, s{off}, 12288")
    if o["rot"]:
        lim = S_LK if off == S_OK else S_LV
        a.e(f"s_cmp_eq_u32 s{off}, s{lim}")
        a.e(f"s_cselect_b32 s{S_T}, 196608, 0")
        a.e(f"s_sub_u32 s{off}, s{off}, s{S_T}")
        if last:
            a.e(f"s_add_u32 s{off}, s{off}, 196608")
            a.e(f"s_add_u32 s{lim}, s{lim}, 196608")


def soft_chunk(j):
    b = AS + 8 * j
    t = []
    for i in range(8): t.append(f"v_fma_f32 v{b+i}, v{b+i}, s{S_CS}, -v{A_M+(i>>2)}")
    for i in range(8): t.append(f"v_exp_f32 v{b+i}, v{b+i}")
    for i in (0, 4, 1, 5, 2, 6, 3, 7):
        if j == 0 and i % 4 == 0: t.append(f"v_mov_b32 v{A_L+(i>>2)}, v{b+i}")
        else: t.append(f"v_add_f32 v{A_L+(i>>2)}, v{A_L+(i>>2)}, v{b+i}")
    for qs in range(2):
        for i in range(2): t.append(f"v_cvt_pk_bf16_f32 v{b+4*qs+i}, v{b+4*qs+2*i}, v{b+4*qs+2*i+1}")
    for qs in range(2):
        t.append(f"ds_write_b64 v{A_EW}, {v(b+4*qs,2)} offset:{(j&1)*4096 + qs*512}")
    return t


def max_chunk(s):
    b = AS + 8 * s
    t = []
    for i in range(2):
        for qs in range(2):
            r = b + 4 * qs + 2 * i
            if s == 0 and i == 0: t.append(f"v_max_f32 v{A_M+qs}, v{r}, v{r+1}")
            else: t.append(f"v_max3_f32 v{A_M+qs}, v{A_M+qs}, v{r}, v{r+1}")
    return t


def xlane2(a, reg, op):
    for sw in ("v_permlane32_swap_b32", "v_permlane16_swap_b32"):
        for k in range(2): a.e(f"v_mov_b32 v{A_T0+k}, v{reg+k}")
        for k in range(2): a.e(f"{sw} v{reg+k}, v{A_T0+k}")
        for k in range(2): a.e(f"{op} v{reg+k}, v{reg+k}, v{A_T0+k}")


def a_rowsum(a):
    xlane2(a, A_L, "v_add_f32")
    a.e(f"ds_write_b64 v{A_EW}, {v(A_L,2)}")


def a_qread(ks):
    return [f"ds_read_b128 {v(AR_+8*ks+4*qs,4)}, v{A_XQ+(ks&1)} offset:{qs*6144 + (ks>>1)*128}" for qs in range(2)]


def a_owrite(i):
    t = [f"v_xor_b32 v{A_T0+(i&1)}, {32*(i&3)}, v{A_XO+(1 if i in (2, 3) else 0)}"]
    for qs in range(2):
        t.append(f"ds_write_b64 v{A_T0+(i&1)}, {v(AP+4*i+2*qs,2)} offset:{qs*6144 + (i>>2)*128}")
    return t


def a_onorm(a, after):
    a.e(f"ds_read_b64 {v(A_T0,2)}, v{A_ER}")
    for k in range(2): a.e(f"v_add_f32 v{A_L+k}, v{A_L+k}, v{A_T0+k}")
    for k in range(2): a.e(f"v_rcp_f32 v{A_R+k}, v{A_L+k}")
    for i in range(6):
        for qs in range(2):
            r = AR_ + 8 * i + 4 * qs
            for k in (0, 2):
                a.e(f"v_pk_mul_f32 {v(r+k,2)}, {v(r+k,2)}, {v(A_R,2)} op_sel:[0,{qs}] op_sel_hi:[1,{qs}]")
        for qs in range(2):
            r = AR_ + 8 * i + 4 * qs
            for k in range(2): a.e(f"v_cvt_pk_bf16_f32 v{AP+4*i+2*qs+k}, v{r+2*k}, v{r+2*k+1}")
        for t in after(i): a.e(t)


def hoist(a, reads, depth, pre):
    if not pre: return
    for i in range(min(depth, len(reads))):
        for t in reads[i]: a.e(t)
        reads[i] = []
    for t in pre: a.e(t)


def a_kstep(a, o, s, extra=(), pre=()):
    reads, mf = [], []
    for i in range(12):
        ks, qs = divmod(i, 2) if not o["kord"] else (i % 6, i // 6)
        f = AF + 4 * ks
        reads.append([] if qs else [f"ds_read_b128 {v(f,4)}, v{A_AK+(ks&1)} offset:{(s&3)*12288 + (ks>>1)*128}"])
        mf.append(mfma16(AS + 8 * s + 4 * qs, f, AR_ + 8 * ks + 4 * qs, ks == 0))
    hoist(a, reads, o["adepth"], pre)
    pipe(a, reads, mf, (max_chunk(s - 1) if s else []) + list(extra), o["adepth"])
    if s == 15:
        for t in max_chunk(15): a.e(t)
        xlane2(a, A_M, "v_max_f32")
        a.e(f"ds_write_b64 v{A_EW}, {v(A_M,2)} offset:4096")


def a_vstep(a, o, j, pre=()):
    s = 16 + j
    b = AS + 8 * j
    reads, mf = [], []
    for n in range(12):
        i, qs = divmod(n, 2)
        f = AF + 4 * i
        off = (s & 3) * 12288 + (i >> 2) * 128
        reads.append([] if qs else [f"ds_read_b64_tr_b16 {v(f,2)}, v{A_AV+(i&3)} offset:{off}",
                                    f"ds_read_b64_tr_b16 {v(f+2,2)}, v{A_AV+4+(i&3)} offset:{off}"])
        mf.append(mfma16(AR_ + 8 * i + 4 * qs, f, b + 4 * qs, j == 0))
    if j == 0:
        a.e(f"ds_read_b64 {v(A_T0,2)}, v{A_ER} offset:4096")
        for n in range(0, 12, 2):
            for t in reads[n]: a.e(t)
            reads[n] = []
        for k in range(2): a.e(f"v_max_f32 v{A_M+k}, v{A_M+k}, v{A_T0+k}")
        for k in range(2): a.e(f"v_mul_f32 v{A_M+k}, s{S_CS}, v{A_M+k}")
        for t in soft_chunk(0): a.e(t)
        endstep(a)
    for qs in range(2):
        a.e(f"ds_read_b64 {v(b+4*qs+2,2)}, v{A_ER} offset:{(j&1)*4096 + qs*512}")
    hoist(a, reads, o["adepth"], pre)
    pipe(a, reads, mf, soft_chunk(j + 1) if j < 15 else rec(a_rowsum), o["adepth"], o["vspan"])


def spin(a, tag, load, test, nap=0, bound=0x20000):
    a.e("s_mov_b32 s40, 0")
    a.label(f"L_{tag}")
    a.e(load)
    a.e("s_add_u32 s40, s40, 1")
    a.e("s_waitcnt vmcnt(0) lgkmcnt(0)")
    for t in test: a.e(t)
    a.branch(f"s_cbranch_scc1 L_{tag}_ok")
    if nap: a.e(f"s_sleep {nap}")
    a.e(f"s_cmp_lt_u32 s40, {bound}")
    a.branch(f"s_cbranch_scc1 L_{tag}")
    a.label(f"L_{tag}_ok")


def gen_A(a, o):
    a.comment("attention waves: 16 query rows each; they also feed the first and the last projection")
    if o["prio"] == 2: a.e("s_setprio 1")
    if o["sprio"]: a.e("s_setprio 3")
    T0, T1, T2, T3 = "v24", "v25", "v26", "v27"
    dma_offsets_q(a, AR[0], AR[1], 32)
    scalars_q(a, *AR[2:], 0)
    chains = []
    for j in range(3):
        r = Rec()
        U0, U1, U2, U3 = (f"v{32+4*j+k}" for k in range(4))
        r.e(f"v_add_u32 {U0}, {64*j}, v0")
        r.e(f"v_mul_u32_u24 {U1}, 2731, {U0}")
        r.e(f"v_lshrrev_b32 {U1}, 16, {U1}")
        r.e(f"v_and_b32 {U1}, 6, {U1}")
        r.e(f"v_xor_b32 {U1}, {U1}, v0")
        r.e(f"v_lshlrev_b32 v{A_VD+j}, 4, {U1}")
        chains.append(r.t)
    kv_offsets = chains
    a.e(f"s_mul_i32 s98, s{S_B}, 81920")
    a.e(f"s_mul_i32 s{S_T}, s{S_HALF}, 40960"); a.e(f"s_add_u32 s98, s98, s{S_T}")
    a.e(f"s_mul_i32 s{S_T}, s{S_W}, 10240"); a.e(f"s_add_u32 s98, s98, s{S_T}")
    a.e(f"v_lshlrev_b32 v28, 7, v0")
    a.e(f"v_add_u32 v29, 8192, v28")
    a.e(f"v_mov_b32 {T2}, {OOB}")
    a.e(f"v_cmp_gt_u32 vcc, 16, v0")
    a.e(f"v_cndmask_b32 v29, {T2}, v29, vcc")
    stamp(a, o, 2, "start")
    pp = pol(o["pfpol"])
    vm = ["t"] * 4

    def W(n):
        s = n & 3
        burst_q(a, o, AR, PRO_W + s * 24576, PRO_X + s * 8192, PRO_W + s * 24576 + 12288)
        vm.extend([("W", n)] * 8)

    def K0():
        a_burst(a, o, 0, S_K, S_OK); vm.extend([("K", 0)] * 3 + [("K", 1)] * 3)

    def late_touches():
        a.e(f"s_cmp_eq_u32 s99, 0")
        a.e(f"s_cselect_b32 s{S_T}, {OOB}, s{S_PFO}")
        a.e(f"buffer_load_dword v{A_DUM}, v{A_PF}, {sq(S_PF)}, s{S_T} offen{pp}"); vm.append("t")
        a.e(f"s_add_u32 s{S_PFO}, s{S_PFO}, s99")
        a.e(f"s_cmp_eq_u32 s{S_W}, 0")
        a.e(f"s_cselect_b32 s{S_T}, s46, {OOB}")
        a.e(f"s_cselect_b32 s{S_T2}, s47, {OOB}")
        a.e(f"buffer_load_dword v{A_FI}, v28, {sq(S_WS)}, s{S_T} offen sc1"); vm.append("f")
        a.e(f"buffer_load_dword v{A_FO}, v29, {sq(S_WS)}, s{S_T2} offen sc1"); vm.append("f")

    def wait_for(tag):
        last = max(i for i, x in enumerate(vm) if x == tag)
        return min(63, len(vm) - 1 - last)

    stamp(a, o, 3, "start")
    W(0)
    stamp(a, o, 4, "start")
    if o["sprio"]: a.e(f"s_setprio {1 if o['prio'] == 2 else 0}")
    interleave(a, kv_offsets)
    a.e(f"s_mul_i32 s{S_MK}, s{S_W}, 3072")
    a.e(f"s_lshl_b32 s{S_OK}, s{S_B}, 3"); a.e(f"s_add_u32 s{S_OK}, s{S_OK}, s{S_HG}")
    a.e(f"s_mul_i32 s{S_OK}, s{S_OK}, 786432"); a.e(f"s_add_u32 s{S_OK}, s{S_OK}, s{S_MK}")
    if o["rot"]:
        a.e(f"s_add_u32 s{S_LK}, s{S_OK}, 196608")
        a.e(f"s_mov_b32 s{S_LV}, s{S_LK}")
        a.e(f"s_mul_i32 s{S_T}, s2, {o['rot']}")
        a.e(f"s_lshr_b32 s{S_T}, s{S_T}, 3")
        a.e(f"s_add_u32 s{S_T}, s{S_T}, s2")
        a.e(f"s_and_b32 s{S_T}, s{S_T}, 7")
        a.e(f"s_mul_i32 s{S_T}, s{S_T}, 24576")
        a.e(f"s_add_u32 s{S_OK}, s{S_OK}, s{S_T}")
    a.e(f"s_mov_b32 s{S_OV}, s{S_OK}")
    a.e(f"buffer_load_dword v{A_DUM}, v28, {sq(S_XI)}, s98 offen{pp}"); vm.append("t")
    a.e(f"buffer_load_dword v{A_DUM}, v29, {sq(S_XI)}, s98 offen{pp}"); vm.append("t")
    stamp(a, o, 5, "start")
    if o["k0"] < 0: K0()
    if o["codepf"]:
        a.e("s_getpc_b64 s[100:101]")
        a.raw("L_pc:")
        a.e(f"s_sub_u32 s100, s100, L_pc-{KN}")
        a.e("s_subb_u32 s101, s101, 0")
        a.e("s_lshr_b32 s98, s2, 3")
        a.e(f"s_lshl_b32 s98, s98, 2")
        a.e(f"s_add_u32 s98, s98, s{S_W}")
        a.e(f"s_lshl_b32 s98, s98, 9")
        a.e("v_and_b32 v30, 3, v0")
        a.e("v_lshlrev_b32 v30, 7, v30")
        a.e("v_add_u32 v30, s98, v30")
        a.e(f"v_min_u32 v30, L_end-{KN}, v30")
        a.e(f"global_load_dword v{A_DUM}, v30, s[100:101]"); vm.append("t")
    a.e(f"s_lshl_b32 s44, s{S_BR}, 4")
    a.e(f"s_add_u32 s44, s44, s{S_B}")
    a.e("s_lshl_b32 s45, s44, 10")
    a.e(f"s_add_u32 s45, s45, {FLAGS}")
    a.e(f"s_lshl_b32 s46, s{S_HG}, 7")
    a.e(f"s_add_u32 s46, s46, s45")
    a.e(f"s_lshl_b32 s47, s{S_HG}, 2")
    a.e(f"s_add_u32 s47, s47, s45")
    wq_share(a, T1, T0, T1, T2)
    a.e(f"v_lshlrev_b32 {T2}, 7, {T0}")
    a.e(f"s_mov_b32 s{S_PFS}, 384")
    a.e(f"s_mov_b32 s{S_T}, {40*12288}")
    a.e(f"s_cmp_ge_u32 s{S_W}, 2")
    a.e(f"s_cselect_b64 vcc, -1, 0")
    a.e(f"s_cselect_b32 s{S_PFS}, 245760, s{S_PFS}")
    a.e(f"s_cselect_b32 s{S_T}, 15360, s{S_T}")
    a.e(f"s_cselect_b32 s{S_PF}, s{S_WO}, s{S_WQ}")
    a.e(f"s_cselect_b32 s{S_PF+1}, s{S_WO+1}, s{S_WQ+1}")
    a.e(f"s_cselect_b32 s99, 0, 384")
    a.e(f"s_mov_b32 s{S_PF+2}, {W_BYTES}")
    a.e(f"s_mov_b32 s{S_PF+3}, 0x20000")
    a.e(f"v_cndmask_b32 {T1}, {T1}, {T2}, vcc")
    a.e(f"v_mov_b32 {T2}, {OOB}")
    a.e(f"v_cmp_gt_u32 vcc, 120, {T0}")
    a.e(f"v_cndmask_b32 v{A_PF}, {T2}, {T1}, vcc")
    a.e(f"s_mul_i32 s{S_PFO}, s{S_T}, s{S_B}")
    a.e(f"s_mul_i32 s{S_T}, s{S_PFS}, s{S_HG}")
    a.e(f"s_lshl_b32 s{S_T}, s{S_T}, 2")
    a.e(f"s_add_u32 s{S_PFO}, s{S_PFO}, s{S_T}")
    a.e(f"s_add_u32 s{S_PFO}, s{S_PFO}, s99")
    bits = lambda *pp_: sum(3 << (16 * p + k) for p, k in pp_)
    mA, mB, mO = bits((0, 6), (1, 6)), bits((0, 1), (1, 1), (2, 1)), bits((0, 10), (1, 10), (2, 10), (3, 1))
    a.e(f"s_mov_b32 s{S_PFM}, {mB & 0xffffffff}")
    a.e(f"s_mov_b32 s{S_PFM+1}, {mB >> 32}")
    a.e(f"s_cmp_lt_u32 s{S_B}, {o['pfb']}")
    a.e(f"s_cselect_b32 s{S_PFM}, {mA & 0xffffffff}, s{S_PFM}")
    a.e(f"s_cselect_b32 s{S_PFM+1}, {mA >> 32}, s{S_PFM+1}")
    a.e(f"s_cselect_b32 s99, s99, 0")
    a.e(f"s_cmp_ge_u32 s{S_W}, 2")
    a.e(f"s_cselect_b32 s{S_PFM}, {mO & 0xffffffff}, s{S_PFM}")
    a.e(f"s_cselect_b32 s{S_PFM+1}, {mO >> 32}, s{S_PFM+1}")
    a.e(f"s_and_b32 s{S_T}, s{S_W}, 1")
    a.e(f"s_lshl_b32 s{S_T}, s{S_T}, 1")
    a.e(f"s_lshl_b64 s[{S_PFM}:{S_PFM+1}], s[{S_PFM}:{S_PFM+1}], s{S_T}")
    a.e(f"s_and_b32 s{S_SP}, s{S_W}, 1")
    a.e(f"s_lshr_b32 s{S_T2}, s{S_W}, 1")
    a.e(f"s_mul_i32 s{S_T2}, s{S_T2}, 12288")
    a.e(f"s_add_u32 s{S_T2}, s{S_T2}, {XB}")
    a.e(f"s_mul_i32 s{S_T}, s{S_SP}, 6144")
    a.e(f"v_and_b32 {T0}, 15, v0")
    a.e(f"v_lshrrev_b32 {T1}, 4, v0")
    a.e(f"v_and_b32 {T2}, 6, {T0}")
    a.e(f"v_xor_b32 {T3}, {T2}, {T1}")
    a.e(f"v_mul_u32_u24 {T0}, 384, {T0}")
    a.e(f"v_lshl_add_u32 {T3}, {T3}, 4, {T0}")
    a.e(f"v_add_u32 v{A_AK}, s{S_T}, {T3}")
    a.e(f"v_xor_b32 v{A_AK+1}, 64, v{A_AK}")
    a.e(f"v_add_u32 v{A_XQ}, s{S_T2}, {T3}")
    a.e(f"v_xor_b32 v{A_XQ+1}, 64, v{A_XQ}")
    a.e(f"v_lshrrev_b32 {T3}, 1, {T1}")
    a.e(f"v_xor_b32 {T3}, {T3}, {T2}")
    a.e(f"v_lshl_add_u32 {T3}, {T3}, 4, {T0}")
    a.e(f"v_and_b32 {T2}, 1, {T1}")
    a.e(f"v_lshl_add_u32 {T3}, {T2}, 3, {T3}")
    a.e(f"v_add_u32 {T3}, s{S_T2}, {T3}")
    a.e(f"s_lshl_b32 s{S_T2}, s{S_SP}, 6")
    a.e(f"v_xor_b32 {T3}, s{S_T2}, {T3}")
    a.e(f"s_lshl_b32 s{S_T2}, s{S_SP}, 7")
    a.e(f"v_add_u32 v{A_XO}, s{S_T2}, {T3}")
    a.e(f"v_add_u32 v{A_XO+1}, s{S_T2}, v{A_XO}")
    a.e(f"v_lshrrev_b32 {T0}, 2, v0")
    a.e(f"v_and_b32 {T1}, 6, {T0}")
    a.e(f"v_bfe_u32 {T2}, v0, 1, 1")
    a.e(f"v_xor_b32 {T1}, {T1}, {T2}")
    a.e(f"v_mul_u32_u24 {T0}, 384, {T0}")
    a.e(f"v_lshl_add_u32 {T1}, {T1}, 4, {T0}")
    a.e(f"v_and_b32 {T2}, 1, v0")
    a.e(f"v_lshl_add_u32 {T1}, {T2}, 3, {T1}")
    a.e(f"s_lshl_b32 s{S_T2}, s{S_SP}, 6")
    a.e(f"v_xor_b32 {T1}, s{S_T2}, {T1}")
    for d in range(4):
        a.e(f"v_xor_b32 {T2}, {32*d}, {T1}")
        a.e(f"s_lshl_b32 s{S_T2}, s{S_SP}, {8 if d >= 2 else 7}")
        a.e(f"v_add_u32 {T2}, s{S_T2}, {T2}")
        a.e(f"v_add_u32 v{A_AV+d}, s{S_T}, {T2}")
        a.e(f"s_sub_u32 s{S_T2}, 6144, s{S_T}")
        a.e(f"v_add_u32 v{A_AV+4+d}, s{S_T2}, {T2}")
    a.e(f"v_lshlrev_b32 {T0}, 3, v0")
    a.e(f"s_lshl_b32 s{S_T}, s{S_W}, 10")
    a.e(f"s_add_u32 s{S_T}, s{S_T}, {EB}")
    a.e(f"v_add_u32 v{A_EW}, s{S_T}, {T0}")
    a.e(f"v_xor_b32 v{A_ER}, 1024, v{A_EW}")
    a.e("v_and_b32 v28, 7, v0")
    a.e("v_lshlrev_b32 v29, 7, v28")
    a.e("v_lshlrev_b32 v28, 2, v28")
    a.e(f"s_mov_b32 s{S_CS}, {CSCALE:#x}")
    a.e(f"s_mov_b32 s{S_PER}, 0")
    stamp(a, o, 6, "start")
    W(1)
    stamp(a, o, 12, "pro")
    stamp(a, o, 7, "start")
    endstep(a, wait_for(("W", 0)))
    stamp(a, o, 8, "start")
    stamp(a, o, 1, "pro")
    a.raw("L_Apro:")
    W(2)
    for n in range(10):
        endstep(a, wait_for(("W", n + 1)) if n < 9 else None)
        stamp(a, o, n + 2, "pro")
        if n + 3 < 10: W(n + 3)
        if n == o["kt"]: late_touches()
        if n == o["k0"]: K0()
    if o["k1"] == 10:
        a_burst(a, o, 1, S_K, S_OK); vm.extend([("K", 2)] * 3 + [("K", 3)] * 3)
    endstep(a, wait_for(("K", 0)))
    first = dict(s0=wait_for(("K", 1)), s1=wait_for(("K", 2)))

    a.label("L_Aper")
    stamp(a, o, (1, S_PER, 4))
    for s in range(32):
        a.comment(f"A step {s}")
        if s == 16: stamp(a, o, (5, S_PER, 4))
        vmw = 4 if ((s - 1) >> 1) in PF_LOW + PF_HIGH else 3
        bt = []
        if s == 0:
            a.e(f"s_cmp_eq_u32 s{S_PER}, 0")
            a.branch("s_cbranch_scc1 L_A0")
            a_burst(a, o, 1, S_K, S_OK)
            a_onorm(a, a_qread)
            a.branch("s_branch L_A0j")
            a.label("L_A0")
            for ks in range(6):
                for t in a_qread(ks): a.e(t)
            a.label("L_A0j")
            vmw = min(6, first["s0"])
        elif s == 1:
            vmw = min(3, first["s1"])
        elif s == 30:
            a.e(f"s_cmp_eq_u32 s{S_PER}, 3")
            a.branch("s_cbranch_scc1 L_A30")
            a_burst(a, o, 0, S_K, S_OK)
            a.label("L_A30")
            vmw = 6
        elif s % 2 == 0:
            vmw = 6
            D = ((s >> 1) + 1) & 1
            bt = rec(a_burst, o, D, *((S_K, S_OK) if s < 14 else (S_V, S_OV)), s in (12, 28))
            if (s >> 1) in PF_LOW + PF_HIGH:
                high = (s >> 1) in PF_HIGH
                bt.append(f"s_lshl_b32 s{S_T}, s{S_PER}, 4")
                bt.append(f"s_add_u32 s{S_T}, s{S_T}, {s>>1}")
                bt.append(f"s_bitcmp1_b64 s[{S_PFM}:{S_PFM+1}], s{S_T}")
                bt.append(f"s_cselect_b32 s{S_T}, s{S_PFO}, {OOB}")
                if high: bt.append(f"s_cselect_b32 s{S_T2}, s{S_PFS}, 0")
                bt.append(f"s_mov_b32 {'exec_lo' if high else 'exec_hi'}, 0")
                bt.append(f"buffer_load_dword v{A_DUM}, v{A_PF}, {sq(S_PF)}, s{S_T} offen{pp}")
                bt.append("s_mov_b64 exec, -1")
                if high: bt.append(f"s_add_u32 s{S_PFO}, s{S_PFO}, s{S_T2}")
                vmw = 7
            if o["adma"] == 0 or s == 16:
                for t in bt: a.e(t)
                bt = []
        if s == 5:
            a.comment("the entry reads have landed: count this workgroup in (d_debug word of the group)")
            a.e(f"s_and_b32 s{S_T}, s{S_HG}, 3")
            a.e(f"s_xor_b32 s{S_T}, s{S_T}, s{S_PER}")
            a.e(f"s_or_b32 s{S_T}, s{S_T}, s{S_W}")
            a.branch("s_cbranch_scc1 L_sy1")
            a.e("s_lshl_b32 s45, s44, 3")
            a.e(f"v_mov_b32 v{A_T0}, s45")
            a.e(f"v_mov_b32 v{A_T1}, 1")
            a.e("s_mov_b64 exec, 1")
            a.e(f"buffer_atomic_add v{A_T1}, v{A_T0}, {sq(S_DBG)}, 0 offen")
            a.e("s_mov_b64 exec, -1")
            a.label("L_sy1")
        if o["pdma"] == 3 and s % 2: bt = ["s_barrier"]
        if s == 1: a_kstep(a, o, s, sum((a_owrite(i) for i in range(6)), []), pre=bt)
        elif s < 16: a_kstep(a, o, s, pre=bt)
        else: a_vstep(a, o, s - 16, pre=bt)
        if s == 30:
            a.e(f"s_cmp_eq_u32 s{S_PER}, 3")
            a.branch("s_cbranch_scc0 L_A30j")
            a.e("s_waitcnt vmcnt(0)")
            a.label("L_A30j")
        endstep(a, vmw + o["kvx"])
    a.e(f"s_add_u32 s{S_PER}, s{S_PER}, 1")
    a.e(f"s_cmp_lt_u32 s{S_PER}, 4")
    a.branch("s_cbranch_scc1 L_Aper")
    a.label("L_Aend")
    stamp(a, o, 9)
    stamp(a, o, 1, "tail")
    a_onorm(a, a_owrite)
    endstep(a)
    tail_offsets(a, 128, S_MK, S_OK, "v0", (T0, T1))
    stamp(a, o, 2, "tail")
    for p in range(4):
        if p: a.e(f"s_waitcnt vmcnt({6 if p < 3 else 0})")
        a.e("s_barrier")
        stamp(a, o, p + 3, "tail")
        for n in ([5, 6], [7, 8], [9], [])[p]: tail_tile(a, o, 128, S_MK, S_OK, n)
    a.e(f"s_cmp_lg_u32 s{S_W}, 0")
    a.branch("s_cbranch_scc1 L_red")
    a.e("s_lshl_b32 s45, s44, 3")
    a.e("v_mov_b32 v28, s45")
    spin(a, "in", f"buffer_load_dword v29, v28, {sq(S_DBG)}, 0 offen sc1", ["v_readfirstlane_b32 s41, v29", "s_cmp_ge_u32 s41, 8"])
    a.e("v_lshlrev_b32 v28, 2, v0")
    a.e(f"v_add_u32 v28, {EB}, v28")
    a.e(f"ds_write_b32 v28, v{A_FI}")
    a.e("v_mov_b32 v29, 0")
    a.e("ds_write_b32 v28, v29 offset:256")


def reduce_chunk(a, o, k, base):
    a.e(f"s_lshl_b32 s41, s{k}, 10")
    a.e(f"s_add_u32 s41, s41, {WB}")
    a.e(f"v_add_u32 v3, s41, v1")
    a.e(f"v_add_u32 v6, 40960, v3")
    for i in range(8):
        a.e(f"ds_read_b128 {v(base+4*i,4)}, v{3 if i < 4 else 6} offset:{(i&3)*10240}")
    a.e(f"s_mul_i32 s43, s{S_HG}, 10")
    a.e(f"s_add_u32 s43, s43, s{k}")
    a.e("s_and_b32 s41, s43, 1")
    a.e("s_lshl_b32 s41, s41, 5")
    a.e("s_lshr_b32 s43, s43, 1")
    a.e(f"s_lshl_b32 s42, s{S_B}, 6")
    a.e("s_add_u32 s42, s42, s41")
    a.e("s_mul_i32 s42, s42, 2560")
    a.e(f"s_mul_i32 s41, s{S_BR}, 1280")
    a.e("s_add_u32 s42, s42, s41")
    a.e("s_lshl_b32 s43, s43, 5")
    a.e("s_add_u32 s42, s42, s43")
    ac = base + 32
    for i in range(8):
        for n in range(4):
            r = base + 4 * i + n
            if i == 0:
                a.e(f"v_lshlrev_b32 v{ac+2*n}, 16, v{r}")
                a.e(f"v_and_b32 v{ac+1+2*n}, 0xffff0000, v{r}")
            else:
                a.e(f"v_lshlrev_b32 v4, 16, v{r}")
                a.e(f"v_and_b32 v5, 0xffff0000, v{r}")
                a.e(f"v_pk_add_f32 {v(ac+2*n,2)}, {v(ac+2*n,2)}, v[4:5]")
    for n in range(4): a.e(f"v_cvt_pk_bf16_f32 v{base+n}, v{ac+2*n}, v{ac+1+2*n}")
    a.e(f"buffer_store_dwordx4 {v(base,4)}, v2, {sq(S_OUT)}, s42 offen{pol(o['outpol'])}")


def gen_tail(a, o):
    a.label("L_red")
    lane_id(a, 0)
    a.e(f"s_lshl_b32 s44, s{S_BR}, 4")
    a.e(f"s_add_u32 s44, s44, s{S_B}")
    a.e("s_lshl_b32 s45, s44, 10")
    a.e(f"s_add_u32 s45, s45, {FLAGS}")
    a.e(f"s_lshl_b32 s46, s{S_HG}, 7")
    a.e("s_add_u32 s46, s46, s45")
    a.e(f"s_lshl_b32 s40, s{S_WAVE}, 2")
    a.e(f"s_add_u32 s40, s40, {EB}")
    a.e("v_mov_b32 v3, s40")
    a.e("v_and_b32 v28, 7, v0")
    a.e("v_lshlrev_b32 v29, 7, v28")
    a.e("v_lshlrev_b32 v1, 4, v0")
    a.e("v_lshlrev_b32 v28, 2, v28")
    a.e(f"s_cmp_lg_u32 s{S_WAVE}, 4")
    a.e("s_barrier")
    a.branch("s_cbranch_scc1 L_go")
    stamp(a, o, 10)
    a.e(f"v_add_u32 v{A_FO}, 1, v{A_FO}")
    a.e("s_mov_b64 exec, 0xff")
    a.e(f"buffer_store_dword v{A_FO}, v29, {sq(S_WS)}, s47 offen sc1")
    a.e("s_mov_b64 exec, -1")
    a.label("L_go")
    a.e(f"s_cmp_eq_u32 s{S_WAVE}, s{S_HG}")
    a.branch("s_cbranch_scc0 L_fetch")
    a.e(f"v_add_u32 v5, {EB}, v28")
    a.e("ds_read_b32 v4, v5")
    a.e("s_mov_b64 exec, 0xff")
    spin(a, "poll", f"buffer_load_dword v30, v28, {sq(S_WS)}, s46 offen sc1",
         ["v_cmp_ne_u32 vcc, v30, v4", "v_cndmask_b32 v6, 0, 1, vcc", "ds_write_b32 v5, v6 offset:256",
          f"s_bitset1_b32 vcc_lo, s{S_HG}", "s_cmp_eq_u32 vcc_lo, 0xff"], o["nap"])
    a.e("s_mov_b64 exec, -1")
    a.branch("s_branch L_staged")
    a.label("L_fetch")
    a.e("s_lshl_b32 s45, s44, 3")
    a.e(f"s_add_u32 s45, s45, s{S_WAVE}")
    a.e("s_mul_i32 s45, s45, 81920")
    a.e(f"s_mul_i32 s43, s{S_HG}, 10240")
    a.e("s_add_u32 s45, s45, s43")
    a.e(f"s_mul_i32 s43, s{S_WAVE}, 10240")
    a.e(f"s_add_u32 s43, s43, {WB}")
    spin(a, "seen", "ds_read_b32 v4, v3 offset:256", ["v_readfirstlane_b32 s41, v4", "s_cmp_lg_u32 s41, 0"], 1, 0x400000)
    a.e("v_add_u32 v3, s43, v1")
    for k in range(10):
        a.e(f"buffer_load_dwordx4 {v(8+4*k,4)}, v1, {sq(S_WS)}, s45 offen offset:{(k&3)*1024}{pol(o['ldpol'])}")
        if k & 3 == 3: a.e("s_add_u32 s45, s45, 4096")
    for k in range(10):
        a.e(f"s_waitcnt vmcnt({9-k})")
        a.e(f"ds_write_b128 v3, {v(8+4*k,4)} offset:{k*1024}")
    a.label("L_staged")
    a.e("v_and_b32 v2, 31, v0")
    a.e("v_mul_u32_u24 v2, 2560, v2")
    a.e("v_lshrrev_b32 v3, 5, v0")
    a.e("v_lshl_add_u32 v2, v3, 4, v2")
    a.e(f"s_mov_b32 s45, s{S_WAVE}")
    a.e("s_barrier")
    stamp(a, o, 11)
    reduce_chunk(a, o, 45, 8)
    a.e(f"s_cmp_lt_u32 s{S_WAVE}, 2")
    a.branch("s_cbranch_scc0 L_fin")
    a.e("s_add_u32 s45, s45, 8")
    reduce_chunk(a, o, 45, 48)


def gen_main(a, o):
    a.raw(f".globl {KN}\n.p2align 8\n.type {KN},@function\n{KN}:")
    a.e(f"s_cmp_ge_u32 s2, {o['nact']}")
    a.e("s_cbranch_scc1 L_end")
    if o["stamps"]:
        a.e("s_memrealtime s[90:91]")
        a.e("s_memtime s[86:87]")
    a.e("s_load_dwordx2 s[34:35], s[0:1], 96")
    a.e("s_load_dwordx4 s[64:67], s[0:1], 80")
    a.e("s_and_b32 s3, s2, 7")
    a.e("s_lshr_b32 s5, s3, 2")
    a.e("s_mul_i32 s32, s5, 40")
    a.e("s_add_u32 s0, s0, s32")
    a.e("s_addc_u32 s1, s1, 0")
    a.e("s_load_dwordx4 s[44:47], s[0:1], 24")
    a.e("s_load_dwordx2 s[36:37], s[0:1], 0")
    a.e("s_load_dwordx4 s[40:43], s[0:1], 8")
    a.e("v_lshrrev_b32 v1, 6, v0")
    a.e("v_and_b32 v0, 63, v0")
    a.e("v_readfirstlane_b32 s32, v1")
    a.e("s_lshr_b32 s4, s2, 3")
    a.e("s_and_b32 s7, s4, 15")
    a.e("s_lshr_b32 s4, s4, 4")
    a.e("s_and_b32 s6, s3, 3")
    a.e("s_lshl_b32 s6, s6, 1")
    a.e("s_add_u32 s6, s6, s4")
    if o["stamps"] >= 2:
        a.e("s_waitcnt lgkmcnt(0)")
        for i in range(16): a.e(f"s_mov_b32 s{70+i}, s90")
        stamp(a, o, 1, "start")
    entry_touches(a, o)
    stamp(a, o, 9, "start")
    a.e("s_and_b32 s33, s32, 3")
    a.e("s_cmp_lt_u32 s32, 4")
    a.branch("s_cbranch_scc1 L_P")
    gen_A(a, o)
    gen_tail(a, o)
    a.label("L_fin")
    if o["stamps"]:
        a.e("s_memrealtime s[92:93]")
        a.e("s_memtime s[88:89]")
        a.e("s_waitcnt lgkmcnt(0)")
        a.e("s_sub_u32 s85, s88, s86")
        a.e("s_getreg_b32 s84, hwreg(HW_REG_XCC_ID, 0, 4)")
        a.e("s_getreg_b32 s83, hwreg(HW_REG_HW_ID)")
        a.e("v_mov_b32 v4, s90"); a.e("v_mov_b32 v5, s91"); a.e("v_mov_b32 v6, s92"); a.e("v_mov_b32 v7, s93")
        a.e("s_lshl_b32 s40, s2, 3"); a.e("s_add_u32 s40, s40, s32"); a.e("s_lshl_b32 s40, s40, 4")
        a.e("s_add_u32 s40, s40, 0x2000000")
        a.e("v_mov_b32 v1, 0")
        a.e(f"buffer_store_dwordx4 v[4:7], v1, {sq(S_WS)}, s40 offen")
        if o["stamps"] >= 2:
            a.e("s_lshl_b32 s40, s2, 3"); a.e("s_add_u32 s40, s40, s32"); a.e("s_lshl_b32 s40, s40, 6")
            a.e("s_add_u32 s40, s40, 0x2100000")
            for k in range(4):
                for i in range(4): a.e(f"v_mov_b32 v{8+4*k+i}, s{70+4*k+i}")
                a.e(f"buffer_store_dwordx4 v[{8+4*k}:{11+4*k}], v1, {sq(S_WS)}, s40 offen offset:{16*k}")
    a.e("s_endpgm")
    gen_P(a, o)
    a.label("L_end")
    a.e("s_endpgm")


def droppings(t, d):
    keep = []; cnt = cnt2 = cnt3 = 0; role = ""
    for l in t.split("\n"):
        if l.startswith(("L_PQa", "L_PO:", "L_PQb")): role = "P"
        if l.startswith(("L_Ptail", "L_Aend", "L_Pcyc")): role = ""
        if l.startswith("L_Aper"): role = "A"
        if l.startswith("L_Ppro"): role = "p"
        if l.startswith("L_Apro"): role = "a"
        if "x" in d and role == "p" and l.strip().startswith(("v_", "ds_")): continue
        if "y" in d and role == "a" and l.strip().startswith("buffer_load_dwordx4") and "s[8:11]" not in l: continue
        if "z" in d and role == "a" and l.strip().startswith("buffer_load_dwordx4") and "s[8:11]" in l: continue
        x = l.strip()
        if "k" in d and role == "A" and x.startswith("buffer_load"): continue
        if "w" in d and role == "P" and x.startswith("buffer_load"): continue
        if "a" in d and role == "A" and x.startswith(("v_", "ds_")) and not x.startswith("v_mov_b32"): continue
        if "p" in d and role == "P" and x.startswith(("v_", "ds_")): continue
        if "m" in d and role in ("A", "P") and x.startswith("v_mfma"): continue
        if "r" in d and role in ("A", "P") and x.startswith("ds_read"): continue
        if "h" in d and role == "A" and x.startswith("ds_read"):
            cnt += 1
            if (cnt // (2 if "tr" in x else 1)) % 2: continue
        if "g" in d and role == "P" and x.startswith("ds_read_b64_tr"):
            cnt2 += 1
            if (cnt2 // 2) % 2: continue
        if "T" in d and x.startswith("buffer_store_dwordx4") and "s[28:31]" in x and "sc1" in x: continue
        if "L" in d and x.startswith("buffer_load_dwordx4") and "s[28:31]" in x: continue
        if "v" in d and role == "A" and x.startswith(("v_exp", "v_fma", "v_add_f32", "v_max3")): continue
        if "A" in d and role == "A" and x.startswith("v_mfma"): continue
        if "P" in d and role == "P" and x.startswith("v_mfma"): continue
        if ("s" in d or "S" in d) and role == "P" and x.startswith("v_mfma_f32_32x32x16"):
            m = re.match(r"v_mfma_f32_32x32x16_bf16 v\[(\d+):\d+\], (v\[\d+:\d+\]), (v\[\d+:\d+\]), (.*)", x)
            cnt3 += 1
            for k in range(2):
                b = int(m.group(1)) + 4 * k + 8 * (cnt3 & 1)
                bo = m.group(3) if (k == 0 or "S" not in d) else {"v[16:19]": "v[20:23]", "v[20:23]": "v[16:19]"}[m.group(3)]
                keep.append(f"    v_mfma_f32_16x16x32_bf16 v[{b}:{b+3}], {m.group(2)}, {bo}, v[{b}:{b+3}]")
            continue
        keep.append(l)
    return "\n".join(keep)


def gen(**kw):
    o = dict(DEFAULTS); o.update(kw)
    a = Asm()
    if o["stamps"]: a.raw(f"; stamps={8*o['nact']} @0x2000000")
    a.raw(f"; @launch grid=(256,1,1) block=(512,1,1) lds={LDS}")
    a.raw('.amdgcn_target "amdgcn-amd-amdhsa--gfx950"\n.text')
    gen_main(a, o)
    a.raw(f""".section .rodata,"a"
.p2align 6
.amdhsa_kernel {KN}
  .amdhsa_next_free_vgpr 256
  .amdhsa_next_free_sgpr 102
  .amdhsa_accum_offset 256
  .amdhsa_group_segment_fixed_size 0
  .amdhsa_kernarg_size 104
  .amdhsa_user_sgpr_count 2
  .amdhsa_user_sgpr_kernarg_segment_ptr 1
  .amdhsa_system_sgpr_workgroup_id_x 1
.end_amdhsa_kernel""")
    t = a.text()
    return droppings(t, o["drop"]) if o["drop"] else t


if __name__ == "__main__":
    out = sys.argv[1]
    kw = {}
    for x in sys.argv[2:]:
        k, val = x.split("=")
        kw[k] = int(val) if val.lstrip("-").isdigit() else val.replace("+", " ")
    open(out, "w").write(gen(**kw))
```

```python
import sys, math, struct, re
from asmlib import Asm

NAME = "concat_heads__gqa_block_cached__gqa_block_cached__near_ridge"
KN = NAME + "_kernel"
WB, XB, EB, LDS = 49152, 131072, 155648, 163840
KV_BYTES, W_BYTES, X_BYTES, OUT_BYTES, WS_BYTES = 100663296, 7864320, 1310720, 2621440, 64 << 20
OOB = 0x40000000
FLAGS = 0x1800000
CSCALE = struct.unpack("<I", struct.pack("<f", math.log2(math.e) / math.sqrt(192.0)))[0]

DEFAULTS = dict(kvpol="nt", wpol="", pfpol="", xpol="", stpol="sc1", ldpol="sc1", outpol="", stamps=0, prio=0,
                adepth=8, pq=12, po=9, pdma=2, drop="", nact=256, k0=6, k1=10, kt=7, prod=12, codepf=0, pf0=8, pf1=26, pfb=4, kvx=0, warm=65536, xbar=11, vspan=9, adma=0, sprio=0, nap=8, tst=0, rot=0, kord=0, dbgt=0)

S_HALF, S_BR, S_HG, S_B = 4, 5, 6, 7
S_K, S_V, S_WQ, S_WO, S_XI, S_WS, S_OUT = 8, 12, 16, 20, 24, 28, 64
S_WAVE, S_W, S_DBG, S_T, S_T2 = 32, 33, 36, 57, 59


def v(a, n=1):
    return f"v{a}" if n == 1 else f"v[{a}:{a+n-1}]"


def sq(a):
    return f"s[{a}:{a+3}]"


def pol(s):
    return (" " + s) if s else ""


class Rec:
    def __init__(self): self.t = []
    def e(self, x): self.t.append(x)


def rec(fn, *args):
    r = Rec(); fn(r, *args); return r.t


def srd(a, base, src, size):
    if src != base: a.e(f"s_mov_b32 s{base}, s{src}")
    a.e(f"s_and_b32 s{base+1}, s{src+1}, 0xffff")
    a.e(f"s_mov_b32 s{base+2}, {size}")
    a.e(f"s_mov_b32 s{base+3}, 0x20000")


def entry_touches(a, o):
    pp = pol(o["pfpol"])
    a.e(f"s_lshl_b32 s{S_T}, s{S_WAVE}, 4")
    a.e(f"v_add_u32 v2, s{S_T}, v0")
    a.e("v_mul_u32_u24 v3, 21846, v2")
    a.e("v_mul_u32_u24 v6, 1280, v0")
    a.e("v_lshrrev_b32 v3, 16, v3")
    a.e(f"v_mul_u32_u24 v7, {o['warm']}, v0")
    a.e("v_mul_u32_u24 v4, 3, v3")
    a.e("v_mul_u32_u24 v3, 12288, v3")
    a.e("v_sub_u32 v4, v2, v4")
    a.e(f"s_mul_i32 s48, s{S_B}, {40*12288}")
    a.e("v_lshl_add_u32 v3, v4, 7, v3")
    a.e(f"s_mul_i32 s{S_T}, s{S_HG}, 1536")
    a.e(f"s_add_u32 s48, s48, s{S_T}")
    a.e(f"s_cmp_eq_u32 s{S_WAVE}, 7")
    a.e("s_cselect_b32 s49, 8, 16")
    a.e("s_bfm_b32 s49, s49, 0")
    a.e(f"s_mul_i32 s50, s{S_B}, 81920")
    a.e(f"s_lshl_b32 s51, s{S_B}, 3"); a.e(f"s_add_u32 s51, s51, s{S_HG}")
    a.e(f"s_mul_i32 s51, s51, 786432")
    a.e(f"s_cmp_eq_u32 s{S_WAVE}, 0"); a.e(f"s_cselect_b32 s50, s50, {OOB}")
    a.e(f"s_cmp_eq_u32 s{S_WAVE}, 1"); a.e(f"s_cselect_b32 s52, s51, {OOB}")
    a.e(f"s_cmp_eq_u32 s{S_WAVE}, 2"); a.e(f"s_cselect_b32 s53, s51, {OOB}")
    a.e("s_mov_b32 exec_hi, 0")
    a.e("s_mov_b32 exec_lo, s49")
    a.e("s_waitcnt lgkmcnt(0)")
    srd(a, S_WQ, 44, W_BYTES)
    a.e(f"buffer_load_dword v255, v3, {sq(S_WQ)}, s48 offen{pp}")
    a.e("s_mov_b64 exec, -1")
    srd(a, S_XI, 36, X_BYTES)
    a.e(f"buffer_load_dword v255, v6, {sq(S_XI)}, s50 offen{pp}")
    a.e(f"s_mov_b64 exec, {(1 << (786432 // o['warm'])) - 1}")
    srd(a, S_K, 40, KV_BYTES)
    a.e(f"buffer_load_dword v255, v7, {sq(S_K)}, s52 offen nt")
    srd(a, S_V, 42, KV_BYTES)
    a.e(f"buffer_load_dword v255, v7, {sq(S_V)}, s53 offen nt")
    a.e("s_mov_b64 exec, -1")
    srd(a, S_WO, 46, W_BYTES); srd(a, S_WS, 34, WS_BYTES)
    srd(a, S_DBG, 66, 256)
    srd(a, S_OUT, 64, OUT_BYTES)


def pipe(a, reads, mfmas, fill, depth, span=None, skip=0):
    n = len(mfmas)
    span = span or n
    for i in range(min(depth, n)):
        for t in reads[i]: a.e(t)
    done = 0
    for i in range(n):
        for t in ([mfmas[i]] if isinstance(mfmas[i], str) else mfmas[i]): a.e(t)
        if i + depth < n:
            for t in reads[i + depth]: a.e(t)
        upto = len(fill) * max(min(i + 1, span) - skip, 0) // (span - skip)
        for t in fill[done:upto]: a.e(t)
        done = upto


def interleave(a, chains):
    for i in range(max(map(len, chains))):
        for c in chains:
            if i < len(c): a.e(c[i])


def div24(a, dst_row, dst_rem, src, tmp):
    a.e(f"v_mul_u32_u24 {tmp}, 2731, {src}")
    a.e(f"v_lshrrev_b32 {dst_row}, 16, {tmp}")
    a.e(f"v_mul_u32_u24 {tmp}, 24, {dst_row}")
    a.e(f"v_sub_u32 {dst_rem}, {src}, {tmp}")


def stamp(a, o, k, tag=''):
    if {2: "", 3: "pro", 4: "tail", 5: "start"}.get(o["stamps"]) != tag: return
    a.e("s_waitcnt lgkmcnt(0)")
    a.e("s_memrealtime s[94:95]")
    a.e("s_waitcnt lgkmcnt(0)")
    if isinstance(k, int): a.e(f"s_mov_b32 s{70+k}, s94")
    else:
        base, reg, n = k
        for i in range(n):
            a.e(f"s_cmp_eq_u32 s{reg}, {i}")
            a.e(f"s_cselect_b32 s{70+base+i}, s94, s{70+base+i}")


def endstep(a, vm=None):
    a.e("s_waitcnt lgkmcnt(0)" if vm is None else f"s_waitcnt vmcnt({vm}) lgkmcnt(0)")
    a.e("s_barrier")


def idle(a, tag, n):
    if n <= 2:
        for _ in range(n): a.e("s_barrier")
        return
    a.e(f"s_mov_b32 s{S_T}, {n}")
    a.label(f"L_{tag}")
    a.e("s_barrier")
    a.e(f"s_sub_u32 s{S_T}, s{S_T}, 1")
    a.e(f"s_cmp_lg_u32 s{S_T}, 0")
    a.branch(f"s_cbranch_scc1 L_{tag}")


def idle_steps(a, o, tag, r0, r1):
    n = sum(1 + (r == 17) + (o["pdma"] == 3 and r % 2 == 0) for r in range(r0, r1))
    idle(a, tag, n)


def lane_id(a, r):
    a.e(f"v_mbcnt_lo_u32_b32 v{r}, -1, 0")
    a.e(f"v_mbcnt_hi_u32_b32 v{r}, -1, v{r}")


def dma_offsets_q(a, vq, vx, t):
    chains = []
    for j in range(3):
        r = Rec()
        T0, T1, T2, T3 = (f"v{t+4*j+k}" for k in range(4))
        r.e(f"v_add_u32 {T0}, {64*j}, v0")
        div24(r, T1, T2, T0, T3)
        r.e(f"v_and_or_b32 {T3}, {T1}, 2, s{S_T}")
        r.e(f"v_xor_b32 {T2}, {T2}, {T3}")
        r.e(f"v_mul_u32_u24 {T1}, 12288, {T1}")
        r.e(f"v_lshl_add_u32 {T1}, {T2}, 4, {T1}")
        r.e(f"v_subrev_u32 v{vq+j}, {1024*j}, {T1}")
        chains.append(r.t)
    T0, T1 = f"v{t+12}", f"v{t+13}"
    a.e(f"s_and_b32 s{S_T}, s{S_W}, 1")
    a.e(f"s_lshl_b32 s{S_T}, s{S_T}, 2")
    chains.append([f"v_lshrrev_b32 {T0}, 3, v0", f"v_and_b32 {T0}, 6, {T0}", f"v_and_b32 {T1}, 7, v0",
                   f"v_xor_b32 {T0}, {T0}, {T1}", f"v_lshrrev_b32 {T1}, 3, v0", f"v_mul_u32_u24 {T1}, 1280, {T1}",
                   f"v_lshl_add_u32 v{vx}, {T0}, 4, {T1}"])
    interleave(a, chains)


def wq_share(a, dst, T0, T1, T2):
    a.e(f"s_and_b32 s{S_T}, s{S_W}, 1")
    a.e(f"s_lshl_b32 s{S_T}, s{S_T}, 6")
    a.e(f"v_add_u32 {T0}, s{S_T}, v0")
    a.e(f"v_mul_u32_u24 {T1}, 21846, {T0}")
    a.e(f"v_lshrrev_b32 {T1}, 16, {T1}")
    a.e(f"v_mul_u32_u24 {T2}, 3, {T1}")
    a.e(f"v_sub_u32 {T2}, {T0}, {T2}")
    a.e(f"v_mul_u32_u24 {T1}, 12288, {T1}")
    a.e(f"v_lshl_add_u32 {dst}, {T2}, 7, {T1}")


def scalars_q(a, mq, mx, oq, ox, head):
    a.e(f"s_mul_i32 s{mq}, s{S_W}, 3072")
    a.e(f"s_lshl_b32 s{mx}, s{S_W}, 10")
    a.e(f"s_mul_i32 s{oq}, s{S_HG}, 1536")
    a.e(f"s_mul_i32 s{S_T}, s{S_W}, {8*12288}")
    a.e(f"s_add_u32 s{oq}, s{oq}, s{S_T}")
    if head: a.e(f"s_add_u32 s{oq}, s{oq}, {384*head}")
    a.e(f"s_mul_i32 s{ox}, s{S_B}, 81920")
    a.e(f"s_mul_i32 s{S_T}, s{S_W}, {8*1280}")
    a.e(f"s_add_u32 s{ox}, s{ox}, s{S_T}")


def burst_q(a, o, R, la, lx, lb):
    vq, vx, mq, mx, oq, ox = R
    wp, xp = pol(o["wpol"]), pol(o["xpol"])
    a.e(f"s_add_u32 m0, s{mq}, {la}")
    a.e(f"s_add_u32 s{S_T}, s{ox}, {32*1280}")
    for j in range(3):
        a.e(f"buffer_load_dwordx4 v{vq+j}, {sq(S_WQ)}, s{oq} offen offset:{1024*j}{wp} lds")
    a.e(f"s_add_u32 m0, s{mx}, {lx}")
    a.e(f"s_add_u32 s{oq}, s{oq}, {32*12288}")
    a.e(f"buffer_load_dwordx4 v{vx}, {sq(S_XI)}, s{ox} offen{xp} lds")
    a.e(f"s_add_u32 m0, s{mx}, {lx+4096}")
    a.e(f"s_add_u32 s{ox}, s{ox}, 128")
    a.e(f"buffer_load_dwordx4 v{vx}, {sq(S_XI)}, s{S_T} offen{xp} lds")
    a.e(f"s_add_u32 m0, s{mq}, {lb}")
    a.e("s_nop 0")
    for j in range(3):
        a.e(f"buffer_load_dwordx4 v{vq+j}, {sq(S_WQ)}, s{oq} offen offset:{1024*j}{wp} lds")
    a.e(f"s_add_u32 s{oq}, s{oq}, {32*12288}")


def tail_slot(n):
    k = n % 5
    return WB + k * 24576 if k < 3 else (k - 3) * 24576


def tail_offsets(a, vt, mt, ot, lane, T):
    T0, T1 = T
    a.e(f"v_lshrrev_b32 {T0}, 3, {lane}")
    a.e(f"v_and_b32 {T0}, 2, {T0}")
    a.e(f"v_and_b32 {T1}, 7, {lane}")
    a.e(f"v_xor_b32 {T0}, {T0}, {T1}")
    a.e(f"v_lshrrev_b32 {T1}, 3, {lane}")
    a.e(f"v_mul_u32_u24 {T1}, 1280, {T1}")
    a.e(f"v_lshl_add_u32 v{vt}, {T0}, 4, {T1}")
    a.e(f"v_xor_b32 v{vt+1}, 64, v{vt}")
    a.e(f"s_mul_i32 s{mt}, s{S_W}, 6144")
    a.e(f"s_mul_i32 s{ot}, s{S_HG}, {4*245760}")
    a.e(f"s_mul_i32 s{S_T2}, s{S_W}, {48*1280}")
    a.e(f"s_add_u32 s{ot}, s{ot}, s{S_T2}")
    a.e(f"s_add_u32 s{ot}, s{ot}, {3*245760}")


def tail_tile(a, o, vt, mt, ot, n):
    for j in range(6):
        a.e(f"s_add_u32 m0, s{mt}, {tail_slot(n) + 1024*j}")
        a.e(f"s_add_u32 s{S_T2}, s{ot}, {128*n + 8*1280*j}")
        a.e(f"buffer_load_dwordx4 v{vt+(j&1)}, {sq(S_WO)}, s{S_T2} offen{pol(o['wpol'])} lds")


PRO_W, PRO_X = 24576, 122880


PY, PQ, PFA, PFB = 96, 48, 36, 20
P_T0, P_VQ, P_VX, P_VO, P_AQ, P_AW, P_AX, P_AO, P_T1, P_QW, P_DUM = 0, 1, 4, 5, 10, 13, 15, 16, 17, 18, 19
S_C, S_MQ, S_MX, S_MO, S_OQ, S_OX, S_OO, S_P, S_OWN = 50, 51, 52, 53, 54, 55, 56, 58, 49
PR = (P_VQ, P_VX, S_MQ, S_MX, S_OQ, S_OX)


def p_burst_q(a, o, D):
    b = WB + D * 40960
    burst_q(a, o, PR, b, b + 32768, b + 20480)
    return 8


def p_burst_o(a, o, D):
    wp = pol(o["wpol"])
    for h in range(2):
        b = WB + D * 40960 + h * 20480
        a.e(f"s_add_u32 m0, s{S_MO}, {b}")
        a.e(f"s_add_u32 s{S_T}, s{S_OO}, 4096")
        for j in range(4):
            a.e(f"buffer_load_dwordx4 v{P_VO+j}, {sq(S_WO)}, s{S_OO} offen offset:{1024*j}{wp} lds")
        a.e(f"s_add_u32 m0, s{S_MO}, {b+4096}")
        a.e(f"s_add_u32 s{S_OO}, s{S_OO}, 20480")
        a.e(f"buffer_load_dwordx4 v{P_VO+4}, {sq(S_WO)}, s{S_T} offen{wp} lds")
    return 10


def p_toggle(a, regs, D):
    for r in regs:
        a.e(f"v_add_u32 v{r}, 40960, v{r}" if D == 0 else f"v_subrev_u32 v{r}, 40960, v{r}")


def tr_pair(f, addr, off, delta):
    return [f"ds_read_b64_tr_b16 {v(f,2)}, v{addr} offset:{off}", f"ds_read_b64_tr_b16 {v(f+2,2)}, v{addr} offset:{off+delta}"]


def mfma16(acc, fa, fb, zero=False):
    return f"v_mfma_f32_16x16x32_bf16 {v(acc,4)}, {v(fa,4)}, {v(fb,4)}, {'0' if zero else v(acc,4)}"


def quad(reads, mf, rd, acc, f, fb, zero=False):
    for qs in range(4):
        reads.append(rd if qs == 0 else [])
        mf.append(mfma16(acc + 4 * qs, f, fb + 4 * qs, zero))


def p_qstep(a, o, qs, fill=()):
    h = qs & 1
    reads, mf = [], []
    for i in range(3):
        quad(reads, mf, tr_pair(PFA + 4 * i, P_AQ + i, h * 20480, 1536), PQ + 16 * i, PFA + 4 * i, PFB, qs == 0)
    ax = P_AX
    if h:
        a.e(f"v_xor_b32 v{P_T0}, 64, v{P_AX}"); ax = P_T0
    xr = [f"ds_read_b128 {v(PFB+4*k,4)}, v{ax} offset:{2048*k}" for k in range(4)]
    reads[0] = xr[:1] + reads[0] + xr[1:]
    if qs == 5: mf[o["xbar"]] = [mf[o["xbar"]], "s_barrier"]
    pipe(a, reads, mf, list(fill), o["pq"])
    if h: p_toggle(a, [P_AQ, P_AQ + 1, P_AQ + 2, P_AX], (qs >> 1) & 1)


def p_oreads(a, dst, tau, tmp):
    ao = P_AO
    if tau & 1:
        a.e(f"v_xor_b32 v{tmp}, 64, v{P_AO}"); ao = tmp
    return [f"ds_read_b128 {v(dst+4*k,4)}, v{ao} offset:{6144*k + (tau>>1)*128}" for k in range(4)]


def p_ostep(a, o, s, fill=()):
    h = s & 1
    reads, mf = [], []
    for i in range(5):
        T = 5 * h + i
        f = PFA + 4 * (i % 3)
        quad(reads, mf, tr_pair(f, P_AW + (T & 1), (T >> 1) * 256, 5120), PY + 16 * T, f, PFB)
    if not h:
        xr = p_oreads(a, PFB, s >> 1, P_T0)
        reads[0] = xr[:1] + reads[0] + xr[1:]
    pipe(a, reads, mf, list(fill), o["po"])
    if h: p_toggle(a, [P_AW, P_AW + 1], (s >> 1) & 1)


def p_even(a, o, step, idx, burst, D):
    r = Rec(); n = burst(r, o, D)
    if o["pdma"] == 1:
        for x in r.t: a.e(x)
        step(a, o, idx)
    elif o["pdma"] == 2: step(a, o, idx, r.t)
    else:
        step(a, o, idx)
        if o["pdma"] == 3: a.e("s_barrier")
        for x in r.t: a.e(x)
    endstep(a, n)


def p_choice(a, o, tag, cond, first, second):
    if o["pdma"] == 3: a.e("s_barrier")
    a.e(cond)
    a.branch(f"s_cbranch_scc1 L_{tag}_b")
    a.e(f"s_waitcnt vmcnt({first()})")
    a.branch(f"s_branch L_{tag}_j")
    a.label(f"L_{tag}_b")
    a.e(f"s_waitcnt vmcnt({second()})")
    a.label(f"L_{tag}_j")
    endstep(a)


PRO_AQ, PRO_AX = 168, 174


def p_prologue(a, o):
    XF, F = 96, 144
    reads, mf = [], []
    for n in range(10):
        s = n & 3
        for h in range(2):
            xf = XF + 16 * ((2 * n + h) % 3)
            xr = [f"ds_read_b128 {v(xf+4*k,4)}, v{PRO_AX+h} offset:{s*8192 + 2048*k}" for k in range(4)]
            for i in range(3):
                f = F + 4 * ((len(mf) // 4) % 6)
                rd = tr_pair(f, PRO_AQ + 3 * (s >> 1) + i, (s & 1) * 24576 + h * 12288, 1536)
                if i == 0: rd = xr[:1] + rd + xr[1:]
                if i == 0 and h == 0 and n: rd = ["s_barrier"] + rd
                quad(reads, mf, rd, PQ + 16 * i, f, xf, n == 0 and h == 0)
    pipe(a, reads, mf, [], o["prod"])
    endstep(a)


def p_pack_block(a, i):
    y = PY + 16 * i
    for k in range(8): a.e(f"v_cvt_pk_bf16_f32 v{y+k}, v{y+2*k}, v{y+2*k+1}")
    for t in range(2):
        a.e(f"v_permlane16_swap_b32 v{y+4*t}, v{y+4*t+2}")
        a.e(f"v_permlane16_swap_b32 v{y+4*t+1}, v{y+4*t+3}")


def p_store_block(a, o, i):
    a.e(f"s_add_u32 s{S_T}, s{S_OWN}, {4*i}")
    a.e(f"s_cmp_lt_u32 s{S_T}, 5")
    a.e(f"s_cselect_b32 s{S_T}, {OOB}, s{S_P}")
    for t in range(2):
        a.e(f"buffer_store_dwordx4 {v(PY+16*i+4*t,4)}, v1, {sq(S_WS)}, s{S_T} offen offset:{t*1024}{pol(o['stpol'])}")
    a.e(f"s_add_u32 s{S_P}, s{S_P}, 8192")


def p_keep_block(a, i):
    a.e(f"s_add_u32 s{S_T}, s{S_OWN}, {4*i}")
    a.e(f"s_cmp_lt_u32 s{S_T}, 5")
    a.branch(f"s_cbranch_scc0 L_keep{i}")
    a.e(f"s_lshl_b32 s{S_T}, s{S_T}, 11")
    a.e(f"v_add_u32 v3, s{S_T}, v2")
    for t in range(2):
        a.e(f"ds_write_b128 v3, {v(PY+16*i+4*t,4)} offset:{t*1024}")
    a.label(f"L_keep{i}")


def tr_lane_parts(a, lane, G1, RR, ROW, C1, B8):
    a.e(f"v_lshrrev_b32 {ROW}, 4, {lane}")
    a.e(f"v_and_b32 {G1}, 1, {ROW}")
    a.e(f"v_bfe_u32 {RR}, {lane}, 2, 2")
    a.e(f"v_lshl_add_u32 {ROW}, {ROW}, 3, {RR}")
    a.e(f"v_bfe_u32 {C1}, {lane}, 1, 1")
    a.e(f"v_and_b32 {B8}, 1, {lane}")
    a.e(f"v_lshlrev_b32 {B8}, 3, {B8}")


def gen_P(a, o):
    a.label("L_P")
    if o["prio"] == 1: a.e("s_setprio 1")
    T0, T1, T2, T3, T4, T5, T6 = (f"v{20+k}" for k in range(7))
    stamp(a, o, 2, "start")
    G1, RR, ROW, C1, B8 = T0, T1, T2, T3, T4
    tr_lane_parts(a, "v0", G1, RR, ROW, C1, B8)
    a.e(f"v_and_b32 {T5}, 2, {RR}")
    a.e(f"v_lshl_or_b32 {T5}, {G1}, 2, {T5}")
    a.e(f"v_mul_u32_u24 v27, 384, {ROW}")
    a.e(f"v_add_u32 v27, v27, {B8}")
    for i in range(3):
        a.e(f"s_mul_i32 s{S_T}, s{S_W}, 6")
        a.e(f"s_add_u32 s{S_T}, s{S_T}, {2*i}")
        a.e(f"v_add_u32 {T6}, s{S_T}, {C1}")
        a.e(f"v_xor_b32 {T6}, {T6}, {T5}")
        a.e(f"v_lshl_add_u32 {T6}, {T6}, 4, v27")
        a.e(f"v_add_u32 v{P_AQ+i}, {WB}, {T6}")
        a.e(f"v_add_u32 v{PRO_AQ+i}, {PRO_W}, {T6}")
        a.e(f"v_add_u32 v{PRO_AQ+3+i}, {PRO_W+49152}, {T6}")
    a.e(f"v_lshl_or_b32 {T5}, {G1}, 2, {RR}")
    a.e(f"v_lshlrev_b32 {T5}, 1, {T5}")
    a.e(f"v_mul_u32_u24 v27, 1280, {ROW}")
    a.e(f"v_add_u32 v27, v27, {B8}")
    a.e(f"s_lshl_b32 s{S_T}, s{S_W}, 1")
    a.e(f"v_add_u32 {T6}, s{S_T}, {C1}")
    a.e(f"v_xor_b32 {T6}, {T6}, {T5}")
    a.e(f"v_lshl_add_u32 {T6}, {T6}, 4, v27")
    a.e(f"v_add_u32 v{P_AW}, {WB}, {T6}")
    a.e(f"v_xor_b32 v{P_AW+1}, 128, v{P_AW}")
    a.e(f"v_and_b32 {T0}, 15, v0")
    a.e(f"v_lshrrev_b32 {T1}, 4, v0")
    a.e(f"v_and_b32 {T2}, 6, {T0}")
    a.e(f"v_xor_b32 {T3}, {T2}, {T1}")
    a.e(f"v_lshlrev_b32 {T3}, 4, {T3}")
    a.e(f"v_lshl_add_u32 {T4}, {T0}, 7, {T3}")
    a.e(f"v_add_u32 v{P_AX}, {WB+32768}, {T4}")
    a.e(f"v_add_u32 v{PRO_AX}, {PRO_X}, {T4}")
    a.e(f"v_xor_b32 v{PRO_AX+1}, 64, v{PRO_AX}")
    a.e(f"v_mul_u32_u24 {T0}, 384, {T0}")
    a.e(f"v_add_u32 {T0}, {XB}, {T0}")
    a.e(f"v_add_u32 v{P_AO}, {T0}, {T3}")
    a.e(f"v_lshrrev_b32 {T3}, 1, {T1}")
    a.e(f"v_xor_b32 {T3}, {T3}, {T2}")
    a.e(f"v_lshl_add_u32 {T3}, {T3}, 4, {T0}")
    a.e(f"v_and_b32 {T1}, 1, {T1}")
    a.e(f"v_lshl_add_u32 v{P_QW}, {T1}, 3, {T3}")
    dma_offsets_q(a, P_VQ, P_VX, 28)
    a.e(f"s_lshr_b32 s{S_T}, s{S_W}, 1")
    a.e(f"s_lshl_b32 s{S_T}, s{S_T}, 2")
    for j in range(5):
        a.e(f"v_add_u32 {T0}, {64*j}, v0")
        a.e(f"v_mul_u32_u24 {T0}, 820, {T0}")
        a.e(f"v_lshrrev_b32 {T0}, 16, {T0}")
        a.e(f"v_or_b32 {T0}, s{S_T}, {T0}")
        a.e(f"v_lshlrev_b32 {T0}, 1, {T0}")
        a.e(f"v_xor_b32 {T0}, {T0}, v0")
        a.e(f"v_lshlrev_b32 v{P_VO+j}, 4, {T0}")
    scalars_q(a, S_MQ, S_MX, S_OQ, S_OX, 1)
    a.e(f"s_mul_i32 s{S_MO}, s{S_W}, 5120")
    a.e(f"s_mul_i32 s{S_OO}, s{S_HG}, {4*245760}")
    a.e(f"s_add_u32 s{S_OO}, s{S_OO}, s{S_MO}")
    a.e(f"s_mov_b32 s{S_C}, 1")
    stamp(a, o, 3, "start")
    a.e("s_barrier")
    stamp(a, o, 1)
    a.raw("L_Ppro:")
    p_prologue(a, o)

    a.label("L_Pcyc")
    for i in range(24):
        a.e(f"v_cvt_pk_bf16_f32 v{PQ+i}, v{PQ+2*i}, v{PQ+2*i+1}")
    for i in range(3):
        a.e(f"s_mul_i32 s{S_T}, s{S_W}, 3")
        a.e(f"s_add_u32 s{S_T}, s{S_T}, {i}")
        a.e(f"s_and_b32 s{S_T2}, s{S_T}, 3")
        a.e(f"s_lshl_b32 s{S_T2}, s{S_T2}, 5")
        a.e(f"s_lshr_b32 s{S_T}, s{S_T}, 2")
        a.e(f"s_lshl_b32 s{S_T}, s{S_T}, 7")
        t = (P_T0, P_T1)[i & 1]
        a.e(f"v_xor_b32 v{t}, s{S_T2}, v{P_QW}")
        a.e(f"v_add_u32 v{t}, s{S_T}, v{t}")
        for k in range(4):
            a.e(f"ds_write_b64 v{t}, {v(PQ+8*i+2*k,2)} offset:{6144*k}")
    a.e("s_waitcnt lgkmcnt(0)")
    a.e(f"s_cmp_eq_u32 s{S_C}, 4")
    a.branch("s_cbranch_scc0 L_Pc3")
    idle_steps(a, o, "Pi4", 0, 4)
    a.branch("s_branch L_PO")
    a.label("L_Pc3")
    a.e(f"s_cmp_eq_u32 s{S_C}, 1")
    a.branch("s_cbranch_scc0 L_PQa")
    a.e("s_barrier")
    p_burst_q(a, o, 0)
    endstep(a, 3)

    a.label("L_PQa")
    for qs in range(4):
        if qs == 0:
            p_even(a, o, p_qstep, 0, p_burst_q, 1); continue
        p_qstep(a, o, qs)
        if qs == 2: p_choice(a, o, "Pa", f"s_cmp_ge_u32 s{S_C}, 2", lambda: p_burst_q(a, o, 0), lambda: p_burst_o(a, o, 0))
        else: endstep(a, 3 if qs == 1 else 0)
    a.e(f"s_cmp_ge_u32 s{S_C}, 2")
    a.branch("s_cbranch_scc1 L_PO")
    for i in range(160): a.e(f"v_mov_b32 v{PY+i}, 0")
    idle_steps(a, o, "Pi10", 6, 16)
    a.branch("s_branch L_PQb")

    a.label("L_PO")
    stamp(a, o, (2, S_C, 5))
    for s in range(12):
        if s < 10 and s % 2 == 0:
            p_even(a, o, p_ostep, s, p_burst_o, ((s >> 1) + 1) & 1); continue
        p_ostep(a, o, s)
        if s == 10: p_choice(a, o, "Po", f"s_cmp_eq_u32 s{S_C}, 4", lambda: p_burst_q(a, o, 0), lambda: 0)
        elif s == 11: endstep(a, 3)
        else: endstep(a, 0)
    a.e(f"s_cmp_eq_u32 s{S_C}, 4")
    a.branch("s_cbranch_scc1 L_Ptail")

    a.label("L_PQb")
    for qs in range(4, 20):
        if qs < 18 and qs % 2 == 0:
            p_even(a, o, p_qstep, qs, p_burst_q, ((qs >> 1) + 1) & 1); continue
        p_qstep(a, o, qs)
        if qs == 18:
            a.e(f"s_add_u32 s{S_OQ}, s{S_OQ}, {(384 - 640*12288) & 0xffffffff}")
            a.e(f"s_sub_u32 s{S_OX}, s{S_OX}, 1280")
            p_choice(a, o, "Pb", f"s_cmp_eq_u32 s{S_C}, 3", lambda: p_burst_q(a, o, 0), lambda: p_burst_o(a, o, 0))
        else: endstep(a, 0 if qs == 19 else 3)
    a.e(f"s_add_u32 s{S_C}, s{S_C}, 1")
    a.branch("s_branch L_Pcyc")

    a.label("L_Ptail")
    VT, TA = 2, 4
    lane_id(a, 5)
    tail_offsets(a, VT, S_MO, S_OO, "v5", ("v6", "v7"))
    tr_lane_parts(a, "v5", "v6", "v7", "v8", "v9", "v10")
    a.e("v_and_b32 v7, 2, v7")
    a.e("v_lshl_or_b32 v7, v6, 2, v7")
    a.e(f"s_lshl_b32 s{S_T}, s{S_W}, 1")
    a.e(f"v_add_u32 v9, s{S_T}, v9")
    a.e("v_xor_b32 v9, v9, v7")
    a.e("v_lshl_add_u32 v9, v9, 4, v10")
    a.e(f"v_lshl_add_u32 v{TA}, v8, 7, v9")
    a.e("v_lshlrev_b32 v1, 4, v5")
    a.e(f"s_lshl_b32 s{S_P}, s{S_BR}, 4"); a.e(f"s_add_u32 s{S_P}, s{S_P}, s{S_B}")
    a.e(f"s_lshl_b32 s{S_P}, s{S_P}, 3"); a.e(f"s_add_u32 s{S_P}, s{S_P}, s{S_HG}")
    a.e(f"s_mul_i32 s{S_P}, s{S_P}, 81920")
    a.e(f"s_lshl_b32 s{S_T}, s{S_W}, 11"); a.e(f"s_add_u32 s{S_P}, s{S_P}, s{S_T}")
    a.e(f"s_mul_i32 s{S_T}, s{S_HG}, 5"); a.e(f"s_sub_u32 s{S_OWN}, s{S_W}, s{S_T}")
    for n in range(3):
        tail_tile(a, o, VT, S_MO, S_OO, n)
        idle_steps(a, o, f"Pt{n}", 16 + 2 * n, 18 + 2 * n)
    idle_steps(a, o, "Pt3", 22, 31)
    tail_tile(a, o, VT, S_MO, S_OO, 3)
    idle_steps(a, o, "Pt4", 31, 33)
    tail_tile(a, o, VT, S_MO, S_OO, 4)
    endstep(a, 6)
    stamp(a, o, 7)
    SB, F = 8, 24
    a.e(f"v_xor_b32 v{P_T0}, 64, v{P_AO}")
    a.e(f"v_mov_b32 v7, v{P_AO}")
    ob = lambda dst, tau: [f"ds_read_b128 {v(dst+4*k,4)}, v{P_T0 if tau & 1 else 7} offset:{6144*k + (tau>>1)*128}" for k in range(4)]
    order = (3, 0, 4, 1, 5, 2)
    for t in ob(SB, 3): a.e(t)
    for p in range(5):
        for k in range(2): a.e(f"v_add_u32 v{5+k}, {tail_slot(2*p+k)}, v{TA}")
        reads, mf = [], []
        for gi, tau in enumerate(order):
            for k in range(2):
                f = F + 4 * ((len(mf) // 4) % 6)
                rd = tr_pair(f, 5 + k, tau * 4096, 512)
                if p == 0 and tau < 3 and k == 0: rd = ob(PQ + 16 * tau, tau) + rd
                quad(reads, mf, rd, PY + 16 * (2 * p + k), f, PQ + 16 * tau if tau < 3 else SB)
            if tau >= 3 and not (p == 4 and tau == 5):
                mf[-1] = [mf[-1]] + ob(SB, 3 if tau == 5 else tau + 1)
        fill = []
        if p: fill = rec(p_pack_block, 2 * p - 2) + rec(p_pack_block, 2 * p - 1)
        for m in TAIL_STORES[o["tst"]].get(p, []): fill += rec(p_store_block, o, m)
        for n in range(4):
            for t in reads[n]: a.e(t)
            reads[n] = []
        pipe(a, reads, mf, fill, 16, skip=6)
        if p == 0: a.e("s_waitcnt vmcnt(0)")
        if p < 4: a.e("s_barrier")
    stamp(a, o, 8)
    for m in TAIL_STORES[o["tst"]][5]:
        if m >= 8: p_pack_block(a, m)
        p_store_block(a, o, m)
    a.e(f"s_mul_i32 s{S_T}, s{S_HG}, 10240")
    a.e(f"s_add_u32 s{S_T}, s{S_T}, {WB}")
    a.e(f"v_add_u32 v2, s{S_T}, v1")
    for m in range(10): p_keep_block(a, m)
    a.e("s_waitcnt vmcnt(0)")
    a.branch("s_branch L_red")


TAIL_STORES = [{3: [0, 1, 2, 3, 4, 5], 4: [6, 7], 5: [8, 9]},
               {3: [0, 1, 2], 4: [3, 4, 5, 6], 5: [7, 8, 9]},
               {2: [0, 1], 3: [2, 3, 4], 4: [5, 6, 7], 5: [8, 9]},
               {1: [0, 1], 2: [2, 3], 3: [4, 5], 4: [6, 7], 5: [8, 9]}]


AS, AR_, AP, AF = 128, 80, 56, 24
A_VD, A_AK, A_AV, A_M, A_L, A_R, A_T0, A_T1, A_PF, A_DUM = 1, 4, 6, 14, 16, 18, 20, 21, 22, 23
A_XQ, A_XO, A_EW, A_ER, A_FI, A_FO = 48, 50, 52, 53, 54, 55
S_SP, S_PER, S_MK, S_OK, S_OV, S_CS, S_PFO, S_PFS, S_PF = 49, 50, 51, 52, 53, 54, 55, 56, 60
AR = (128, 131, 68, 69, 96, 97)
S_PFM = 100
S_LK, S_LV = 48, 58
PF_LOW, PF_HIGH = (1, 3, 6, 8, 10, 12), (2, 4, 7, 9, 11, 13)


def a_burst(a, o, D, srdreg, off, last=False):
    kp = pol(o["kvpol"])
    for h in range(2):
        a.e(f"s_add_u32 m0, s{S_MK}, {D*24576+h*12288}")
        if h: a.e(f"s_add_u32 s{off}, s{off}, 12288")
        else: a.e("s_nop 0")
        for j in range(3):
            a.e(f"buffer_load_dwordx4 v{A_VD+j}, {sq(srdreg)}, s{off} offen offset:{1024*j}{kp} lds")
    a.e(f"s_add_u32 s{off}, s{off}, 12288")
    if o["rot"]:
        lim = S_LK if off == S_OK else S_LV
        a.e(f"s_cmp_eq_u32 s{off}, s{lim}")
        a.e(f"s_cselect_b32 s{S_T}, 196608, 0")
        a.e(f"s_sub_u32 s{off}, s{off}, s{S_T}")
        if last:
            a.e(f"s_add_u32 s{off}, s{off}, 196608")
            a.e(f"s_add_u32 s{lim}, s{lim}, 196608")


def soft_chunk(j):
    b = AS + 8 * j
    t = []
    for i in range(8): t.append(f"v_fma_f32 v{b+i}, v{b+i}, s{S_CS}, -v{A_M+(i>>2)}")
    for i in range(8): t.append(f"v_exp_f32 v{b+i}, v{b+i}")
    for i in (0, 4, 1, 5, 2, 6, 3, 7):
        if j == 0 and i % 4 == 0: t.append(f"v_mov_b32 v{A_L+(i>>2)}, v{b+i}")
        else: t.append(f"v_add_f32 v{A_L+(i>>2)}, v{A_L+(i>>2)}, v{b+i}")
    for qs in range(2):
        for i in range(2): t.append(f"v_cvt_pk_bf16_f32 v{b+4*qs+i}, v{b+4*qs+2*i}, v{b+4*qs+2*i+1}")
    for qs in range(2):
        t.append(f"ds_write_b64 v{A_EW}, {v(b+4*qs,2)} offset:{(j&1)*4096 + qs*512}")
    return t


def max_chunk(s):
    b = AS + 8 * s
    t = []
    for i in range(2):
        for qs in range(2):
            r = b + 4 * qs + 2 * i
            if s == 0 and i == 0: t.append(f"v_max_f32 v{A_M+qs}, v{r}, v{r+1}")
            else: t.append(f"v_max3_f32 v{A_M+qs}, v{A_M+qs}, v{r}, v{r+1}")
    return t


def xlane2(a, reg, op):
    for sw in ("v_permlane32_swap_b32", "v_permlane16_swap_b32"):
        for k in range(2): a.e(f"v_mov_b32 v{A_T0+k}, v{reg+k}")
        for k in range(2): a.e(f"{sw} v{reg+k}, v{A_T0+k}")
        for k in range(2): a.e(f"{op} v{reg+k}, v{reg+k}, v{A_T0+k}")


def a_rowsum(a):
    xlane2(a, A_L, "v_add_f32")
    a.e(f"ds_write_b64 v{A_EW}, {v(A_L,2)}")


def a_qread(ks):
    return [f"ds_read_b128 {v(AR_+8*ks+4*qs,4)}, v{A_XQ+(ks&1)} offset:{qs*6144 + (ks>>1)*128}" for qs in range(2)]


def a_owrite(i):
    t = [f"v_xor_b32 v{A_T0+(i&1)}, {32*(i&3)}, v{A_XO+(1 if i in (2, 3) else 0)}"]
    for qs in range(2):
        t.append(f"ds_write_b64 v{A_T0+(i&1)}, {v(AP+4*i+2*qs,2)} offset:{qs*6144 + (i>>2)*128}")
    return t


def a_onorm(a, after):
    a.e(f"ds_read_b64 {v(A_T0,2)}, v{A_ER}")
    for k in range(2): a.e(f"v_add_f32 v{A_L+k}, v{A_L+k}, v{A_T0+k}")
    for k in range(2): a.e(f"v_rcp_f32 v{A_R+k}, v{A_L+k}")
    for i in range(6):
        for qs in range(2):
            r = AR_ + 8 * i + 4 * qs
            for k in (0, 2):
                a.e(f"v_pk_mul_f32 {v(r+k,2)}, {v(r+k,2)}, {v(A_R,2)} op_sel:[0,{qs}] op_sel_hi:[1,{qs}]")
        for qs in range(2):
            r = AR_ + 8 * i + 4 * qs
            for k in range(2): a.e(f"v_cvt_pk_bf16_f32 v{AP+4*i+2*qs+k}, v{r+2*k}, v{r+2*k+1}")
        for t in after(i): a.e(t)


def hoist(a, reads, depth, pre):
    if not pre: return
    for i in range(min(depth, len(reads))):
        for t in reads[i]: a.e(t)
        reads[i] = []
    for t in pre: a.e(t)


def a_kstep(a, o, s, extra=(), pre=()):
    reads, mf = [], []
    for i in range(12):
        ks, qs = divmod(i, 2) if not o["kord"] else (i % 6, i // 6)
        f = AF + 4 * ks
        reads.append([] if qs else [f"ds_read_b128 {v(f,4)}, v{A_AK+(ks&1)} offset:{(s&3)*12288 + (ks>>1)*128}"])
        mf.append(mfma16(AS + 8 * s + 4 * qs, f, AR_ + 8 * ks + 4 * qs, ks == 0))
    hoist(a, reads, o["adepth"], pre)
    pipe(a, reads, mf, (max_chunk(s - 1) if s else []) + list(extra), o["adepth"])
    if s == 15:
        for t in max_chunk(15): a.e(t)
        xlane2(a, A_M, "v_max_f32")
        a.e(f"ds_write_b64 v{A_EW}, {v(A_M,2)} offset:4096")


def a_vstep(a, o, j, pre=()):
    s = 16 + j
    b = AS + 8 * j
    reads, mf = [], []
    for n in range(12):
        i, qs = divmod(n, 2)
        f = AF + 4 * i
        off = (s & 3) * 12288 + (i >> 2) * 128
        reads.append([] if qs else [f"ds_read_b64_tr_b16 {v(f,2)}, v{A_AV+(i&3)} offset:{off}",
                                    f"ds_read_b64_tr_b16 {v(f+2,2)}, v{A_AV+4+(i&3)} offset:{off}"])
        mf.append(mfma16(AR_ + 8 * i + 4 * qs, f, b + 4 * qs, j == 0))
    if j == 0:
        a.e(f"ds_read_b64 {v(A_T0,2)}, v{A_ER} offset:4096")
        for n in range(0, 12, 2):
            for t in reads[n]: a.e(t)
            reads[n] = []
        for k in range(2): a.e(f"v_max_f32 v{A_M+k}, v{A_M+k}, v{A_T0+k}")
        for k in range(2): a.e(f"v_mul_f32 v{A_M+k}, s{S_CS}, v{A_M+k}")
        for t in soft_chunk(0): a.e(t)
        endstep(a)
    for qs in range(2):
        a.e(f"ds_read_b64 {v(b+4*qs+2,2)}, v{A_ER} offset:{(j&1)*4096 + qs*512}")
    hoist(a, reads, o["adepth"], pre)
    pipe(a, reads, mf, soft_chunk(j + 1) if j < 15 else rec(a_rowsum), o["adepth"], o["vspan"])


def spin(a, tag, load, test, nap=0, bound=0x20000):
    a.e("s_mov_b32 s40, 0")
    a.label(f"L_{tag}")
    a.e(load)
    a.e("s_add_u32 s40, s40, 1")
    a.e("s_waitcnt vmcnt(0) lgkmcnt(0)")
    for t in test: a.e(t)
    a.branch(f"s_cbranch_scc1 L_{tag}_ok")
    if nap: a.e(f"s_sleep {nap}")
    a.e(f"s_cmp_lt_u32 s40, {bound}")
    a.branch(f"s_cbranch_scc1 L_{tag}")
    a.label(f"L_{tag}_ok")


def gen_A(a, o):
    a.comment("attention waves: 16 query rows each; they also feed the first and the last projection")
    if o["prio"] == 2: a.e("s_setprio 1")
    if o["sprio"]: a.e("s_setprio 3")
    T0, T1, T2, T3 = "v24", "v25", "v26", "v27"
    dma_offsets_q(a, AR[0], AR[1], 32)
    scalars_q(a, *AR[2:], 0)
    chains = []
    for j in range(3):
        r = Rec()
        U0, U1, U2, U3 = (f"v{32+4*j+k}" for k in range(4))
        r.e(f"v_add_u32 {U0}, {64*j}, v0")
        r.e(f"v_mul_u32_u24 {U1}, 2731, {U0}")
        r.e(f"v_lshrrev_b32 {U1}, 16, {U1}")
        r.e(f"v_and_b32 {U1}, 6, {U1}")
        r.e(f"v_xor_b32 {U1}, {U1}, v0")
        r.e(f"v_lshlrev_b32 v{A_VD+j}, 4, {U1}")
        chains.append(r.t)
    kv_offsets = chains
    a.e(f"s_mul_i32 s98, s{S_B}, 81920")
    a.e(f"s_mul_i32 s{S_T}, s{S_HALF}, 40960"); a.e(f"s_add_u32 s98, s98, s{S_T}")
    a.e(f"s_mul_i32 s{S_T}, s{S_W}, 10240"); a.e(f"s_add_u32 s98, s98, s{S_T}")
    a.e(f"v_lshlrev_b32 v28, 7, v0")
    a.e(f"v_add_u32 v29, 8192, v28")
    a.e(f"v_mov_b32 {T2}, {OOB}")
    a.e(f"v_cmp_gt_u32 vcc, 16, v0")
    a.e(f"v_cndmask_b32 v29, {T2}, v29, vcc")
    stamp(a, o, 2, "start")
    pp = pol(o["pfpol"])
    vm = ["t"] * 4

    def W(n):
        s = n & 3
        burst_q(a, o, AR, PRO_W + s * 24576, PRO_X + s * 8192, PRO_W + s * 24576 + 12288)
        vm.extend([("W", n)] * 8)

    def K0():
        a_burst(a, o, 0, S_K, S_OK); vm.extend([("K", 0)] * 3 + [("K", 1)] * 3)

    def late_touches():
        a.e(f"s_cmp_eq_u32 s99, 0")
        a.e(f"s_cselect_b32 s{S_T}, {OOB}, s{S_PFO}")
        a.e(f"buffer_load_dword v{A_DUM}, v{A_PF}, {sq(S_PF)}, s{S_T} offen{pp}"); vm.append("t")
        a.e(f"s_add_u32 s{S_PFO}, s{S_PFO}, s99")
        a.e(f"s_cmp_eq_u32 s{S_W}, 0")
        a.e(f"s_cselect_b32 s{S_T}, s46, {OOB}")
        a.e(f"s_cselect_b32 s{S_T2}, s47, {OOB}")
        a.e(f"buffer_load_dword v{A_FI}, v28, {sq(S_WS)}, s{S_T} offen sc1"); vm.append("f")
        a.e(f"buffer_load_dword v{A_FO}, v29, {sq(S_WS)}, s{S_T2} offen sc1"); vm.append("f")

    def wait_for(tag):
        last = max(i for i, x in enumerate(vm) if x == tag)
        return min(63, len(vm) - 1 - last)

    stamp(a, o, 3, "start")
    W(0)
    stamp(a, o, 4, "start")
    if o["sprio"]: a.e(f"s_setprio {1 if o['prio'] == 2 else 0}")
    interleave(a, kv_offsets)
    a.e(f"s_mul_i32 s{S_MK}, s{S_W}, 3072")
    a.e(f"s_lshl_b32 s{S_OK}, s{S_B}, 3"); a.e(f"s_add_u32 s{S_OK}, s{S_OK}, s{S_HG}")
    a.e(f"s_mul_i32 s{S_OK}, s{S_OK}, 786432"); a.e(f"s_add_u32 s{S_OK}, s{S_OK}, s{S_MK}")
    if o["rot"]:
        a.e(f"s_add_u32 s{S_LK}, s{S_OK}, 196608")
        a.e(f"s_mov_b32 s{S_LV}, s{S_LK}")
        a.e(f"s_mul_i32 s{S_T}, s2, {o['rot']}")
        a.e(f"s_lshr_b32 s{S_T}, s{S_T}, 3")
        a.e(f"s_add_u32 s{S_T}, s{S_T}, s2")
        a.e(f"s_and_b32 s{S_T}, s{S_T}, 7")
        a.e(f"s_mul_i32 s{S_T}, s{S_T}, 24576")
        a.e(f"s_add_u32 s{S_OK}, s{S_OK}, s{S_T}")
    a.e(f"s_mov_b32 s{S_OV}, s{S_OK}")
    a.e(f"buffer_load_dword v{A_DUM}, v28, {sq(S_XI)}, s98 offen{pp}"); vm.append("t")
    a.e(f"buffer_load_dword v{A_DUM}, v29, {sq(S_XI)}, s98 offen{pp}"); vm.append("t")
    stamp(a, o, 5, "start")
    if o["k0"] < 0: K0()
    if o["codepf"]:
        a.e("s_getpc_b64 s[100:101]")
        a.raw("L_pc:")
        a.e(f"s_sub_u32 s100, s100, L_pc-{KN}")
        a.e("s_subb_u32 s101, s101, 0")
        a.e("s_lshr_b32 s98, s2, 3")
        a.e(f"s_lshl_b32 s98, s98, 2")
        a.e(f"s_add_u32 s98, s98, s{S_W}")
        a.e(f"s_lshl_b32 s98, s98, 9")
        a.e("v_and_b32 v30, 3, v0")
        a.e("v_lshlrev_b32 v30, 7, v30")
        a.e("v_add_u32 v30, s98, v30")
        a.e(f"v_min_u32 v30, L_end-{KN}, v30")
        a.e(f"global_load_dword v{A_DUM}, v30, s[100:101]"); vm.append("t")
    a.e(f"s_lshl_b32 s44, s{S_BR}, 4")
    a.e(f"s_add_u32 s44, s44, s{S_B}")
    a.e("s_lshl_b32 s45, s44, 10")
    a.e(f"s_add_u32 s45, s45, {FLAGS}")
    a.e(f"s_lshl_b32 s46, s{S_HG}, 7")
    a.e(f"s_add_u32 s46, s46, s45")
    a.e(f"s_lshl_b32 s47, s{S_HG}, 2")
    a.e(f"s_add_u32 s47, s47, s45")
    wq_share(a, T1, T0, T1, T2)
    a.e(f"v_lshlrev_b32 {T2}, 7, {T0}")
    a.e(f"s_mov_b32 s{S_PFS}, 384")
    a.e(f"s_mov_b32 s{S_T}, {40*12288}")
    a.e(f"s_cmp_ge_u32 s{S_W}, 2")
    a.e(f"s_cselect_b64 vcc, -1, 0")
    a.e(f"s_cselect_b32 s{S_PFS}, 245760, s{S_PFS}")
    a.e(f"s_cselect_b32 s{S_T}, 15360, s{S_T}")
    a.e(f"s_cselect_b32 s{S_PF}, s{S_WO}, s{S_WQ}")
    a.e(f"s_cselect_b32 s{S_PF+1}, s{S_WO+1}, s{S_WQ+1}")
    a.e(f"s_cselect_b32 s99, 0, 384")
    a.e(f"s_mov_b32 s{S_PF+2}, {W_BYTES}")
    a.e(f"s_mov_b32 s{S_PF+3}, 0x20000")
    a.e(f"v_cndmask_b32 {T1}, {T1}, {T2}, vcc")
    a.e(f"v_mov_b32 {T2}, {OOB}")
    a.e(f"v_cmp_gt_u32 vcc, 120, {T0}")
    a.e(f"v_cndmask_b32 v{A_PF}, {T2}, {T1}, vcc")
    a.e(f"s_mul_i32 s{S_PFO}, s{S_T}, s{S_B}")
    a.e(f"s_mul_i32 s{S_T}, s{S_PFS}, s{S_HG}")
    a.e(f"s_lshl_b32 s{S_T}, s{S_T}, 2")
    a.e(f"s_add_u32 s{S_PFO}, s{S_PFO}, s{S_T}")
    a.e(f"s_add_u32 s{S_PFO}, s{S_PFO}, s99")
    bits = lambda *pp_: sum(3 << (16 * p + k) for p, k in pp_)
    mA, mB, mO = bits((0, 6), (1, 6)), bits((0, 1), (1, 1), (2, 1)), bits((0, 10), (1, 10), (2, 10), (3, 1))
    a.e(f"s_mov_b32 s{S_PFM}, {mB & 0xffffffff}")
    a.e(f"s_mov_b32 s{S_PFM+1}, {mB >> 32}")
    a.e(f"s_cmp_lt_u32 s{S_B}, {o['pfb']}")
    a.e(f"s_cselect_b32 s{S_PFM}, {mA & 0xffffffff}, s{S_PFM}")
    a.e(f"s_cselect_b32 s{S_PFM+1}, {mA >> 32}, s{S_PFM+1}")
    a.e(f"s_cselect_b32 s99, s99, 0")
    a.e(f"s_cmp_ge_u32 s{S_W}, 2")
    a.e(f"s_cselect_b32 s{S_PFM}, {mO & 0xffffffff}, s{S_PFM}")
    a.e(f"s_cselect_b32 s{S_PFM+1}, {mO >> 32}, s{S_PFM+1}")
    a.e(f"s_and_b32 s{S_T}, s{S_W}, 1")
    a.e(f"s_lshl_b32 s{S_T}, s{S_T}, 1")
    a.e(f"s_lshl_b64 s[{S_PFM}:{S_PFM+1}], s[{S_PFM}:{S_PFM+1}], s{S_T}")
    a.e(f"s_and_b32 s{S_SP}, s{S_W}, 1")
    a.e(f"s_lshr_b32 s{S_T2}, s{S_W}, 1")
    a.e(f"s_mul_i32 s{S_T2}, s{S_T2}, 12288")
    a.e(f"s_add_u32 s{S_T2}, s{S_T2}, {XB}")
    a.e(f"s_mul_i32 s{S_T}, s{S_SP}, 6144")
    a.e(f"v_and_b32 {T0}, 15, v0")
    a.e(f"v_lshrrev_b32 {T1}, 4, v0")
    a.e(f"v_and_b32 {T2}, 6, {T0}")
    a.e(f"v_xor_b32 {T3}, {T2}, {T1}")
    a.e(f"v_mul_u32_u24 {T0}, 384, {T0}")
    a.e(f"v_lshl_add_u32 {T3}, {T3}, 4, {T0}")
    a.e(f"v_add_u32 v{A_AK}, s{S_T}, {T3}")
    a.e(f"v_xor_b32 v{A_AK+1}, 64, v{A_AK}")
    a.e(f"v_add_u32 v{A_XQ}, s{S_T2}, {T3}")
    a.e(f"v_xor_b32 v{A_XQ+1}, 64, v{A_XQ}")
    a.e(f"v_lshrrev_b32 {T3}, 1, {T1}")
    a.e(f"v_xor_b32 {T3}, {T3}, {T2}")
    a.e(f"v_lshl_add_u32 {T3}, {T3}, 4, {T0}")
    a.e(f"v_and_b32 {T2}, 1, {T1}")
    a.e(f"v_lshl_add_u32 {T3}, {T2}, 3, {T3}")
    a.e(f"v_add_u32 {T3}, s{S_T2}, {T3}")
    a.e(f"s_lshl_b32 s{S_T2}, s{S_SP}, 6")
    a.e(f"v_xor_b32 {T3}, s{S_T2}, {T3}")
    a.e(f"s_lshl_b32 s{S_T2}, s{S_SP}, 7")
    a.e(f"v_add_u32 v{A_XO}, s{S_T2}, {T3}")
    a.e(f"v_add_u32 v{A_XO+1}, s{S_T2}, v{A_XO}")
    a.e(f"v_lshrrev_b32 {T0}, 2, v0")
    a.e(f"v_and_b32 {T1}, 6, {T0}")
    a.e(f"v_bfe_u32 {T2}, v0, 1, 1")
    a.e(f"v_xor_b32 {T1}, {T1}, {T2}")
    a.e(f"v_mul_u32_u24 {T0}, 384, {T0}")
    a.e(f"v_lshl_add_u32 {T1}, {T1}, 4, {T0}")
    a.e(f"v_and_b32 {T2}, 1, v0")
    a.e(f"v_lshl_add_u32 {T1}, {T2}, 3, {T1}")
    a.e(f"s_lshl_b32 s{S_T2}, s{S_SP}, 6")
    a.e(f"v_xor_b32 {T1}, s{S_T2}, {T1}")
    for d in range(4):
        a.e(f"v_xor_b32 {T2}, {32*d}, {T1}")
        a.e(f"s_lshl_b32 s{S_T2}, s{S_SP}, {8 if d >= 2 else 7}")
        a.e(f"v_add_u32 {T2}, s{S_T2}, {T2}")
        a.e(f"v_add_u32 v{A_AV+d}, s{S_T}, {T2}")
        a.e(f"s_sub_u32 s{S_T2}, 6144, s{S_T}")
        a.e(f"v_add_u32 v{A_AV+4+d}, s{S_T2}, {T2}")
    a.e(f"v_lshlrev_b32 {T0}, 3, v0")
    a.e(f"s_lshl_b32 s{S_T}, s{S_W}, 10")
    a.e(f"s_add_u32 s{S_T}, s{S_T}, {EB}")
    a.e(f"v_add_u32 v{A_EW}, s{S_T}, {T0}")
    a.e(f"v_xor_b32 v{A_ER}, 1024, v{A_EW}")
    a.e("v_and_b32 v28, 7, v0")
    a.e("v_lshlrev_b32 v29, 7, v28")
    a.e("v_lshlrev_b32 v28, 2, v28")
    a.e(f"s_mov_b32 s{S_CS}, {CSCALE:#x}")
    a.e(f"s_mov_b32 s{S_PER}, 0")
    stamp(a, o, 6, "start")
    W(1)
    stamp(a, o, 12, "pro")
    stamp(a, o, 7, "start")
    endstep(a, wait_for(("W", 0)))
    stamp(a, o, 8, "start")
    stamp(a, o, 1, "pro")
    a.raw("L_Apro:")
    W(2)
    for n in range(10):
        endstep(a, wait_for(("W", n + 1)) if n < 9 else None)
        stamp(a, o, n + 2, "pro")
        if n + 3 < 10: W(n + 3)
        if n == o["kt"]: late_touches()
        if n == o["k0"]: K0()
    if o["k1"] == 10:
        a_burst(a, o, 1, S_K, S_OK); vm.extend([("K", 2)] * 3 + [("K", 3)] * 3)
    endstep(a, wait_for(("K", 0)))
    first = dict(s0=wait_for(("K", 1)), s1=wait_for(("K", 2)))

    a.label("L_Aper")
    stamp(a, o, (1, S_PER, 4))
    for s in range(32):
        a.comment(f"A step {s}")
        if s == 16: stamp(a, o, (5, S_PER, 4))
        vmw = 4 if ((s - 1) >> 1) in PF_LOW + PF_HIGH else 3
        bt = []
        if s == 0:
            a.e(f"s_cmp_eq_u32 s{S_PER}, 0")
            a.branch("s_cbranch_scc1 L_A0")
            a_burst(a, o, 1, S_K, S_OK)
            a_onorm(a, a_qread)
            a.branch("s_branch L_A0j")
            a.label("L_A0")
            for ks in range(6):
                for t in a_qread(ks): a.e(t)
            a.label("L_A0j")
            vmw = min(6, first["s0"])
        elif s == 1:
            vmw = min(3, first["s1"])
        elif s == 30:
            a.e(f"s_cmp_eq_u32 s{S_PER}, 3")
            a.branch("s_cbranch_scc1 L_A30")
            a_burst(a, o, 0, S_K, S_OK)
            a.label("L_A30")
            vmw = 6
        elif s % 2 == 0:
            vmw = 6
            D = ((s >> 1) + 1) & 1
            bt = rec(a_burst, o, D, *((S_K, S_OK) if s < 14 else (S_V, S_OV)), s in (12, 28))
            if (s >> 1) in PF_LOW + PF_HIGH:
                high = (s >> 1) in PF_HIGH
                bt.append(f"s_lshl_b32 s{S_T}, s{S_PER}, 4")
                bt.append(f"s_add_u32 s{S_T}, s{S_T}, {s>>1}")
                bt.append(f"s_bitcmp1_b64 s[{S_PFM}:{S_PFM+1}], s{S_T}")
                bt.append(f"s_cselect_b32 s{S_T}, s{S_PFO}, {OOB}")
                if high: bt.append(f"s_cselect_b32 s{S_T2}, s{S_PFS}, 0")
                bt.append(f"s_mov_b32 {'exec_lo' if high else 'exec_hi'}, 0")
                bt.append(f"buffer_load_dword v{A_DUM}, v{A_PF}, {sq(S_PF)}, s{S_T} offen{pp}")
                bt.append("s_mov_b64 exec, -1")
                if high: bt.append(f"s_add_u32 s{S_PFO}, s{S_PFO}, s{S_T2}")
                vmw = 7
            if o["adma"] == 0 or s == 16:
                for t in bt: a.e(t)
                bt = []
        if s == 5:
            a.comment("the entry reads have landed: count this workgroup in (d_debug word of the group)")
            a.e(f"s_and_b32 s{S_T}, s{S_HG}, 3")
            a.e(f"s_xor_b32 s{S_T}, s{S_T}, s{S_PER}")
            a.e(f"s_or_b32 s{S_T}, s{S_T}, s{S_W}")
            a.branch("s_cbranch_scc1 L_sy1")
            a.e("s_lshl_b32 s45, s44, 3")
            a.e(f"v_mov_b32 v{A_T0}, s45")
            a.e(f"v_mov_b32 v{A_T1}, 1")
            a.e("s_mov_b64 exec, 1")
            a.e(f"buffer_atomic_add v{A_T1}, v{A_T0}, {sq(S_DBG)}, 0 offen")
            a.e("s_mov_b64 exec, -1")
            a.label("L_sy1")
        if o["pdma"] == 3 and s % 2: bt = ["s_barrier"]
        if s == 1: a_kstep(a, o, s, sum((a_owrite(i) for i in range(6)), []), pre=bt)
        elif s < 16: a_kstep(a, o, s, pre=bt)
        else: a_vstep(a, o, s - 16, pre=bt)
        if s == 30:
            a.e(f"s_cmp_eq_u32 s{S_PER}, 3")
            a.branch("s_cbranch_scc0 L_A30j")
            a.e("s_waitcnt vmcnt(0)")
            a.label("L_A30j")
        endstep(a, vmw + o["kvx"])
    a.e(f"s_add_u32 s{S_PER}, s{S_PER}, 1")
    a.e(f"s_cmp_lt_u32 s{S_PER}, 4")
    a.branch("s_cbranch_scc1 L_Aper")
    a.label("L_Aend")
    stamp(a, o, 9)
    stamp(a, o, 1, "tail")
    a_onorm(a, a_owrite)
    endstep(a)
    tail_offsets(a, 128, S_MK, S_OK, "v0", (T0, T1))
    stamp(a, o, 2, "tail")
    for p in range(4):
        if p: a.e(f"s_waitcnt vmcnt({6 if p < 3 else 0})")
        a.e("s_barrier")
        stamp(a, o, p + 3, "tail")
        for n in ([5, 6], [7, 8], [9], [])[p]: tail_tile(a, o, 128, S_MK, S_OK, n)
    a.e(f"s_cmp_lg_u32 s{S_W}, 0")
    a.branch("s_cbranch_scc1 L_red")
    a.e("s_lshl_b32 s45, s44, 3")
    a.e("v_mov_b32 v28, s45")
    spin(a, "in", f"buffer_load_dword v29, v28, {sq(S_DBG)}, 0 offen sc1", ["v_readfirstlane_b32 s41, v29", "s_cmp_ge_u32 s41, 8"])
    a.e("v_lshlrev_b32 v28, 2, v0")
    a.e(f"v_add_u32 v28, {EB}, v28")
    a.e(f"ds_write_b32 v28, v{A_FI}")
    a.e("v_mov_b32 v29, 0")
    a.e("ds_write_b32 v28, v29 offset:256")


def reduce_chunk(a, o, k, base):
    a.e(f"s_lshl_b32 s41, s{k}, 10")
    a.e(f"s_add_u32 s41, s41, {WB}")
    a.e(f"v_add_u32 v3, s41, v1")
    a.e(f"v_add_u32 v6, 40960, v3")
    for i in range(8):
        a.e(f"ds_read_b128 {v(base+4*i,4)}, v{3 if i < 4 else 6} offset:{(i&3)*10240}")
    a.e(f"s_mul_i32 s43, s{S_HG}, 10")
    a.e(f"s_add_u32 s43, s43, s{k}")
    a.e("s_and_b32 s41, s43, 1")
    a.e("s_lshl_b32 s41, s41, 5")
    a.e("s_lshr_b32 s43, s43, 1")
    a.e(f"s_lshl_b32 s42, s{S_B}, 6")
    a.e("s_add_u32 s42, s42, s41")
    a.e("s_mul_i32 s42, s42, 2560")
    a.e(f"s_mul_i32 s41, s{S_BR}, 1280")
    a.e("s_add_u32 s42, s42, s41")
    a.e("s_lshl_b32 s43, s43, 5")
    a.e("s_add_u32 s42, s42, s43")
    ac = base + 32
    for i in range(8):
        for n in range(4):
            r = base + 4 * i + n
            if i == 0:
                a.e(f"v_lshlrev_b32 v{ac+2*n}, 16, v{r}")
                a.e(f"v_and_b32 v{ac+1+2*n}, 0xffff0000, v{r}")
            else:
                a.e(f"v_lshlrev_b32 v4, 16, v{r}")
                a.e(f"v_and_b32 v5, 0xffff0000, v{r}")
                a.e(f"v_pk_add_f32 {v(ac+2*n,2)}, {v(ac+2*n,2)}, v[4:5]")
    for n in range(4): a.e(f"v_cvt_pk_bf16_f32 v{base+n}, v{ac+2*n}, v{ac+1+2*n}")
    a.e(f"buffer_store_dwordx4 {v(base,4)}, v2, {sq(S_OUT)}, s42 offen{pol(o['outpol'])}")


def gen_tail(a, o):
    a.label("L_red")
    lane_id(a, 0)
    a.e(f"s_lshl_b32 s44, s{S_BR}, 4")
    a.e(f"s_add_u32 s44, s44, s{S_B}")
    a.e("s_lshl_b32 s45, s44, 10")
    a.e(f"s_add_u32 s45, s45, {FLAGS}")
    a.e(f"s_lshl_b32 s46, s{S_HG}, 7")
    a.e("s_add_u32 s46, s46, s45")
    a.e(f"s_lshl_b32 s40, s{S_WAVE}, 2")
    a.e(f"s_add_u32 s40, s40, {EB}")
    a.e("v_mov_b32 v3, s40")
    a.e("v_and_b32 v28, 7, v0")
    a.e("v_lshlrev_b32 v29, 7, v28")
    a.e("v_lshlrev_b32 v1, 4, v0")
    a.e("v_lshlrev_b32 v28, 2, v28")
    a.e(f"s_cmp_lg_u32 s{S_WAVE}, 4")
    a.e("s_barrier")
    a.branch("s_cbranch_scc1 L_go")
    stamp(a, o, 10)
    a.e(f"v_add_u32 v{A_FO}, 1, v{A_FO}")
    a.e("s_mov_b64 exec, 0xff")
    a.e(f"buffer_store_dword v{A_FO}, v29, {sq(S_WS)}, s47 offen sc1")
    a.e("s_mov_b64 exec, -1")
    a.label("L_go")
    a.e(f"s_cmp_eq_u32 s{S_WAVE}, s{S_HG}")
    a.branch("s_cbranch_scc0 L_fetch")
    a.e(f"v_add_u32 v5, {EB}, v28")
    a.e("ds_read_b32 v4, v5")
    a.e("s_mov_b64 exec, 0xff")
    spin(a, "poll", f"buffer_load_dword v30, v28, {sq(S_WS)}, s46 offen sc1",
         ["v_cmp_ne_u32 vcc, v30, v4", "v_cndmask_b32 v6, 0, 1, vcc", "ds_write_b32 v5, v6 offset:256",
          f"s_bitset1_b32 vcc_lo, s{S_HG}", "s_cmp_eq_u32 vcc_lo, 0xff"], o["nap"])
    a.e("s_mov_b64 exec, -1")
    a.branch("s_branch L_staged")
    a.label("L_fetch")
    a.e("s_lshl_b32 s45, s44, 3")
    a.e(f"s_add_u32 s45, s45, s{S_WAVE}")
    a.e("s_mul_i32 s45, s45, 81920")
    a.e(f"s_mul_i32 s43, s{S_HG}, 10240")
    a.e("s_add_u32 s45, s45, s43")
    a.e(f"s_mul_i32 s43, s{S_WAVE}, 10240")
    a.e(f"s_add_u32 s43, s43, {WB}")
    spin(a, "seen", "ds_read_b32 v4, v3 offset:256", ["v_readfirstlane_b32 s41, v4", "s_cmp_lg_u32 s41, 0"], 1, 0x400000)
    a.e("v_add_u32 v3, s43, v1")
    for k in range(10):
        a.e(f"buffer_load_dwordx4 {v(8+4*k,4)}, v1, {sq(S_WS)}, s45 offen offset:{(k&3)*1024}{pol(o['ldpol'])}")
        if k & 3 == 3: a.e("s_add_u32 s45, s45, 4096")
    for k in range(10):
        a.e(f"s_waitcnt vmcnt({9-k})")
        a.e(f"ds_write_b128 v3, {v(8+4*k,4)} offset:{k*1024}")
    a.label("L_staged")
    a.e("v_and_b32 v2, 31, v0")
    a.e("v_mul_u32_u24 v2, 2560, v2")
    a.e("v_lshrrev_b32 v3, 5, v0")
    a.e("v_lshl_add_u32 v2, v3, 4, v2")
    a.e(f"s_mov_b32 s45, s{S_WAVE}")
    a.e("s_barrier")
    stamp(a, o, 11)
    reduce_chunk(a, o, 45, 8)
    a.e(f"s_cmp_lt_u32 s{S_WAVE}, 2")
    a.branch("s_cbranch_scc0 L_fin")
    a.e("s_add_u32 s45, s45, 8")
    reduce_chunk(a, o, 45, 48)


def gen_main(a, o):
    a.raw(f".globl {KN}\n.p2align 8\n.type {KN},@function\n{KN}:")
    a.e(f"s_cmp_ge_u32 s2, {o['nact']}")
    a.e("s_cbranch_scc1 L_end")
    if o["dbgt"]: a.e("s_memrealtime s[90:91]")
    if o["stamps"]:
        a.e("s_memrealtime s[90:91]")
        a.e("s_memtime s[86:87]")
    a.e("s_load_dwordx2 s[34:35], s[0:1], 96")
    a.e("s_load_dwordx4 s[64:67], s[0:1], 80")
    a.e("s_and_b32 s3, s2, 7")
    a.e("s_lshr_b32 s5, s3, 2")
    a.e("s_mul_i32 s32, s5, 40")
    a.e("s_add_u32 s0, s0, s32")
    a.e("s_addc_u32 s1, s1, 0")
    a.e("s_load_dwordx4 s[44:47], s[0:1], 24")
    a.e("s_load_dwordx2 s[36:37], s[0:1], 0")
    a.e("s_load_dwordx4 s[40:43], s[0:1], 8")
    a.e("v_lshrrev_b32 v1, 6, v0")
    a.e("v_and_b32 v0, 63, v0")
    a.e("v_readfirstlane_b32 s32, v1")
    a.e("s_lshr_b32 s4, s2, 3")
    a.e("s_and_b32 s7, s4, 15")
    a.e("s_lshr_b32 s4, s4, 4")
    a.e("s_and_b32 s6, s3, 3")
    a.e("s_lshl_b32 s6, s6, 1")
    a.e("s_add_u32 s6, s6, s4")
    if o["stamps"] >= 2:
        a.e("s_waitcnt lgkmcnt(0)")
        for i in range(16): a.e(f"s_mov_b32 s{70+i}, s90")
        stamp(a, o, 1, "start")
    entry_touches(a, o)
    stamp(a, o, 9, "start")
    a.e("s_and_b32 s33, s32, 3")
    a.e("s_cmp_lt_u32 s32, 4")
    a.branch("s_cbranch_scc1 L_P")
    gen_A(a, o)
    gen_tail(a, o)
    a.label("L_fin")
    if o["dbgt"]:
        a.e("s_memrealtime s[92:93]")
        a.e("s_waitcnt lgkmcnt(0)")
        a.e("s_sub_u32 s92, s92, s90")
        a.e("s_lshl_b32 s40, s2, 3"); a.e("s_add_u32 s40, s40, 4")
        a.e("s_cmp_eq_u32 s32, 0"); a.e(f"s_cselect_b32 s40, s40, {OOB}")
        a.e("v_mov_b32 v4, s92"); a.e("v_mov_b32 v1, 0")
        a.e("s_mov_b64 exec, 1")
        a.e(f"buffer_store_dword v4, v1, {sq(S_DBG)}, s40 offen")
    if o["stamps"]:
        a.e("s_memrealtime s[92:93]")
        a.e("s_memtime s[88:89]")
        a.e("s_waitcnt lgkmcnt(0)")
        a.e("s_sub_u32 s85, s88, s86")
        a.e("s_getreg_b32 s84, hwreg(HW_REG_XCC_ID, 0, 4)")
        a.e("s_getreg_b32 s83, hwreg(HW_REG_HW_ID)")
        a.e("v_mov_b32 v4, s90"); a.e("v_mov_b32 v5, s91"); a.e("v_mov_b32 v6, s92"); a.e("v_mov_b32 v7, s93")
        a.e("s_lshl_b32 s40, s2, 3"); a.e("s_add_u32 s40, s40, s32"); a.e("s_lshl_b32 s40, s40, 4")
        a.e("s_add_u32 s40, s40, 0x2000000")
        a.e("v_mov_b32 v1, 0")
        a.e(f"buffer_store_dwordx4 v[4:7], v1, {sq(S_WS)}, s40 offen")
        if o["stamps"] >= 2:
            a.e("s_lshl_b32 s40, s2, 3"); a.e("s_add_u32 s40, s40, s32"); a.e("s_lshl_b32 s40, s40, 6")
            a.e("s_add_u32 s40, s40, 0x2100000")
            for k in range(4):
                for i in range(4): a.e(f"v_mov_b32 v{8+4*k+i}, s{70+4*k+i}")
                a.e(f"buffer_store_dwordx4 v[{8+4*k}:{11+4*k}], v1, {sq(S_WS)}, s40 offen offset:{16*k}")
    a.e("s_endpgm")
    gen_P(a, o)
    a.label("L_end")
    a.e("s_endpgm")


def droppings(t, d):
    keep = []; cnt = cnt2 = cnt3 = 0; role = ""
    for l in t.split("\n"):
        if l.startswith(("L_PQa", "L_PO:", "L_PQb")): role = "P"
        if l.startswith(("L_Ptail", "L_Aend", "L_Pcyc")): role = ""
        if l.startswith("L_Aper"): role = "A"
        if l.startswith("L_Ppro"): role = "p"
        if l.startswith("L_Apro"): role = "a"
        if "x" in d and role == "p" and l.strip().startswith(("v_", "ds_")): continue
        if "y" in d and role == "a" and l.strip().startswith("buffer_load_dwordx4") and "s[8:11]" not in l: continue
        if "z" in d and role == "a" and l.strip().startswith("buffer_load_dwordx4") and "s[8:11]" in l: continue
        x = l.strip()
        if "k" in d and role == "A" and x.startswith("buffer_load"): continue
        if "w" in d and role == "P" and x.startswith("buffer_load"): continue
        if "a" in d and role == "A" and x.startswith(("v_", "ds_")) and not x.startswith("v_mov_b32"): continue
        if "p" in d and role == "P" and x.startswith(("v_", "ds_")): continue
        if "m" in d and role in ("A", "P") and x.startswith("v_mfma"): continue
        if "r" in d and role in ("A", "P") and x.startswith("ds_read"): continue
        if "h" in d and role == "A" and x.startswith("ds_read"):
            cnt += 1
            if (cnt // (2 if "tr" in x else 1)) % 2: continue
        if "g" in d and role == "P" and x.startswith("ds_read_b64_tr"):
            cnt2 += 1
            if (cnt2 // 2) % 2: continue
        if "T" in d and x.startswith("buffer_store_dwordx4") and "s[28:31]" in x and "sc1" in x: continue
        if "L" in d and x.startswith("buffer_load_dwordx4") and "s[28:31]" in x: continue
        if "v" in d and role == "A" and x.startswith(("v_exp", "v_fma", "v_add_f32", "v_max3")): continue
        if "A" in d and role == "A" and x.startswith("v_mfma"): continue
        if "P" in d and role == "P" and x.startswith("v_mfma"): continue
        if ("s" in d or "S" in d) and role == "P" and x.startswith("v_mfma_f32_32x32x16"):
            m = re.match(r"v_mfma_f32_32x32x16_bf16 v\[(\d+):\d+\], (v\[\d+:\d+\]), (v\[\d+:\d+\]), (.*)", x)
            cnt3 += 1
            for k in range(2):
                b = int(m.group(1)) + 4 * k + 8 * (cnt3 & 1)
                bo = m.group(3) if (k == 0 or "S" not in d) else {"v[16:19]": "v[20:23]", "v[20:23]": "v[16:19]"}[m.group(3)]
                keep.append(f"    v_mfma_f32_16x16x32_bf16 v[{b}:{b+3}], {m.group(2)}, {bo}, v[{b}:{b+3}]")
            continue
        keep.append(l)
    return "\n".join(keep)


def gen(**kw):
    o = dict(DEFAULTS); o.update(kw)
    a = Asm()
    if o["stamps"]: a.raw(f"; stamps={8*o['nact']} @0x2000000")
    a.raw(f"; @launch grid=(256,1,1) block=(512,1,1) lds={LDS}")
    a.raw('.amdgcn_target "amdgcn-amd-amdhsa--gfx950"\n.text')
    gen_main(a, o)
    a.raw(f""".section .rodata,"a"
.p2align 6
.amdhsa_kernel {KN}
  .amdhsa_next_free_vgpr 256
  .amdhsa_next_free_sgpr 102
  .amdhsa_accum_offset 256
  .amdhsa_group_segment_fixed_size 0
  .amdhsa_kernarg_size 104
  .amdhsa_user_sgpr_count 2
  .amdhsa_user_sgpr_kernarg_segment_ptr 1
  .amdhsa_system_sgpr_workgroup_id_x 1
.end_amdhsa_kernel""")
    t = a.text()
    return droppings(t, o["drop"]) if o["drop"] else t


if __name__ == "__main__":
    out = sys.argv[1]
    kw = {}
    for x in sys.argv[2:]:
        k, val = x.split("=")
        kw[k] = int(val) if val.lstrip("-").isdigit() else val.replace("+", " ")
    open(out, "w").write(gen(**kw))
```

```python
import sys, math, struct, re
from asmlib import Asm

NAME = "concat_heads__gqa_block_cached__gqa_block_cached__near_ridge"
KN = NAME + "_kernel"
WB, XB, EB, LDS = 49152, 131072, 155648, 163840
KV_BYTES, W_BYTES, X_BYTES, OUT_BYTES, WS_BYTES = 100663296, 7864320, 1310720, 2621440, 64 << 20
OOB = 0x40000000
FLAGS = 0x1800000
CSCALE = struct.unpack("<I", struct.pack("<f", math.log2(math.e) / math.sqrt(192.0)))[0]

DEFAULTS = dict(kvpol="nt", wpol="", pfpol="", xpol="", stpol="sc1", ldpol="sc1", outpol="", stamps=0, prio=0,
                adepth=8, pq=12, po=9, pdma=2, drop="", nact=256, k0=6, k1=10, kt=7, prod=12, codepf=0, pf0=8, pf1=26, pfb=4, kvx=0, warm=65536, xbar=11, vspan=9, adma=0, sprio=0, nap=8, tst=0, rot=0, kord=0, dbgt=0)

S_HALF, S_BR, S_HG, S_B = 4, 5, 6, 7
S_K, S_V, S_WQ, S_WO, S_XI, S_WS, S_OUT = 8, 12, 16, 20, 24, 28, 64
S_WAVE, S_W, S_DBG, S_T, S_T2 = 32, 33, 36, 57, 59


def v(a, n=1):
    return f"v{a}" if n == 1 else f"v[{a}:{a+n-1}]"


def sq(a):
    return f"s[{a}:{a+3}]"


def pol(s):
    return (" " + s) if s else ""


class Rec:
    def __init__(self): self.t = []
    def e(self, x): self.t.append(x)


def rec(fn, *args):
    r = Rec(); fn(r, *args); return r.t


def srd(a, base, src, size):
    if src != base: a.e(f"s_mov_b32 s{base}, s{src}")
    a.e(f"s_and_b32 s{base+1}, s{src+1}, 0xffff")
    a.e(f"s_mov_b32 s{base+2}, {size}")
    a.e(f"s_mov_b32 s{base+3}, 0x20000")


def entry_touches(a, o):
    pp = pol(o["pfpol"])
    a.e(f"s_lshl_b32 s{S_T}, s{S_WAVE}, 4")
    a.e(f"v_add_u32 v2, s{S_T}, v0")
    a.e("v_mul_u32_u24 v3, 21846, v2")
    a.e("v_mul_u32_u24 v6, 1280, v0")
    a.e("v_lshrrev_b32 v3, 16, v3")
    a.e(f"v_mul_u32_u24 v7, {o['warm']}, v0")
    a.e("v_mul_u32_u24 v4, 3, v3")
    a.e("v_mul_u32_u24 v3, 12288, v3")
    a.e("v_sub_u32 v4, v2, v4")
    a.e(f"s_mul_i32 s48, s{S_B}, {40*12288}")
    a.e("v_lshl_add_u32 v3, v4, 7, v3")
    a.e(f"s_mul_i32 s{S_T}, s{S_HG}, 1536")
    a.e(f"s_add_u32 s48, s48, s{S_T}")
    a.e(f"s_cmp_eq_u32 s{S_WAVE}, 7")
    a.e("s_cselect_b32 s49, 8, 16")
    a.e("s_bfm_b32 s49, s49, 0")
    a.e(f"s_mul_i32 s50, s{S_B}, 81920")
    a.e(f"s_lshl_b32 s51, s{S_B}, 3"); a.e(f"s_add_u32 s51, s51, s{S_HG}")
    a.e(f"s_mul_i32 s51, s51, 786432")
    a.e(f"s_cmp_eq_u32 s{S_WAVE}, 0"); a.e(f"s_cselect_b32 s50, s50, {OOB}")
    a.e(f"s_cmp_eq_u32 s{S_WAVE}, 1"); a.e(f"s_cselect_b32 s52, s51, {OOB}")
    a.e(f"s_cmp_eq_u32 s{S_WAVE}, 2"); a.e(f"s_cselect_b32 s53, s51, {OOB}")
    a.e("s_mov_b32 exec_hi, 0")
    a.e("s_mov_b32 exec_lo, s49")
    a.e("s_waitcnt lgkmcnt(0)")
    srd(a, S_WQ, 44, W_BYTES)
    a.e(f"buffer_load_dword v255, v3, {sq(S_WQ)}, s48 offen{pp}")
    a.e("s_mov_b64 exec, -1")
    srd(a, S_XI, 36, X_BYTES)
    a.e(f"buffer_load_dword v255, v6, {sq(S_XI)}, s50 offen{pp}")
    a.e(f"s_mov_b64 exec, {(1 << (786432 // o['warm'])) - 1}")
    srd(a, S_K, 40, KV_BYTES)
    a.e(f"buffer_load_dword v255, v7, {sq(S_K)}, s52 offen nt")
    srd(a, S_V, 42, KV_BYTES)
    a.e(f"buffer_load_dword v255, v7, {sq(S_V)}, s53 offen nt")
    a.e("s_mov_b64 exec, -1")
    srd(a, S_WO, 46, W_BYTES); srd(a, S_WS, 34, WS_BYTES)
    srd(a, S_DBG, 66, 256)
    srd(a, S_OUT, 64, OUT_BYTES)


def pipe(a, reads, mfmas, fill, depth, span=None, skip=0):
    n = len(mfmas)
    span = span or n
    for i in range(min(depth, n)):
        for t in reads[i]: a.e(t)
    done = 0
    for i in range(n):
        for t in ([mfmas[i]] if isinstance(mfmas[i], str) else mfmas[i]): a.e(t)
        if i + depth < n:
            for t in reads[i + depth]: a.e(t)
        upto = len(fill) * max(min(i + 1, span) - skip, 0) // (span - skip)
        for t in fill[done:upto]: a.e(t)
        done = upto


def interleave(a, chains):
    for i in range(max(map(len, chains))):
        for c in chains:
            if i < len(c): a.e(c[i])


def div24(a, dst_row, dst_rem, src, tmp):
    a.e(f"v_mul_u32_u24 {tmp}, 2731, {src}")
    a.e(f"v_lshrrev_b32 {dst_row}, 16, {tmp}")
    a.e(f"v_mul_u32_u24 {tmp}, 24, {dst_row}")
    a.e(f"v_sub_u32 {dst_rem}, {src}, {tmp}")


def stamp(a, o, k, tag=''):
    if {2: "", 3: "pro", 4: "tail", 5: "start"}.get(o["stamps"]) != tag: return
    a.e("s_waitcnt lgkmcnt(0)")
    a.e("s_memrealtime s[94:95]")
    a.e("s_waitcnt lgkmcnt(0)")
    if isinstance(k, int): a.e(f"s_mov_b32 s{70+k}, s94")
    else:
        base, reg, n = k
        for i in range(n):
            a.e(f"s_cmp_eq_u32 s{reg}, {i}")
            a.e(f"s_cselect_b32 s{70+base+i}, s94, s{70+base+i}")


def endstep(a, vm=None):
    a.e("s_waitcnt lgkmcnt(0)" if vm is None else f"s_waitcnt vmcnt({vm}) lgkmcnt(0)")
    a.e("s_barrier")


def idle(a, tag, n):
    if n <= 2:
        for _ in range(n): a.e("s_barrier")
        return
    a.e(f"s_mov_b32 s{S_T}, {n}")
    a.label(f"L_{tag}")
    a.e("s_barrier")
    a.e(f"s_sub_u32 s{S_T}, s{S_T}, 1")
    a.e(f"s_cmp_lg_u32 s{S_T}, 0")
    a.branch(f"s_cbranch_scc1 L_{tag}")


def idle_steps(a, o, tag, r0, r1):
    n = sum(1 + (r == 17) + (o["pdma"] == 3 and r % 2 == 0) for r in range(r0, r1))
    idle(a, tag, n)


def lane_id(a, r):
    a.e(f"v_mbcnt_lo_u32_b32 v{r}, -1, 0")
    a.e(f"v_mbcnt_hi_u32_b32 v{r}, -1, v{r}")


def dma_offsets_q(a, vq, vx, t):
    chains = []
    for j in range(3):
        r = Rec()
        T0, T1, T2, T3 = (f"v{t+4*j+k}" for k in range(4))
        r.e(f"v_add_u32 {T0}, {64*j}, v0")
        div24(r, T1, T2, T0, T3)
        r.e(f"v_and_or_b32 {T3}, {T1}, 2, s{S_T}")
        r.e(f"v_xor_b32 {T2}, {T2}, {T3}")
        r.e(f"v_mul_u32_u24 {T1}, 12288, {T1}")
        r.e(f"v_lshl_add_u32 {T1}, {T2}, 4, {T1}")
        r.e(f"v_subrev_u32 v{vq+j}, {1024*j}, {T1}")
        chains.append(r.t)
    T0, T1 = f"v{t+12}", f"v{t+13}"
    a.e(f"s_and_b32 s{S_T}, s{S_W}, 1")
    a.e(f"s_lshl_b32 s{S_T}, s{S_T}, 2")
    chains.append([f"v_lshrrev_b32 {T0}, 3, v0", f"v_and_b32 {T0}, 6, {T0}", f"v_and_b32 {T1}, 7, v0",
                   f"v_xor_b32 {T0}, {T0}, {T1}", f"v_lshrrev_b32 {T1}, 3, v0", f"v_mul_u32_u24 {T1}, 1280, {T1}",
                   f"v_lshl_add_u32 v{vx}, {T0}, 4, {T1}"])
    interleave(a, chains)


def wq_share(a, dst, T0, T1, T2):
    a.e(f"s_and_b32 s{S_T}, s{S_W}, 1")
    a.e(f"s_lshl_b32 s{S_T}, s{S_T}, 6")
    a.e(f"v_add_u32 {T0}, s{S_T}, v0")
    a.e(f"v_mul_u32_u24 {T1}, 21846, {T0}")
    a.e(f"v_lshrrev_b32 {T1}, 16, {T1}")
    a.e(f"v_mul_u32_u24 {T2}, 3, {T1}")
    a.e(f"v_sub_u32 {T2}, {T0}, {T2}")
    a.e(f"v_mul_u32_u24 {T1}, 12288, {T1}")
    a.e(f"v_lshl_add_u32 {dst}, {T2}, 7, {T1}")


def scalars_q(a, mq, mx, oq, ox, head):
    a.e(f"s_mul_i32 s{mq}, s{S_W}, 3072")
    a.e(f"s_lshl_b32 s{mx}, s{S_W}, 10")
    a.e(f"s_mul_i32 s{oq}, s{S_HG}, 1536")
    a.e(f"s_mul_i32 s{S_T}, s{S_W}, {8*12288}")
    a.e(f"s_add_u32 s{oq}, s{oq}, s{S_T}")
    if head: a.e(f"s_add_u32 s{oq}, s{oq}, {384*head}")
    a.e(f"s_mul_i32 s{ox}, s{S_B}, 81920")
    a.e(f"s_mul_i32 s{S_T}, s{S_W}, {8*1280}")
    a.e(f"s_add_u32 s{ox}, s{ox}, s{S_T}")


def burst_q(a, o, R, la, lx, lb):
    vq, vx, mq, mx, oq, ox = R
    wp, xp = pol(o["wpol"]), pol(o["xpol"])
    a.e(f"s_add_u32 m0, s{mq}, {la}")
    a.e(f"s_add_u32 s{S_T}, s{ox}, {32*1280}")
    for j in range(3):
        a.e(f"buffer_load_dwordx4 v{vq+j}, {sq(S_WQ)}, s{oq} offen offset:{1024*j}{wp} lds")
    a.e(f"s_add_u32 m0, s{mx}, {lx}")
    a.e(f"s_add_u32 s{oq}, s{oq}, {32*12288}")
    a.e(f"buffer_load_dwordx4 v{vx}, {sq(S_XI)}, s{ox} offen{xp} lds")
    a.e(f"s_add_u32 m0, s{mx}, {lx+4096}")
    a.e(f"s_add_u32 s{ox}, s{ox}, 128")
    a.e(f"buffer_load_dwordx4 v{vx}, {sq(S_XI)}, s{S_T} offen{xp} lds")
    a.e(f"s_add_u32 m0, s{mq}, {lb}")
    a.e("s_nop 0")
    for j in range(3):
        a.e(f"buffer_load_dwordx4 v{vq+j}, {sq(S_WQ)}, s{oq} offen offset:{1024*j}{wp} lds")
    a.e(f"s_add_u32 s{oq}, s{oq}, {32*12288}")


def tail_slot(n):
    k = n % 5
    return WB + k * 24576 if k < 3 else (k - 3) * 24576


def tail_offsets(a, vt, mt, ot, lane, T):
    T0, T1 = T
    a.e(f"v_lshrrev_b32 {T0}, 3, {lane}")
    a.e(f"v_and_b32 {T0}, 2, {T0}")
    a.e(f"v_and_b32 {T1}, 7, {lane}")
    a.e(f"v_xor_b32 {T0}, {T0}, {T1}")
    a.e(f"v_lshrrev_b32 {T1}, 3, {lane}")
    a.e(f"v_mul_u32_u24 {T1}, 1280, {T1}")
    a.e(f"v_lshl_add_u32 v{vt}, {T0}, 4, {T1}")
    a.e(f"v_xor_b32 v{vt+1}, 64, v{vt}")
    a.e(f"s_mul_i32 s{mt}, s{S_W}, 6144")
    a.e(f"s_mul_i32 s{ot}, s{S_HG}, {4*245760}")
    a.e(f"s_mul_i32 s{S_T2}, s{S_W}, {48*1280}")
    a.e(f"s_add_u32 s{ot}, s{ot}, s{S_T2}")
    a.e(f"s_add_u32 s{ot}, s{ot}, {3*245760}")


def tail_tile(a, o, vt, mt, ot, n):
    for j in range(6):
        a.e(f"s_add_u32 m0, s{mt}, {tail_slot(n) + 1024*j}")
        a.e(f"s_add_u32 s{S_T2}, s{ot}, {128*n + 8*1280*j}")
        a.e(f"buffer_load_dwordx4 v{vt+(j&1)}, {sq(S_WO)}, s{S_T2} offen{pol(o['wpol'])} lds")


PRO_W, PRO_X = 24576, 122880


PY, PQ, PFA, PFB = 96, 48, 36, 20
P_T0, P_VQ, P_VX, P_VO, P_AQ, P_AW, P_AX, P_AO, P_T1, P_QW, P_DUM = 0, 1, 4, 5, 10, 13, 15, 16, 17, 18, 19
S_C, S_MQ, S_MX, S_MO, S_OQ, S_OX, S_OO, S_P, S_OWN = 50, 51, 52, 53, 54, 55, 56, 58, 49
PR = (P_VQ, P_VX, S_MQ, S_MX, S_OQ, S_OX)


def p_burst_q(a, o, D):
    b = WB + D * 40960
    burst_q(a, o, PR, b, b + 32768, b + 20480)
    return 8


def p_burst_o(a, o, D):
    wp = pol(o["wpol"])
    for h in range(2):
        b = WB + D * 40960 + h * 20480
        a.e(f"s_add_u32 m0, s{S_MO}, {b}")
        a.e(f"s_add_u32 s{S_T}, s{S_OO}, 4096")
        for j in range(4):
            a.e(f"buffer_load_dwordx4 v{P_VO+j}, {sq(S_WO)}, s{S_OO} offen offset:{1024*j}{wp} lds")
        a.e(f"s_add_u32 m0, s{S_MO}, {b+4096}")
        a.e(f"s_add_u32 s{S_OO}, s{S_OO}, 20480")
        a.e(f"buffer_load_dwordx4 v{P_VO+4}, {sq(S_WO)}, s{S_T} offen{wp} lds")
    return 10


def p_toggle(a, regs, D):
    for r in regs:
        a.e(f"v_add_u32 v{r}, 40960, v{r}" if D == 0 else f"v_subrev_u32 v{r}, 40960, v{r}")


def tr_pair(f, addr, off, delta):
    return [f"ds_read_b64_tr_b16 {v(f,2)}, v{addr} offset:{off}", f"ds_read_b64_tr_b16 {v(f+2,2)}, v{addr} offset:{off+delta}"]


def mfma16(acc, fa, fb, zero=False):
    return f"v_mfma_f32_16x16x32_bf16 {v(acc,4)}, {v(fa,4)}, {v(fb,4)}, {'0' if zero else v(acc,4)}"


def quad(reads, mf, rd, acc, f, fb, zero=False):
    for qs in range(4):
        reads.append(rd if qs == 0 else [])
        mf.append(mfma16(acc + 4 * qs, f, fb + 4 * qs, zero))


def p_qstep(a, o, qs, fill=()):
    h = qs & 1
    reads, mf = [], []
    for i in range(3):
        quad(reads, mf, tr_pair(PFA + 4 * i, P_AQ + i, h * 20480, 1536), PQ + 16 * i, PFA + 4 * i, PFB, qs == 0)
    ax = P_AX
    if h:
        a.e(f"v_xor_b32 v{P_T0}, 64, v{P_AX}"); ax = P_T0
    xr = [f"ds_read_b128 {v(PFB+4*k,4)}, v{ax} offset:{2048*k}" for k in range(4)]
    reads[0] = xr[:1] + reads[0] + xr[1:]
    if qs == 5: mf[o["xbar"]] = [mf[o["xbar"]], "s_barrier"]
    pipe(a, reads, mf, list(fill), o["pq"])
    if h: p_toggle(a, [P_AQ, P_AQ + 1, P_AQ + 2, P_AX], (qs >> 1) & 1)


def p_oreads(a, dst, tau, tmp):
    ao = P_AO
    if tau & 1:
        a.e(f"v_xor_b32 v{tmp}, 64, v{P_AO}"); ao = tmp
    return [f"ds_read_b128 {v(dst+4*k,4)}, v{ao} offset:{6144*k + (tau>>1)*128}" for k in range(4)]


def p_ostep(a, o, s, fill=()):
    h = s & 1
    reads, mf = [], []
    for i in range(5):
        T = 5 * h + i
        f = PFA + 4 * (i % 3)
        quad(reads, mf, tr_pair(f, P_AW + (T & 1), (T >> 1) * 256, 5120), PY + 16 * T, f, PFB)
    if not h:
        xr = p_oreads(a, PFB, s >> 1, P_T0)
        reads[0] = xr[:1] + reads[0] + xr[1:]
    pipe(a, reads, mf, list(fill), o["po"])
    if h: p_toggle(a, [P_AW, P_AW + 1], (s >> 1) & 1)


def p_even(a, o, step, idx, burst, D):
    r = Rec(); n = burst(r, o, D)
    if o["pdma"] == 1:
        for x in r.t: a.e(x)
        step(a, o, idx)
    elif o["pdma"] == 2: step(a, o, idx, r.t)
    else:
        step(a, o, idx)
        if o["pdma"] == 3: a.e("s_barrier")
        for x in r.t: a.e(x)
    endstep(a, n)


def p_choice(a, o, tag, cond, first, second):
    if o["pdma"] == 3: a.e("s_barrier")
    a.e(cond)
    a.branch(f"s_cbranch_scc1 L_{tag}_b")
    a.e(f"s_waitcnt vmcnt({first()})")
    a.branch(f"s_branch L_{tag}_j")
    a.label(f"L_{tag}_b")
    a.e(f"s_waitcnt vmcnt({second()})")
    a.label(f"L_{tag}_j")
    endstep(a)


PRO_AQ, PRO_AX = 168, 174


def p_prologue(a, o):
    XF, F = 96, 144
    reads, mf = [], []
    for n in range(10):
        s = n & 3
        for h in range(2):
            xf = XF + 16 * ((2 * n + h) % 3)
            xr = [f"ds_read_b128 {v(xf+4*k,4)}, v{PRO_AX+h} offset:{s*8192 + 2048*k}" for k in range(4)]
            for i in range(3):
                f = F + 4 * ((len(mf) // 4) % 6)
                rd = tr_pair(f, PRO_AQ + 3 * (s >> 1) + i, (s & 1) * 24576 + h * 12288, 1536)
                if i == 0: rd = xr[:1] + rd + xr[1:]
                if i == 0 and h == 0 and n: rd = ["s_barrier"] + rd
                quad(reads, mf, rd, PQ + 16 * i, f, xf, n == 0 and h == 0)
    pipe(a, reads, mf, [], o["prod"])
    endstep(a)


def p_pack_block(a, i):
    y = PY + 16 * i
    for k in range(8): a.e(f"v_cvt_pk_bf16_f32 v{y+k}, v{y+2*k}, v{y+2*k+1}")
    for t in range(2):
        a.e(f"v_permlane16_swap_b32 v{y+4*t}, v{y+4*t+2}")
        a.e(f"v_permlane16_swap_b32 v{y+4*t+1}, v{y+4*t+3}")


def p_store_block(a, o, i):
    a.e(f"s_add_u32 s{S_T}, s{S_OWN}, {4*i}")
    a.e(f"s_cmp_lt_u32 s{S_T}, 5")
    a.e(f"s_cselect_b32 s{S_T}, {OOB}, s{S_P}")
    for t in range(2):
        a.e(f"buffer_store_dwordx4 {v(PY+16*i+4*t,4)}, v1, {sq(S_WS)}, s{S_T} offen offset:{t*1024}{pol(o['stpol'])}")
    a.e(f"s_add_u32 s{S_P}, s{S_P}, 8192")


def p_keep_block(a, i):
    a.e(f"s_add_u32 s{S_T}, s{S_OWN}, {4*i}")
    a.e(f"s_cmp_lt_u32 s{S_T}, 5")
    a.branch(f"s_cbranch_scc0 L_keep{i}")
    a.e(f"s_lshl_b32 s{S_T}, s{S_T}, 11")
    a.e(f"v_add_u32 v3, s{S_T}, v2")
    for t in range(2):
        a.e(f"ds_write_b128 v3, {v(PY+16*i+4*t,4)} offset:{t*1024}")
    a.label(f"L_keep{i}")


def tr_lane_parts(a, lane, G1, RR, ROW, C1, B8):
    a.e(f"v_lshrrev_b32 {ROW}, 4, {lane}")
    a.e(f"v_and_b32 {G1}, 1, {ROW}")
    a.e(f"v_bfe_u32 {RR}, {lane}, 2, 2")
    a.e(f"v_lshl_add_u32 {ROW}, {ROW}, 3, {RR}")
    a.e(f"v_bfe_u32 {C1}, {lane}, 1, 1")
    a.e(f"v_and_b32 {B8}, 1, {lane}")
    a.e(f"v_lshlrev_b32 {B8}, 3, {B8}")


def gen_P(a, o):
    a.label("L_P")
    if o["prio"] == 1: a.e("s_setprio 1")
    T0, T1, T2, T3, T4, T5, T6 = (f"v{20+k}" for k in range(7))
    stamp(a, o, 2, "start")
    G1, RR, ROW, C1, B8 = T0, T1, T2, T3, T4
    tr_lane_parts(a, "v0", G1, RR, ROW, C1, B8)
    a.e(f"v_and_b32 {T5}, 2, {RR}")
    a.e(f"v_lshl_or_b32 {T5}, {G1}, 2, {T5}")
    a.e(f"v_mul_u32_u24 v27, 384, {ROW}")
    a.e(f"v_add_u32 v27, v27, {B8}")
    for i in range(3):
        a.e(f"s_mul_i32 s{S_T}, s{S_W}, 6")
        a.e(f"s_add_u32 s{S_T}, s{S_T}, {2*i}")
        a.e(f"v_add_u32 {T6}, s{S_T}, {C1}")
        a.e(f"v_xor_b32 {T6}, {T6}, {T5}")
        a.e(f"v_lshl_add_u32 {T6}, {T6}, 4, v27")
        a.e(f"v_add_u32 v{P_AQ+i}, {WB}, {T6}")
        a.e(f"v_add_u32 v{PRO_AQ+i}, {PRO_W}, {T6}")
        a.e(f"v_add_u32 v{PRO_AQ+3+i}, {PRO_W+49152}, {T6}")
    a.e(f"v_lshl_or_b32 {T5}, {G1}, 2, {RR}")
    a.e(f"v_lshlrev_b32 {T5}, 1, {T5}")
    a.e(f"v_mul_u32_u24 v27, 1280, {ROW}")
    a.e(f"v_add_u32 v27, v27, {B8}")
    a.e(f"s_lshl_b32 s{S_T}, s{S_W}, 1")
    a.e(f"v_add_u32 {T6}, s{S_T}, {C1}")
    a.e(f"v_xor_b32 {T6}, {T6}, {T5}")
    a.e(f"v_lshl_add_u32 {T6}, {T6}, 4, v27")
    a.e(f"v_add_u32 v{P_AW}, {WB}, {T6}")
    a.e(f"v_xor_b32 v{P_AW+1}, 128, v{P_AW}")
    a.e(f"v_and_b32 {T0}, 15, v0")
    a.e(f"v_lshrrev_b32 {T1}, 4, v0")
    a.e(f"v_and_b32 {T2}, 6, {T0}")
    a.e(f"v_xor_b32 {T3}, {T2}, {T1}")
    a.e(f"v_lshlrev_b32 {T3}, 4, {T3}")
    a.e(f"v_lshl_add_u32 {T4}, {T0}, 7, {T3}")
    a.e(f"v_add_u32 v{P_AX}, {WB+32768}, {T4}")
    a.e(f"v_add_u32 v{PRO_AX}, {PRO_X}, {T4}")
    a.e(f"v_xor_b32 v{PRO_AX+1}, 64, v{PRO_AX}")
    a.e(f"v_mul_u32_u24 {T0}, 384, {T0}")
    a.e(f"v_add_u32 {T0}, {XB}, {T0}")
    a.e(f"v_add_u32 v{P_AO}, {T0}, {T3}")
    a.e(f"v_lshrrev_b32 {T3}, 1, {T1}")
    a.e(f"v_xor_b32 {T3}, {T3}, {T2}")
    a.e(f"v_lshl_add_u32 {T3}, {T3}, 4, {T0}")
    a.e(f"v_and_b32 {T1}, 1, {T1}")
    a.e(f"v_lshl_add_u32 v{P_QW}, {T1}, 3, {T3}")
    dma_offsets_q(a, P_VQ, P_VX, 28)
    a.e(f"s_lshr_b32 s{S_T}, s{S_W}, 1")
    a.e(f"s_lshl_b32 s{S_T}, s{S_T}, 2")
    for j in range(5):
        a.e(f"v_add_u32 {T0}, {64*j}, v0")
        a.e(f"v_mul_u32_u24 {T0}, 820, {T0}")
        a.e(f"v_lshrrev_b32 {T0}, 16, {T0}")
        a.e(f"v_or_b32 {T0}, s{S_T}, {T0}")
        a.e(f"v_lshlrev_b32 {T0}, 1, {T0}")
        a.e(f"v_xor_b32 {T0}, {T0}, v0")
        a.e(f"v_lshlrev_b32 v{P_VO+j}, 4, {T0}")
    scalars_q(a, S_MQ, S_MX, S_OQ, S_OX, 1)
    a.e(f"s_mul_i32 s{S_MO}, s{S_W}, 5120")
    a.e(f"s_mul_i32 s{S_OO}, s{S_HG}, {4*245760}")
    a.e(f"s_add_u32 s{S_OO}, s{S_OO}, s{S_MO}")
    a.e(f"s_mov_b32 s{S_C}, 1")
    stamp(a, o, 3, "start")
    a.e("s_barrier")
    stamp(a, o, 1)
    a.raw("L_Ppro:")
    p_prologue(a, o)

    a.label("L_Pcyc")
    for i in range(24):
        a.e(f"v_cvt_pk_bf16_f32 v{PQ+i}, v{PQ+2*i}, v{PQ+2*i+1}")
    for i in range(3):
        a.e(f"s_mul_i32 s{S_T}, s{S_W}, 3")
        a.e(f"s_add_u32 s{S_T}, s{S_T}, {i}")
        a.e(f"s_and_b32 s{S_T2}, s{S_T}, 3")
        a.e(f"s_lshl_b32 s{S_T2}, s{S_T2}, 5")
        a.e(f"s_lshr_b32 s{S_T}, s{S_T}, 2")
        a.e(f"s_lshl_b32 s{S_T}, s{S_T}, 7")
        t = (P_T0, P_T1)[i & 1]
        a.e(f"v_xor_b32 v{t}, s{S_T2}, v{P_QW}")
        a.e(f"v_add_u32 v{t}, s{S_T}, v{t}")
        for k in range(4):
            a.e(f"ds_write_b64 v{t}, {v(PQ+8*i+2*k,2)} offset:{6144*k}")
    a.e("s_waitcnt lgkmcnt(0)")
    a.e(f"s_cmp_eq_u32 s{S_C}, 4")
    a.branch("s_cbranch_scc0 L_Pc3")
    idle_steps(a, o, "Pi4", 0, 4)
    a.branch("s_branch L_PO")
    a.label("L_Pc3")
    a.e(f"s_cmp_eq_u32 s{S_C}, 1")
    a.branch("s_cbranch_scc0 L_PQa")
    a.e("s_barrier")
    p_burst_q(a, o, 0)
    endstep(a, 3)

    a.label("L_PQa")
    for qs in range(4):
        if qs == 0:
            p_even(a, o, p_qstep, 0, p_burst_q, 1); continue
        p_qstep(a, o, qs)
        if qs == 2: p_choice(a, o, "Pa", f"s_cmp_ge_u32 s{S_C}, 2", lambda: p_burst_q(a, o, 0), lambda: p_burst_o(a, o, 0))
        else: endstep(a, 3 if qs == 1 else 0)
    a.e(f"s_cmp_ge_u32 s{S_C}, 2")
    a.branch("s_cbranch_scc1 L_PO")
    for i in range(160): a.e(f"v_mov_b32 v{PY+i}, 0")
    idle_steps(a, o, "Pi10", 6, 16)
    a.branch("s_branch L_PQb")

    a.label("L_PO")
    stamp(a, o, (2, S_C, 5))
    for s in range(12):
        if s < 10 and s % 2 == 0:
            p_even(a, o, p_ostep, s, p_burst_o, ((s >> 1) + 1) & 1); continue
        p_ostep(a, o, s)
        if s == 10: p_choice(a, o, "Po", f"s_cmp_eq_u32 s{S_C}, 4", lambda: p_burst_q(a, o, 0), lambda: 0)
        elif s == 11: endstep(a, 3)
        else: endstep(a, 0)
    a.e(f"s_cmp_eq_u32 s{S_C}, 4")
    a.branch("s_cbranch_scc1 L_Ptail")

    a.label("L_PQb")
    for qs in range(4, 20):
        if qs < 18 and qs % 2 == 0:
            p_even(a, o, p_qstep, qs, p_burst_q, ((qs >> 1) + 1) & 1); continue
        p_qstep(a, o, qs)
        if qs == 18:
            a.e(f"s_add_u32 s{S_OQ}, s{S_OQ}, {(384 - 640*12288) & 0xffffffff}")
            a.e(f"s_sub_u32 s{S_OX}, s{S_OX}, 1280")
            p_choice(a, o, "Pb", f"s_cmp_eq_u32 s{S_C}, 3", lambda: p_burst_q(a, o, 0), lambda: p_burst_o(a, o, 0))
        else: endstep(a, 0 if qs == 19 else 3)
    a.e(f"s_add_u32 s{S_C}, s{S_C}, 1")
    a.branch("s_branch L_Pcyc")

    a.label("L_Ptail")
    VT, TA = 2, 4
    lane_id(a, 5)
    tail_offsets(a, VT, S_MO, S_OO, "v5", ("v6", "v7"))
    tr_lane_parts(a, "v5", "v6", "v7", "v8", "v9", "v10")
    a.e("v_and_b32 v7, 2, v7")
    a.e("v_lshl_or_b32 v7, v6, 2, v7")
    a.e(f"s_lshl_b32 s{S_T}, s{S_W}, 1")
    a.e(f"v_add_u32 v9, s{S_T}, v9")
    a.e("v_xor_b32 v9, v9, v7")
    a.e("v_lshl_add_u32 v9, v9, 4, v10")
    a.e(f"v_lshl_add_u32 v{TA}, v8, 7, v9")
    a.e("v_lshlrev_b32 v1, 4, v5")
    a.e(f"s_lshl_b32 s{S_P}, s{S_BR}, 4"); a.e(f"s_add_u32 s{S_P}, s{S_P}, s{S_B}")
    a.e(f"s_lshl_b32 s{S_P}, s{S_P}, 3"); a.e(f"s_add_u32 s{S_P}, s{S_P}, s{S_HG}")
    a.e(f"s_mul_i32 s{S_P}, s{S_P}, 81920")
    a.e(f"s_lshl_b32 s{S_T}, s{S_W}, 11"); a.e(f"s_add_u32 s{S_P}, s{S_P}, s{S_T}")
    a.e(f"s_mul_i32 s{S_T}, s{S_HG}, 5"); a.e(f"s_sub_u32 s{S_OWN}, s{S_W}, s{S_T}")
    for n in range(3):
        tail_tile(a, o, VT, S_MO, S_OO, n)
        idle_steps(a, o, f"Pt{n}", 16 + 2 * n, 18 + 2 * n)
    idle_steps(a, o, "Pt3", 22, 31)
    tail_tile(a, o, VT, S_MO, S_OO, 3)
    idle_steps(a, o, "Pt4", 31, 33)
    tail_tile(a, o, VT, S_MO, S_OO, 4)
    endstep(a, 6)
    stamp(a, o, 7)
    SB, F = 8, 24
    a.e(f"v_xor_b32 v{P_T0}, 64, v{P_AO}")
    a.e(f"v_mov_b32 v7, v{P_AO}")
    ob = lambda dst, tau: [f"ds_read_b128 {v(dst+4*k,4)}, v{P_T0 if tau & 1 else 7} offset:{6144*k + (tau>>1)*128}" for k in range(4)]
    order = (3, 0, 4, 1, 5, 2)
    for t in ob(SB, 3): a.e(t)
    for p in range(5):
        for k in range(2): a.e(f"v_add_u32 v{5+k}, {tail_slot(2*p+k)}, v{TA}")
        reads, mf = [], []
        for gi, tau in enumerate(order):
            for k in range(2):
                f = F + 4 * ((len(mf) // 4) % 6)
                rd = tr_pair(f, 5 + k, tau * 4096, 512)
                if p == 0 and tau < 3 and k == 0: rd = ob(PQ + 16 * tau, tau) + rd
                quad(reads, mf, rd, PY + 16 * (2 * p + k), f, PQ + 16 * tau if tau < 3 else SB)
            if tau >= 3 and not (p == 4 and tau == 5):
                mf[-1] = [mf[-1]] + ob(SB, 3 if tau == 5 else tau + 1)
        fill = []
        if p: fill = rec(p_pack_block, 2 * p - 2) + rec(p_pack_block, 2 * p - 1)
        for m in TAIL_STORES[o["tst"]].get(p, []): fill += rec(p_store_block, o, m)
        for n in range(4):
            for t in reads[n]: a.e(t)
            reads[n] = []
        pipe(a, reads, mf, fill, 16, skip=6)
        if p == 0: a.e("s_waitcnt vmcnt(0)")
        if p < 4: a.e("s_barrier")
    stamp(a, o, 8)
    for m in TAIL_STORES[o["tst"]][5]:
        if m >= 8: p_pack_block(a, m)
        p_store_block(a, o, m)
    a.e(f"s_mul_i32 s{S_T}, s{S_HG}, 10240")
    a.e(f"s_add_u32 s{S_T}, s{S_T}, {WB}")
    a.e(f"v_add_u32 v2, s{S_T}, v1")
    for m in range(10): p_keep_block(a, m)
    a.e("s_waitcnt vmcnt(0)")
    a.branch("s_branch L_red")


TAIL_STORES = [{3: [0, 1, 2, 3, 4, 5], 4: [6, 7], 5: [8, 9]},
               {3: [0, 1, 2], 4: [3, 4, 5, 6], 5: [7, 8, 9]},
               {2: [0, 1], 3: [2, 3, 4], 4: [5, 6, 7], 5: [8, 9]},
               {1: [0, 1], 2: [2, 3], 3: [4, 5], 4: [6, 7], 5: [8, 9]}]


AS, AR_, AP, AF = 128, 80, 56, 24
A_VD, A_AK, A_AV, A_M, A_L, A_R, A_T0, A_T1, A_PF, A_DUM = 1, 4, 6, 14, 16, 18, 20, 21, 22, 23
A_XQ, A_XO, A_EW, A_ER, A_FI, A_FO = 48, 50, 52, 53, 54, 55
S_SP, S_PER, S_MK, S_OK, S_OV, S_CS, S_PFO, S_PFS, S_PF = 49, 50, 51, 52, 53, 54, 55, 56, 60
AR = (128, 131, 68, 69, 96, 97)
S_PFM = 100
S_LK, S_LV = 48, 58
PF_LOW, PF_HIGH = (1, 3, 6, 8, 10, 12), (2, 4, 7, 9, 11, 13)


def a_burst(a, o, D, srdreg, off, last=False):
    kp = pol(o["kvpol"])
    for h in range(2):
        a.e(f"s_add_u32 m0, s{S_MK}, {D*24576+h*12288}")
        if h: a.e(f"s_add_u32 s{off}, s{off}, 12288")
        else: a.e("s_nop 0")
        for j in range(3):
            a.e(f"buffer_load_dwordx4 v{A_VD+j}, {sq(srdreg)}, s{off} offen offset:{1024*j}{kp} lds")
    a.e(f"s_add_u32 s{off}, s{off}, 12288")
    if o["rot"]:
        lim = S_LK if off == S_OK else S_LV
        a.e(f"s_cmp_eq_u32 s{off}, s{lim}")
        a.e(f"s_cselect_b32 s{S_T}, 196608, 0")
        a.e(f"s_sub_u32 s{off}, s{off}, s{S_T}")
        if last:
            a.e(f"s_add_u32 s{off}, s{off}, 196608")
            a.e(f"s_add_u32 s{lim}, s{lim}, 196608")


def soft_chunk(j):
    b = AS + 8 * j
    t = []
    for i in range(8): t.append(f"v_fma_f32 v{b+i}, v{b+i}, s{S_CS}, -v{A_M+(i>>2)}")
    for i in range(8): t.append(f"v_exp_f32 v{b+i}, v{b+i}")
    for i in (0, 4, 1, 5, 2, 6, 3, 7):
        if j == 0 and i % 4 == 0: t.append(f"v_mov_b32 v{A_L+(i>>2)}, v{b+i}")
        else: t.append(f"v_add_f32 v{A_L+(i>>2)}, v{A_L+(i>>2)}, v{b+i}")
    for qs in range(2):
        for i in range(2): t.append(f"v_cvt_pk_bf16_f32 v{b+4*qs+i}, v{b+4*qs+2*i}, v{b+4*qs+2*i+1}")
    for qs in range(2):
        t.append(f"ds_write_b64 v{A_EW}, {v(b+4*qs,2)} offset:{(j&1)*4096 + qs*512}")
    return t


def max_chunk(s):
    b = AS + 8 * s
    t = []
    for i in range(2):
        for qs in range(2):
            r = b + 4 * qs + 2 * i
            if s == 0 and i == 0: t.append(f"v_max_f32 v{A_M+qs}, v{r}, v{r+1}")
            else: t.append(f"v_max3_f32 v{A_M+qs}, v{A_M+qs}, v{r}, v{r+1}")
    return t


def xlane2(a, reg, op):
    for sw in ("v_permlane32_swap_b32", "v_permlane16_swap_b32"):
        for k in range(2): a.e(f"v_mov_b32 v{A_T0+k}, v{reg+k}")
        for k in range(2): a.e(f"{sw} v{reg+k}, v{A_T0+k}")
        for k in range(2): a.e(f"{op} v{reg+k}, v{reg+k}, v{A_T0+k}")


def a_rowsum(a):
    xlane2(a, A_L, "v_add_f32")
    a.e(f"ds_write_b64 v{A_EW}, {v(A_L,2)}")


def a_qread(ks):
    return [f"ds_read_b128 {v(AR_+8*ks+4*qs,4)}, v{A_XQ+(ks&1)} offset:{qs*6144 + (ks>>1)*128}" for qs in range(2)]


def a_owrite(i):
    t = [f"v_xor_b32 v{A_T0+(i&1)}, {32*(i&3)}, v{A_XO+(1 if i in (2, 3) else 0)}"]
    for qs in range(2):
        t.append(f"ds_write_b64 v{A_T0+(i&1)}, {v(AP+4*i+2*qs,2)} offset:{qs*6144 + (i>>2)*128}")
    return t


def a_onorm(a, after):
    a.e(f"ds_read_b64 {v(A_T0,2)}, v{A_ER}")
    for k in range(2): a.e(f"v_add_f32 v{A_L+k}, v{A_L+k}, v{A_T0+k}")
    for k in range(2): a.e(f"v_rcp_f32 v{A_R+k}, v{A_L+k}")
    for i in range(6):
        for qs in range(2):
            r = AR_ + 8 * i + 4 * qs
            for k in (0, 2):
                a.e(f"v_pk_mul_f32 {v(r+k,2)}, {v(r+k,2)}, {v(A_R,2)} op_sel:[0,{qs}] op_sel_hi:[1,{qs}]")
        for qs in range(2):
            r = AR_ + 8 * i + 4 * qs
            for k in range(2): a.e(f"v_cvt_pk_bf16_f32 v{AP+4*i+2*qs+k}, v{r+2*k}, v{r+2*k+1}")
        for t in after(i): a.e(t)


def hoist(a, reads, depth, pre):
    if not pre: return
    for i in range(min(depth, len(reads))):
        for t in reads[i]: a.e(t)
        reads[i] = []
    for t in pre: a.e(t)


def a_kstep(a, o, s, extra=(), pre=()):
    reads, mf = [], []
    for i in range(12):
        ks, qs = divmod(i, 2) if not o["kord"] else (i % 6, i // 6)
        f = AF + 4 * ks
        reads.append([] if qs else [f"ds_read_b128 {v(f,4)}, v{A_AK+(ks&1)} offset:{(s&3)*12288 + (ks>>1)*128}"])
        mf.append(mfma16(AS + 8 * s + 4 * qs, f, AR_ + 8 * ks + 4 * qs, ks == 0))
    hoist(a, reads, o["adepth"], pre)
    pipe(a, reads, mf, (max_chunk(s - 1) if s else []) + list(extra), o["adepth"])
    if s == 15:
        for t in max_chunk(15): a.e(t)
        xlane2(a, A_M, "v_max_f32")
        a.e(f"ds_write_b64 v{A_EW}, {v(A_M,2)} offset:4096")


def a_vstep(a, o, j, pre=()):
    s = 16 + j
    b = AS + 8 * j
    reads, mf = [], []
    for n in range(12):
        i, qs = divmod(n, 2)
        f = AF + 4 * i
        off = (s & 3) * 12288 + (i >> 2) * 128
        reads.append([] if qs else [f"ds_read_b64_tr_b16 {v(f,2)}, v{A_AV+(i&3)} offset:{off}",
                                    f"ds_read_b64_tr_b16 {v(f+2,2)}, v{A_AV+4+(i&3)} offset:{off}"])
        mf.append(mfma16(AR_ + 8 * i + 4 * qs, f, b + 4 * qs, j == 0))
    if j == 0:
        a.e(f"ds_read_b64 {v(A_T0,2)}, v{A_ER} offset:4096")
        for n in range(0, 12, 2):
            for t in reads[n]: a.e(t)
            reads[n] = []
        for k in range(2): a.e(f"v_max_f32 v{A_M+k}, v{A_M+k}, v{A_T0+k}")
        for k in range(2): a.e(f"v_mul_f32 v{A_M+k}, s{S_CS}, v{A_M+k}")
        for t in soft_chunk(0): a.e(t)
        endstep(a)
    for qs in range(2):
        a.e(f"ds_read_b64 {v(b+4*qs+2,2)}, v{A_ER} offset:{(j&1)*4096 + qs*512}")
    hoist(a, reads, o["adepth"], pre)
    pipe(a, reads, mf, soft_chunk(j + 1) if j < 15 else rec(a_rowsum), o["adepth"], o["vspan"])


def spin(a, tag, load, test, nap=0, bound=0x20000):
    a.e("s_mov_b32 s40, 0")
    a.label(f"L_{tag}")
    a.e(load)
    a.e("s_add_u32 s40, s40, 1")
    a.e("s_waitcnt vmcnt(0) lgkmcnt(0)")
    for t in test: a.e(t)
    a.branch(f"s_cbranch_scc1 L_{tag}_ok")
    if nap: a.e(f"s_sleep {nap}")
    a.e(f"s_cmp_lt_u32 s40, {bound}")
    a.branch(f"s_cbranch_scc1 L_{tag}")
    a.label(f"L_{tag}_ok")


def gen_A(a, o):
    a.comment("attention waves: 16 query rows each; they also feed the first and the last projection")
    if o["prio"] == 2: a.e("s_setprio 1")
    if o["sprio"]: a.e("s_setprio 3")
    T0, T1, T2, T3 = "v24", "v25", "v26", "v27"
    dma_offsets_q(a, AR[0], AR[1], 32)
    scalars_q(a, *AR[2:], 0)
    chains = []
    for j in range(3):
        r = Rec()
        U0, U1, U2, U3 = (f"v{32+4*j+k}" for k in range(4))
        r.e(f"v_add_u32 {U0}, {64*j}, v0")
        r.e(f"v_mul_u32_u24 {U1}, 2731, {U0}")
        r.e(f"v_lshrrev_b32 {U1}, 16, {U1}")
        r.e(f"v_and_b32 {U1}, 6, {U1}")
        r.e(f"v_xor_b32 {U1}, {U1}, v0")
        r.e(f"v_lshlrev_b32 v{A_VD+j}, 4, {U1}")
        chains.append(r.t)
    kv_offsets = chains
    a.e(f"s_mul_i32 s98, s{S_B}, 81920")
    a.e(f"s_mul_i32 s{S_T}, s{S_HALF}, 40960"); a.e(f"s_add_u32 s98, s98, s{S_T}")
    a.e(f"s_mul_i32 s{S_T}, s{S_W}, 10240"); a.e(f"s_add_u32 s98, s98, s{S_T}")
    a.e(f"v_lshlrev_b32 v28, 7, v0")
    a.e(f"v_add_u32 v29, 8192, v28")
    a.e(f"v_mov_b32 {T2}, {OOB}")
    a.e(f"v_cmp_gt_u32 vcc, 16, v0")
    a.e(f"v_cndmask_b32 v29, {T2}, v29, vcc")
    stamp(a, o, 2, "start")
    pp = pol(o["pfpol"])
    vm = ["t"] * 4

    def W(n):
        s = n & 3
        burst_q(a, o, AR, PRO_W + s * 24576, PRO_X + s * 8192, PRO_W + s * 24576 + 12288)
        vm.extend([("W", n)] * 8)

    def K0():
        a_burst(a, o, 0, S_K, S_OK); vm.extend([("K", 0)] * 3 + [("K", 1)] * 3)

    def late_touches():
        a.e(f"s_cmp_eq_u32 s99, 0")
        a.e(f"s_cselect_b32 s{S_T}, {OOB}, s{S_PFO}")
        a.e(f"buffer_load_dword v{A_DUM}, v{A_PF}, {sq(S_PF)}, s{S_T} offen{pp}"); vm.append("t")
        a.e(f"s_add_u32 s{S_PFO}, s{S_PFO}, s99")
        a.e(f"s_cmp_eq_u32 s{S_W}, 0")
        a.e(f"s_cselect_b32 s{S_T}, s46, {OOB}")
        a.e(f"s_cselect_b32 s{S_T2}, s47, {OOB}")
        a.e(f"buffer_load_dword v{A_FI}, v28, {sq(S_WS)}, s{S_T} offen sc1"); vm.append("f")
        a.e(f"buffer_load_dword v{A_FO}, v29, {sq(S_WS)}, s{S_T2} offen sc1"); vm.append("f")

    def wait_for(tag):
        last = max(i for i, x in enumerate(vm) if x == tag)
        return min(63, len(vm) - 1 - last)

    stamp(a, o, 3, "start")
    W(0)
    stamp(a, o, 4, "start")
    if o["sprio"]: a.e(f"s_setprio {1 if o['prio'] == 2 else 0}")
    interleave(a, kv_offsets)
    a.e(f"s_mul_i32 s{S_MK}, s{S_W}, 3072")
    a.e(f"s_lshl_b32 s{S_OK}, s{S_B}, 3"); a.e(f"s_add_u32 s{S_OK}, s{S_OK}, s{S_HG}")
    a.e(f"s_mul_i32 s{S_OK}, s{S_OK}, 786432"); a.e(f"s_add_u32 s{S_OK}, s{S_OK}, s{S_MK}")
    if o["rot"]:
        a.e(f"s_add_u32 s{S_LK}, s{S_OK}, 196608")
        a.e(f"s_mov_b32 s{S_LV}, s{S_LK}")
        a.e(f"s_mul_i32 s{S_T}, s2, {o['rot']}")
        a.e(f"s_lshr_b32 s{S_T}, s{S_T}, 3")
        a.e(f"s_add_u32 s{S_T}, s{S_T}, s2")
        a.e(f"s_and_b32 s{S_T}, s{S_T}, 7")
        a.e(f"s_mul_i32 s{S_T}, s{S_T}, 24576")
        a.e(f"s_add_u32 s{S_OK}, s{S_OK}, s{S_T}")
    a.e(f"s_mov_b32 s{S_OV}, s{S_OK}")
    a.e(f"buffer_load_dword v{A_DUM}, v28, {sq(S_XI)}, s98 offen{pp}"); vm.append("t")
    a.e(f"buffer_load_dword v{A_DUM}, v29, {sq(S_XI)}, s98 offen{pp}"); vm.append("t")
    stamp(a, o, 5, "start")
    if o["k0"] < 0: K0()
    if o["codepf"]:
        a.e("s_getpc_b64 s[100:101]")
        a.raw("L_pc:")
        a.e(f"s_sub_u32 s100, s100, L_pc-{KN}")
        a.e("s_subb_u32 s101, s101, 0")
        a.e("s_lshr_b32 s98, s2, 3")
        a.e(f"s_lshl_b32 s98, s98, 2")
        a.e(f"s_add_u32 s98, s98, s{S_W}")
        a.e(f"s_lshl_b32 s98, s98, 9")
        a.e("v_and_b32 v30, 3, v0")
        a.e("v_lshlrev_b32 v30, 7, v30")
        a.e("v_add_u32 v30, s98, v30")
        a.e(f"v_min_u32 v30, L_end-{KN}, v30")
        a.e(f"global_load_dword v{A_DUM}, v30, s[100:101]"); vm.append("t")
    a.e(f"s_lshl_b32 s44, s{S_BR}, 4")
    a.e(f"s_add_u32 s44, s44, s{S_B}")
    a.e("s_lshl_b32 s45, s44, 10")
    a.e(f"s_add_u32 s45, s45, {FLAGS}")
    a.e(f"s_lshl_b32 s46, s{S_HG}, 7")
    a.e(f"s_add_u32 s46, s46, s45")
    a.e(f"s_lshl_b32 s47, s{S_HG}, 2")
    a.e(f"s_add_u32 s47, s47, s45")
    wq_share(a, T1, T0, T1, T2)
    a.e(f"v_lshlrev_b32 {T2}, 7, {T0}")
    a.e(f"s_mov_b32 s{S_PFS}, 384")
    a.e(f"s_mov_b32 s{S_T}, {40*12288}")
    a.e(f"s_cmp_ge_u32 s{S_W}, 2")
    a.e(f"s_cselect_b64 vcc, -1, 0")
    a.e(f"s_cselect_b32 s{S_PFS}, 245760, s{S_PFS}")
    a.e(f"s_cselect_b32 s{S_T}, 15360, s{S_T}")
    a.e(f"s_cselect_b32 s{S_PF}, s{S_WO}, s{S_WQ}")
    a.e(f"s_cselect_b32 s{S_PF+1}, s{S_WO+1}, s{S_WQ+1}")
    a.e(f"s_cselect_b32 s99, 0, 384")
    a.e(f"s_mov_b32 s{S_PF+2}, {W_BYTES}")
    a.e(f"s_mov_b32 s{S_PF+3}, 0x20000")
    a.e(f"v_cndmask_b32 {T1}, {T1}, {T2}, vcc")
    a.e(f"v_mov_b32 {T2}, {OOB}")
    a.e(f"v_cmp_gt_u32 vcc, 120, {T0}")
    a.e(f"v_cndmask_b32 v{A_PF}, {T2}, {T1}, vcc")
    a.e(f"s_mul_i32 s{S_PFO}, s{S_T}, s{S_B}")
    a.e(f"s_mul_i32 s{S_T}, s{S_PFS}, s{S_HG}")
    a.e(f"s_lshl_b32 s{S_T}, s{S_T}, 2")
    a.e(f"s_add_u32 s{S_PFO}, s{S_PFO}, s{S_T}")
    a.e(f"s_add_u32 s{S_PFO}, s{S_PFO}, s99")
    bits = lambda *pp_: sum(3 << (16 * p + k) for p, k in pp_)
    mA, mB, mO = bits((0, 6), (1, 6)), bits((0, 1), (1, 1), (2, 1)), bits((0, 10), (1, 10), (2, 10), (3, 1))
    a.e(f"s_mov_b32 s{S_PFM}, {mB & 0xffffffff}")
    a.e(f"s_mov_b32 s{S_PFM+1}, {mB >> 32}")
    a.e(f"s_cmp_lt_u32 s{S_B}, {o['pfb']}")
    a.e(f"s_cselect_b32 s{S_PFM}, {mA & 0xffffffff}, s{S_PFM}")
    a.e(f"s_cselect_b32 s{S_PFM+1}, {mA >> 32}, s{S_PFM+1}")
    a.e(f"s_cselect_b32 s99, s99, 0")
    a.e(f"s_cmp_ge_u32 s{S_W}, 2")
    a.e(f"s_cselect_b32 s{S_PFM}, {mO & 0xffffffff}, s{S_PFM}")
    a.e(f"s_cselect_b32 s{S_PFM+1}, {mO >> 32}, s{S_PFM+1}")
    a.e(f"s_and_b32 s{S_T}, s{S_W}, 1")
    a.e(f"s_lshl_b32 s{S_T}, s{S_T}, 1")
    a.e(f"s_lshl_b64 s[{S_PFM}:{S_PFM+1}], s[{S_PFM}:{S_PFM+1}], s{S_T}")
    a.e(f"s_and_b32 s{S_SP}, s{S_W}, 1")
    a.e(f"s_lshr_b32 s{S_T2}, s{S_W}, 1")
    a.e(f"s_mul_i32 s{S_T2}, s{S_T2}, 12288")
    a.e(f"s_add_u32 s{S_T2}, s{S_T2}, {XB}")
    a.e(f"s_mul_i32 s{S_T}, s{S_SP}, 6144")
    a.e(f"v_and_b32 {T0}, 15, v0")
    a.e(f"v_lshrrev_b32 {T1}, 4, v0")
    a.e(f"v_and_b32 {T2}, 6, {T0}")
    a.e(f"v_xor_b32 {T3}, {T2}, {T1}")
    a.e(f"v_mul_u32_u24 {T0}, 384, {T0}")
    a.e(f"v_lshl_add_u32 {T3}, {T3}, 4, {T0}")
    a.e(f"v_add_u32 v{A_AK}, s{S_T}, {T3}")
    a.e(f"v_xor_b32 v{A_AK+1}, 64, v{A_AK}")
    a.e(f"v_add_u32 v{A_XQ}, s{S_T2}, {T3}")
    a.e(f"v_xor_b32 v{A_XQ+1}, 64, v{A_XQ}")
    a.e(f"v_lshrrev_b32 {T3}, 1, {T1}")
    a.e(f"v_xor_b32 {T3}, {T3}, {T2}")
    a.e(f"v_lshl_add_u32 {T3}, {T3}, 4, {T0}")
    a.e(f"v_and_b32 {T2}, 1, {T1}")
    a.e(f"v_lshl_add_u32 {T3}, {T2}, 3, {T3}")
    a.e(f"v_add_u32 {T3}, s{S_T2}, {T3}")
    a.e(f"s_lshl_b32 s{S_T2}, s{S_SP}, 6")
    a.e(f"v_xor_b32 {T3}, s{S_T2}, {T3}")
    a.e(f"s_lshl_b32 s{S_T2}, s{S_SP}, 7")
    a.e(f"v_add_u32 v{A_XO}, s{S_T2}, {T3}")
    a.e(f"v_add_u32 v{A_XO+1}, s{S_T2}, v{A_XO}")
    a.e(f"v_lshrrev_b32 {T0}, 2, v0")
    a.e(f"v_and_b32 {T1}, 6, {T0}")
    a.e(f"v_bfe_u32 {T2}, v0, 1, 1")
    a.e(f"v_xor_b32 {T1}, {T1}, {T2}")
    a.e(f"v_mul_u32_u24 {T0}, 384, {T0}")
    a.e(f"v_lshl_add_u32 {T1}, {T1}, 4, {T0}")
    a.e(f"v_and_b32 {T2}, 1, v0")
    a.e(f"v_lshl_add_u32 {T1}, {T2}, 3, {T1}")
    a.e(f"s_lshl_b32 s{S_T2}, s{S_SP}, 6")
    a.e(f"v_xor_b32 {T1}, s{S_T2}, {T1}")
    for d in range(4):
        a.e(f"v_xor_b32 {T2}, {32*d}, {T1}")
        a.e(f"s_lshl_b32 s{S_T2}, s{S_SP}, {8 if d >= 2 else 7}")
        a.e(f"v_add_u32 {T2}, s{S_T2}, {T2}")
        a.e(f"v_add_u32 v{A_AV+d}, s{S_T}, {T2}")
        a.e(f"s_sub_u32 s{S_T2}, 6144, s{S_T}")
        a.e(f"v_add_u32 v{A_AV+4+d}, s{S_T2}, {T2}")
    a.e(f"v_lshlrev_b32 {T0}, 3, v0")
    a.e(f"s_lshl_b32 s{S_T}, s{S_W}, 10")
    a.e(f"s_add_u32 s{S_T}, s{S_T}, {EB}")
    a.e(f"v_add_u32 v{A_EW}, s{S_T}, {T0}")
    a.e(f"v_xor_b32 v{A_ER}, 1024, v{A_EW}")
    a.e("v_and_b32 v28, 7, v0")
    a.e("v_lshlrev_b32 v29, 7, v28")
    a.e("v_lshlrev_b32 v28, 2, v28")
    a.e(f"s_mov_b32 s{S_CS}, {CSCALE:#x}")
    a.e(f"s_mov_b32 s{S_PER}, 0")
    stamp(a, o, 6, "start")
    W(1)
    stamp(a, o, 12, "pro")
    stamp(a, o, 7, "start")
    endstep(a, wait_for(("W", 0)))
    stamp(a, o, 8, "start")
    stamp(a, o, 1, "pro")
    a.raw("L_Apro:")
    W(2)
    for n in range(10):
        endstep(a, wait_for(("W", n + 1)) if n < 9 else None)
        stamp(a, o, n + 2, "pro")
        if n + 3 < 10: W(n + 3)
        if n == o["kt"]: late_touches()
        if n == o["k0"]: K0()
    if o["k1"] == 10:
        a_burst(a, o, 1, S_K, S_OK); vm.extend([("K", 2)] * 3 + [("K", 3)] * 3)
    endstep(a, wait_for(("K", 0)))
    first = dict(s0=wait_for(("K", 1)), s1=wait_for(("K", 2)))

    a.label("L_Aper")
    stamp(a, o, (1, S_PER, 4))
    for s in range(32):
        a.comment(f"A step {s}")
        if s == 16: stamp(a, o, (5, S_PER, 4))
        vmw = 4 if ((s - 1) >> 1) in PF_LOW + PF_HIGH else 3
        bt = []
        if s == 0:
            a.e(f"s_cmp_eq_u32 s{S_PER}, 0")
            a.branch("s_cbranch_scc1 L_A0")
            a_burst(a, o, 1, S_K, S_OK)
            a_onorm(a, a_qread)
            a.branch("s_branch L_A0j")
            a.label("L_A0")
            for ks in range(6):
                for t in a_qread(ks): a.e(t)
            a.label("L_A0j")
            vmw = min(6, first["s0"])
        elif s == 1:
            vmw = min(3, first["s1"])
        elif s == 30:
            a.e(f"s_cmp_eq_u32 s{S_PER}, 3")
            a.branch("s_cbranch_scc1 L_A30")
            a_burst(a, o, 0, S_K, S_OK)
            a.label("L_A30")
            vmw = 6
        elif s % 2 == 0:
            vmw = 6
            D = ((s >> 1) + 1) & 1
            bt = rec(a_burst, o, D, *((S_K, S_OK) if s < 14 else (S_V, S_OV)), s in (12, 28))
            if (s >> 1) in PF_LOW + PF_HIGH:
                high = (s >> 1) in PF_HIGH
                bt.append(f"s_lshl_b32 s{S_T}, s{S_PER}, 4")
                bt.append(f"s_add_u32 s{S_T}, s{S_T}, {s>>1}")
                bt.append(f"s_bitcmp1_b64 s[{S_PFM}:{S_PFM+1}], s{S_T}")
                bt.append(f"s_cselect_b32 s{S_T}, s{S_PFO}, {OOB}")
                if high: bt.append(f"s_cselect_b32 s{S_T2}, s{S_PFS}, 0")
                bt.append(f"s_mov_b32 {'exec_lo' if high else 'exec_hi'}, 0")
                bt.append(f"buffer_load_dword v{A_DUM}, v{A_PF}, {sq(S_PF)}, s{S_T} offen{pp}")
                bt.append("s_mov_b64 exec, -1")
                if high: bt.append(f"s_add_u32 s{S_PFO}, s{S_PFO}, s{S_T2}")
                vmw = 7
            if o["adma"] == 0 or s == 16:
                for t in bt: a.e(t)
                bt = []
        if s == 5:
            a.comment("the entry reads have landed: count this workgroup in (d_debug word of the group)")
            a.e(f"s_and_b32 s{S_T}, s{S_HG}, 3")
            a.e(f"s_xor_b32 s{S_T}, s{S_T}, s{S_PER}")
            a.e(f"s_or_b32 s{S_T}, s{S_T}, s{S_W}")
            a.branch("s_cbranch_scc1 L_sy1")
            a.e("s_lshl_b32 s45, s44, 3")
            a.e(f"v_mov_b32 v{A_T0}, s45")
            a.e(f"v_mov_b32 v{A_T1}, 1")
            a.e("s_mov_b64 exec, 1")
            a.e(f"buffer_atomic_add v{A_T1}, v{A_T0}, {sq(S_DBG)}, 0 offen")
            a.e("s_mov_b64 exec, -1")
            a.label("L_sy1")
        if o["pdma"] == 3 and s % 2: bt = ["s_barrier"]
        if s == 1: a_kstep(a, o, s, sum((a_owrite(i) for i in range(6)), []), pre=bt)
        elif s < 16: a_kstep(a, o, s, pre=bt)
        else: a_vstep(a, o, s - 16, pre=bt)
        if s == 30:
            a.e(f"s_cmp_eq_u32 s{S_PER}, 3")
            a.branch("s_cbranch_scc0 L_A30j")
            a.e("s_waitcnt vmcnt(0)")
            a.label("L_A30j")
        endstep(a, vmw + o["kvx"])
    a.e(f"s_add_u32 s{S_PER}, s{S_PER}, 1")
    a.e(f"s_cmp_lt_u32 s{S_PER}, 4")
    a.branch("s_cbranch_scc1 L_Aper")
    a.label("L_Aend")
    stamp(a, o, 9)
    stamp(a, o, 1, "tail")
    a_onorm(a, a_owrite)
    endstep(a)
    tail_offsets(a, 128, S_MK, S_OK, "v0", (T0, T1))
    stamp(a, o, 2, "tail")
    for p in range(4):
        if p: a.e(f"s_waitcnt vmcnt({6 if p < 3 else 0})")
        a.e("s_barrier")
        stamp(a, o, p + 3, "tail")
        for n in ([5, 6], [7, 8], [9], [])[p]: tail_tile(a, o, 128, S_MK, S_OK, n)
    a.e(f"s_cmp_lg_u32 s{S_W}, 0")
    a.branch("s_cbranch_scc1 L_red")
    a.e("s_lshl_b32 s45, s44, 3")
    a.e("v_mov_b32 v28, s45")
    spin(a, "in", f"buffer_load_dword v29, v28, {sq(S_DBG)}, 0 offen sc1", ["v_readfirstlane_b32 s41, v29", "s_cmp_ge_u32 s41, 8"])
    a.e("v_lshlrev_b32 v28, 2, v0")
    a.e(f"v_add_u32 v28, {EB}, v28")
    a.e(f"ds_write_b32 v28, v{A_FI}")
    a.e("v_mov_b32 v29, 0")
    a.e("ds_write_b32 v28, v29 offset:256")


def reduce_chunk(a, o, k, base):
    a.e(f"s_lshl_b32 s41, s{k}, 10")
    a.e(f"s_add_u32 s41, s41, {WB}")
    a.e(f"v_add_u32 v3, s41, v1")
    a.e(f"v_add_u32 v6, 40960, v3")
    for i in range(8):
        a.e(f"ds_read_b128 {v(base+4*i,4)}, v{3 if i < 4 else 6} offset:{(i&3)*10240}")
    a.e(f"s_mul_i32 s43, s{S_HG}, 10")
    a.e(f"s_add_u32 s43, s43, s{k}")
    a.e("s_and_b32 s41, s43, 1")
    a.e("s_lshl_b32 s41, s41, 5")
    a.e("s_lshr_b32 s43, s43, 1")
    a.e(f"s_lshl_b32 s42, s{S_B}, 6")
    a.e("s_add_u32 s42, s42, s41")
    a.e("s_mul_i32 s42, s42, 2560")
    a.e(f"s_mul_i32 s41, s{S_BR}, 1280")
    a.e("s_add_u32 s42, s42, s41")
    a.e("s_lshl_b32 s43, s43, 5")
    a.e("s_add_u32 s42, s42, s43")
    ac = base + 32
    for i in range(8):
        for n in range(4):
            r = base + 4 * i + n
            if i == 0:
                a.e(f"v_lshlrev_b32 v{ac+2*n}, 16, v{r}")
                a.e(f"v_and_b32 v{ac+1+2*n}, 0xffff0000, v{r}")
            else:
                a.e(f"v_lshlrev_b32 v4, 16, v{r}")
                a.e(f"v_and_b32 v5, 0xffff0000, v{r}")
                a.e(f"v_pk_add_f32 {v(ac+2*n,2)}, {v(ac+2*n,2)}, v[4:5]")
    for n in range(4): a.e(f"v_cvt_pk_bf16_f32 v{base+n}, v{ac+2*n}, v{ac+1+2*n}")
    a.e(f"buffer_store_dwordx4 {v(base,4)}, v2, {sq(S_OUT)}, s42 offen{pol(o['outpol'])}")


def gen_tail(a, o):
    a.label("L_red")
    lane_id(a, 0)
    a.e(f"s_lshl_b32 s44, s{S_BR}, 4")
    a.e(f"s_add_u32 s44, s44, s{S_B}")
    a.e("s_lshl_b32 s45, s44, 10")
    a.e(f"s_add_u32 s45, s45, {FLAGS}")
    a.e(f"s_lshl_b32 s46, s{S_HG}, 7")
    a.e("s_add_u32 s46, s46, s45")
    a.e(f"s_lshl_b32 s40, s{S_WAVE}, 2")
    a.e(f"s_add_u32 s40, s40, {EB}")
    a.e("v_mov_b32 v3, s40")
    a.e("v_and_b32 v28, 7, v0")
    a.e("v_lshlrev_b32 v29, 7, v28")
    a.e("v_lshlrev_b32 v1, 4, v0")
    a.e("v_lshlrev_b32 v28, 2, v28")
    a.e(f"s_cmp_lg_u32 s{S_WAVE}, 4")
    a.e("s_barrier")
    a.branch("s_cbranch_scc1 L_go")
    stamp(a, o, 10)
    a.e(f"v_add_u32 v{A_FO}, 1, v{A_FO}")
    a.e("s_mov_b64 exec, 0xff")
    a.e(f"buffer_store_dword v{A_FO}, v29, {sq(S_WS)}, s47 offen sc1")
    a.e("s_mov_b64 exec, -1")
    a.label("L_go")
    a.e(f"s_cmp_eq_u32 s{S_WAVE}, s{S_HG}")
    a.branch("s_cbranch_scc0 L_fetch")
    a.e(f"v_add_u32 v5, {EB}, v28")
    a.e("ds_read_b32 v4, v5")
    a.e("s_mov_b64 exec, 0xff")
    spin(a, "poll", f"buffer_load_dword v30, v28, {sq(S_WS)}, s46 offen sc1",
         ["v_cmp_ne_u32 vcc, v30, v4", "v_cndmask_b32 v6, 0, 1, vcc", "ds_write_b32 v5, v6 offset:256",
          f"s_bitset1_b32 vcc_lo, s{S_HG}", "s_cmp_eq_u32 vcc_lo, 0xff"], o["nap"])
    a.e("s_mov_b64 exec, -1")
    a.branch("s_branch L_staged")
    a.label("L_fetch")
    a.e("s_lshl_b32 s45, s44, 3")
    a.e(f"s_add_u32 s45, s45, s{S_WAVE}")
    a.e("s_mul_i32 s45, s45, 81920")
    a.e(f"s_mul_i32 s43, s{S_HG}, 10240")
    a.e("s_add_u32 s45, s45, s43")
    a.e(f"s_mul_i32 s43, s{S_WAVE}, 10240")
    a.e(f"s_add_u32 s43, s43, {WB}")
    spin(a, "seen", "ds_read_b32 v4, v3 offset:256", ["v_readfirstlane_b32 s41, v4", "s_cmp_lg_u32 s41, 0"], 1, 0x400000)
    a.e("v_add_u32 v3, s43, v1")
    for k in range(10):
        a.e(f"buffer_load_dwordx4 {v(8+4*k,4)}, v1, {sq(S_WS)}, s45 offen offset:{(k&3)*1024}{pol(o['ldpol'])}")
        if k & 3 == 3: a.e("s_add_u32 s45, s45, 4096")
    for k in range(10):
        a.e(f"s_waitcnt vmcnt({9-k})")
        a.e(f"ds_write_b128 v3, {v(8+4*k,4)} offset:{k*1024}")
    a.label("L_staged")
    a.e("v_and_b32 v2, 31, v0")
    a.e("v_mul_u32_u24 v2, 2560, v2")
    a.e("v_lshrrev_b32 v3, 5, v0")
    a.e("v_lshl_add_u32 v2, v3, 4, v2")
    a.e(f"s_mov_b32 s45, s{S_WAVE}")
    a.e("s_barrier")
    stamp(a, o, 11)
    reduce_chunk(a, o, 45, 8)
    a.e(f"s_cmp_lt_u32 s{S_WAVE}, 2")
    a.branch("s_cbranch_scc0 L_fin")
    a.e("s_add_u32 s45, s45, 8")
    reduce_chunk(a, o, 45, 48)


def gen_main(a, o):
    a.raw(f".globl {KN}\n.p2align 8\n.type {KN},@function\n{KN}:")
    a.e(f"s_cmp_ge_u32 s2, {o['nact']}")
    a.e("s_cbranch_scc1 L_end")
    if o["dbgt"]: a.e("s_memrealtime s[90:91]")
    if o["stamps"]:
        a.e("s_memrealtime s[90:91]")
        a.e("s_memtime s[86:87]")
    a.e("s_load_dwordx2 s[34:35], s[0:1], 96")
    a.e("s_load_dwordx4 s[64:67], s[0:1], 80")
    a.e("s_and_b32 s3, s2, 7")
    a.e("s_lshr_b32 s5, s3, 2")
    a.e("s_mul_i32 s32, s5, 40")
    a.e("s_add_u32 s0, s0, s32")
    a.e("s_addc_u32 s1, s1, 0")
    a.e("s_load_dwordx4 s[44:47], s[0:1], 24")
    a.e("s_load_dwordx2 s[36:37], s[0:1], 0")
    a.e("s_load_dwordx4 s[40:43], s[0:1], 8")
    a.e("v_lshrrev_b32 v1, 6, v0")
    a.e("v_and_b32 v0, 63, v0")
    a.e("v_readfirstlane_b32 s32, v1")
    a.e("s_lshr_b32 s4, s2, 3")
    a.e("s_and_b32 s7, s4, 15")
    a.e("s_lshr_b32 s4, s4, 4")
    a.e("s_and_b32 s6, s3, 3")
    a.e("s_lshl_b32 s6, s6, 1")
    a.e("s_add_u32 s6, s6, s4")
    if o["stamps"] >= 2:
        a.e("s_waitcnt lgkmcnt(0)")
        for i in range(16): a.e(f"s_mov_b32 s{70+i}, s90")
        stamp(a, o, 1, "start")
    entry_touches(a, o)
    stamp(a, o, 9, "start")
    a.e("s_and_b32 s33, s32, 3")
    a.e("s_cmp_lt_u32 s32, 4")
    a.branch("s_cbranch_scc1 L_P")
    gen_A(a, o)
    gen_tail(a, o)
    a.label("L_fin")
    if o["dbgt"] == 2:
        a.comment("diagnostic build: doubles the in-kernel span so that launch overhead and span can be separated")
        a.e("s_memrealtime s[92:93]")
        a.e("s_waitcnt lgkmcnt(0)")
        a.e("s_sub_u32 s94, s92, s90")
        a.e("s_min_u32 s94, s94, 20000")
        a.label("L_dbl")
        a.e("s_memrealtime s[90:91]")
        a.e("s_waitcnt lgkmcnt(0)")
        a.e("s_sub_u32 s95, s90, s92")
        a.e("s_cmp_lt_u32 s95, s94")
        a.branch("s_cbranch_scc1 L_dbl")
    if o["dbgt"] == 1:
        a.e("s_memrealtime s[92:93]")
        a.e("s_waitcnt lgkmcnt(0)")
        a.e("s_sub_u32 s92, s92, s90")
        a.e("s_lshl_b32 s40, s2, 3"); a.e("s_add_u32 s40, s40, 4")
        a.e("s_cmp_eq_u32 s32, 0"); a.e(f"s_cselect_b32 s40, s40, {OOB}")
        a.e("v_mov_b32 v4, s92"); a.e("v_mov_b32 v1, 0")
        a.e("s_mov_b64 exec, 1")
        a.e(f"buffer_store_dword v4, v1, {sq(S_DBG)}, s40 offen")
    if o["stamps"]:
        a.e("s_memrealtime s[92:93]")
        a.e("s_memtime s[88:89]")
        a.e("s_waitcnt lgkmcnt(0)")
        a.e("s_sub_u32 s85, s88, s86")
        a.e("s_getreg_b32 s84, hwreg(HW_REG_XCC_ID, 0, 4)")
        a.e("s_getreg_b32 s83, hwreg(HW_REG_HW_ID)")
        a.e("v_mov_b32 v4, s90"); a.e("v_mov_b32 v5, s91"); a.e("v_mov_b32 v6, s92"); a.e("v_mov_b32 v7, s93")
        a.e("s_lshl_b32 s40, s2, 3"); a.e("s_add_u32 s40, s40, s32"); a.e("s_lshl_b32 s40, s40, 4")
        a.e("s_add_u32 s40, s40, 0x2000000")
        a.e("v_mov_b32 v1, 0")
        a.e(f"buffer_store_dwordx4 v[4:7], v1, {sq(S_WS)}, s40 offen")
        if o["stamps"] >= 2:
            a.e("s_lshl_b32 s40, s2, 3"); a.e("s_add_u32 s40, s40, s32"); a.e("s_lshl_b32 s40, s40, 6")
            a.e("s_add_u32 s40, s40, 0x2100000")
            for k in range(4):
                for i in range(4): a.e(f"v_mov_b32 v{8+4*k+i}, s{70+4*k+i}")
                a.e(f"buffer_store_dwordx4 v[{8+4*k}:{11+4*k}], v1, {sq(S_WS)}, s40 offen offset:{16*k}")
    a.e("s_endpgm")
    gen_P(a, o)
    a.label("L_end")
    a.e("s_endpgm")


def droppings(t, d):
    keep = []; cnt = cnt2 = cnt3 = 0; role = ""
    for l in t.split("\n"):
        if l.startswith(("L_PQa", "L_PO:", "L_PQb")): role = "P"
        if l.startswith(("L_Ptail", "L_Aend", "L_Pcyc")): role = ""
        if l.startswith("L_Aper"): role = "A"
        if l.startswith("L_Ppro"): role = "p"
        if l.startswith("L_Apro"): role = "a"
        if "x" in d and role == "p" and l.strip().startswith(("v_", "ds_")): continue
        if "y" in d and role == "a" and l.strip().startswith("buffer_load_dwordx4") and "s[8:11]" not in l: continue
        if "z" in d and role == "a" and l.strip().startswith("buffer_load_dwordx4") and "s[8:11]" in l: continue
        x = l.strip()
        if "k" in d and role == "A" and x.startswith("buffer_load"): continue
        if "w" in d and role == "P" and x.startswith("buffer_load"): continue
        if "a" in d and role == "A" and x.startswith(("v_", "ds_")) and not x.startswith("v_mov_b32"): continue
        if "p" in d and role == "P" and x.startswith(("v_", "ds_")): continue
        if "m" in d and role in ("A", "P") and x.startswith("v_mfma"): continue
        if "r" in d and role in ("A", "P") and x.startswith("ds_read"): continue
        if "h" in d and role == "A" and x.startswith("ds_read"):
            cnt += 1
            if (cnt // (2 if "tr" in x else 1)) % 2: continue
        if "g" in d and role == "P" and x.startswith("ds_read_b64_tr"):
            cnt2 += 1
            if (cnt2 // 2) % 2: continue
        if "T" in d and x.startswith("buffer_store_dwordx4") and "s[28:31]" in x and "sc1" in x: continue
        if "L" in d and x.startswith("buffer_load_dwordx4") and "s[28:31]" in x: continue
        if "v" in d and role == "A" and x.startswith(("v_exp", "v_fma", "v_add_f32", "v_max3")): continue
        if "A" in d and role == "A" and x.startswith("v_mfma"): continue
        if "P" in d and role == "P" and x.startswith("v_mfma"): continue
        if ("s" in d or "S" in d) and role == "P" and x.startswith("v_mfma_f32_32x32x16"):
            m = re.match(r"v_mfma_f32_32x32x16_bf16 v\[(\d+):\d+\], (v\[\d+:\d+\]), (v\[\d+:\d+\]), (.*)", x)
            cnt3 += 1
            for k in range(2):
                b = int(m.group(1)) + 4 * k + 8 * (cnt3 & 1)
                bo = m.group(3) if (k == 0 or "S" not in d) else {"v[16:19]": "v[20:23]", "v[20:23]": "v[16:19]"}[m.group(3)]
                keep.append(f"    v_mfma_f32_16x16x32_bf16 v[{b}:{b+3}], {m.group(2)}, {bo}, v[{b}:{b+3}]")
            continue
        keep.append(l)
    return "\n".join(keep)


def gen(**kw):
    o = dict(DEFAULTS); o.update(kw)
    a = Asm()
    if o["stamps"]: a.raw(f"; stamps={8*o['nact']} @0x2000000")
    a.raw(f"; @launch grid=(256,1,1) block=(512,1,1) lds={LDS}")
    a.raw('.amdgcn_target "amdgcn-amd-amdhsa--gfx950"\n.text')
    gen_main(a, o)
    a.raw(f""".section .rodata,"a"
.p2align 6
.amdhsa_kernel {KN}
  .amdhsa_next_free_vgpr 256
  .amdhsa_next_free_sgpr 102
  .amdhsa_accum_offset 256
  .amdhsa_group_segment_fixed_size 0
  .amdhsa_kernarg_size 104
  .amdhsa_user_sgpr_count 2
  .amdhsa_user_sgpr_kernarg_segment_ptr 1
  .amdhsa_system_sgpr_workgroup_id_x 1
.end_amdhsa_kernel""")
    t = a.text()
    return droppings(t, o["drop"]) if o["drop"] else t


if __name__ == "__main__":
    out = sys.argv[1]
    kw = {}
    for x in sys.argv[2:]:
        k, val = x.split("=")
        kw[k] = int(val) if val.lstrip("-").isdigit() else val.replace("+", " ")
    open(out, "w").write(gen(**kw))
```

```python
import re

REG = re.compile(r"^(-|\|)?([vsa])(\d+)\|?$")
RNG = re.compile(r"^(-)?([vsa])\[(\d+):(\d+)\]$")
TRANS = ("v_exp_f32", "v_log_f32", "v_rcp_f32", "v_rsq_f32", "v_sqrt_f32")
NO_DST_S = ("s_cmp", "s_waitcnt", "s_barrier", "s_branch", "s_nop", "s_cbranch", "s_setprio", "s_endpgm",
            "s_sleep", "s_bitcmp", "s_setpc")


def regs_of(op):
    op = op.strip()
    m = REG.match(op)
    if m:
        return {(m.group(2), int(m.group(3)))}
    m = RNG.match(op)
    if m:
        return {(m.group(2), i) for i in range(int(m.group(3)), int(m.group(4)) + 1)}
    if op in ("vcc", "vcc_lo", "vcc_hi"):
        return {("s", "vcc")}
    if op == "m0":
        return {("s", "m0")}
    if op in ("exec", "exec_lo", "exec_hi"):
        return {("s", "exec")}
    return set()


class Ins:
    def __init__(self, text):
        self.text = text
        parts = text.split(None, 1)
        self.op = parts[0]
        rest = parts[1] if len(parts) > 1 else ""
        ops = [o.strip() for o in re.split(r",(?![^\[]*\])", rest)] if rest else []
        if ops:
            last = ops[-1].split()
            ops[-1] = last[0] if last else ""
            self.mods = last[1:]
        else:
            self.mods = []
        self.ops = ops
        R = [regs_of(o) for o in ops]
        op = self.op
        self.w = set(); self.r = set(); self.kind = "other"; self.srcc = set(); self.ab = set(); self.data = set()
        if op.startswith("v_mfma"):
            self.kind = "mfma"; self.w = R[0]; self.ab = R[1] | R[2]; self.srcc = R[3]; self.r = self.ab | self.srcc
            self.passes = 8 if "32x32" in op else 4
        elif op.startswith("v_permlane"):
            self.kind = "valu"; self.w = R[0] | R[1]; self.r = R[0] | R[1]
        elif op.startswith("v_"):
            self.kind = "valu"; self.w = R[0]
            srcs = R[1:]
            if op.startswith(("v_add_co", "v_sub_co", "v_addc_co")):
                self.w = R[0] | R[1]; srcs = R[2:]
            for x in srcs: self.r |= x
            if op.startswith("v_fmac"): self.r |= R[0]
        elif op.startswith("ds_read"):
            self.kind = "ds"; self.w = R[0]; self.r = R[1]
        elif op.startswith("ds_write"):
            self.kind = "ds"; self.r = R[0] | R[1]
        elif op.startswith(("buffer_load", "global_load")):
            self.kind = "vmem"
            if "lds" in self.mods:
                for x in R: self.r |= x
                self.r |= {("s", "m0")}
            else:
                self.w = R[0]
                for x in R[1:]: self.r |= x
        elif op.startswith(("buffer_store", "global_store", "buffer_atomic", "global_atomic")):
            self.kind = "vmem"
            for x in R: self.r |= x
            if op.startswith("buffer_store") and ("x4" in op or "x3" in op): self.data = R[0]
            if op.startswith("buffer_atomic") and "sc0" in self.mods: self.w = R[0]
        elif op.startswith("s_"):
            self.kind = "salu"
            if op.startswith(NO_DST_S):
                for x in R: self.r |= x
            else:
                self.w = R[0] if R else set()
                for x in R[1:]: self.r |= x
                if op.startswith("s_bitset"): self.r |= self.w
        self.states = 1
        if op == "s_nop": self.states = int(ops[0]) + 1


def need(p, c):
    n = 0
    vw = {x for x in p.w if x[0] in "va"}
    sw = {x for x in p.w if x[0] == "s"}
    if p.kind == "valu":
        if c.kind == "mfma" and vw & c.r: n = max(n, 2)
        if c.op.startswith("v_permlane") and vw & c.r: n = max(n, 2)
        if "dpp" in c.op and vw & c.r: n = max(n, 2)
        if c.op.startswith(("v_readfirstlane", "v_readlane")) and vw & c.r: n = max(n, 1)
        if p.op.startswith(TRANS) and c.kind == "valu" and vw & c.r: n = max(n, 1)
        if sw & c.r:
            if c.kind in ("valu", "mfma"): n = max(n, 2)
            if c.kind == "vmem": n = max(n, 5)
            if c.kind == "salu": n = max(n, 2)
    if p.kind == "mfma":
        long_ = 12 if p.passes == 8 else 8
        if c.kind == "mfma":
            if vw & c.ab: n = max(n, long_)
            if vw & (c.srcc | c.w):
                if not (c.srcc == vw and c.w == vw and c.op == p.op): n = max(n, long_ - 2)
        elif vw & (c.r | c.w): n = max(n, long_)
        if c.kind == "valu" and p.srcc & c.w: n = max(n, 7 if p.passes == 8 else 3)
    if p.kind == "salu" and ("s", "m0") in sw and c.kind == "vmem" and ("s", "m0") in c.r: n = max(n, 1)
    if p.data and p.data & c.w: n = max(n, 2)
    return n


def worst(p):
    if p.kind == "mfma": return 12 if p.passes == 8 else 8
    if p.kind == "valu":
        return 5 if any(x[0] == "s" for x in p.w) else 2
    if p.kind == "salu" and ("s", "m0") in p.w: return 1
    if p.data: return 2
    return 0


class Asm:
    def __init__(self):
        self.lines = []
        self.hist = []
        self.ds = []
        self.nops = 0
        self.count = 0

    def raw(self, text):
        self.lines.append(text)

    def comment(self, text):
        self.lines.append("    ; " + text)

    def _push(self, ins):
        self.lines.append("    " + ins.text)
        self.count += 1
        self.hist = [(p, a + ins.states) for p, a in self.hist if a + ins.states < 13]
        if worst(ins): self.hist.append((ins, 0))

    def _nop(self, n):
        while n > 0:
            k = min(n, 16)
            self._push(Ins(f"s_nop {k-1}")); self.nops += 1
            n -= k

    def e(self, text):
        if text.startswith("need "):
            touched = regs_of(text[5:])
            last = max([i for i, d in enumerate(self.ds) if d & touched], default=-1)
            if last >= 0: self.e(f"s_waitcnt lgkmcnt({min(len(self.ds) - 1 - last, 15)})")
            return
        ins = Ins(text)
        if ins.op == "s_waitcnt":
            m = re.search(r"lgkmcnt\((\d+)\)", text)
            if m:
                k = int(m.group(1)); self.ds = self.ds[len(self.ds) - k:] if k else []
        else:
            touched = ins.r | ins.w
            last = -1
            for i, d in enumerate(self.ds):
                if d & touched: last = i
            if last >= 0:
                k = min(len(self.ds) - 1 - last, 15)
                self._push(Ins(f"s_waitcnt lgkmcnt({k})"))
                self.ds = self.ds[len(self.ds) - k:] if k else []
        n = 0
        for p, a in self.hist:
            n = max(n, need(p, ins) - a)
        if n > 0: self._nop(n)
        self._push(ins)
        if ins.kind == "ds": self.ds.append(set(ins.w))

    def flush(self):
        if self.ds: self.e("s_waitcnt lgkmcnt(0)")
        n = 0
        for p, a in self.hist: n = max(n, worst(p) - a)
        if n > 0: self._nop(n)
        self.hist = []

    def label(self, name):
        self.flush()
        self.lines.append(name + ":")

    def branch(self, text):
        self.flush()
        self.e(text)

    def text(self):
        return "\n".join(self.lines) + "\n"
```

```python
import sys, math, struct, re
from asmlib import Asm

NAME = "concat_heads__gqa_block_cached__gqa_block_cached__near_ridge"
KN = NAME + "_kernel"
WB, XB, EB, LDS = 49152, 131072, 155648, 163840
KV_BYTES, W_BYTES, X_BYTES, OUT_BYTES, WS_BYTES = 100663296, 7864320, 1310720, 2621440, 64 << 20
OOB = 0x40000000
FLAGS = 0x1800000
CSCALE = struct.unpack("<I", struct.pack("<f", math.log2(math.e) / math.sqrt(192.0)))[0]

DEFAULTS = dict(kvpol="nt", wpol="", pfpol="", xpol="", stpol="sc1", ldpol="sc1", outpol="", stamps=0, prio=0,
                adepth=8, pq=12, po=9, pdma=2, drop="", nact=256, k0=6, k1=10, k0b=-1, k1b=7, kbit=3, kt=7, kp=-1, kpb=-1, kpn=48, prod=12, codepf=0, pfa=5, pfo=9, pfb=4, kvx=0, warm=65536, xbar=11, vspan=9, adma=0, sprio=0, nap=4, tst=1, rot=0, kord=0, dbgt=0, tk0=0, tkp=0, tkg=2, ows=3, owf=1, t16=2, vweave=0, tx=1, dot=1, tq=1)

S_HALF, S_BR, S_HG, S_B = 4, 5, 6, 7
S_K, S_V, S_WQ, S_WO, S_XI, S_WS, S_OUT = 8, 12, 16, 20, 24, 28, 64
S_WAVE, S_W, S_DBG, S_T, S_T2 = 32, 33, 36, 57, 59


def v(a, n=1):
    return f"v{a}" if n == 1 else f"v[{a}:{a+n-1}]"


def sq(a):
    return f"s[{a}:{a+3}]"


def pol(s):
    return (" " + s) if s else ""


class Rec:
    def __init__(self): self.t = []
    def e(self, x): self.t.append(x)


def rec(fn, *args):
    r = Rec(); fn(r, *args); return r.t


def srd(a, base, src, size):
    if src != base: a.e(f"s_mov_b32 s{base}, s{src}")
    a.e(f"s_and_b32 s{base+1}, s{src+1}, 0xffff")
    a.e(f"s_mov_b32 s{base+2}, {size}")
    a.e(f"s_mov_b32 s{base+3}, 0x20000")


def entry_touches(a, o):
    pp = pol(o["pfpol"])
    a.e(f"s_lshl_b32 s{S_T}, s{S_WAVE}, 4")
    a.e(f"v_add_u32 v2, s{S_T}, v0")
    a.e("v_mul_u32_u24 v3, 21846, v2")
    a.e("v_mul_u32_u24 v6, 1280, v0")
    a.e("v_lshrrev_b32 v3, 16, v3")
    a.e(f"v_mul_u32_u24 v7, {o['warm']}, v0")
    a.e("v_mul_u32_u24 v4, 3, v3")
    a.e("v_mul_u32_u24 v3, 12288, v3")
    a.e("v_sub_u32 v4, v2, v4")
    a.e(f"s_mul_i32 s48, s{S_B}, {40*12288}")
    a.e("v_lshl_add_u32 v3, v4, 7, v3")
    a.e(f"s_mul_i32 s{S_T}, s{S_HG}, 1536")
    a.e(f"s_add_u32 s48, s48, s{S_T}")
    a.e(f"s_cmp_eq_u32 s{S_WAVE}, 7")
    a.e("s_cselect_b32 s49, 8, 16")
    a.e("s_bfm_b32 s49, s49, 0")
    a.e(f"s_mul_i32 s50, s{S_B}, 81920")
    a.e(f"s_lshl_b32 s51, s{S_B}, 3"); a.e(f"s_add_u32 s51, s51, s{S_HG}")
    a.e(f"s_mul_i32 s51, s51, 786432")
    a.e(f"s_cmp_eq_u32 s{S_WAVE}, 0"); a.e(f"s_cselect_b32 s50, s50, {OOB}")
    a.e(f"s_cmp_eq_u32 s{S_WAVE}, 1"); a.e(f"s_cselect_b32 s52, s51, {OOB}")
    a.e(f"s_cmp_eq_u32 s{S_WAVE}, 2"); a.e(f"s_cselect_b32 s53, s51, {OOB}")
    a.e("s_mov_b32 exec_hi, 0")
    a.e("s_mov_b32 exec_lo, s49")
    a.e("s_waitcnt lgkmcnt(0)")
    srd(a, S_WQ, 44, W_BYTES)
    a.e(f"buffer_load_dword v255, v3, {sq(S_WQ)}, s48 offen{pp}")
    a.e("s_mov_b64 exec, -1")
    srd(a, S_XI, 36, X_BYTES)
    a.e(f"buffer_load_dword v255, v6, {sq(S_XI)}, s50 offen{pp}")
    a.e(f"s_mov_b64 exec, {(1 << (786432 // o['warm'])) - 1}")
    srd(a, S_K, 40, KV_BYTES)
    a.e(f"buffer_load_dword v255, v7, {sq(S_K)}, s52 offen nt")
    srd(a, S_V, 42, KV_BYTES)
    a.e(f"buffer_load_dword v255, v7, {sq(S_V)}, s53 offen nt")
    a.e("s_mov_b64 exec, -1")
    srd(a, S_WO, 46, W_BYTES); srd(a, S_WS, 34, WS_BYTES)
    srd(a, S_DBG, 66, 256)
    srd(a, S_OUT, 64, OUT_BYTES)


def pipe(a, reads, mfmas, fill, depth, span=None, skip=0):
    n = len(mfmas)
    span = span or n
    for i in range(min(depth, n)):
        for t in reads[i]: a.e(t)
    done = 0
    for i in range(n):
        for t in ([mfmas[i]] if isinstance(mfmas[i], str) else mfmas[i]): a.e(t)
        if i + depth < n:
            for t in reads[i + depth]: a.e(t)
        upto = len(fill) * max(min(i + 1, span) - skip, 0) // (span - skip)
        for t in fill[done:upto]: a.e(t)
        done = upto


def interleave(a, chains):
    for i in range(max(map(len, chains))):
        for c in chains:
            if i < len(c): a.e(c[i])


def div24(a, dst_row, dst_rem, src, tmp):
    a.e(f"v_mul_u32_u24 {tmp}, 2731, {src}")
    a.e(f"v_lshrrev_b32 {dst_row}, 16, {tmp}")
    a.e(f"v_mul_u32_u24 {tmp}, 24, {dst_row}")
    a.e(f"v_sub_u32 {dst_rem}, {src}, {tmp}")


def stamp(a, o, k, tag=''):
    if {2: "", 3: "pro", 4: "tail", 5: "start", 6: "tick", 7: "s1"}.get(o["stamps"]) != tag: return
    a.e("s_waitcnt lgkmcnt(0)")
    a.e("s_memrealtime s[94:95]")
    a.e("s_waitcnt lgkmcnt(0)")
    if isinstance(k, int): a.e(f"s_mov_b32 s{70+k}, s94")
    else:
        base, reg, n = k[:3]
        for i in range(k[3] if len(k) > 3 else 0, n):
            a.e(f"s_cmp_eq_u32 s{reg}, {i}")
            a.e(f"s_cselect_b32 s{70+base+i}, s94, s{70+base+i}")


def endstep(a, vm=None):
    a.e("s_waitcnt lgkmcnt(0)" if vm is None else f"s_waitcnt vmcnt({vm}) lgkmcnt(0)")
    a.e("s_barrier")


def idle(a, tag, n):
    if n <= 2:
        for _ in range(n): a.e("s_barrier")
        return
    a.e(f"s_mov_b32 s{S_T}, {n}")
    a.label(f"L_{tag}")
    a.e("s_barrier")
    a.e(f"s_sub_u32 s{S_T}, s{S_T}, 1")
    a.e(f"s_cmp_lg_u32 s{S_T}, 0")
    a.branch(f"s_cbranch_scc1 L_{tag}")


def idle_steps(a, o, tag, r0, r1):
    n = sum(1 + (r == 17) + (o["pdma"] == 3 and r % 2 == 0) for r in range(r0, r1))
    idle(a, tag, n)


def lane_id(a, r):
    a.e(f"v_mbcnt_lo_u32_b32 v{r}, -1, 0")
    a.e(f"v_mbcnt_hi_u32_b32 v{r}, -1, v{r}")


def dma_offsets_q(a, vq, vx, t):
    chains = []
    for j in range(3):
        r = Rec()
        T0, T1, T2, T3 = (f"v{t+4*j+k}" for k in range(4))
        r.e(f"v_add_u32 {T0}, {64*j}, v0")
        div24(r, T1, T2, T0, T3)
        r.e(f"v_and_or_b32 {T3}, {T1}, 2, s{S_T}")
        r.e(f"v_xor_b32 {T2}, {T2}, {T3}")
        r.e(f"v_mul_u32_u24 {T1}, 12288, {T1}")
        r.e(f"v_lshl_add_u32 {T1}, {T2}, 4, {T1}")
        r.e(f"v_subrev_u32 v{vq+j}, {1024*j}, {T1}")
        chains.append(r.t)
    T0, T1 = f"v{t+12}", f"v{t+13}"
    a.e(f"s_and_b32 s{S_T}, s{S_W}, 1")
    a.e(f"s_lshl_b32 s{S_T}, s{S_T}, 2")
    chains.append([f"v_lshrrev_b32 {T0}, 3, v0", f"v_and_b32 {T0}, 6, {T0}", f"v_and_b32 {T1}, 7, v0",
                   f"v_xor_b32 {T0}, {T0}, {T1}", f"v_lshrrev_b32 {T1}, 3, v0", f"v_mul_u32_u24 {T1}, 1280, {T1}",
                   f"v_lshl_add_u32 v{vx}, {T0}, 4, {T1}"])
    interleave(a, chains)


def wq_share(a, dst, T0, T1, T2):
    a.e(f"s_and_b32 s{S_T}, s{S_W}, 1")
    a.e(f"s_lshl_b32 s{S_T}, s{S_T}, 6")
    a.e(f"v_add_u32 {T0}, s{S_T}, v0")
    a.e(f"v_mul_u32_u24 {T1}, 21846, {T0}")
    a.e(f"v_lshrrev_b32 {T1}, 16, {T1}")
    a.e(f"v_mul_u32_u24 {T2}, 3, {T1}")
    a.e(f"v_sub_u32 {T2}, {T0}, {T2}")
    a.e(f"v_mul_u32_u24 {T1}, 12288, {T1}")
    a.e(f"v_lshl_add_u32 {dst}, {T2}, 7, {T1}")


def scalars_q(a, mq, mx, oq, ox, head):
    a.e(f"s_mul_i32 s{mq}, s{S_W}, 3072")
    a.e(f"s_lshl_b32 s{mx}, s{S_W}, 10")
    a.e(f"s_mul_i32 s{oq}, s{S_HG}, 1536")
    a.e(f"s_mul_i32 s{S_T}, s{S_W}, {8*12288}")
    a.e(f"s_add_u32 s{oq}, s{oq}, s{S_T}")
    if head: a.e(f"s_add_u32 s{oq}, s{oq}, {384*head}")
    a.e(f"s_mul_i32 s{ox}, s{S_B}, 81920")
    a.e(f"s_mul_i32 s{S_T}, s{S_W}, {8*1280}")
    a.e(f"s_add_u32 s{ox}, s{ox}, s{S_T}")


def burst_q(a, o, R, la, lx, lb):
    vq, vx, mq, mx, oq, ox = R
    wp, xp = pol(o["wpol"]), pol(o["xpol"])
    a.e(f"s_add_u32 m0, s{mq}, {la}")
    a.e(f"s_add_u32 s{S_T}, s{ox}, {32*1280}")
    for j in range(3):
        a.e(f"buffer_load_dwordx4 v{vq+j}, {sq(S_WQ)}, s{oq} offen offset:{1024*j}{wp} lds")
    a.e(f"s_add_u32 m0, s{mx}, {lx}")
    a.e(f"s_add_u32 s{oq}, s{oq}, {32*12288}")
    a.e(f"buffer_load_dwordx4 v{vx}, {sq(S_XI)}, s{ox} offen{xp} lds")
    a.e(f"s_add_u32 m0, s{mx}, {lx+4096}")
    a.e(f"s_add_u32 s{ox}, s{ox}, 128")
    a.e(f"buffer_load_dwordx4 v{vx}, {sq(S_XI)}, s{S_T} offen{xp} lds")
    a.e(f"s_add_u32 m0, s{mq}, {lb}")
    a.e("s_nop 0")
    for j in range(3):
        a.e(f"buffer_load_dwordx4 v{vq+j}, {sq(S_WQ)}, s{oq} offen offset:{1024*j}{wp} lds")
    a.e(f"s_add_u32 s{oq}, s{oq}, {32*12288}")


def tail_slot(n):
    k = n % 5
    return WB + k * 24576 if k < 3 else (k - 3) * 24576


def tail_offsets(a, vt, mt, ot, lane, T):
    T0, T1 = T
    a.e(f"v_lshrrev_b32 {T0}, 3, {lane}")
    a.e(f"v_and_b32 {T0}, 2, {T0}")
    a.e(f"v_and_b32 {T1}, 7, {lane}")
    a.e(f"v_xor_b32 {T0}, {T0}, {T1}")
    a.e(f"v_lshrrev_b32 {T1}, 3, {lane}")
    a.e(f"v_mul_u32_u24 {T1}, 1280, {T1}")
    a.e(f"v_lshl_add_u32 v{vt}, {T0}, 4, {T1}")
    a.e(f"v_xor_b32 v{vt+1}, 64, v{vt}")
    a.e(f"s_mul_i32 s{mt}, s{S_W}, 6144")
    a.e(f"s_mul_i32 s{ot}, s{S_HG}, {4*245760}")
    a.e(f"s_mul_i32 s{S_T2}, s{S_W}, {48*1280}")
    a.e(f"s_add_u32 s{ot}, s{ot}, s{S_T2}")
    a.e(f"s_add_u32 s{ot}, s{ot}, {3*245760}")


def tail_tile(a, o, vt, mt, ot, n):
    for j in range(6):
        a.e(f"s_add_u32 m0, s{mt}, {tail_slot(n) + 1024*j}")
        a.e(f"s_add_u32 s{S_T2}, s{ot}, {128*n + 8*1280*j}")
        a.e(f"buffer_load_dwordx4 v{vt+(j&1)}, {sq(S_WO)}, s{S_T2} offen{pol(o['wpol'])} lds")


PRO_W, PRO_X = 24576, 122880


PY, PQ, PFA, PFB = 96, 48, 36, 20
P_T0, P_VQ, P_VX, P_VO, P_AQ, P_AW, P_AX, P_AO, P_T1, P_QW, P_DUM = 0, 1, 4, 5, 10, 13, 15, 16, 17, 18, 19
S_C, S_MQ, S_MX, S_MO, S_OQ, S_OX, S_OO, S_P, S_OWN = 50, 51, 52, 53, 54, 55, 56, 58, 49
PR = (P_VQ, P_VX, S_MQ, S_MX, S_OQ, S_OX)


def p_burst_q(a, o, D):
    b = WB + D * 40960
    burst_q(a, o, PR, b, b + 32768, b + 20480)
    return 8


def p_burst_o(a, o, D):
    wp = pol(o["wpol"])
    for h in range(2):
        b = WB + D * 40960 + h * 20480
        a.e(f"s_add_u32 m0, s{S_MO}, {b}")
        a.e(f"s_add_u32 s{S_T}, s{S_OO}, 4096")
        for j in range(4):
            a.e(f"buffer_load_dwordx4 v{P_VO+j}, {sq(S_WO)}, s{S_OO} offen offset:{1024*j}{wp} lds")
        a.e(f"s_add_u32 m0, s{S_MO}, {b+4096}")
        a.e(f"s_add_u32 s{S_OO}, s{S_OO}, 20480")
        a.e(f"buffer_load_dwordx4 v{P_VO+4}, {sq(S_WO)}, s{S_T} offen{wp} lds")
    return 10


def p_toggle(a, regs, D):
    for r in regs:
        a.e(f"v_add_u32 v{r}, 40960, v{r}" if D == 0 else f"v_subrev_u32 v{r}, 40960, v{r}")


def tr_pair(f, addr, off, delta):
    return [f"ds_read_b64_tr_b16 {v(f,2)}, v{addr} offset:{off}", f"ds_read_b64_tr_b16 {v(f+2,2)}, v{addr} offset:{off+delta}"]


def mfma16(acc, fa, fb, zero=False):
    return f"v_mfma_f32_16x16x32_bf16 {v(acc,4)}, {v(fa,4)}, {v(fb,4)}, {'0' if zero else v(acc,4)}"


def quad(reads, mf, rd, acc, f, fb, zero=False):
    for qs in range(4):
        reads.append(rd if qs == 0 else [])
        mf.append(mfma16(acc + 4 * qs, f, fb + 4 * qs, zero))


def p_qstep(a, o, qs, fill=()):
    h = qs & 1
    reads, mf = [], []
    for i in range(3):
        quad(reads, mf, tr_pair(PFA + 4 * i, P_AQ + i, h * 20480, 1536), PQ + 16 * i, PFA + 4 * i, PFB, qs == 0)
    ax = P_AX
    if h:
        a.e(f"v_xor_b32 v{P_T0}, 64, v{P_AX}"); ax = P_T0
    xr = [f"ds_read_b128 {v(PFB+4*k,4)}, v{ax} offset:{2048*k}" for k in range(4)]
    reads[0] = xr[:1] + reads[0] + xr[1:]
    if qs == 5: mf[o["xbar"]] = [mf[o["xbar"]], "s_barrier"]
    pipe(a, reads, mf, list(fill), o["pq"])
    if h: p_toggle(a, [P_AQ, P_AQ + 1, P_AQ + 2, P_AX], (qs >> 1) & 1)


def p_oreads(a, dst, tau, tmp):
    ao = P_AO
    if tau & 1:
        a.e(f"v_xor_b32 v{tmp}, 64, v{P_AO}"); ao = tmp
    return [f"ds_read_b128 {v(dst+4*k,4)}, v{ao} offset:{6144*k + (tau>>1)*128}" for k in range(4)]


def p_ostep(a, o, s, fill=()):
    h = s & 1
    reads, mf = [], []
    for i in range(5):
        T = 5 * h + i
        f = PFA + 4 * (i % 3)
        quad(reads, mf, tr_pair(f, P_AW + (T & 1), (T >> 1) * 256, 5120), PY + 16 * T, f, PFB)
    if not h:
        xr = p_oreads(a, PFB, s >> 1, P_T0)
        reads[0] = xr[:1] + reads[0] + xr[1:]
    pipe(a, reads, mf, list(fill), o["po"])
    if h: p_toggle(a, [P_AW, P_AW + 1], (s >> 1) & 1)


def p_even(a, o, step, idx, burst, D):
    r = Rec(); n = burst(r, o, D)
    if o["pdma"] == 1:
        for x in r.t: a.e(x)
        step(a, o, idx)
    elif o["pdma"] == 2: step(a, o, idx, r.t)
    else:
        step(a, o, idx)
        if o["pdma"] == 3: a.e("s_barrier")
        for x in r.t: a.e(x)
    endstep(a, n)


def p_choice(a, o, tag, cond, first, second):
    if o["pdma"] == 3: a.e("s_barrier")
    if tag == "Pa": stamp(a, o, (4 - 2, S_C, 3, 2), "s1")
    a.e(cond)
    a.branch(f"s_cbranch_scc1 L_{tag}_b")
    a.e(f"s_waitcnt vmcnt({first()})")
    a.branch(f"s_branch L_{tag}_j")
    a.label(f"L_{tag}_b")
    n2 = second()
    if tag == "Pa": stamp(a, o, (5 - 2, S_C, 3, 2), "s1")
    a.e(f"s_waitcnt vmcnt({n2})")
    if tag == "Pa": stamp(a, o, (6 - 2, S_C, 3, 2), "s1")
    a.label(f"L_{tag}_j")
    endstep(a)


PRO_AQ, PRO_AX = 168, 174


def p_prologue(a, o):
    XF, F = 96, 144
    reads, mf = [], []
    for n in range(10):
        s = (n + 2) & 3
        for h in range(2):
            xf = XF + 16 * ((2 * n + h) % 3)
            xr = [f"ds_read_b128 {v(xf+4*k,4)}, v{PRO_AX+h} offset:{s*8192 + 2048*k}" for k in range(4)]
            for i in range(3):
                f = F + 4 * ((len(mf) // 4) % 6)
                rd = tr_pair(f, PRO_AQ + 3 * (s >> 1) + i, (s & 1) * 24576 + h * 12288, 1536)
                if i == 0: rd = xr[:1] + rd + xr[1:]
                if i == 0 and h == 0 and n: rd = ["s_barrier"] + rd
                quad(reads, mf, rd, PQ + 16 * i, f, xf, n == 0 and h == 0)
    pipe(a, reads, mf, [], o["prod"])
    endstep(a)


def p_pack_block(a, i):
    y = PY + 16 * i
    for k in range(8): a.e(f"v_cvt_pk_bf16_f32 v{y+k}, v{y+2*k}, v{y+2*k+1}")
    for t in range(2):
        a.e(f"v_permlane16_swap_b32 v{y+4*t}, v{y+4*t+2}")
        a.e(f"v_permlane16_swap_b32 v{y+4*t+1}, v{y+4*t+3}")


def p_store_block(a, o, i):
    a.e(f"s_add_u32 s{S_T}, s{S_OWN}, {4*i}")
    a.e(f"s_cmp_lt_u32 s{S_T}, 5")
    a.e(f"s_cselect_b32 s{S_T}, {OOB}, s{S_P}")
    for t in range(2):
        a.e(f"buffer_store_dwordx4 {v(PY+16*i+4*t,4)}, v1, {sq(S_WS)}, s{S_T} offen offset:{t*1024}{pol(o['stpol'])}")
    a.e(f"s_add_u32 s{S_P}, s{S_P}, 8192")


def p_keep_block(a, i):
    a.e(f"s_add_u32 s{S_T}, s{S_OWN}, {4*i}")
    a.e(f"s_cmp_lt_u32 s{S_T}, 5")
    a.branch(f"s_cbranch_scc0 L_keep{i}")
    a.e(f"s_lshl_b32 s{S_T}, s{S_T}, 11")
    a.e(f"v_add_u32 v3, s{S_T}, v2")
    for t in range(2):
        a.e(f"ds_write_b128 v3, {v(PY+16*i+4*t,4)} offset:{t*1024}")
    a.label(f"L_keep{i}")


def tr_lane_parts(a, lane, G1, RR, ROW, C1, B8):
    a.e(f"v_lshrrev_b32 {ROW}, 4, {lane}")
    a.e(f"v_and_b32 {G1}, 1, {ROW}")
    a.e(f"v_bfe_u32 {RR}, {lane}, 2, 2")
    a.e(f"v_lshl_add_u32 {ROW}, {ROW}, 3, {RR}")
    a.e(f"v_bfe_u32 {C1}, {lane}, 1, 1")
    a.e(f"v_and_b32 {B8}, 1, {lane}")
    a.e(f"v_lshlrev_b32 {B8}, 3, {B8}")


def gen_P(a, o):
    a.label("L_P")
    if o["prio"] == 1: a.e("s_setprio 1")
    T0, T1, T2, T3, T4, T5, T6 = (f"v{20+k}" for k in range(7))
    stamp(a, o, 2, "start")
    G1, RR, ROW, C1, B8 = T0, T1, T2, T3, T4
    tr_lane_parts(a, "v0", G1, RR, ROW, C1, B8)
    a.e(f"v_and_b32 {T5}, 2, {RR}")
    a.e(f"v_lshl_or_b32 {T5}, {G1}, 2, {T5}")
    a.e(f"v_mul_u32_u24 v27, 384, {ROW}")
    a.e(f"v_add_u32 v27, v27, {B8}")
    for i in range(3):
        a.e(f"s_mul_i32 s{S_T}, s{S_W}, 6")
        a.e(f"s_add_u32 s{S_T}, s{S_T}, {2*i}")
        a.e(f"v_add_u32 {T6}, s{S_T}, {C1}")
        a.e(f"v_xor_b32 {T6}, {T6}, {T5}")
        a.e(f"v_lshl_add_u32 {T6}, {T6}, 4, v27")
        a.e(f"v_add_u32 v{P_AQ+i}, {WB}, {T6}")
        a.e(f"v_add_u32 v{PRO_AQ+i}, {PRO_W}, {T6}")
        a.e(f"v_add_u32 v{PRO_AQ+3+i}, {PRO_W+49152}, {T6}")
    a.e(f"v_lshl_or_b32 {T5}, {G1}, 2, {RR}")
    a.e(f"v_lshlrev_b32 {T5}, 1, {T5}")
    a.e(f"v_mul_u32_u24 v27, 1280, {ROW}")
    a.e(f"v_add_u32 v27, v27, {B8}")
    a.e(f"s_lshl_b32 s{S_T}, s{S_W}, 1")
    a.e(f"v_add_u32 {T6}, s{S_T}, {C1}")
    a.e(f"v_xor_b32 {T6}, {T6}, {T5}")
    a.e(f"v_lshl_add_u32 {T6}, {T6}, 4, v27")
    a.e(f"v_add_u32 v{P_AW}, {WB}, {T6}")
    a.e(f"v_xor_b32 v{P_AW+1}, 128, v{P_AW}")
    a.e(f"v_and_b32 {T0}, 15, v0")
    a.e(f"v_lshrrev_b32 {T1}, 4, v0")
    a.e(f"v_and_b32 {T2}, 6, {T0}")
    a.e(f"v_xor_b32 {T3}, {T2}, {T1}")
    a.e(f"v_lshlrev_b32 {T3}, 4, {T3}")
    a.e(f"v_lshl_add_u32 {T4}, {T0}, 7, {T3}")
    a.e(f"v_add_u32 v{P_AX}, {WB+32768}, {T4}")
    a.e(f"v_add_u32 v{PRO_AX}, {PRO_X}, {T4}")
    a.e(f"v_xor_b32 v{PRO_AX+1}, 64, v{PRO_AX}")
    a.e(f"v_mul_u32_u24 {T0}, 384, {T0}")
    a.e(f"v_add_u32 {T0}, {XB}, {T0}")
    a.e(f"v_bfe_u32 {T2}, v0, 1, 3")
    a.e(f"v_xor_b32 {T3}, {T2}, {T1}")
    a.e(f"v_lshl_add_u32 v{P_AO}, {T3}, 4, {T0}")
    a.e(f"v_lshrrev_b32 {T3}, 1, {T1}")
    a.e(f"v_xor_b32 {T3}, {T3}, {T2}")
    a.e(f"v_lshl_add_u32 {T3}, {T3}, 4, {T0}")
    a.e(f"v_and_b32 {T1}, 1, {T1}")
    a.e(f"v_lshl_add_u32 v{P_QW}, {T1}, 3, {T3}")
    dma_offsets_q(a, P_VQ, P_VX, 28)
    a.e(f"s_lshr_b32 s{S_T}, s{S_W}, 1")
    a.e(f"s_lshl_b32 s{S_T}, s{S_T}, 2")
    for j in range(5):
        a.e(f"v_add_u32 {T0}, {64*j}, v0")
        a.e(f"v_mul_u32_u24 {T0}, 820, {T0}")
        a.e(f"v_lshrrev_b32 {T0}, 16, {T0}")
        a.e(f"v_or_b32 {T0}, s{S_T}, {T0}")
        a.e(f"v_lshlrev_b32 {T0}, 1, {T0}")
        a.e(f"v_xor_b32 {T0}, {T0}, v0")
        a.e(f"v_lshlrev_b32 v{P_VO+j}, 4, {T0}")
    scalars_q(a, S_MQ, S_MX, S_OQ, S_OX, 1)
    a.e(f"s_mul_i32 s{S_MO}, s{S_W}, 5120")
    a.e(f"s_mul_i32 s{S_OO}, s{S_HG}, {4*245760}")
    a.e(f"s_add_u32 s{S_OO}, s{S_OO}, s{S_MO}")
    a.e(f"s_mov_b32 s{S_C}, 1")
    stamp(a, o, 3, "start")
    a.e("s_barrier")
    stamp(a, o, 1)
    a.raw("L_Ppro:")
    p_prologue(a, o)

    a.label("L_Pcyc")
    for i in range(24):
        a.e(f"v_cvt_pk_bf16_f32 v{PQ+i}, v{PQ+2*i}, v{PQ+2*i+1}")
    for i in range(3):
        a.e(f"s_mul_i32 s{S_T}, s{S_W}, 3")
        a.e(f"s_add_u32 s{S_T}, s{S_T}, {i}")
        a.e(f"s_and_b32 s{S_T2}, s{S_T}, 3")
        a.e(f"s_lshl_b32 s{S_T2}, s{S_T2}, 5")
        a.e(f"s_lshr_b32 s{S_T}, s{S_T}, 2")
        a.e(f"s_lshl_b32 s{S_T}, s{S_T}, 7")
        t = (P_T0, P_T1)[i & 1]
        a.e(f"v_xor_b32 v{t}, s{S_T2}, v{P_QW}")
        a.e(f"v_add_u32 v{t}, s{S_T}, v{t}")
        for k in range(4):
            a.e(f"ds_write_b64 v{t}, {v(PQ+8*i+2*k,2)} offset:{6144*k}")
    a.e("s_waitcnt lgkmcnt(0)")
    a.e(f"s_cmp_eq_u32 s{S_C}, 4")
    a.branch("s_cbranch_scc0 L_Pc3")
    idle_steps(a, o, "Pi4", 0, 4)
    a.branch("s_branch L_PO")
    a.label("L_Pc3")
    a.e(f"s_cmp_eq_u32 s{S_C}, 1")
    a.branch("s_cbranch_scc0 L_PQa")
    a.e("s_barrier")
    p_burst_q(a, o, 0)
    idle_steps(a, o, "Pi2", 1, 3)
    endstep(a, 3)

    a.label("L_PQa")
    for qs in range(4):
        if qs == 0:
            p_even(a, o, p_qstep, 0, p_burst_q, 1); continue
        p_qstep(a, o, qs)
        if qs == 2: p_choice(a, o, "Pa", f"s_cmp_ge_u32 s{S_C}, 2", lambda: p_burst_q(a, o, 0), lambda: p_burst_o(a, o, 0))
        else: endstep(a, 3 if qs == 1 else 0)
    a.e(f"s_cmp_ge_u32 s{S_C}, 2")
    a.branch("s_cbranch_scc1 L_PO")
    for i in range(160): a.e(f"v_mov_b32 v{PY+i}, 0")
    idle_steps(a, o, "Pi10", 8, 16)
    a.branch("s_branch L_PQb")

    a.label("L_PO")
    stamp(a, o, (2, S_C, 5))
    for s in range(12):
        if s < 10 and s % 2 == 0:
            p_even(a, o, p_ostep, s, p_burst_o, ((s >> 1) + 1) & 1); continue
        p_ostep(a, o, s)
        if s == 10: p_choice(a, o, "Po", f"s_cmp_eq_u32 s{S_C}, 4", lambda: p_burst_q(a, o, 0), lambda: 0)
        elif s == 11: endstep(a, 3)
        else: endstep(a, 0)
    a.e(f"s_cmp_eq_u32 s{S_C}, 4")
    a.branch("s_cbranch_scc1 L_Ptail")

    a.label("L_PQb")
    for qs in range(4, 20):
        if qs < 18 and qs % 2 == 0:
            p_even(a, o, p_qstep, qs, p_burst_q, ((qs >> 1) + 1) & 1); continue
        p_qstep(a, o, qs)
        if qs == 18:
            a.e(f"s_add_u32 s{S_OQ}, s{S_OQ}, {(384 - 640*12288) & 0xffffffff}")
            a.e(f"s_sub_u32 s{S_OX}, s{S_OX}, 1280")
            p_choice(a, o, "Pb", f"s_cmp_eq_u32 s{S_C}, 3", lambda: p_burst_q(a, o, 0), lambda: p_burst_o(a, o, 0))
        else: endstep(a, 0 if qs == 19 else 3)
    a.e(f"s_add_u32 s{S_C}, s{S_C}, 1")
    a.branch("s_branch L_Pcyc")

    a.label("L_Ptail")
    VT, TA = 2, 4
    lane_id(a, 5)
    tail_offsets(a, VT, S_MO, S_OO, "v5", ("v6", "v7"))
    tr_lane_parts(a, "v5", "v6", "v7", "v8", "v9", "v10")
    a.e("v_and_b32 v7, 2, v7")
    a.e("v_lshl_or_b32 v7, v6, 2, v7")
    a.e(f"s_lshl_b32 s{S_T}, s{S_W}, 1")
    a.e(f"v_add_u32 v9, s{S_T}, v9")
    a.e("v_xor_b32 v9, v9, v7")
    a.e("v_lshl_add_u32 v9, v9, 4, v10")
    a.e(f"v_lshl_add_u32 v{TA}, v8, 7, v9")
    a.e("v_lshlrev_b32 v1, 4, v5")
    a.e(f"s_lshl_b32 s{S_P}, s{S_BR}, 4"); a.e(f"s_add_u32 s{S_P}, s{S_P}, s{S_B}")
    a.e(f"s_lshl_b32 s{S_P}, s{S_P}, 3"); a.e(f"s_add_u32 s{S_P}, s{S_P}, s{S_HG}")
    a.e(f"s_mul_i32 s{S_P}, s{S_P}, 81920")
    a.e(f"s_lshl_b32 s{S_T}, s{S_W}, 11"); a.e(f"s_add_u32 s{S_P}, s{S_P}, s{S_T}")
    a.e(f"s_mul_i32 s{S_T}, s{S_HG}, 5"); a.e(f"s_sub_u32 s{S_OWN}, s{S_W}, s{S_T}")
    for n in range(3):
        tail_tile(a, o, VT, S_MO, S_OO, n)
        idle_steps(a, o, f"Pt{n}", 16 + 2 * n, 18 + 2 * n)
    idle_steps(a, o, "Pt3", 22, 31)
    tail_tile(a, o, VT, S_MO, S_OO, 3)
    idle_steps(a, o, "Pt4", 31, 32)
    if o["pdma"] == 3: a.e("s_barrier")
    endstep(a, 0)
    stamp(a, o, 7)
    SB, F = 8, 24
    a.e(f"v_xor_b32 v{P_T0}, 64, v{P_AO}")
    a.e(f"v_mov_b32 v7, v{P_AO}")
    ob = lambda dst, tau: [f"ds_read_b128 {v(dst+4*k,4)}, v{P_T0 if tau & 1 else 7} offset:{6144*k + (tau>>1)*128}" for k in range(4)]
    order = (3, 0, 4, 1, 5, 2)
    for t in ob(SB, 3): a.e(t)
    addr = lambda p, k: f"v_add_u32 v{5+k}, {tail_slot(2*p+k)}, v{TA}"
    pairs = []
    for p in range(5):
        reads, mf = [], []
        for gi, tau in enumerate(order):
            for k in range(2):
                f = F + 4 * ((len(mf) // 4) % 6)
                rd = tr_pair(f, 5 + k, tau * 4096, 512)
                if gi == 0: rd = [addr(p, k)] + rd
                if p == 0 and tau < 3 and k == 0: rd = ob(PQ + 16 * tau, tau) + rd
                quad(reads, mf, rd, PY + 16 * (2 * p + k), f, PQ + 16 * tau if tau < 3 else SB)
            if o["tq"] and tau >= 3 and (p or gi):
                mf[-8] = [f"need {v(SB,16)}", mf[-8]]
            if tau >= 3 and not (p == 4 and tau == 5):
                nxt = ob(SB, 3 if tau == 5 else tau + 1)
                if o["tq"]:
                    for k in range(4): mf[k - 4] = [mf[k - 4], nxt[k]]
                else: mf[-1] = [mf[-1]] + nxt
        pairs.append((reads, mf))
    for p, h in ((0, 3), (1, 1)):
        for q_ in range(h if o["tx"] else 0):
            pairs[p][1][41 + 2 * q_] = [pairs[p][1][41 + 2 * q_]] + pairs[p + 1][0][4 * q_]
            pairs[p + 1][0][4 * q_] = []
    for p, (reads, mf) in enumerate(pairs):
        fill = []
        if p: fill = rec(p_pack_block, 2 * p - 2) + rec(p_pack_block, 2 * p - 1)
        for m in TAIL_STORES[o["tst"]].get(p, []): fill += rec(p_store_block, o, m)
        pipe(a, reads, mf, fill, 16, skip=6)
        if p < 4: a.e("s_barrier")
    stamp(a, o, 8)
    for m in TAIL_STORES[o["tst"]][5]:
        if m >= 8: p_pack_block(a, m)
        p_store_block(a, o, m)
    a.e(f"s_mul_i32 s{S_T}, s{S_HG}, 10240")
    a.e(f"s_add_u32 s{S_T}, s{S_T}, {WB}")
    a.e(f"v_add_u32 v2, s{S_T}, v1")
    for m in range(10): p_keep_block(a, m)
    a.e("s_waitcnt vmcnt(0)")
    a.branch("s_branch L_red")


TAIL_STORES = [{3: [0, 1, 2, 3, 4, 5], 4: [6, 7], 5: [8, 9]},
               {3: [0, 1, 2], 4: [3, 4, 5, 6], 5: [7, 8, 9]},
               {2: [0, 1], 3: [2, 3, 4], 4: [5, 6, 7], 5: [8, 9]},
               {1: [0, 1], 2: [2, 3], 3: [4, 5], 4: [6, 7], 5: [8, 9]}]


AS, AR_, AP, AF = 128, 80, 56, 24
A_VD, A_AK, A_AV, A_M, A_L, A_R, A_T0, A_T1, A_PF, A_DUM = 1, 4, 6, 14, 16, 18, 20, 21, 22, 23
A_XQ, A_XO, A_EW, A_ER, A_FI, A_FO = 48, 50, 52, 53, 54, 55
S_SP, S_PER, S_MK, S_OK, S_OV, S_CS, S_PFO, S_PFS, S_PF = 49, 50, 51, 52, 53, 54, 55, 56, 60
AR = (128, 131, 68, 69, 96, 97)
S_PFM = 100
S_LK, S_LV = 48, 58


def pf_sites(o):
    return {b + k for b in (1, o["pfa"], o["pfo"]) for k in range(4)}


def a_burst(a, o, D, srdreg, off, last=False):
    kp = pol(o["kvpol"])
    for h in range(2):
        a.e(f"s_add_u32 m0, s{S_MK}, {D*24576+h*12288}")
        if h: a.e(f"s_add_u32 s{off}, s{off}, 12288")
        else: a.e("s_nop 0")
        for j in range(3):
            a.e(f"buffer_load_dwordx4 v{A_VD+j}, {sq(srdreg)}, s{off} offen offset:{1024*j}{kp} lds")
    a.e(f"s_add_u32 s{off}, s{off}, 12288")
    if o["rot"]:
        lim = S_LK if off == S_OK else S_LV
        a.e(f"s_cmp_eq_u32 s{off}, s{lim}")
        a.e(f"s_cselect_b32 s{S_T}, 196608, 0")
        a.e(f"s_sub_u32 s{off}, s{off}, s{S_T}")
        if last:
            a.e(f"s_add_u32 s{off}, s{off}, 196608")
            a.e(f"s_add_u32 s{lim}, s{lim}, 196608")


def soft_chunk(j):
    b = AS + 8 * j
    t = []
    for i in range(8): t.append(f"v_fma_f32 v{b+i}, v{b+i}, s{S_CS}, -v{A_M+(i>>2)}")
    for i in range(8): t.append(f"v_exp_f32 v{b+i}, v{b+i}")
    for i in (0, 4, 1, 5, 2, 6, 3, 7):
        if j == 0 and i % 4 == 0: t.append(f"v_mov_b32 v{A_L+(i>>2)}, v{b+i}")
        else: t.append(f"v_add_f32 v{A_L+(i>>2)}, v{A_L+(i>>2)}, v{b+i}")
    for qs in range(2):
        for i in range(2): t.append(f"v_cvt_pk_bf16_f32 v{b+4*qs+i}, v{b+4*qs+2*i}, v{b+4*qs+2*i+1}")
    for qs in range(2):
        t.append(f"ds_write_b64 v{A_EW}, {v(b+4*qs,2)} offset:{(j&1)*4096 + qs*512}")
    return t


def max_chunk(s):
    b = AS + 8 * s
    t = []
    for i in range(2):
        for qs in range(2):
            r = b + 4 * qs + 2 * i
            if s == 0 and i == 0: t.append(f"v_max_f32 v{A_M+qs}, v{r}, v{r+1}")
            else: t.append(f"v_max3_f32 v{A_M+qs}, v{A_M+qs}, v{r}, v{r+1}")
    return t


def xlane2(a, reg, op):
    for sw in ("v_permlane32_swap_b32", "v_permlane16_swap_b32"):
        for k in range(2): a.e(f"v_mov_b32 v{A_T0+k}, v{reg+k}")
        for k in range(2): a.e(f"{sw} v{reg+k}, v{A_T0+k}")
        for k in range(2): a.e(f"{op} v{reg+k}, v{reg+k}, v{A_T0+k}")


def a_rowsum(a):
    xlane2(a, A_L, "v_add_f32")
    a.e(f"s_mov_b32 s{S_T}, {WB + 40960 + 12288 - EB & 0xffffffff}")
    a.e(f"s_cmp_eq_u32 s{S_PER}, 3")
    a.e(f"s_cselect_b32 s{S_T}, {WB + 73728 - EB & 0xffffffff}, s{S_T}")
    a.e(f"s_lshl_b32 s{S_T2}, s{S_W}, 9")
    a.e(f"s_sub_u32 s{S_T}, s{S_T}, s{S_T2}")
    a.e(f"v_add_u32 v{A_R}, s{S_T}, v{A_EW}")
    a.e(f"v_xor_b32 v{A_R+1}, 512, v{A_R}")
    a.e(f"ds_write_b64 v{A_R}, {v(A_L,2)}")


def a_qread(ks):
    return [f"ds_read_b128 {v(AR_+8*ks+4*qs,4)}, v{A_XQ+(ks&1)} offset:{qs*6144 + (ks>>1)*128}" for qs in range(2)]


def a_owrite(i):
    t = [f"v_xor_b32 v{A_T0+(i&1)}, {32*(i&3)}, v{A_XO+(1 if i in (2, 3) else 0)}"]
    for qs in range(2):
        t.append(f"ds_write_b64 v{A_T0+(i&1)}, {v(AP+4*i+2*qs,2)} offset:{qs*6144 + (i>>2)*128}")
    return t


def a_onorm(i):
    t = []
    for qs in range(2):
        r = AR_ + 8 * i + 4 * qs
        for k in range(4): t.append(f"v_mul_f32 v{r+k}, v{r+k}, v{A_R+qs}")
    for qs in range(2):
        r = AR_ + 8 * i + 4 * qs
        for k in range(2): t.append(f"v_cvt_pk_bf16_f32 v{AP+4*i+2*qs+k}, v{r+2*k}, v{r+2*k+1}")
    return t


def weave(pre, work):
    n = sum(t.startswith("buffer_load_dwordx4") for t in pre)
    out, k = [], 0
    for t in pre:
        out.append(t)
        if t.startswith("buffer_load_dwordx4"):
            k += 1
            out += work[len(work) * (k - 1) // n:len(work) * k // n]
    return out


def hoist(a, reads, depth, pre):
    if not pre: return
    for i in range(min(depth, len(reads))):
        for t in reads[i]: a.e(t)
        reads[i] = []
    for t in pre: a.e(t)


def a_kstep(a, o, s, extra=(), pre=()):
    reads, mf = [], []
    for i in range(12):
        ks, qs = divmod(i, 2) if not o["kord"] else (i % 6, i // 6)
        f = AF + 4 * ks
        reads.append([] if qs else [f"ds_read_b128 {v(f,4)}, v{A_AK+(ks&1)} offset:{(s&3)*12288 + (ks>>1)*128}"])
        mf.append(mfma16(AS + 8 * s + 4 * qs, f, AR_ + 8 * ks + 4 * qs, ks == 0))
    hoist(a, reads, o["adepth"], pre)
    pipe(a, reads, mf, (max_chunk(s - 1) if s else []) + list(extra), o["adepth"])
    if s == 15:
        for t in max_chunk(15): a.e(t)
        xlane2(a, A_M, "v_max_f32")
        a.e(f"ds_write_b64 v{A_EW}, {v(A_M,2)} offset:4096")


def a_vstep(a, o, j, pre=()):
    s = 16 + j
    b = AS + 8 * j
    reads, mf = [], []
    for n in range(12):
        i, qs = divmod(n, 2)
        f = AF + 4 * i
        off = (s & 3) * 12288 + (i >> 2) * 128
        reads.append([] if qs else [f"ds_read_b64_tr_b16 {v(f,2)}, v{A_AV+(i&3)} offset:{off}",
                                    f"ds_read_b64_tr_b16 {v(f+2,2)}, v{A_AV+4+(i&3)} offset:{off}"])
        mf.append(mfma16(AR_ + 8 * i + 4 * qs, f, b + 4 * qs, j == 0))
    if j == 0:
        a.e(f"ds_read_b64 {v(A_T0,2)}, v{A_ER} offset:4096")
        for n in range(0, 12, 2):
            for t in reads[n]: a.e(t)
            reads[n] = []
        work = [f"v_max_f32 v{A_M+k}, v{A_M+k}, v{A_T0+k}" for k in range(2)]
        work += [f"v_mul_f32 v{A_M+k}, s{S_CS}, v{A_M+k}" for k in range(2)] + soft_chunk(0)
        for t in (weave(list(pre), work) if o["t16"] == 2 else list(pre) + work): a.e(t)
        pre = ()
        endstep(a)
    for qs in range(2):
        a.e(f"ds_read_b64 {v(b+4*qs+2,2)}, v{A_ER} offset:{(j&1)*4096 + qs*512}")
    if j == 15:
        a.e(f"ds_read_b64 {v(A_T0,2)}, v{A_R+1}")
        mf[1] = [mf[1]] + [f"v_add_f32 v{A_L+k}, v{A_L+k}, v{A_T0+k}" for k in range(2)]
        mf[2] = [mf[2]] + [f"v_rcp_f32 v{A_R+k}, v{A_L+k}" for k in range(2)]
        for i in range(4): mf[2 * i + 5] = [mf[2 * i + 5]] + a_onorm(i)
    fill = soft_chunk(j + 1) + (rec(a_rowsum) if j == 14 else []) if j < 15 else []
    if pre and o["vweave"] and pre != ["s_barrier"]:
        k = len(fill) * o["vweave"] // 4
        pre, fill = weave(list(pre), fill[:k]), fill[k:]
    hoist(a, reads, o["adepth"], pre)
    pipe(a, reads, mf, fill, o["adepth"], 12 if j == 14 else o["vspan"])
    if j == 15:
        for t in a_onorm(4) + a_onorm(5): a.e(t)
        a.e(f"s_cmp_eq_u32 s{S_PER}, 3")
        a.branch("s_cbranch_scc0 L_A31")
        for i in range(6):
            for t in a_owrite(i): a.e(t)
        a.label("L_A31")


def spin(a, tag, load, test, nap=0, bound=0x20000):
    a.e("s_mov_b32 s40, 0")
    a.label(f"L_{tag}")
    a.e(load)
    a.e("s_add_u32 s40, s40, 1")
    a.e("s_waitcnt vmcnt(0) lgkmcnt(0)")
    for t in test: a.e(t)
    a.branch(f"s_cbranch_scc1 L_{tag}_ok")
    if nap: a.e(f"s_sleep {nap}")
    a.e(f"s_cmp_lt_u32 s40, {bound}")
    a.branch(f"s_cbranch_scc1 L_{tag}")
    a.label(f"L_{tag}_ok")


def gen_A(a, o):
    a.comment("attention waves: 16 query rows each; they also feed the first and the last projection")
    if o["prio"] == 2: a.e("s_setprio 1")
    if o["sprio"]: a.e("s_setprio 3")
    T0, T1, T2, T3 = "v24", "v25", "v26", "v27"
    dma_offsets_q(a, AR[0], AR[1], 32)
    scalars_q(a, *AR[2:], 0)
    chains = []
    for j in range(3):
        r = Rec()
        U0, U1, U2, U3 = (f"v{32+4*j+k}" for k in range(4))
        r.e(f"v_add_u32 {U0}, {64*j}, v0")
        r.e(f"v_mul_u32_u24 {U1}, 2731, {U0}")
        r.e(f"v_lshrrev_b32 {U1}, 16, {U1}")
        r.e(f"v_and_b32 {U1}, 6, {U1}")
        r.e(f"v_xor_b32 {U1}, {U1}, v0")
        r.e(f"v_lshlrev_b32 v{A_VD+j}, 4, {U1}")
        chains.append(r.t)
    kv_offsets = chains
    a.e(f"s_mul_i32 s98, s{S_B}, 81920")
    a.e(f"s_mul_i32 s{S_T}, s{S_HALF}, 40960"); a.e(f"s_add_u32 s98, s98, s{S_T}")
    a.e(f"s_mul_i32 s{S_T}, s{S_W}, 10240"); a.e(f"s_add_u32 s98, s98, s{S_T}")
    a.e(f"v_lshlrev_b32 v28, 7, v0")
    a.e(f"v_add_u32 v29, 8192, v28")
    a.e(f"v_mov_b32 {T2}, {OOB}")
    a.e(f"v_cmp_gt_u32 vcc, 16, v0")
    a.e(f"v_cndmask_b32 v29, {T2}, v29, vcc")
    stamp(a, o, 2, "start")
    pp = pol(o["pfpol"])
    vm = ["t"] * 4

    def W(n):
        s = (n + 2) & 3
        burst_q(a, o, AR, PRO_W + s * 24576, PRO_X + s * 8192, PRO_W + s * 24576 + 12288)
        vm.extend([("W", n)] * 8)

    def K0():
        a_burst(a, o, 0, S_K, S_OK); vm.extend([("K", 0)] * 3 + [("K", 1)] * 3)

    def late_touches():
        a.e(f"s_cmp_eq_u32 s99, 0")
        a.e(f"s_cselect_b32 s{S_T}, {OOB}, s{S_PFO}")
        a.e(f"buffer_load_dword v{A_DUM}, v{A_PF}, {sq(S_PF)}, s{S_T} offen{pp}"); vm.append("t")
        a.e(f"s_add_u32 s{S_PFO}, s{S_PFO}, s99")
        a.e(f"s_cmp_eq_u32 s{S_W}, 0")
        a.e(f"s_cselect_b32 s{S_T}, s46, {OOB}")
        a.e(f"s_cselect_b32 s{S_T2}, s47, {OOB}")
        a.e(f"buffer_load_dword v{A_FI}, v28, {sq(S_WS)}, s{S_T} offen sc1"); vm.append("f")
        a.e(f"buffer_load_dword v{A_FO}, v29, {sq(S_WS)}, s{S_T2} offen sc1"); vm.append("f")

    def wait_for(tag):
        last = max(i for i, x in enumerate(vm) if x == tag)
        return min(63, len(vm) - 1 - last)

    stamp(a, o, 3, "start")
    W(0)
    stamp(a, o, 4, "start")
    if o["sprio"]: a.e(f"s_setprio {1 if o['prio'] == 2 else 0}")
    interleave(a, kv_offsets)
    a.e(f"s_mul_i32 s{S_MK}, s{S_W}, 3072")
    a.e(f"s_lshl_b32 s{S_OK}, s{S_B}, 3"); a.e(f"s_add_u32 s{S_OK}, s{S_OK}, s{S_HG}")
    a.e(f"s_mul_i32 s{S_OK}, s{S_OK}, 786432"); a.e(f"s_add_u32 s{S_OK}, s{S_OK}, s{S_MK}")
    if o["rot"]:
        a.e(f"s_add_u32 s{S_LK}, s{S_OK}, 196608")
        a.e(f"s_mov_b32 s{S_LV}, s{S_LK}")
        a.e(f"s_mul_i32 s{S_T}, s2, {o['rot']}")
        a.e(f"s_lshr_b32 s{S_T}, s{S_T}, 3")
        a.e(f"s_add_u32 s{S_T}, s{S_T}, s2")
        a.e(f"s_and_b32 s{S_T}, s{S_T}, 7")
        a.e(f"s_mul_i32 s{S_T}, s{S_T}, 24576")
        a.e(f"s_add_u32 s{S_OK}, s{S_OK}, s{S_T}")
    a.e(f"s_mov_b32 s{S_OV}, s{S_OK}")
    a.e(f"buffer_load_dword v{A_DUM}, v28, {sq(S_XI)}, s98 offen{pp}"); vm.append("t")
    a.e(f"buffer_load_dword v{A_DUM}, v29, {sq(S_XI)}, s98 offen{pp}"); vm.append("t")
    stamp(a, o, 5, "start")
    if o["k0"] < 0: K0()
    if o["codepf"]:
        a.e("s_getpc_b64 s[100:101]")
        a.raw("L_pc:")
        a.e(f"s_sub_u32 s100, s100, L_pc-{KN}")
        a.e("s_subb_u32 s101, s101, 0")
        a.e("s_lshr_b32 s98, s2, 3")
        a.e(f"s_lshl_b32 s98, s98, 2")
        a.e(f"s_add_u32 s98, s98, s{S_W}")
        a.e(f"s_lshl_b32 s98, s98, 9")
        a.e("v_and_b32 v30, 3, v0")
        a.e("v_lshlrev_b32 v30, 7, v30")
        a.e("v_add_u32 v30, s98, v30")
        a.e(f"v_min_u32 v30, L_end-{KN}, v30")
        a.e(f"global_load_dword v{A_DUM}, v30, s[100:101]"); vm.append("t")
    a.e(f"s_lshl_b32 s44, s{S_BR}, 4")
    a.e(f"s_add_u32 s44, s44, s{S_B}")
    a.e("s_lshl_b32 s45, s44, 10")
    a.e(f"s_add_u32 s45, s45, {FLAGS}")
    a.e(f"s_lshl_b32 s46, s{S_HG}, 7")
    a.e(f"s_add_u32 s46, s46, s45")
    a.e(f"s_lshl_b32 s47, s{S_HG}, 2")
    a.e(f"s_add_u32 s47, s47, s45")
    wq_share(a, T1, T0, T1, T2)
    a.e(f"v_lshlrev_b32 {T2}, 7, {T0}")
    a.e(f"s_mov_b32 s{S_PFS}, 384")
    a.e(f"s_mov_b32 s{S_T}, {40*12288}")
    a.e(f"s_cmp_ge_u32 s{S_W}, 2")
    a.e(f"s_cselect_b64 vcc, -1, 0")
    a.e(f"s_cselect_b32 s{S_PFS}, 245760, s{S_PFS}")
    a.e(f"s_cselect_b32 s{S_T}, 15360, s{S_T}")
    a.e(f"s_cselect_b32 s{S_PF}, s{S_WO}, s{S_WQ}")
    a.e(f"s_cselect_b32 s{S_PF+1}, s{S_WO+1}, s{S_WQ+1}")
    a.e(f"s_cselect_b32 s99, 0, 384")
    a.e(f"s_mov_b32 s{S_PF+2}, {W_BYTES}")
    a.e(f"s_mov_b32 s{S_PF+3}, 0x20000")
    a.e(f"v_cndmask_b32 {T1}, {T1}, {T2}, vcc")
    a.e(f"v_mov_b32 {T2}, {OOB}")
    a.e(f"v_cmp_gt_u32 vcc, 120, {T0}")
    a.e(f"v_cndmask_b32 v{A_PF}, {T2}, {T1}, vcc")
    a.e(f"s_mul_i32 s{S_PFO}, s{S_T}, s{S_B}")
    a.e(f"s_mul_i32 s{S_T}, s{S_PFS}, s{S_HG}")
    a.e(f"s_lshl_b32 s{S_T}, s{S_T}, 2")
    a.e(f"s_add_u32 s{S_PFO}, s{S_PFO}, s{S_T}")
    a.e(f"s_add_u32 s{S_PFO}, s{S_PFO}, s99")
    bits = lambda *pp_: sum(3 << (16 * p + k) for p, k in pp_)
    ka, ko = o["pfa"], o["pfo"]
    mA, mB, mO = bits((0, ka), (1, ka)), bits((0, 1), (1, 1), (2, 1)), bits((0, ko), (1, ko), (2, ko), (3, 1))
    a.e(f"s_mov_b32 s{S_PFM}, {mB & 0xffffffff}")
    a.e(f"s_mov_b32 s{S_PFM+1}, {mB >> 32}")
    a.e(f"s_cmp_lt_u32 s{S_B}, {o['pfb']}")
    a.e(f"s_cselect_b32 s{S_PFM}, {mA & 0xffffffff}, s{S_PFM}")
    a.e(f"s_cselect_b32 s{S_PFM+1}, {mA >> 32}, s{S_PFM+1}")
    a.e(f"s_cselect_b32 s99, s99, 0")
    a.e(f"s_cmp_ge_u32 s{S_W}, 2")
    a.e(f"s_cselect_b32 s{S_PFM}, {mO & 0xffffffff}, s{S_PFM}")
    a.e(f"s_cselect_b32 s{S_PFM+1}, {mO >> 32}, s{S_PFM+1}")
    a.e(f"s_and_b32 s{S_T}, s{S_W}, 1")
    a.e(f"s_lshl_b32 s{S_T}, s{S_T}, 1")
    a.e(f"s_lshl_b64 s[{S_PFM}:{S_PFM+1}], s[{S_PFM}:{S_PFM+1}], s{S_T}")
    a.e(f"s_and_b32 s{S_SP}, s{S_W}, 1")
    a.e(f"s_lshr_b32 s{S_T2}, s{S_W}, 1")
    a.e(f"s_mul_i32 s{S_T2}, s{S_T2}, 12288")
    a.e(f"s_add_u32 s{S_T2}, s{S_T2}, {XB}")
    a.e(f"s_mul_i32 s{S_T}, s{S_SP}, 6144")
    a.e(f"v_and_b32 {T0}, 15, v0")
    a.e(f"v_lshrrev_b32 {T1}, 4, v0")
    a.e(f"v_and_b32 {T2}, 6, {T0}")
    a.e(f"v_xor_b32 {T3}, {T2}, {T1}")
    a.e(f"v_mul_u32_u24 {T0}, 384, {T0}")
    a.e(f"v_lshl_add_u32 {T3}, {T3}, 4, {T0}")
    a.e(f"v_add_u32 v{A_AK}, s{S_T}, {T3}")
    a.e(f"v_xor_b32 v{A_AK+1}, 64, v{A_AK}")
    a.e(f"v_bfe_u32 {T2}, v0, 1, 3")
    a.e(f"v_xor_b32 {T3}, {T2}, {T1}")
    a.e(f"v_lshl_add_u32 {T3}, {T3}, 4, {T0}")
    a.e(f"v_add_u32 v{A_XQ}, s{S_T2}, {T3}")
    a.e(f"v_xor_b32 v{A_XQ+1}, 64, v{A_XQ}")
    a.e(f"v_lshrrev_b32 {T3}, 1, {T1}")
    a.e(f"v_xor_b32 {T3}, {T3}, {T2}")
    a.e(f"v_lshl_add_u32 {T3}, {T3}, 4, {T0}")
    a.e(f"v_and_b32 {T2}, 1, {T1}")
    a.e(f"v_lshl_add_u32 {T3}, {T2}, 3, {T3}")
    a.e(f"v_add_u32 {T3}, s{S_T2}, {T3}")
    a.e(f"s_lshl_b32 s{S_T2}, s{S_SP}, 6")
    a.e(f"v_xor_b32 {T3}, s{S_T2}, {T3}")
    a.e(f"s_lshl_b32 s{S_T2}, s{S_SP}, 7")
    a.e(f"v_add_u32 v{A_XO}, s{S_T2}, {T3}")
    a.e(f"v_add_u32 v{A_XO+1}, s{S_T2}, v{A_XO}")
    a.e(f"v_lshrrev_b32 {T0}, 2, v0")
    a.e(f"v_and_b32 {T1}, 6, {T0}")
    a.e(f"v_bfe_u32 {T2}, v0, 1, 1")
    a.e(f"v_xor_b32 {T1}, {T1}, {T2}")
    a.e(f"v_mul_u32_u24 {T0}, 384, {T0}")
    a.e(f"v_lshl_add_u32 {T1}, {T1}, 4, {T0}")
    a.e(f"v_and_b32 {T2}, 1, v0")
    a.e(f"v_lshl_add_u32 {T1}, {T2}, 3, {T1}")
    a.e(f"s_lshl_b32 s{S_T2}, s{S_SP}, 6")
    a.e(f"v_xor_b32 {T1}, s{S_T2}, {T1}")
    for d in range(4):
        a.e(f"v_xor_b32 {T2}, {32*d}, {T1}")
        a.e(f"s_lshl_b32 s{S_T2}, s{S_SP}, {8 if d >= 2 else 7}")
        a.e(f"v_add_u32 {T2}, s{S_T2}, {T2}")
        a.e(f"v_add_u32 v{A_AV+d}, s{S_T}, {T2}")
        a.e(f"s_sub_u32 s{S_T2}, 6144, s{S_T}")
        a.e(f"v_add_u32 v{A_AV+4+d}, s{S_T2}, {T2}")
    a.e(f"v_lshlrev_b32 {T0}, 3, v0")
    a.e(f"s_lshl_b32 s{S_T}, s{S_W}, 10")
    a.e(f"s_add_u32 s{S_T}, s{S_T}, {EB}")
    a.e(f"v_add_u32 v{A_EW}, s{S_T}, {T0}")
    a.e(f"v_xor_b32 v{A_ER}, 1024, v{A_EW}")
    a.e("v_and_b32 v28, 7, v0")
    a.e("v_lshlrev_b32 v29, 7, v28")
    a.e("v_lshlrev_b32 v28, 2, v28")
    a.e(f"s_mov_b32 s{S_CS}, {CSCALE:#x}")
    a.e(f"s_mov_b32 s{S_PER}, 0")
    stamp(a, o, 6, "start")
    W(1)
    stamp(a, o, 12, "pro")
    stamp(a, o, 7, "start")
    endstep(a, wait_for(("W", 0)))
    stamp(a, o, 8, "start")
    stamp(a, o, 1, "pro")
    a.raw("L_Apro:")
    head = list(vm)
    first = dict(s0=6, s1=3)
    classes = [(o["k0"], o["k1"])] + ([(o["k0b"], o["k1b"])] if o["k0b"] >= 0 else [])
    if len(classes) > 1:
        a.e(f"s_bitcmp1_b32 s2, {o['kbit']}")
        a.branch("s_cbranch_scc1 L_Apro1")
    for ci, (k0, k1) in enumerate(classes):
        if ci: a.label("L_Apro1")
        vm[:] = head
        W(2)
        for n in range(11):
            if n < 10:
                endstep(a, wait_for(("W", n + 1)) if n < 9 else None)
                stamp(a, o, n + 2, "pro")
                if n + 3 < 10: W(n + 3)
            if n == o["kt"]: late_touches()
            if n == (o["kp"], o["kpb"])[ci]:
                a.e(f"s_mul_i32 s{S_T}, s{S_W}, {o['kpn'] * 128 - 3072}")
                a.e(f"s_add_u32 s{S_T}, s{S_T}, s{S_OV}")
                a.e(f"s_add_u32 s{S_T}, s{S_T}, 49152")
                a.e("v_lshlrev_b32 v30, 7, v0")
                for k in range(0, o["kpn"], 64):
                    m = min(64, o["kpn"] - k)
                    if m < 64: a.e(f"s_mov_b32 exec_hi, {((1 << m) - 1) >> 32}")
                    a.e(f"buffer_load_dword v{A_DUM}, v30, {sq(S_K)}, s{S_T} offen"); vm.append("t")
                    a.e(f"s_add_u32 s{S_T}, s{S_T}, 8192")
                a.e("s_mov_b64 exec, -1")
            if n == k0: K0()
            if n == k1:
                a_burst(a, o, 1, S_K, S_OK); vm.extend([("K", 2)] * 3 + [("K", 3)] * 3)
        endstep(a, wait_for(("K", 0)))
        first = dict(s0=min(first["s0"], wait_for(("K", 1))), s1=min(first["s1"], wait_for(("K", 2))))
        if ci == 0 and len(classes) > 1: a.branch("s_branch L_Aper")

    a.label("L_Aper")
    stamp(a, o, (1, S_PER, 4))
    for s in range(32):
        a.comment(f"A step {s}")
        if s == 16: stamp(a, o, (5, S_PER, 4))
        g_ = o["tkg"]
        if s % g_ == 0 and o["tk0"] <= s < o["tk0"] + 12 * g_: stamp(a, o, (1 + (s - o["tk0"]) // g_ - o["tkp"], S_PER, o["tkp"] + 1, o["tkp"]), "tick")
        vmw = 4 if ((s - 1) >> 1) in pf_sites(o) else 3
        bt = []
        if s == 0:
            a.e(f"s_cmp_eq_u32 s{S_PER}, 0")
            a.branch("s_cbranch_scc1 L_A0")
            a_burst(a, o, 1, S_K, S_OK)
            a.label("L_A0")
            for ks in range(6):
                for t in a_qread(ks): a.e(t)
            vmw = min(6, first["s0"])
        elif s == 1:
            vmw = min(3, first["s1"])
        elif s == 30:
            a.e(f"s_cmp_eq_u32 s{S_PER}, 3")
            a.branch("s_cbranch_scc1 L_A30")
            a_burst(a, o, 0, S_K, S_OK)
            a.label("L_A30")
            vmw = 6
        elif s % 2 == 0:
            vmw = 6
            D = ((s >> 1) + 1) & 1
            bt = rec(a_burst, o, D, *((S_K, S_OK) if s < 14 else (S_V, S_OV)), s in (12, 28))
            if (s >> 1) in pf_sites(o):
                high = (s >> 1) % 2 == 0
                bt.append(f"s_lshl_b32 s{S_T}, s{S_PER}, 4")
                bt.append(f"s_add_u32 s{S_T}, s{S_T}, {s>>1}")
                bt.append(f"s_bitcmp1_b64 s[{S_PFM}:{S_PFM+1}], s{S_T}")
                bt.append(f"s_cselect_b32 s{S_T}, s{S_PFO}, {OOB}")
                if high: bt.append(f"s_cselect_b32 s{S_T2}, s{S_PFS}, 0")
                bt.append(f"s_mov_b32 {'exec_lo' if high else 'exec_hi'}, 0")
                bt.append(f"buffer_load_dword v{A_DUM}, v{A_PF}, {sq(S_PF)}, s{S_T} offen{pp}")
                bt.append("s_mov_b64 exec, -1")
                if high: bt.append(f"s_add_u32 s{S_PFO}, s{S_PFO}, s{S_T2}")
                vmw = 7
            if o["adma"] == 0 and not (s == 16 and o["t16"]) and not (s > 16 and o["vweave"]):
                for t in bt: a.e(t)
                bt = []
        if s == 5:
            a.comment("the entry reads have landed: count this workgroup in (d_debug word of the group)")
            a.e(f"s_and_b32 s{S_T}, s{S_HG}, 3")
            a.e(f"s_xor_b32 s{S_T}, s{S_T}, s{S_PER}")
            a.e(f"s_or_b32 s{S_T}, s{S_T}, s{S_W}")
            a.branch("s_cbranch_scc1 L_sy1")
            a.e("s_lshl_b32 s45, s44, 3")
            a.e(f"v_mov_b32 v{A_T0}, s45")
            a.e(f"v_mov_b32 v{A_T1}, 1")
            a.e("s_mov_b64 exec, 1")
            a.e(f"buffer_atomic_add v{A_T1}, v{A_T0}, {sq(S_DBG)}, 0 offen")
            a.e("s_mov_b64 exec, -1")
            a.label("L_sy1")
        if o["pdma"] == 3 and s % 2: bt = ["s_barrier"]
        if s in (1, 2):
            ow = sum((a_owrite(i) for i in (range(o["ows"]) if s == 1 else range(o["ows"], 6))), [])
            if o["owf"]: a_kstep(a, o, s, ow, pre=bt)
            else:
                a_kstep(a, o, s, pre=bt)
                for t in ow: a.e(t)
        elif s < 16: a_kstep(a, o, s, pre=bt)
        else: a_vstep(a, o, s - 16, pre=bt)
        if s == 30:
            a.e(f"s_cmp_eq_u32 s{S_PER}, 3")
            a.branch("s_cbranch_scc0 L_A30j")
            a.e("s_waitcnt vmcnt(0)")
            a.label("L_A30j")
        if o["stamps"] == 7 and s in (0, 1, 2, 3):
            stamp(a, o, (1 + 3 * s - 1, S_PER, 2, 1), "s1")
            a.e(f"s_waitcnt vmcnt({vmw})")
            stamp(a, o, (2 + 3 * s - 1, S_PER, 2, 1), "s1")
            a.e("s_barrier")
            stamp(a, o, (3 + 3 * s - 1, S_PER, 2, 1), "s1")
            continue
        endstep(a, vmw + o["kvx"])
    a.e(f"s_add_u32 s{S_PER}, s{S_PER}, 1")
    a.e(f"s_cmp_lt_u32 s{S_PER}, 4")
    a.branch("s_cbranch_scc1 L_Aper")
    a.label("L_Aend")
    stamp(a, o, 9)
    stamp(a, o, 1, "tail")
    tail_offsets(a, 128, S_MK, S_OK, "v0", (T0, T1))
    tail_tile(a, o, 128, S_MK, S_OK, 4)
    stamp(a, o, 2, "tail")
    for p in range(4):
        a.e(f"s_waitcnt vmcnt({6 if p in (1, 2) else 0})")
        a.e("s_barrier")
        stamp(a, o, p + 3, "tail")
        for n in ([5, 6], [7, 8], [9], [])[p]: tail_tile(a, o, 128, S_MK, S_OK, n)
    a.e(f"s_cmp_lg_u32 s{S_W}, 0")
    a.branch("s_cbranch_scc1 L_red")
    a.e("s_lshl_b32 s45, s44, 3")
    a.e("v_mov_b32 v28, s45")
    spin(a, "in", f"buffer_load_dword v29, v28, {sq(S_DBG)}, 0 offen sc1", ["v_readfirstlane_b32 s41, v29", "s_cmp_ge_u32 s41, 8"])
    a.e("v_lshlrev_b32 v28, 2, v0")
    a.e(f"v_add_u32 v28, {EB}, v28")
    a.e(f"ds_write_b32 v28, v{A_FI}")
    a.e("v_mov_b32 v29, 0")
    a.e("ds_write_b32 v28, v29 offset:256")


def reduce_chunk(a, o, k, base):
    a.e(f"s_lshl_b32 s41, s{k}, 10")
    a.e(f"s_add_u32 s41, s41, {WB}")
    a.e(f"v_add_u32 v3, s41, v1")
    a.e(f"v_add_u32 v6, 40960, v3")
    for i in range(8):
        a.e(f"ds_read_b128 {v(base+4*i,4)}, v{3 if i < 4 else 6} offset:{(i&3)*10240}")
    a.e(f"s_mul_i32 s43, s{S_HG}, 10")
    a.e(f"s_add_u32 s43, s43, s{k}")
    a.e("s_and_b32 s41, s43, 1")
    a.e("s_lshl_b32 s41, s41, 5")
    a.e("s_lshr_b32 s43, s43, 1")
    a.e(f"s_lshl_b32 s42, s{S_B}, 6")
    a.e("s_add_u32 s42, s42, s41")
    a.e("s_mul_i32 s42, s42, 2560")
    a.e(f"s_mul_i32 s41, s{S_BR}, 1280")
    a.e("s_add_u32 s42, s42, s41")
    a.e("s_lshl_b32 s43, s43, 5")
    a.e("s_add_u32 s42, s42, s43")
    ac = base + 32
    for i in range(8):
        for n in range(4):
            r = base + 4 * i + n
            if i == 0:
                a.e(f"v_lshlrev_b32 v{ac+2*n}, 16, v{r}")
                a.e(f"v_and_b32 v{ac+1+2*n}, 0xffff0000, v{r}")
            elif o["dot"]:
                a.e(f"v_dot2_f32_bf16 v{ac+2*n}, v{r}, s40, v{ac+2*n}")
                a.e(f"v_dot2_f32_bf16 v{ac+1+2*n}, v{r}, s47, v{ac+1+2*n}")
            else:
                a.e(f"v_lshlrev_b32 v4, 16, v{r}")
                a.e(f"v_and_b32 v5, 0xffff0000, v{r}")
                a.e(f"v_add_f32 v{ac+2*n}, v{ac+2*n}, v4")
                a.e(f"v_add_f32 v{ac+2*n+1}, v{ac+2*n+1}, v5")
    if o["dot"]: a.e("s_nop 2")
    for n in range(4): a.e(f"v_cvt_pk_bf16_f32 v{base+n}, v{ac+2*n}, v{ac+1+2*n}")
    a.e(f"buffer_store_dwordx4 {v(base,4)}, v2, {sq(S_OUT)}, s42 offen{pol(o['outpol'])}")


def gen_tail(a, o):
    a.label("L_red")
    lane_id(a, 0)
    a.e(f"s_lshl_b32 s44, s{S_BR}, 4")
    a.e(f"s_add_u32 s44, s44, s{S_B}")
    a.e("s_lshl_b32 s45, s44, 10")
    a.e(f"s_add_u32 s45, s45, {FLAGS}")
    a.e(f"s_lshl_b32 s46, s{S_HG}, 7")
    a.e("s_add_u32 s46, s46, s45")
    a.e(f"s_lshl_b32 s40, s{S_WAVE}, 2")
    a.e(f"s_add_u32 s40, s40, {EB}")
    a.e("v_mov_b32 v3, s40")
    a.e("v_and_b32 v28, 7, v0")
    a.e("v_lshlrev_b32 v29, 7, v28")
    a.e("v_lshlrev_b32 v1, 4, v0")
    a.e("v_lshlrev_b32 v28, 2, v28")
    a.e(f"s_cmp_lg_u32 s{S_WAVE}, 4")
    a.e("s_barrier")
    a.branch("s_cbranch_scc1 L_go")
    stamp(a, o, 10)
    a.e(f"v_add_u32 v{A_FO}, 1, v{A_FO}")
    a.e("s_mov_b64 exec, 0xff")
    a.e(f"buffer_store_dword v{A_FO}, v29, {sq(S_WS)}, s47 offen sc1")
    a.e("s_mov_b64 exec, -1")
    a.label("L_go")
    a.e(f"s_cmp_eq_u32 s{S_WAVE}, s{S_HG}")
    a.branch("s_cbranch_scc0 L_fetch")
    a.e(f"v_add_u32 v5, {EB}, v28")
    a.e("ds_read_b32 v4, v5")
    a.e("s_mov_b64 exec, 0xff")
    spin(a, "poll", f"buffer_load_dword v30, v28, {sq(S_WS)}, s46 offen sc1",
         ["v_cmp_ne_u32 vcc, v30, v4", "v_cndmask_b32 v6, 0, 1, vcc", "ds_write_b32 v5, v6 offset:256",
          f"s_bitset1_b32 vcc_lo, s{S_HG}", "s_cmp_eq_u32 vcc_lo, 0xff"], o["nap"])
    a.e("s_mov_b64 exec, -1")
    a.branch("s_branch L_staged")
    a.label("L_fetch")
    a.e("s_lshl_b32 s45, s44, 3")
    a.e(f"s_add_u32 s45, s45, s{S_WAVE}")
    a.e("s_mul_i32 s45, s45, 81920")
    a.e(f"s_mul_i32 s43, s{S_HG}, 10240")
    a.e("s_add_u32 s45, s45, s43")
    a.e(f"s_mul_i32 s43, s{S_WAVE}, 10240")
    a.e(f"s_add_u32 s43, s43, {WB}")
    spin(a, "seen", "ds_read_b32 v4, v3 offset:256", ["v_readfirstlane_b32 s41, v4", "s_cmp_lg_u32 s41, 0"], 1, 0x400000)
    a.e("v_add_u32 v3, s43, v1")
    for k in range(10):
        a.e(f"buffer_load_dwordx4 {v(8+4*k,4)}, v1, {sq(S_WS)}, s45 offen offset:{(k&3)*1024}{pol(o['ldpol'])}")
        if k & 3 == 3: a.e("s_add_u32 s45, s45, 4096")
    for k in range(10):
        a.e(f"s_waitcnt vmcnt({9-k})")
        a.e(f"ds_write_b128 v3, {v(8+4*k,4)} offset:{k*1024}")
    a.label("L_staged")
    a.e("v_and_b32 v2, 31, v0")
    a.e("v_mul_u32_u24 v2, 2560, v2")
    a.e("v_lshrrev_b32 v3, 5, v0")
    a.e("v_lshl_add_u32 v2, v3, 4, v2")
    a.e(f"s_mov_b32 s45, s{S_WAVE}")
    a.e("s_mov_b32 s40, 0x3f80")
    a.e("s_mov_b32 s47, 0x3f800000")
    a.e("s_barrier")
    stamp(a, o, 11)
    reduce_chunk(a, o, 45, 8)
    a.e(f"s_cmp_lt_u32 s{S_WAVE}, 2")
    a.branch("s_cbranch_scc0 L_fin")
    a.e("s_add_u32 s45, s45, 8")
    reduce_chunk(a, o, 45, 48)


def gen_main(a, o):
    a.raw(f".globl {KN}\n.p2align 8\n.type {KN},@function\n{KN}:")
    a.e(f"s_cmp_ge_u32 s2, {o['nact']}")
    a.e("s_cbranch_scc1 L_end")
    if o["dbgt"]: a.e("s_memrealtime s[90:91]")
    if o["stamps"]:
        a.e("s_memrealtime s[90:91]")
        a.e("s_memtime s[86:87]")
    a.e("s_load_dwordx2 s[34:35], s[0:1], 96")
    a.e("s_load_dwordx4 s[64:67], s[0:1], 80")
    a.e("s_and_b32 s3, s2, 7")
    a.e("s_lshr_b32 s5, s3, 2")
    a.e("s_mul_i32 s32, s5, 40")
    a.e("s_add_u32 s0, s0, s32")
    a.e("s_addc_u32 s1, s1, 0")
    a.e("s_load_dwordx4 s[44:47], s[0:1], 24")
    a.e("s_load_dwordx2 s[36:37], s[0:1], 0")
    a.e("s_load_dwordx4 s[40:43], s[0:1], 8")
    a.e("v_lshrrev_b32 v1, 6, v0")
    a.e("v_and_b32 v0, 63, v0")
    a.e("v_readfirstlane_b32 s32, v1")
    a.e("s_lshr_b32 s4, s2, 3")
    a.e("s_and_b32 s7, s4, 15")
    a.e("s_lshr_b32 s4, s4, 4")
    a.e("s_and_b32 s6, s3, 3")
    a.e("s_lshl_b32 s6, s6, 1")
    a.e("s_add_u32 s6, s6, s4")
    if o["stamps"] >= 2:
        a.e("s_waitcnt lgkmcnt(0)")
        for i in range(16): a.e(f"s_mov_b32 s{70+i}, s90")
        stamp(a, o, 1, "start")
    entry_touches(a, o)
    stamp(a, o, 9, "start")
    a.e("s_and_b32 s33, s32, 3")
    a.e("s_cmp_lt_u32 s32, 4")
    a.branch("s_cbranch_scc1 L_P")
    gen_A(a, o)
    gen_tail(a, o)
    a.label("L_fin")
    if o["dbgt"] == 2:
        a.comment("diagnostic build: doubles the in-kernel span so that launch overhead and span can be separated")
        a.e("s_memrealtime s[92:93]")
        a.e("s_waitcnt lgkmcnt(0)")
        a.e("s_sub_u32 s94, s92, s90")
        a.e("s_min_u32 s94, s94, 20000")
        a.label("L_dbl")
        a.e("s_memrealtime s[90:91]")
        a.e("s_waitcnt lgkmcnt(0)")
        a.e("s_sub_u32 s95, s90, s92")
        a.e("s_cmp_lt_u32 s95, s94")
        a.branch("s_cbranch_scc1 L_dbl")
    if o["dbgt"] == 1:
        a.e("s_memrealtime s[92:93]")
        a.e("s_waitcnt lgkmcnt(0)")
        a.e("s_sub_u32 s92, s92, s90")
        a.e("s_lshl_b32 s40, s2, 3"); a.e("s_add_u32 s40, s40, 4")
        a.e("s_cmp_eq_u32 s32, 0"); a.e(f"s_cselect_b32 s40, s40, {OOB}")
        a.e("v_mov_b32 v4, s92"); a.e("v_mov_b32 v1, 0")
        a.e("s_mov_b64 exec, 1")
        a.e(f"buffer_store_dword v4, v1, {sq(S_DBG)}, s40 offen")
    if o["stamps"]:
        a.e("s_memrealtime s[92:93]")
        a.e("s_memtime s[88:89]")
        a.e("s_waitcnt lgkmcnt(0)")
        a.e("s_sub_u32 s85, s88, s86")
        a.e("s_getreg_b32 s84, hwreg(HW_REG_XCC_ID, 0, 4)")
        a.e("s_getreg_b32 s83, hwreg(HW_REG_HW_ID)")
        a.e("v_mov_b32 v4, s90"); a.e("v_mov_b32 v5, s91"); a.e("v_mov_b32 v6, s92"); a.e("v_mov_b32 v7, s93")
        a.e("s_lshl_b32 s40, s2, 3"); a.e("s_add_u32 s40, s40, s32"); a.e("s_lshl_b32 s40, s40, 4")
        a.e("s_add_u32 s40, s40, 0x2000000")
        a.e("v_mov_b32 v1, 0")
        a.e(f"buffer_store_dwordx4 v[4:7], v1, {sq(S_WS)}, s40 offen")
        if o["stamps"] >= 2:
            a.e("s_lshl_b32 s40, s2, 3"); a.e("s_add_u32 s40, s40, s32"); a.e("s_lshl_b32 s40, s40, 6")
            a.e("s_add_u32 s40, s40, 0x2100000")
            for k in range(4):
                for i in range(4): a.e(f"v_mov_b32 v{8+4*k+i}, s{70+4*k+i}")
                a.e(f"buffer_store_dwordx4 v[{8+4*k}:{11+4*k}], v1, {sq(S_WS)}, s40 offen offset:{16*k}")
    a.e("s_endpgm")
    gen_P(a, o)
    a.label("L_end")
    a.e("s_endpgm")


def droppings(t, d):
    keep = []; cnt = cnt2 = cnt3 = 0; role = ""
    for l in t.split("\n"):
        if l.startswith(("L_PQa", "L_PO:", "L_PQb")): role = "P"
        if l.startswith(("L_Ptail", "L_Aend", "L_Pcyc")): role = ""
        if l.startswith("L_Aper"): role = "A"
        if l.startswith("L_Ppro"): role = "p"
        if l.startswith("L_Apro"): role = "a"
        if "x" in d and role == "p" and l.strip().startswith(("v_", "ds_")): continue
        if "y" in d and role == "a" and l.strip().startswith("buffer_load_dwordx4") and "s[8:11]" not in l: continue
        if "z" in d and role == "a" and l.strip().startswith("buffer_load_dwordx4") and "s[8:11]" in l: continue
        x = l.strip()
        if "k" in d and role == "A" and x.startswith("buffer_load"): continue
        if "w" in d and role == "P" and x.startswith("buffer_load"): continue
        if "a" in d and role == "A" and x.startswith(("v_", "ds_")) and not x.startswith("v_mov_b32"): continue
        if "p" in d and role == "P" and x.startswith(("v_", "ds_")): continue
        if "m" in d and role in ("A", "P") and x.startswith("v_mfma"): continue
        if "r" in d and role in ("A", "P") and x.startswith("ds_read"): continue
        if "h" in d and role == "A" and x.startswith("ds_read"):
            cnt += 1
            if (cnt // (2 if "tr" in x else 1)) % 2: continue
        if "g" in d and role == "P" and x.startswith("ds_read_b64_tr"):
            cnt2 += 1
            if (cnt2 // 2) % 2: continue
        if "T" in d and x.startswith("buffer_store_dwordx4") and "s[28:31]" in x and "sc1" in x: continue
        if "L" in d and x.startswith("buffer_load_dwordx4") and "s[28:31]" in x: continue
        if "v" in d and role == "A" and x.startswith(("v_exp", "v_fma", "v_add_f32", "v_max3")): continue
        if "A" in d and role == "A" and x.startswith("v_mfma"): continue
        if "P" in d and role == "P" and x.startswith("v_mfma"): continue
        if ("s" in d or "S" in d) and role == "P" and x.startswith("v_mfma_f32_32x32x16"):
            m = re.match(r"v_mfma_f32_32x32x16_bf16 v\[(\d+):\d+\], (v\[\d+:\d+\]), (v\[\d+:\d+\]), (.*)", x)
            cnt3 += 1
            for k in range(2):
                b = int(m.group(1)) + 4 * k + 8 * (cnt3 & 1)
                bo = m.group(3) if (k == 0 or "S" not in d) else {"v[16:19]": "v[20:23]", "v[20:23]": "v[16:19]"}[m.group(3)]
                keep.append(f"    v_mfma_f32_16x16x32_bf16 v[{b}:{b+3}], {m.group(2)}, {bo}, v[{b}:{b+3}]")
            continue
        keep.append(l)
    return "\n".join(keep)


def gen(**kw):
    o = dict(DEFAULTS); o.update(kw)
    a = Asm()
    if o["stamps"]: a.raw(f"; stamps={8*o['nact']} @0x2000000")
    a.raw(f"; @launch grid=(256,1,1) block=(512,1,1) lds={LDS}")
    a.raw('.amdgcn_target "amdgcn-amd-amdhsa--gfx950"\n.text')
    gen_main(a, o)
    a.raw(f""".section .rodata,"a"
.p2align 6
.amdhsa_kernel {KN}
  .amdhsa_next_free_vgpr 256
  .amdhsa_next_free_sgpr 102
  .amdhsa_accum_offset 256
  .amdhsa_group_segment_fixed_size 0
  .amdhsa_kernarg_size 104
  .amdhsa_user_sgpr_count 2
  .amdhsa_user_sgpr_kernarg_segment_ptr 1
  .amdhsa_system_sgpr_workgroup_id_x 1
.end_amdhsa_kernel""")
    t = a.text()
    return droppings(t, o["drop"]) if o["drop"] else t


if __name__ == "__main__":
    out = sys.argv[1]
    kw = {}
    for x in sys.argv[2:]:
        k, val = x.split("=")
        kw[k] = int(val) if val.lstrip("-").isdigit() else val.replace("+", " ")
    open(out, "w").write(gen(**kw))
```

```python
import sys, math, struct, re
from asmlib import Asm

NAME = "concat_heads__gqa_block_cached__gqa_block_cached__near_ridge"
KN = NAME + "_kernel"
WB, XB, EB, LDS = 49152, 131072, 155648, 163840
KV_BYTES, W_BYTES, X_BYTES, OUT_BYTES, WS_BYTES = 100663296, 7864320, 1310720, 2621440, 64 << 20
OOB = 0x40000000
FLAGS = 0x1800000
CSCALE = struct.unpack("<I", struct.pack("<f", math.log2(math.e) / math.sqrt(192.0)))[0]

DEFAULTS = dict(kvpol="nt", wpol="", pfpol="", xpol="", stpol="sc1", ldpol="sc1", outpol="", stamps=0, prio=0,
                adepth=8, pq=12, po=9, pdma=1, drop="", nact=256, k0=5, k1=7, k0b=-1, k1b=7, kbit=3, kt=7, kp=-1, kpb=-1, kpn=48, prod=12, codepf=0, pfa=5, pfo=9, pfb=4, kvx=0, warm=65536, xbar=11, vspan=9, adma=0, sprio=0, nap=4, tst=1, rot=0, kord=0, dbgt=0, tk0=0, tkp=0, tkg=2, ows=3, owf=1, t16=2, vweave=0, tx=1, dot=1, tq=1, psplit=2)

S_HALF, S_BR, S_HG, S_B = 4, 5, 6, 7
S_K, S_V, S_WQ, S_WO, S_XI, S_WS, S_OUT = 8, 12, 16, 20, 24, 28, 64
S_WAVE, S_W, S_DBG, S_T, S_T2 = 32, 33, 36, 57, 59


def v(a, n=1):
    return f"v{a}" if n == 1 else f"v[{a}:{a+n-1}]"


def sq(a):
    return f"s[{a}:{a+3}]"


def pol(s):
    return (" " + s) if s else ""


class Rec:
    def __init__(self): self.t = []
    def e(self, x): self.t.append(x)


def rec(fn, *args):
    r = Rec(); fn(r, *args); return r.t


def srd(a, base, src, size):
    if src != base: a.e(f"s_mov_b32 s{base}, s{src}")
    a.e(f"s_and_b32 s{base+1}, s{src+1}, 0xffff")
    a.e(f"s_mov_b32 s{base+2}, {size}")
    a.e(f"s_mov_b32 s{base+3}, 0x20000")


def entry_touches(a, o):
    pp = pol(o["pfpol"])
    a.e(f"s_lshl_b32 s{S_T}, s{S_WAVE}, 4")
    a.e(f"v_add_u32 v2, s{S_T}, v0")
    a.e("v_mul_u32_u24 v3, 21846, v2")
    a.e("v_mul_u32_u24 v6, 1280, v0")
    a.e("v_lshrrev_b32 v3, 16, v3")
    a.e(f"v_mul_u32_u24 v7, {o['warm']}, v0")
    a.e("v_mul_u32_u24 v4, 3, v3")
    a.e("v_mul_u32_u24 v3, 12288, v3")
    a.e("v_sub_u32 v4, v2, v4")
    a.e(f"s_mul_i32 s48, s{S_B}, {40*12288}")
    a.e("v_lshl_add_u32 v3, v4, 7, v3")
    a.e(f"s_mul_i32 s{S_T}, s{S_HG}, 1536")
    a.e(f"s_add_u32 s48, s48, s{S_T}")
    a.e(f"s_cmp_eq_u32 s{S_WAVE}, 7")
    a.e("s_cselect_b32 s49, 8, 16")
    a.e("s_bfm_b32 s49, s49, 0")
    a.e(f"s_mul_i32 s50, s{S_B}, 81920")
    a.e(f"s_lshl_b32 s51, s{S_B}, 3"); a.e(f"s_add_u32 s51, s51, s{S_HG}")
    a.e(f"s_mul_i32 s51, s51, 786432")
    a.e(f"s_cmp_eq_u32 s{S_WAVE}, 0"); a.e(f"s_cselect_b32 s50, s50, {OOB}")
    a.e(f"s_cmp_eq_u32 s{S_WAVE}, 1"); a.e(f"s_cselect_b32 s52, s51, {OOB}")
    a.e(f"s_cmp_eq_u32 s{S_WAVE}, 2"); a.e(f"s_cselect_b32 s53, s51, {OOB}")
    a.e("s_mov_b32 exec_hi, 0")
    a.e("s_mov_b32 exec_lo, s49")
    a.e("s_waitcnt lgkmcnt(0)")
    srd(a, S_WQ, 44, W_BYTES)
    a.e(f"buffer_load_dword v255, v3, {sq(S_WQ)}, s48 offen{pp}")
    a.e("s_mov_b64 exec, -1")
    srd(a, S_XI, 36, X_BYTES)
    a.e(f"buffer_load_dword v255, v6, {sq(S_XI)}, s50 offen{pp}")
    a.e(f"s_mov_b64 exec, {(1 << (786432 // o['warm'])) - 1}")
    srd(a, S_K, 40, KV_BYTES)
    a.e(f"buffer_load_dword v255, v7, {sq(S_K)}, s52 offen nt")
    srd(a, S_V, 42, KV_BYTES)
    a.e(f"buffer_load_dword v255, v7, {sq(S_V)}, s53 offen nt")
    a.e("s_mov_b64 exec, -1")
    srd(a, S_WO, 46, W_BYTES); srd(a, S_WS, 34, WS_BYTES)
    srd(a, S_DBG, 66, 256)
    srd(a, S_OUT, 64, OUT_BYTES)


def pipe(a, reads, mfmas, fill, depth, span=None, skip=0):
    n = len(mfmas)
    span = span or n
    for i in range(min(depth, n)):
        for t in reads[i]: a.e(t)
    done = 0
    for i in range(n):
        for t in ([mfmas[i]] if isinstance(mfmas[i], str) else mfmas[i]): a.e(t)
        if i + depth < n:
            for t in reads[i + depth]: a.e(t)
        upto = len(fill) * max(min(i + 1, span) - skip, 0) // (span - skip)
        for t in fill[done:upto]: a.e(t)
        done = upto


def interleave(a, chains):
    for i in range(max(map(len, chains))):
        for c in chains:
            if i < len(c): a.e(c[i])


def div24(a, dst_row, dst_rem, src, tmp):
    a.e(f"v_mul_u32_u24 {tmp}, 2731, {src}")
    a.e(f"v_lshrrev_b32 {dst_row}, 16, {tmp}")
    a.e(f"v_mul_u32_u24 {tmp}, 24, {dst_row}")
    a.e(f"v_sub_u32 {dst_rem}, {src}, {tmp}")


def stamp(a, o, k, tag=''):
    if {2: "", 3: "pro", 4: "tail", 5: "start", 6: "tick", 7: "s1"}.get(o["stamps"]) != tag: return
    a.e("s_waitcnt lgkmcnt(0)")
    a.e("s_memrealtime s[94:95]")
    a.e("s_waitcnt lgkmcnt(0)")
    if isinstance(k, int): a.e(f"s_mov_b32 s{70+k}, s94")
    else:
        base, reg, n = k[:3]
        for i in range(k[3] if len(k) > 3 else 0, n):
            a.e(f"s_cmp_eq_u32 s{reg}, {i}")
            a.e(f"s_cselect_b32 s{70+base+i}, s94, s{70+base+i}")


def endstep(a, vm=None):
    a.e("s_waitcnt lgkmcnt(0)" if vm is None else f"s_waitcnt vmcnt({vm}) lgkmcnt(0)")
    a.e("s_barrier")


def idle(a, tag, n):
    if n <= 2:
        for _ in range(n): a.e("s_barrier")
        return
    a.e(f"s_mov_b32 s{S_T}, {n}")
    a.label(f"L_{tag}")
    a.e("s_barrier")
    a.e(f"s_sub_u32 s{S_T}, s{S_T}, 1")
    a.e(f"s_cmp_lg_u32 s{S_T}, 0")
    a.branch(f"s_cbranch_scc1 L_{tag}")


def idle_steps(a, o, tag, r0, r1):
    n = sum(1 + (r == 17) + (o["pdma"] == 3 and r % 2 == 0) for r in range(r0, r1))
    idle(a, tag, n)


def lane_id(a, r):
    a.e(f"v_mbcnt_lo_u32_b32 v{r}, -1, 0")
    a.e(f"v_mbcnt_hi_u32_b32 v{r}, -1, v{r}")


def dma_offsets_q(a, vq, vx, t):
    chains = []
    for j in range(3):
        r = Rec()
        T0, T1, T2, T3 = (f"v{t+4*j+k}" for k in range(4))
        r.e(f"v_add_u32 {T0}, {64*j}, v0")
        div24(r, T1, T2, T0, T3)
        r.e(f"v_and_or_b32 {T3}, {T1}, 2, s{S_T}")
        r.e(f"v_xor_b32 {T2}, {T2}, {T3}")
        r.e(f"v_mul_u32_u24 {T1}, 12288, {T1}")
        r.e(f"v_lshl_add_u32 {T1}, {T2}, 4, {T1}")
        r.e(f"v_subrev_u32 v{vq+j}, {1024*j}, {T1}")
        chains.append(r.t)
    T0, T1 = f"v{t+12}", f"v{t+13}"
    a.e(f"s_and_b32 s{S_T}, s{S_W}, 1")
    a.e(f"s_lshl_b32 s{S_T}, s{S_T}, 2")
    chains.append([f"v_lshrrev_b32 {T0}, 3, v0", f"v_and_b32 {T0}, 6, {T0}", f"v_and_b32 {T1}, 7, v0",
                   f"v_xor_b32 {T0}, {T0}, {T1}", f"v_lshrrev_b32 {T1}, 3, v0", f"v_mul_u32_u24 {T1}, 1280, {T1}",
                   f"v_lshl_add_u32 v{vx}, {T0}, 4, {T1}"])
    interleave(a, chains)


def wq_share(a, dst, T0, T1, T2):
    a.e(f"s_and_b32 s{S_T}, s{S_W}, 1")
    a.e(f"s_lshl_b32 s{S_T}, s{S_T}, 6")
    a.e(f"v_add_u32 {T0}, s{S_T}, v0")
    a.e(f"v_mul_u32_u24 {T1}, 21846, {T0}")
    a.e(f"v_lshrrev_b32 {T1}, 16, {T1}")
    a.e(f"v_mul_u32_u24 {T2}, 3, {T1}")
    a.e(f"v_sub_u32 {T2}, {T0}, {T2}")
    a.e(f"v_mul_u32_u24 {T1}, 12288, {T1}")
    a.e(f"v_lshl_add_u32 {dst}, {T2}, 7, {T1}")


def scalars_q(a, mq, mx, oq, ox, head):
    a.e(f"s_mul_i32 s{mq}, s{S_W}, 3072")
    a.e(f"s_lshl_b32 s{mx}, s{S_W}, 10")
    a.e(f"s_mul_i32 s{oq}, s{S_HG}, 1536")
    a.e(f"s_mul_i32 s{S_T}, s{S_W}, {8*12288}")
    a.e(f"s_add_u32 s{oq}, s{oq}, s{S_T}")
    if head: a.e(f"s_add_u32 s{oq}, s{oq}, {384*head}")
    a.e(f"s_mul_i32 s{ox}, s{S_B}, 81920")
    a.e(f"s_mul_i32 s{S_T}, s{S_W}, {8*1280}")
    a.e(f"s_add_u32 s{ox}, s{ox}, s{S_T}")


def burst_q(a, o, R, la, lx, lb):
    vq, vx, mq, mx, oq, ox = R
    wp, xp = pol(o["wpol"]), pol(o["xpol"])
    a.e(f"s_add_u32 m0, s{mq}, {la}")
    a.e(f"s_add_u32 s{S_T}, s{ox}, {32*1280}")
    for j in range(3):
        a.e(f"buffer_load_dwordx4 v{vq+j}, {sq(S_WQ)}, s{oq} offen offset:{1024*j}{wp} lds")
    a.e(f"s_add_u32 m0, s{mx}, {lx}")
    a.e(f"s_add_u32 s{oq}, s{oq}, {32*12288}")
    a.e(f"buffer_load_dwordx4 v{vx}, {sq(S_XI)}, s{ox} offen{xp} lds")
    a.e(f"s_add_u32 m0, s{mx}, {lx+4096}")
    a.e(f"s_add_u32 s{ox}, s{ox}, 128")
    a.e(f"buffer_load_dwordx4 v{vx}, {sq(S_XI)}, s{S_T} offen{xp} lds")
    a.e(f"s_add_u32 m0, s{mq}, {lb}")
    a.e("s_nop 0")
    for j in range(3):
        a.e(f"buffer_load_dwordx4 v{vq+j}, {sq(S_WQ)}, s{oq} offen offset:{1024*j}{wp} lds")
    a.e(f"s_add_u32 s{oq}, s{oq}, {32*12288}")


def tail_slot(n):
    k = n % 5
    return WB + k * 24576 if k < 3 else (k - 3) * 24576


def tail_offsets(a, vt, mt, ot, lane, T):
    T0, T1 = T
    a.e(f"v_lshrrev_b32 {T0}, 3, {lane}")
    a.e(f"v_and_b32 {T0}, 2, {T0}")
    a.e(f"v_and_b32 {T1}, 7, {lane}")
    a.e(f"v_xor_b32 {T0}, {T0}, {T1}")
    a.e(f"v_lshrrev_b32 {T1}, 3, {lane}")
    a.e(f"v_mul_u32_u24 {T1}, 1280, {T1}")
    a.e(f"v_lshl_add_u32 v{vt}, {T0}, 4, {T1}")
    a.e(f"v_xor_b32 v{vt+1}, 64, v{vt}")
    a.e(f"s_mul_i32 s{mt}, s{S_W}, 6144")
    a.e(f"s_mul_i32 s{ot}, s{S_HG}, {4*245760}")
    a.e(f"s_mul_i32 s{S_T2}, s{S_W}, {48*1280}")
    a.e(f"s_add_u32 s{ot}, s{ot}, s{S_T2}")
    a.e(f"s_add_u32 s{ot}, s{ot}, {3*245760}")


def tail_tile(a, o, vt, mt, ot, n):
    for j in range(6):
        a.e(f"s_add_u32 m0, s{mt}, {tail_slot(n) + 1024*j}")
        a.e(f"s_add_u32 s{S_T2}, s{ot}, {128*n + 8*1280*j}")
        a.e(f"buffer_load_dwordx4 v{vt+(j&1)}, {sq(S_WO)}, s{S_T2} offen{pol(o['wpol'])} lds")


PRO_W, PRO_X = 24576, 122880
PRO_XO = (8192, 16384, 0, 32768)


PY, PQ, PFA, PFB = 96, 48, 36, 20
P_T0, P_VQ, P_VX, P_VO, P_AQ, P_AW, P_AX, P_AO, P_T1, P_QW, P_DUM = 0, 1, 4, 5, 10, 13, 15, 16, 17, 18, 19
S_C, S_MQ, S_MX, S_MO, S_OQ, S_OX, S_OO, S_P, S_OWN = 50, 51, 52, 53, 54, 55, 56, 58, 49
PR = (P_VQ, P_VX, S_MQ, S_MX, S_OQ, S_OX)


def p_burst_q(a, o, D):
    b = WB + D * 40960
    burst_q(a, o, PR, b, b + 32768, b + 20480)
    return 8


def p_burst_o(a, o, D):
    wp = pol(o["wpol"])
    for h in range(2):
        b = WB + D * 40960 + h * 20480
        a.e(f"s_add_u32 m0, s{S_MO}, {b}")
        a.e(f"s_add_u32 s{S_T}, s{S_OO}, 4096")
        for j in range(4):
            a.e(f"buffer_load_dwordx4 v{P_VO+j}, {sq(S_WO)}, s{S_OO} offen offset:{1024*j}{wp} lds")
        a.e(f"s_add_u32 m0, s{S_MO}, {b+4096}")
        a.e(f"s_add_u32 s{S_OO}, s{S_OO}, 20480")
        a.e(f"buffer_load_dwordx4 v{P_VO+4}, {sq(S_WO)}, s{S_T} offen{wp} lds")
    return 10


def p_toggle(a, regs, D):
    for r in regs:
        a.e(f"v_add_u32 v{r}, 40960, v{r}" if D == 0 else f"v_subrev_u32 v{r}, 40960, v{r}")


def tr_pair(f, addr, off, delta):
    return [f"ds_read_b64_tr_b16 {v(f,2)}, v{addr} offset:{off}", f"ds_read_b64_tr_b16 {v(f+2,2)}, v{addr} offset:{off+delta}"]


def mfma16(acc, fa, fb, zero=False):
    return f"v_mfma_f32_16x16x32_bf16 {v(acc,4)}, {v(fa,4)}, {v(fb,4)}, {'0' if zero else v(acc,4)}"


def quad(reads, mf, rd, acc, f, fb, zero=False):
    for qs in range(4):
        reads.append(rd if qs == 0 else [])
        mf.append(mfma16(acc + 4 * qs, f, fb + 4 * qs, zero))


def p_qstep(a, o, qs, fill=(), pre=()):
    h = qs & 1
    reads, mf = [], []
    for i in range(3):
        quad(reads, mf, tr_pair(PFA + 4 * i, P_AQ + i, h * 20480, 1536), PQ + 16 * i, PFA + 4 * i, PFB, qs == 0)
    ax = P_AX
    if h:
        a.e(f"v_xor_b32 v{P_T0}, 64, v{P_AX}"); ax = P_T0
    xr = [f"ds_read_b128 {v(PFB+4*k,4)}, v{ax} offset:{2048*k}" for k in range(4)]
    reads[0] = xr[:1] + reads[0] + xr[1:]
    if qs == 5: mf[o["xbar"]] = [mf[o["xbar"]], "s_barrier"]
    hoist(a, reads, o["pq"], pre)
    pipe(a, reads, mf, list(fill), o["pq"])
    if h: p_toggle(a, [P_AQ, P_AQ + 1, P_AQ + 2, P_AX], (qs >> 1) & 1)


def p_oreads(a, dst, tau, tmp):
    ao = P_AO
    if tau & 1:
        a.e(f"v_xor_b32 v{tmp}, 64, v{P_AO}"); ao = tmp
    return [f"ds_read_b128 {v(dst+4*k,4)}, v{ao} offset:{6144*k + (tau>>1)*128}" for k in range(4)]


def p_ostep(a, o, s, fill=(), pre=()):
    h = s & 1
    reads, mf = [], []
    for i in range(5):
        T = 5 * h + i
        f = PFA + 4 * (i % 3)
        quad(reads, mf, tr_pair(f, P_AW + (T & 1), (T >> 1) * 256, 5120), PY + 16 * T, f, PFB)
    if not h:
        xr = p_oreads(a, PFB, s >> 1, P_T0)
        reads[0] = xr[:1] + reads[0] + xr[1:]
    hoist(a, reads, o["po"], pre)
    pipe(a, reads, mf, list(fill), o["po"])
    if h: p_toggle(a, [P_AW, P_AW + 1], (s >> 1) & 1)


def p_even(a, o, step, idx, burst, D):
    r = Rec(); n = burst(r, o, D)
    if o["pdma"] == 1:
        for x in r.t: a.e(x)
        step(a, o, idx)
    elif o["pdma"] == 2: step(a, o, idx, r.t)
    elif o["pdma"] == 4: step(a, o, idx, pre=r.t)
    elif o["pdma"] == 5:
        k = len(r.t) * o["psplit"] // 4
        step(a, o, idx, r.t[k:], pre=r.t[:k])
    else:
        step(a, o, idx)
        if o["pdma"] == 3: a.e("s_barrier")
        for x in r.t: a.e(x)
    endstep(a, n)


def p_choice(a, o, tag, cond, first, second):
    if o["pdma"] == 3: a.e("s_barrier")
    if tag == "Pa": stamp(a, o, (4 - 2, S_C, 3, 2), "s1")
    a.e(cond)
    a.branch(f"s_cbranch_scc1 L_{tag}_b")
    a.e(f"s_waitcnt vmcnt({first()})")
    a.branch(f"s_branch L_{tag}_j")
    a.label(f"L_{tag}_b")
    n2 = second()
    if tag == "Pa": stamp(a, o, (5 - 2, S_C, 3, 2), "s1")
    a.e(f"s_waitcnt vmcnt({n2})")
    if tag == "Pa": stamp(a, o, (6 - 2, S_C, 3, 2), "s1")
    a.label(f"L_{tag}_j")
    endstep(a)


PRO_AQ, PRO_AX = 168, 174


def p_prologue(a, o):
    XF, F = 96, 144
    reads, mf = [], []
    for n in range(10):
        s = (n + 2) & 3
        for h in range(2):
            xf = XF + 16 * ((2 * n + h) % 3)
            xr = [f"ds_read_b128 {v(xf+4*k,4)}, v{PRO_AX+h} offset:{PRO_XO[s] + 2048*k}" for k in range(4)]
            for i in range(3):
                f = F + 4 * ((len(mf) // 4) % 6)
                rd = tr_pair(f, PRO_AQ + 3 * (s >> 1) + i, (s & 1) * 24576 + h * 12288, 1536)
                if i == 0: rd = xr[:1] + rd + xr[1:]
                if i == 0 and h == 0 and n: rd = ["s_barrier"] + rd
                quad(reads, mf, rd, PQ + 16 * i, f, xf, n == 0 and h == 0)
    pipe(a, reads, mf, [], o["prod"])


def p_pack_block(a, i):
    y = PY + 16 * i
    for k in range(8): a.e(f"v_cvt_pk_bf16_f32 v{y+k}, v{y+2*k}, v{y+2*k+1}")
    for t in range(2):
        a.e(f"v_permlane16_swap_b32 v{y+4*t}, v{y+4*t+2}")
        a.e(f"v_permlane16_swap_b32 v{y+4*t+1}, v{y+4*t+3}")


def p_store_block(a, o, i):
    a.e(f"s_add_u32 s{S_T}, s{S_OWN}, {4*i}")
    a.e(f"s_cmp_lt_u32 s{S_T}, 5")
    a.e(f"s_cselect_b32 s{S_T}, {OOB}, s{S_P}")
    for t in range(2):
        a.e(f"buffer_store_dwordx4 {v(PY+16*i+4*t,4)}, v1, {sq(S_WS)}, s{S_T} offen offset:{t*1024}{pol(o['stpol'])}")
    a.e(f"s_add_u32 s{S_P}, s{S_P}, 8192")


def p_keep_block(a, i):
    a.e(f"s_add_u32 s{S_T}, s{S_OWN}, {4*i}")
    a.e(f"s_cmp_lt_u32 s{S_T}, 5")
    a.branch(f"s_cbranch_scc0 L_keep{i}")
    a.e(f"s_lshl_b32 s{S_T}, s{S_T}, 11")
    a.e(f"v_add_u32 v3, s{S_T}, v2")
    for t in range(2):
        a.e(f"ds_write_b128 v3, {v(PY+16*i+4*t,4)} offset:{t*1024}")
    a.label(f"L_keep{i}")


def tr_lane_parts(a, lane, G1, RR, ROW, C1, B8):
    a.e(f"v_lshrrev_b32 {ROW}, 4, {lane}")
    a.e(f"v_and_b32 {G1}, 1, {ROW}")
    a.e(f"v_bfe_u32 {RR}, {lane}, 2, 2")
    a.e(f"v_lshl_add_u32 {ROW}, {ROW}, 3, {RR}")
    a.e(f"v_bfe_u32 {C1}, {lane}, 1, 1")
    a.e(f"v_and_b32 {B8}, 1, {lane}")
    a.e(f"v_lshlrev_b32 {B8}, 3, {B8}")


def gen_P(a, o):
    a.label("L_P")
    if o["prio"] == 1: a.e("s_setprio 1")
    T0, T1, T2, T3, T4, T5, T6 = (f"v{20+k}" for k in range(7))
    stamp(a, o, 2, "start")
    G1, RR, ROW, C1, B8 = T0, T1, T2, T3, T4
    tr_lane_parts(a, "v0", G1, RR, ROW, C1, B8)
    a.e(f"v_and_b32 {T5}, 2, {RR}")
    a.e(f"v_lshl_or_b32 {T5}, {G1}, 2, {T5}")
    a.e(f"v_mul_u32_u24 v27, 384, {ROW}")
    a.e(f"v_add_u32 v27, v27, {B8}")
    for i in range(3):
        a.e(f"s_mul_i32 s{S_T}, s{S_W}, 6")
        a.e(f"s_add_u32 s{S_T}, s{S_T}, {2*i}")
        a.e(f"v_add_u32 {T6}, s{S_T}, {C1}")
        a.e(f"v_xor_b32 {T6}, {T6}, {T5}")
        a.e(f"v_lshl_add_u32 {T6}, {T6}, 4, v27")
        a.e(f"v_add_u32 v{P_AQ+i}, {WB}, {T6}")
        a.e(f"v_add_u32 v{PRO_AQ+i}, {PRO_W}, {T6}")
        a.e(f"v_add_u32 v{PRO_AQ+3+i}, {PRO_W+49152}, {T6}")
    a.e(f"v_lshl_or_b32 {T5}, {G1}, 2, {RR}")
    a.e(f"v_lshlrev_b32 {T5}, 1, {T5}")
    a.e(f"v_mul_u32_u24 v27, 1280, {ROW}")
    a.e(f"v_add_u32 v27, v27, {B8}")
    a.e(f"s_lshl_b32 s{S_T}, s{S_W}, 1")
    a.e(f"v_add_u32 {T6}, s{S_T}, {C1}")
    a.e(f"v_xor_b32 {T6}, {T6}, {T5}")
    a.e(f"v_lshl_add_u32 {T6}, {T6}, 4, v27")
    a.e(f"v_add_u32 v{P_AW}, {WB}, {T6}")
    a.e(f"v_xor_b32 v{P_AW+1}, 128, v{P_AW}")
    a.e(f"v_and_b32 {T0}, 15, v0")
    a.e(f"v_lshrrev_b32 {T1}, 4, v0")
    a.e(f"v_and_b32 {T2}, 6, {T0}")
    a.e(f"v_xor_b32 {T3}, {T2}, {T1}")
    a.e(f"v_lshlrev_b32 {T3}, 4, {T3}")
    a.e(f"v_lshl_add_u32 {T4}, {T0}, 7, {T3}")
    a.e(f"v_add_u32 v{P_AX}, {WB+32768}, {T4}")
    a.e(f"v_add_u32 v{PRO_AX}, {PRO_X}, {T4}")
    a.e(f"v_xor_b32 v{PRO_AX+1}, 64, v{PRO_AX}")
    a.e(f"v_mul_u32_u24 {T0}, 384, {T0}")
    a.e(f"v_add_u32 {T0}, {XB}, {T0}")
    a.e(f"v_bfe_u32 {T2}, v0, 1, 3")
    a.e(f"v_xor_b32 {T3}, {T2}, {T1}")
    a.e(f"v_lshl_add_u32 v{P_AO}, {T3}, 4, {T0}")
    a.e(f"v_lshrrev_b32 {T3}, 1, {T1}")
    a.e(f"v_xor_b32 {T3}, {T3}, {T2}")
    a.e(f"v_lshl_add_u32 {T3}, {T3}, 4, {T0}")
    a.e(f"v_and_b32 {T1}, 1, {T1}")
    a.e(f"v_lshl_add_u32 v{P_QW}, {T1}, 3, {T3}")
    dma_offsets_q(a, P_VQ, P_VX, 28)
    a.e(f"s_lshr_b32 s{S_T}, s{S_W}, 1")
    a.e(f"s_lshl_b32 s{S_T}, s{S_T}, 2")
    for j in range(5):
        a.e(f"v_add_u32 {T0}, {64*j}, v0")
        a.e(f"v_mul_u32_u24 {T0}, 820, {T0}")
        a.e(f"v_lshrrev_b32 {T0}, 16, {T0}")
        a.e(f"v_or_b32 {T0}, s{S_T}, {T0}")
        a.e(f"v_lshlrev_b32 {T0}, 1, {T0}")
        a.e(f"v_xor_b32 {T0}, {T0}, v0")
        a.e(f"v_lshlrev_b32 v{P_VO+j}, 4, {T0}")
    scalars_q(a, S_MQ, S_MX, S_OQ, S_OX, 1)
    a.e(f"s_mul_i32 s{S_MO}, s{S_W}, 5120")
    a.e(f"s_mul_i32 s{S_OO}, s{S_HG}, {4*245760}")
    a.e(f"s_add_u32 s{S_OO}, s{S_OO}, s{S_MO}")
    a.e(f"s_mov_b32 s{S_C}, 1")
    stamp(a, o, 3, "start")
    a.e("s_barrier")
    stamp(a, o, 1)
    a.raw("L_Ppro:")
    p_prologue(a, o)

    a.label("L_Pcyc")
    for i in range(24):
        a.e(f"v_cvt_pk_bf16_f32 v{PQ+i}, v{PQ+2*i}, v{PQ+2*i+1}")
    for i in range(3):
        a.e(f"s_mul_i32 s{S_T}, s{S_W}, 3")
        a.e(f"s_add_u32 s{S_T}, s{S_T}, {i}")
        a.e(f"s_and_b32 s{S_T2}, s{S_T}, 3")
        a.e(f"s_lshl_b32 s{S_T2}, s{S_T2}, 5")
        a.e(f"s_lshr_b32 s{S_T}, s{S_T}, 2")
        a.e(f"s_lshl_b32 s{S_T}, s{S_T}, 7")
        t = (P_T0, P_T1)[i & 1]
        a.e(f"v_xor_b32 v{t}, s{S_T2}, v{P_QW}")
        a.e(f"v_add_u32 v{t}, s{S_T}, v{t}")
        for k in range(4):
            a.e(f"ds_write_b64 v{t}, {v(PQ+8*i+2*k,2)} offset:{6144*k}")
    a.e("s_waitcnt lgkmcnt(0)")
    a.e(f"s_cmp_eq_u32 s{S_C}, 4")
    a.branch("s_cbranch_scc0 L_Pc3")
    idle_steps(a, o, "Pi4", 0, 4)
    a.branch("s_branch L_PO")
    a.label("L_Pc3")
    a.e(f"s_cmp_eq_u32 s{S_C}, 1")
    a.branch("s_cbranch_scc0 L_PQa")
    a.e("s_barrier")
    p_burst_q(a, o, 0)
    idle_steps(a, o, "Pi2", 1, 3)
    endstep(a, 3)

    a.label("L_PQa")
    for qs in range(4):
        if qs == 0:
            p_even(a, o, p_qstep, 0, p_burst_q, 1); continue
        p_qstep(a, o, qs)
        if qs == 2: p_choice(a, o, "Pa", f"s_cmp_ge_u32 s{S_C}, 2", lambda: p_burst_q(a, o, 0), lambda: p_burst_o(a, o, 0))
        else: endstep(a, 3 if qs == 1 else 0)
    a.e(f"s_cmp_ge_u32 s{S_C}, 2")
    a.branch("s_cbranch_scc1 L_PO")
    for i in range(160): a.e(f"v_mov_b32 v{PY+i}, 0")
    idle_steps(a, o, "Pi10", 8, 16)
    a.branch("s_branch L_PQb")

    a.label("L_PO")
    stamp(a, o, (2, S_C, 5))
    for s in range(12):
        if s < 10 and s % 2 == 0:
            p_even(a, o, p_ostep, s, p_burst_o, ((s >> 1) + 1) & 1); continue
        p_ostep(a, o, s)
        if s == 10: p_choice(a, o, "Po", f"s_cmp_eq_u32 s{S_C}, 4", lambda: p_burst_q(a, o, 0), lambda: 0)
        elif s == 11: endstep(a, 3)
        else: endstep(a, 0)
    a.e(f"s_cmp_eq_u32 s{S_C}, 4")
    a.branch("s_cbranch_scc1 L_Ptail")

    a.label("L_PQb")
    for qs in range(4, 20):
        if qs < 18 and qs % 2 == 0:
            p_even(a, o, p_qstep, qs, p_burst_q, ((qs >> 1) + 1) & 1); continue
        p_qstep(a, o, qs)
        if qs == 18:
            a.e(f"s_add_u32 s{S_OQ}, s{S_OQ}, {(384 - 640*12288) & 0xffffffff}")
            a.e(f"s_sub_u32 s{S_OX}, s{S_OX}, 1280")
            p_choice(a, o, "Pb", f"s_cmp_eq_u32 s{S_C}, 3", lambda: p_burst_q(a, o, 0), lambda: p_burst_o(a, o, 0))
        else: endstep(a, 0 if qs == 19 else 3)
    a.e(f"s_add_u32 s{S_C}, s{S_C}, 1")
    a.branch("s_branch L_Pcyc")

    a.label("L_Ptail")
    VT, TA = 2, 4
    lane_id(a, 5)
    tail_offsets(a, VT, S_MO, S_OO, "v5", ("v6", "v7"))
    tr_lane_parts(a, "v5", "v6", "v7", "v8", "v9", "v10")
    a.e("v_and_b32 v7, 2, v7")
    a.e("v_lshl_or_b32 v7, v6, 2, v7")
    a.e(f"s_lshl_b32 s{S_T}, s{S_W}, 1")
    a.e(f"v_add_u32 v9, s{S_T}, v9")
    a.e("v_xor_b32 v9, v9, v7")
    a.e("v_lshl_add_u32 v9, v9, 4, v10")
    a.e(f"v_lshl_add_u32 v{TA}, v8, 7, v9")
    a.e("v_lshlrev_b32 v1, 4, v5")
    a.e(f"s_lshl_b32 s{S_P}, s{S_BR}, 4"); a.e(f"s_add_u32 s{S_P}, s{S_P}, s{S_B}")
    a.e(f"s_lshl_b32 s{S_P}, s{S_P}, 3"); a.e(f"s_add_u32 s{S_P}, s{S_P}, s{S_HG}")
    a.e(f"s_mul_i32 s{S_P}, s{S_P}, 81920")
    a.e(f"s_lshl_b32 s{S_T}, s{S_W}, 11"); a.e(f"s_add_u32 s{S_P}, s{S_P}, s{S_T}")
    a.e(f"s_mul_i32 s{S_T}, s{S_HG}, 5"); a.e(f"s_sub_u32 s{S_OWN}, s{S_W}, s{S_T}")
    for n in range(3):
        tail_tile(a, o, VT, S_MO, S_OO, n)
        idle_steps(a, o, f"Pt{n}", 16 + 2 * n, 18 + 2 * n)
    idle_steps(a, o, "Pt3", 22, 31)
    tail_tile(a, o, VT, S_MO, S_OO, 3)
    idle_steps(a, o, "Pt4", 31, 32)
    if o["pdma"] == 3: a.e("s_barrier")
    endstep(a, 0)
    stamp(a, o, 7)
    SB, F = 8, 24
    a.e(f"v_xor_b32 v{P_T0}, 64, v{P_AO}")
    a.e(f"v_mov_b32 v7, v{P_AO}")
    ob = lambda dst, tau: [f"ds_read_b128 {v(dst+4*k,4)}, v{P_T0 if tau & 1 else 7} offset:{6144*k + (tau>>1)*128}" for k in range(4)]
    order = (3, 0, 4, 1, 5, 2)
    for t in ob(SB, 3): a.e(t)
    addr = lambda p, k: f"v_add_u32 v{5+k}, {tail_slot(2*p+k)}, v{TA}"
    pairs = []
    for p in range(5):
        reads, mf = [], []
        for gi, tau in enumerate(order):
            for k in range(2):
                f = F + 4 * ((len(mf) // 4) % 6)
                rd = tr_pair(f, 5 + k, tau * 4096, 512)
                if gi == 0: rd = [addr(p, k)] + rd
                if p == 0 and tau < 3 and k == 0: rd = ob(PQ + 16 * tau, tau) + rd
                quad(reads, mf, rd, PY + 16 * (2 * p + k), f, PQ + 16 * tau if tau < 3 else SB)
            if o["tq"] and tau >= 3 and (p or gi):
                mf[-8] = [f"need {v(SB,16)}", mf[-8]]
            if tau >= 3 and not (p == 4 and tau == 5):
                nxt = ob(SB, 3 if tau == 5 else tau + 1)
                if o["tq"]:
                    for k in range(4): mf[k - 4] = [mf[k - 4], nxt[k]]
                else: mf[-1] = [mf[-1]] + nxt
        pairs.append((reads, mf))
    for p, h in ((0, 3), (1, 1)):
        for q_ in range(h if o["tx"] else 0):
            pairs[p][1][41 + 2 * q_] = [pairs[p][1][41 + 2 * q_]] + pairs[p + 1][0][4 * q_]
            pairs[p + 1][0][4 * q_] = []
    for p, (reads, mf) in enumerate(pairs):
        fill = []
        if p: fill = rec(p_pack_block, 2 * p - 2) + rec(p_pack_block, 2 * p - 1)
        for m in TAIL_STORES[o["tst"]].get(p, []): fill += rec(p_store_block, o, m)
        pipe(a, reads, mf, fill, 16, skip=6)
        if p < 4: a.e("s_barrier")
    stamp(a, o, 8)
    for m in TAIL_STORES[o["tst"]][5]:
        if m >= 8: p_pack_block(a, m)
        p_store_block(a, o, m)
    a.e(f"s_mul_i32 s{S_T}, s{S_HG}, 10240")
    a.e(f"s_add_u32 s{S_T}, s{S_T}, {WB}")
    a.e(f"v_add_u32 v2, s{S_T}, v1")
    for m in range(10): p_keep_block(a, m)
    a.e("s_waitcnt vmcnt(0)")
    a.branch("s_branch L_red")


TAIL_STORES = [{3: [0, 1, 2, 3, 4, 5], 4: [6, 7], 5: [8, 9]},
               {3: [0, 1, 2], 4: [3, 4, 5, 6], 5: [7, 8, 9]},
               {2: [0, 1], 3: [2, 3, 4], 4: [5, 6, 7], 5: [8, 9]},
               {1: [0, 1], 2: [2, 3], 3: [4, 5], 4: [6, 7], 5: [8, 9]}]


AS, AR_, AP, AF = 128, 80, 56, 24
A_VD, A_AK, A_AV, A_M, A_L, A_R, A_T0, A_T1, A_PF, A_DUM = 1, 4, 6, 14, 16, 18, 20, 21, 22, 23
A_XQ, A_XO, A_EW, A_ER, A_FI, A_FO = 48, 50, 52, 53, 54, 55
S_SP, S_PER, S_MK, S_OK, S_OV, S_CS, S_PFO, S_PFS, S_PF = 49, 50, 51, 52, 53, 54, 55, 56, 60
AR = (128, 131, 68, 69, 96, 97)
S_PFM = 100
S_LK, S_LV = 48, 58


def pf_sites(o):
    return {b + k for b in (1, o["pfa"], o["pfo"]) for k in range(4)}


def a_burst(a, o, D, srdreg, off, last=False):
    kp = pol(o["kvpol"])
    for h in range(2):
        a.e(f"s_add_u32 m0, s{S_MK}, {D*24576+h*12288}")
        if h: a.e(f"s_add_u32 s{off}, s{off}, 12288")
        else: a.e("s_nop 0")
        for j in range(3):
            a.e(f"buffer_load_dwordx4 v{A_VD+j}, {sq(srdreg)}, s{off} offen offset:{1024*j}{kp} lds")
    a.e(f"s_add_u32 s{off}, s{off}, 12288")
    if o["rot"]:
        lim = S_LK if off == S_OK else S_LV
        a.e(f"s_cmp_eq_u32 s{off}, s{lim}")
        a.e(f"s_cselect_b32 s{S_T}, 196608, 0")
        a.e(f"s_sub_u32 s{off}, s{off}, s{S_T}")
        if last:
            a.e(f"s_add_u32 s{off}, s{off}, 196608")
            a.e(f"s_add_u32 s{lim}, s{lim}, 196608")


def soft_chunk(j):
    b = AS + 8 * j
    t = []
    for i in range(8): t.append(f"v_fma_f32 v{b+i}, v{b+i}, s{S_CS}, -v{A_M+(i>>2)}")
    for i in range(8): t.append(f"v_exp_f32 v{b+i}, v{b+i}")
    for i in (0, 4, 1, 5, 2, 6, 3, 7):
        if j == 0 and i % 4 == 0: t.append(f"v_mov_b32 v{A_L+(i>>2)}, v{b+i}")
        else: t.append(f"v_add_f32 v{A_L+(i>>2)}, v{A_L+(i>>2)}, v{b+i}")
    for qs in range(2):
        for i in range(2): t.append(f"v_cvt_pk_bf16_f32 v{b+4*qs+i}, v{b+4*qs+2*i}, v{b+4*qs+2*i+1}")
    for qs in range(2):
        t.append(f"ds_write_b64 v{A_EW}, {v(b+4*qs,2)} offset:{(j&1)*4096 + qs*512}")
    return t


def max_chunk(s):
    b = AS + 8 * s
    t = []
    for i in range(2):
        for qs in range(2):
            r = b + 4 * qs + 2 * i
            if s == 0 and i == 0: t.append(f"v_max_f32 v{A_M+qs}, v{r}, v{r+1}")
            else: t.append(f"v_max3_f32 v{A_M+qs}, v{A_M+qs}, v{r}, v{r+1}")
    return t


def xlane2(a, reg, op):
    for sw in ("v_permlane32_swap_b32", "v_permlane16_swap_b32"):
        for k in range(2): a.e(f"v_mov_b32 v{A_T0+k}, v{reg+k}")
        for k in range(2): a.e(f"{sw} v{reg+k}, v{A_T0+k}")
        for k in range(2): a.e(f"{op} v{reg+k}, v{reg+k}, v{A_T0+k}")


def a_rowsum(a):
    xlane2(a, A_L, "v_add_f32")
    a.e(f"s_mov_b32 s{S_T}, {WB + 40960 + 12288 - EB & 0xffffffff}")
    a.e(f"s_cmp_eq_u32 s{S_PER}, 3")
    a.e(f"s_cselect_b32 s{S_T}, {WB + 73728 - EB & 0xffffffff}, s{S_T}")
    a.e(f"s_lshl_b32 s{S_T2}, s{S_W}, 9")
    a.e(f"s_sub_u32 s{S_T}, s{S_T}, s{S_T2}")
    a.e(f"v_add_u32 v{A_R}, s{S_T}, v{A_EW}")
    a.e(f"v_xor_b32 v{A_R+1}, 512, v{A_R}")
    a.e(f"ds_write_b64 v{A_R}, {v(A_L,2)}")


def a_qread(ks):
    return [f"ds_read_b128 {v(AR_+8*ks+4*qs,4)}, v{A_XQ+(ks&1)} offset:{qs*6144 + (ks>>1)*128}" for qs in range(2)]


def a_owrite(i):
    t = [f"v_xor_b32 v{A_T0+(i&1)}, {32*(i&3)}, v{A_XO+(1 if i in (2, 3) else 0)}"]
    for qs in range(2):
        t.append(f"ds_write_b64 v{A_T0+(i&1)}, {v(AP+4*i+2*qs,2)} offset:{qs*6144 + (i>>2)*128}")
    return t


def a_onorm(i):
    t = []
    for qs in range(2):
        r = AR_ + 8 * i + 4 * qs
        for k in range(4): t.append(f"v_mul_f32 v{r+k}, v{r+k}, v{A_R+qs}")
    for qs in range(2):
        r = AR_ + 8 * i + 4 * qs
        for k in range(2): t.append(f"v_cvt_pk_bf16_f32 v{AP+4*i+2*qs+k}, v{r+2*k}, v{r+2*k+1}")
    return t


def weave(pre, work):
    n = sum(t.startswith("buffer_load_dwordx4") for t in pre)
    out, k = [], 0
    for t in pre:
        out.append(t)
        if t.startswith("buffer_load_dwordx4"):
            k += 1
            out += work[len(work) * (k - 1) // n:len(work) * k // n]
    return out


def hoist(a, reads, depth, pre):
    if not pre: return
    for i in range(min(depth, len(reads))):
        for t in reads[i]: a.e(t)
        reads[i] = []
    for t in pre: a.e(t)


def a_kstep(a, o, s, extra=(), pre=()):
    reads, mf = [], []
    for i in range(12):
        ks, qs = divmod(i, 2) if not o["kord"] else (i % 6, i // 6)
        f = AF + 4 * ks
        reads.append([] if qs else [f"ds_read_b128 {v(f,4)}, v{A_AK+(ks&1)} offset:{(s&3)*12288 + (ks>>1)*128}"])
        mf.append(mfma16(AS + 8 * s + 4 * qs, f, AR_ + 8 * ks + 4 * qs, ks == 0))
    hoist(a, reads, o["adepth"], pre)
    pipe(a, reads, mf, (max_chunk(s - 1) if s else []) + list(extra), o["adepth"])
    if s == 15:
        for t in max_chunk(15): a.e(t)
        xlane2(a, A_M, "v_max_f32")
        a.e(f"ds_write_b64 v{A_EW}, {v(A_M,2)} offset:4096")


def a_vstep(a, o, j, pre=()):
    s = 16 + j
    b = AS + 8 * j
    reads, mf = [], []
    for n in range(12):
        i, qs = divmod(n, 2)
        f = AF + 4 * i
        off = (s & 3) * 12288 + (i >> 2) * 128
        reads.append([] if qs else [f"ds_read_b64_tr_b16 {v(f,2)}, v{A_AV+(i&3)} offset:{off}",
                                    f"ds_read_b64_tr_b16 {v(f+2,2)}, v{A_AV+4+(i&3)} offset:{off}"])
        mf.append(mfma16(AR_ + 8 * i + 4 * qs, f, b + 4 * qs, j == 0))
    if j == 0:
        a.e(f"ds_read_b64 {v(A_T0,2)}, v{A_ER} offset:4096")
        for n in range(0, 12, 2):
            for t in reads[n]: a.e(t)
            reads[n] = []
        work = [f"v_max_f32 v{A_M+k}, v{A_M+k}, v{A_T0+k}" for k in range(2)]
        work += [f"v_mul_f32 v{A_M+k}, s{S_CS}, v{A_M+k}" for k in range(2)] + soft_chunk(0)
        for t in (weave(list(pre), work) if o["t16"] == 2 else list(pre) + work): a.e(t)
        pre = ()
        endstep(a)
    for qs in range(2):
        a.e(f"ds_read_b64 {v(b+4*qs+2,2)}, v{A_ER} offset:{(j&1)*4096 + qs*512}")
    if j == 15:
        a.e(f"ds_read_b64 {v(A_T0,2)}, v{A_R+1}")
        mf[1] = [mf[1]] + [f"v_add_f32 v{A_L+k}, v{A_L+k}, v{A_T0+k}" for k in range(2)]
        mf[2] = [mf[2]] + [f"v_rcp_f32 v{A_R+k}, v{A_L+k}" for k in range(2)]
        for i in range(4): mf[2 * i + 5] = [mf[2 * i + 5]] + a_onorm(i)
    fill = soft_chunk(j + 1) + (rec(a_rowsum) if j == 14 else []) if j < 15 else []
    if pre and o["vweave"] and pre != ["s_barrier"]:
        k = len(fill) * o["vweave"] // 4
        pre, fill = weave(list(pre), fill[:k]), fill[k:]
    hoist(a, reads, o["adepth"], pre)
    pipe(a, reads, mf, fill, o["adepth"], 12 if j == 14 else o["vspan"])
    if j == 15:
        for t in a_onorm(4) + a_onorm(5): a.e(t)
        a.e(f"s_cmp_eq_u32 s{S_PER}, 3")
        a.branch("s_cbranch_scc0 L_A31")
        for i in range(6):
            for t in a_owrite(i): a.e(t)
        a.label("L_A31")


def spin(a, tag, load, test, nap=0, bound=0x20000):
    a.e("s_mov_b32 s40, 0")
    a.label(f"L_{tag}")
    a.e(load)
    a.e("s_add_u32 s40, s40, 1")
    a.e("s_waitcnt vmcnt(0) lgkmcnt(0)")
    for t in test: a.e(t)
    a.branch(f"s_cbranch_scc1 L_{tag}_ok")
    if nap: a.e(f"s_sleep {nap}")
    a.e(f"s_cmp_lt_u32 s40, {bound}")
    a.branch(f"s_cbranch_scc1 L_{tag}")
    a.label(f"L_{tag}_ok")


def gen_A(a, o):
    a.comment("attention waves: 16 query rows each; they also feed the first and the last projection")
    if o["prio"] == 2: a.e("s_setprio 1")
    if o["sprio"]: a.e("s_setprio 3")
    T0, T1, T2, T3 = "v24", "v25", "v26", "v27"
    dma_offsets_q(a, AR[0], AR[1], 32)
    scalars_q(a, *AR[2:], 0)
    chains = []
    for j in range(3):
        r = Rec()
        U0, U1, U2, U3 = (f"v{32+4*j+k}" for k in range(4))
        r.e(f"v_add_u32 {U0}, {64*j}, v0")
        r.e(f"v_mul_u32_u24 {U1}, 2731, {U0}")
        r.e(f"v_lshrrev_b32 {U1}, 16, {U1}")
        r.e(f"v_and_b32 {U1}, 6, {U1}")
        r.e(f"v_xor_b32 {U1}, {U1}, v0")
        r.e(f"v_lshlrev_b32 v{A_VD+j}, 4, {U1}")
        chains.append(r.t)
    kv_offsets = chains
    a.e(f"s_mul_i32 s98, s{S_B}, 81920")
    a.e(f"s_mul_i32 s{S_T}, s{S_HALF}, 40960"); a.e(f"s_add_u32 s98, s98, s{S_T}")
    a.e(f"s_mul_i32 s{S_T}, s{S_W}, 10240"); a.e(f"s_add_u32 s98, s98, s{S_T}")
    a.e(f"v_lshlrev_b32 v28, 7, v0")
    a.e(f"v_add_u32 v29, 8192, v28")
    a.e(f"v_mov_b32 {T2}, {OOB}")
    a.e(f"v_cmp_gt_u32 vcc, 16, v0")
    a.e(f"v_cndmask_b32 v29, {T2}, v29, vcc")
    stamp(a, o, 2, "start")
    pp = pol(o["pfpol"])
    vm = ["t"] * 4

    def W(n):
        s = (n + 2) & 3
        burst_q(a, o, AR, PRO_W + s * 24576, PRO_X + PRO_XO[s], PRO_W + s * 24576 + 12288)
        vm.extend([("W", n)] * 8)

    def K0():
        a_burst(a, o, 0, S_K, S_OK); vm.extend([("K", 0)] * 3 + [("K", 1)] * 3)

    def late_touches():
        a.e(f"s_cmp_eq_u32 s99, 0")
        a.e(f"s_cselect_b32 s{S_T}, {OOB}, s{S_PFO}")
        a.e(f"buffer_load_dword v{A_DUM}, v{A_PF}, {sq(S_PF)}, s{S_T} offen{pp}"); vm.append("t")
        a.e(f"s_add_u32 s{S_PFO}, s{S_PFO}, s99")
        a.e(f"s_cmp_eq_u32 s{S_W}, 0")
        a.e(f"s_cselect_b32 s{S_T}, s46, {OOB}")
        a.e(f"s_cselect_b32 s{S_T2}, s47, {OOB}")
        a.e(f"buffer_load_dword v{A_FI}, v28, {sq(S_WS)}, s{S_T} offen sc1"); vm.append("f")
        a.e(f"buffer_load_dword v{A_FO}, v29, {sq(S_WS)}, s{S_T2} offen sc1"); vm.append("f")

    def wait_for(tag):
        last = max(i for i, x in enumerate(vm) if x == tag)
        return min(63, len(vm) - 1 - last)

    stamp(a, o, 3, "start")
    W(0)
    stamp(a, o, 4, "start")
    if o["sprio"]: a.e(f"s_setprio {1 if o['prio'] == 2 else 0}")
    interleave(a, kv_offsets)
    a.e(f"s_mul_i32 s{S_MK}, s{S_W}, 3072")
    a.e(f"s_lshl_b32 s{S_OK}, s{S_B}, 3"); a.e(f"s_add_u32 s{S_OK}, s{S_OK}, s{S_HG}")
    a.e(f"s_mul_i32 s{S_OK}, s{S_OK}, 786432"); a.e(f"s_add_u32 s{S_OK}, s{S_OK}, s{S_MK}")
    if o["rot"]:
        a.e(f"s_add_u32 s{S_LK}, s{S_OK}, 196608")
        a.e(f"s_mov_b32 s{S_LV}, s{S_LK}")
        a.e(f"s_mul_i32 s{S_T}, s2, {o['rot']}")
        a.e(f"s_lshr_b32 s{S_T}, s{S_T}, 3")
        a.e(f"s_add_u32 s{S_T}, s{S_T}, s2")
        a.e(f"s_and_b32 s{S_T}, s{S_T}, 7")
        a.e(f"s_mul_i32 s{S_T}, s{S_T}, 24576")
        a.e(f"s_add_u32 s{S_OK}, s{S_OK}, s{S_T}")
    a.e(f"s_mov_b32 s{S_OV}, s{S_OK}")
    a.e(f"buffer_load_dword v{A_DUM}, v28, {sq(S_XI)}, s98 offen{pp}"); vm.append("t")
    a.e(f"buffer_load_dword v{A_DUM}, v29, {sq(S_XI)}, s98 offen{pp}"); vm.append("t")
    stamp(a, o, 5, "start")
    if o["k0"] < 0: K0()
    if o["codepf"]:
        a.e("s_getpc_b64 s[100:101]")
        a.raw("L_pc:")
        a.e(f"s_sub_u32 s100, s100, L_pc-{KN}")
        a.e("s_subb_u32 s101, s101, 0")
        a.e("s_lshr_b32 s98, s2, 3")
        a.e(f"s_lshl_b32 s98, s98, 2")
        a.e(f"s_add_u32 s98, s98, s{S_W}")
        a.e(f"s_lshl_b32 s98, s98, 9")
        a.e("v_and_b32 v30, 3, v0")
        a.e("v_lshlrev_b32 v30, 7, v30")
        a.e("v_add_u32 v30, s98, v30")
        a.e(f"v_min_u32 v30, L_end-{KN}, v30")
        a.e(f"global_load_dword v{A_DUM}, v30, s[100:101]"); vm.append("t")
    a.e(f"s_lshl_b32 s44, s{S_BR}, 4")
    a.e(f"s_add_u32 s44, s44, s{S_B}")
    a.e("s_lshl_b32 s45, s44, 10")
    a.e(f"s_add_u32 s45, s45, {FLAGS}")
    a.e(f"s_lshl_b32 s46, s{S_HG}, 7")
    a.e(f"s_add_u32 s46, s46, s45")
    a.e(f"s_lshl_b32 s47, s{S_HG}, 2")
    a.e(f"s_add_u32 s47, s47, s45")
    wq_share(a, T1, T0, T1, T2)
    a.e(f"v_lshlrev_b32 {T2}, 7, {T0}")
    a.e(f"s_mov_b32 s{S_PFS}, 384")
    a.e(f"s_mov_b32 s{S_T}, {40*12288}")
    a.e(f"s_cmp_ge_u32 s{S_W}, 2")
    a.e(f"s_cselect_b64 vcc, -1, 0")
    a.e(f"s_cselect_b32 s{S_PFS}, 245760, s{S_PFS}")
    a.e(f"s_cselect_b32 s{S_T}, 15360, s{S_T}")
    a.e(f"s_cselect_b32 s{S_PF}, s{S_WO}, s{S_WQ}")
    a.e(f"s_cselect_b32 s{S_PF+1}, s{S_WO+1}, s{S_WQ+1}")
    a.e(f"s_cselect_b32 s99, 0, 384")
    a.e(f"s_mov_b32 s{S_PF+2}, {W_BYTES}")
    a.e(f"s_mov_b32 s{S_PF+3}, 0x20000")
    a.e(f"v_cndmask_b32 {T1}, {T1}, {T2}, vcc")
    a.e(f"v_mov_b32 {T2}, {OOB}")
    a.e(f"v_cmp_gt_u32 vcc, 120, {T0}")
    a.e(f"v_cndmask_b32 v{A_PF}, {T2}, {T1}, vcc")
    a.e(f"s_mul_i32 s{S_PFO}, s{S_T}, s{S_B}")
    a.e(f"s_mul_i32 s{S_T}, s{S_PFS}, s{S_HG}")
    a.e(f"s_lshl_b32 s{S_T}, s{S_T}, 2")
    a.e(f"s_add_u32 s{S_PFO}, s{S_PFO}, s{S_T}")
    a.e(f"s_add_u32 s{S_PFO}, s{S_PFO}, s99")
    bits = lambda *pp_: sum(3 << (16 * p + k) for p, k in pp_)
    ka, ko = o["pfa"], o["pfo"]
    mA, mB, mO = bits((0, ka), (1, ka)), bits((0, 1), (1, 1), (2, 1)), bits((0, ko), (1, ko), (2, ko), (3, 1))
    a.e(f"s_mov_b32 s{S_PFM}, {mB & 0xffffffff}")
    a.e(f"s_mov_b32 s{S_PFM+1}, {mB >> 32}")
    a.e(f"s_cmp_lt_u32 s{S_B}, {o['pfb']}")
    a.e(f"s_cselect_b32 s{S_PFM}, {mA & 0xffffffff}, s{S_PFM}")
    a.e(f"s_cselect_b32 s{S_PFM+1}, {mA >> 32}, s{S_PFM+1}")
    a.e(f"s_cselect_b32 s99, s99, 0")
    a.e(f"s_cmp_ge_u32 s{S_W}, 2")
    a.e(f"s_cselect_b32 s{S_PFM}, {mO & 0xffffffff}, s{S_PFM}")
    a.e(f"s_cselect_b32 s{S_PFM+1}, {mO >> 32}, s{S_PFM+1}")
    a.e(f"s_and_b32 s{S_T}, s{S_W}, 1")
    a.e(f"s_lshl_b32 s{S_T}, s{S_T}, 1")
    a.e(f"s_lshl_b64 s[{S_PFM}:{S_PFM+1}], s[{S_PFM}:{S_PFM+1}], s{S_T}")
    a.e(f"s_and_b32 s{S_SP}, s{S_W}, 1")
    a.e(f"s_lshr_b32 s{S_T2}, s{S_W}, 1")
    a.e(f"s_mul_i32 s{S_T2}, s{S_T2}, 12288")
    a.e(f"s_add_u32 s{S_T2}, s{S_T2}, {XB}")
    a.e(f"s_mul_i32 s{S_T}, s{S_SP}, 6144")
    a.e(f"v_and_b32 {T0}, 15, v0")
    a.e(f"v_lshrrev_b32 {T1}, 4, v0")
    a.e(f"v_and_b32 {T2}, 6, {T0}")
    a.e(f"v_xor_b32 {T3}, {T2}, {T1}")
    a.e(f"v_mul_u32_u24 {T0}, 384, {T0}")
    a.e(f"v_lshl_add_u32 {T3}, {T3}, 4, {T0}")
    a.e(f"v_add_u32 v{A_AK}, s{S_T}, {T3}")
    a.e(f"v_xor_b32 v{A_AK+1}, 64, v{A_AK}")
    a.e(f"v_bfe_u32 {T2}, v0, 1, 3")
    a.e(f"v_xor_b32 {T3}, {T2}, {T1}")
    a.e(f"v_lshl_add_u32 {T3}, {T3}, 4, {T0}")
    a.e(f"v_add_u32 v{A_XQ}, s{S_T2}, {T3}")
    a.e(f"v_xor_b32 v{A_XQ+1}, 64, v{A_XQ}")
    a.e(f"v_lshrrev_b32 {T3}, 1, {T1}")
    a.e(f"v_xor_b32 {T3}, {T3}, {T2}")
    a.e(f"v_lshl_add_u32 {T3}, {T3}, 4, {T0}")
    a.e(f"v_and_b32 {T2}, 1, {T1}")
    a.e(f"v_lshl_add_u32 {T3}, {T2}, 3, {T3}")
    a.e(f"v_add_u32 {T3}, s{S_T2}, {T3}")
    a.e(f"s_lshl_b32 s{S_T2}, s{S_SP}, 6")
    a.e(f"v_xor_b32 {T3}, s{S_T2}, {T3}")
    a.e(f"s_lshl_b32 s{S_T2}, s{S_SP}, 7")
    a.e(f"v_add_u32 v{A_XO}, s{S_T2}, {T3}")
    a.e(f"v_add_u32 v{A_XO+1}, s{S_T2}, v{A_XO}")
    a.e(f"v_lshrrev_b32 {T0}, 2, v0")
    a.e(f"v_and_b32 {T1}, 6, {T0}")
    a.e(f"v_bfe_u32 {T2}, v0, 1, 1")
    a.e(f"v_xor_b32 {T1}, {T1}, {T2}")
    a.e(f"v_mul_u32_u24 {T0}, 384, {T0}")
    a.e(f"v_lshl_add_u32 {T1}, {T1}, 4, {T0}")
    a.e(f"v_and_b32 {T2}, 1, v0")
    a.e(f"v_lshl_add_u32 {T1}, {T2}, 3, {T1}")
    a.e(f"s_lshl_b32 s{S_T2}, s{S_SP}, 6")
    a.e(f"v_xor_b32 {T1}, s{S_T2}, {T1}")
    for d in range(4):
        a.e(f"v_xor_b32 {T2}, {32*d}, {T1}")
        a.e(f"s_lshl_b32 s{S_T2}, s{S_SP}, {8 if d >= 2 else 7}")
        a.e(f"v_add_u32 {T2}, s{S_T2}, {T2}")
        a.e(f"v_add_u32 v{A_AV+d}, s{S_T}, {T2}")
        a.e(f"s_sub_u32 s{S_T2}, 6144, s{S_T}")
        a.e(f"v_add_u32 v{A_AV+4+d}, s{S_T2}, {T2}")
    a.e(f"v_lshlrev_b32 {T0}, 3, v0")
    a.e(f"s_lshl_b32 s{S_T}, s{S_W}, 10")
    a.e(f"s_add_u32 s{S_T}, s{S_T}, {EB}")
    a.e(f"v_add_u32 v{A_EW}, s{S_T}, {T0}")
    a.e(f"v_xor_b32 v{A_ER}, 1024, v{A_EW}")
    a.e("v_and_b32 v28, 7, v0")
    a.e("v_lshlrev_b32 v29, 7, v28")
    a.e("v_lshlrev_b32 v28, 2, v28")
    a.e(f"s_mov_b32 s{S_CS}, {CSCALE:#x}")
    a.e(f"s_mov_b32 s{S_PER}, 0")
    stamp(a, o, 6, "start")
    W(1)
    stamp(a, o, 12, "pro")
    stamp(a, o, 7, "start")
    endstep(a, wait_for(("W", 0)))
    stamp(a, o, 8, "start")
    stamp(a, o, 1, "pro")
    a.raw("L_Apro:")
    head = list(vm)
    first = dict(s0=6, s1=3)
    classes = [(o["k0"], o["k1"])] + ([(o["k0b"], o["k1b"])] if o["k0b"] >= 0 else [])
    if len(classes) > 1:
        a.e(f"s_bitcmp1_b32 s2, {o['kbit']}")
        a.branch("s_cbranch_scc1 L_Apro1")
    for ci, (k0, k1) in enumerate(classes):
        if ci: a.label("L_Apro1")
        vm[:] = head
        W(2)
        for n in range(9):
            endstep(a, wait_for(("W", n + 1)))
            stamp(a, o, n + 2, "pro")
            if n + 3 < 10: W(n + 3)
            if n == o["kt"]: late_touches()
            if n == (o["kp"], o["kpb"])[ci]:
                a.e(f"s_mul_i32 s{S_T}, s{S_W}, {o['kpn'] * 128 - 3072}")
                a.e(f"s_add_u32 s{S_T}, s{S_T}, s{S_OV}")
                a.e(f"s_add_u32 s{S_T}, s{S_T}, 49152")
                a.e("v_lshlrev_b32 v30, 7, v0")
                for k in range(0, o["kpn"], 64):
                    m = min(64, o["kpn"] - k)
                    if m < 64: a.e(f"s_mov_b32 exec_hi, {((1 << m) - 1) >> 32}")
                    a.e(f"buffer_load_dword v{A_DUM}, v30, {sq(S_K)}, s{S_T} offen"); vm.append("t")
                    a.e(f"s_add_u32 s{S_T}, s{S_T}, 8192")
                a.e("s_mov_b64 exec, -1")
            if n == k0: K0()
            if n == k1:
                a_burst(a, o, 1, S_K, S_OK); vm.extend([("K", 2)] * 3 + [("K", 3)] * 3)
        endstep(a, wait_for(("K", 0)))
        first = dict(s0=min(first["s0"], wait_for(("K", 1))), s1=min(first["s1"], wait_for(("K", 2))))
        if ci == 0 and len(classes) > 1: a.branch("s_branch L_Aper")

    a.label("L_Aper")
    stamp(a, o, (1, S_PER, 4))
    for s in range(32):
        a.comment(f"A step {s}")
        if s == 16: stamp(a, o, (5, S_PER, 4))
        g_ = o["tkg"]
        if s % g_ == 0 and o["tk0"] <= s < o["tk0"] + 12 * g_: stamp(a, o, (1 + (s - o["tk0"]) // g_ - o["tkp"], S_PER, o["tkp"] + 1, o["tkp"]), "tick")
        vmw = 4 if ((s - 1) >> 1) in pf_sites(o) else 3
        bt = []
        if s == 0:
            a.e(f"s_cmp_eq_u32 s{S_PER}, 0")
            a.branch("s_cbranch_scc1 L_A0")
            a_burst(a, o, 1, S_K, S_OK)
            a.label("L_A0")
            for ks in range(6):
                for t in a_qread(ks): a.e(t)
            vmw = min(6, first["s0"])
        elif s == 1:
            vmw = min(3, first["s1"])
        elif s == 30:
            a.e(f"s_cmp_eq_u32 s{S_PER}, 3")
            a.branch("s_cbranch_scc1 L_A30")
            a_burst(a, o, 0, S_K, S_OK)
            a.label("L_A30")
            vmw = 6
        elif s % 2 == 0:
            vmw = 6
            D = ((s >> 1) + 1) & 1
            bt = rec(a_burst, o, D, *((S_K, S_OK) if s < 14 else (S_V, S_OV)), s in (12, 28))
            if (s >> 1) in pf_sites(o):
                high = (s >> 1) % 2 == 0
                bt.append(f"s_lshl_b32 s{S_T}, s{S_PER}, 4")
                bt.append(f"s_add_u32 s{S_T}, s{S_T}, {s>>1}")
                bt.append(f"s_bitcmp1_b64 s[{S_PFM}:{S_PFM+1}], s{S_T}")
                bt.append(f"s_cselect_b32 s{S_T}, s{S_PFO}, {OOB}")
                if high: bt.append(f"s_cselect_b32 s{S_T2}, s{S_PFS}, 0")
                bt.append(f"s_mov_b32 {'exec_lo' if high else 'exec_hi'}, 0")
                bt.append(f"buffer_load_dword v{A_DUM}, v{A_PF}, {sq(S_PF)}, s{S_T} offen{pp}")
                bt.append("s_mov_b64 exec, -1")
                if high: bt.append(f"s_add_u32 s{S_PFO}, s{S_PFO}, s{S_T2}")
                vmw = 7
            if o["adma"] == 0 and not (s == 16 and o["t16"]) and not (s > 16 and o["vweave"]):
                for t in bt: a.e(t)
                bt = []
        if s == 5:
            a.comment("the entry reads have landed: count this workgroup in (d_debug word of the group)")
            a.e(f"s_and_b32 s{S_T}, s{S_HG}, 3")
            a.e(f"s_xor_b32 s{S_T}, s{S_T}, s{S_PER}")
            a.e(f"s_or_b32 s{S_T}, s{S_T}, s{S_W}")
            a.branch("s_cbranch_scc1 L_sy1")
            a.e("s_lshl_b32 s45, s44, 3")
            a.e(f"v_mov_b32 v{A_T0}, s45")
            a.e(f"v_mov_b32 v{A_T1}, 1")
            a.e("s_mov_b64 exec, 1")
            a.e(f"buffer_atomic_add v{A_T1}, v{A_T0}, {sq(S_DBG)}, 0 offen")
            a.e("s_mov_b64 exec, -1")
            a.label("L_sy1")
        if o["pdma"] == 3 and s % 2: bt = ["s_barrier"]
        if s in (1, 2):
            ow = sum((a_owrite(i) for i in (range(o["ows"]) if s == 1 else range(o["ows"], 6))), [])
            if o["owf"]: a_kstep(a, o, s, ow, pre=bt)
            else:
                a_kstep(a, o, s, pre=bt)
                for t in ow: a.e(t)
        elif s < 16: a_kstep(a, o, s, pre=bt)
        else: a_vstep(a, o, s - 16, pre=bt)
        if s == 30:
            a.e(f"s_cmp_eq_u32 s{S_PER}, 3")
            a.branch("s_cbranch_scc0 L_A30j")
            a.e("s_waitcnt vmcnt(0)")
            a.label("L_A30j")
        if o["stamps"] == 7 and s in (0, 1, 2, 3):
            stamp(a, o, (1 + 3 * s - 1, S_PER, 2, 1), "s1")
            a.e(f"s_waitcnt vmcnt({vmw})")
            stamp(a, o, (2 + 3 * s - 1, S_PER, 2, 1), "s1")
            a.e("s_barrier")
            stamp(a, o, (3 + 3 * s - 1, S_PER, 2, 1), "s1")
            continue
        endstep(a, vmw + o["kvx"])
    a.e(f"s_add_u32 s{S_PER}, s{S_PER}, 1")
    a.e(f"s_cmp_lt_u32 s{S_PER}, 4")
    a.branch("s_cbranch_scc1 L_Aper")
    a.label("L_Aend")
    stamp(a, o, 9)
    stamp(a, o, 1, "tail")
    tail_offsets(a, 128, S_MK, S_OK, "v0", (T0, T1))
    tail_tile(a, o, 128, S_MK, S_OK, 4)
    stamp(a, o, 2, "tail")
    for p in range(4):
        a.e(f"s_waitcnt vmcnt({6 if p in (1, 2) else 0})")
        a.e("s_barrier")
        stamp(a, o, p + 3, "tail")
        for n in ([5, 6], [7, 8], [9], [])[p]: tail_tile(a, o, 128, S_MK, S_OK, n)
    a.e(f"s_cmp_lg_u32 s{S_W}, 0")
    a.branch("s_cbranch_scc1 L_red")
    a.e("s_lshl_b32 s45, s44, 3")
    a.e("v_mov_b32 v28, s45")
    spin(a, "in", f"buffer_load_dword v29, v28, {sq(S_DBG)}, 0 offen sc1", ["v_readfirstlane_b32 s41, v29", "s_cmp_ge_u32 s41, 8"])
    a.e("v_lshlrev_b32 v28, 2, v0")
    a.e(f"v_add_u32 v28, {EB}, v28")
    a.e(f"ds_write_b32 v28, v{A_FI}")
    a.e("v_mov_b32 v29, 0")
    a.e("ds_write_b32 v28, v29 offset:256")


def reduce_chunk(a, o, k, base):
    a.e(f"s_lshl_b32 s41, s{k}, 10")
    a.e(f"s_add_u32 s41, s41, {WB}")
    a.e(f"v_add_u32 v3, s41, v1")
    a.e(f"v_add_u32 v6, 40960, v3")
    for i in range(8):
        a.e(f"ds_read_b128 {v(base+4*i,4)}, v{3 if i < 4 else 6} offset:{(i&3)*10240}")
    a.e(f"s_mul_i32 s43, s{S_HG}, 10")
    a.e(f"s_add_u32 s43, s43, s{k}")
    a.e("s_and_b32 s41, s43, 1")
    a.e("s_lshl_b32 s41, s41, 5")
    a.e("s_lshr_b32 s43, s43, 1")
    a.e(f"s_lshl_b32 s42, s{S_B}, 6")
    a.e("s_add_u32 s42, s42, s41")
    a.e("s_mul_i32 s42, s42, 2560")
    a.e(f"s_mul_i32 s41, s{S_BR}, 1280")
    a.e("s_add_u32 s42, s42, s41")
    a.e("s_lshl_b32 s43, s43, 5")
    a.e("s_add_u32 s42, s42, s43")
    ac = base + 32
    for i in range(8):
        for n in range(4):
            r = base + 4 * i + n
            if i == 0:
                a.e(f"v_lshlrev_b32 v{ac+2*n}, 16, v{r}")
                a.e(f"v_and_b32 v{ac+1+2*n}, 0xffff0000, v{r}")
            elif o["dot"]:
                a.e(f"v_dot2_f32_bf16 v{ac+2*n}, v{r}, s40, v{ac+2*n}")
                a.e(f"v_dot2_f32_bf16 v{ac+1+2*n}, v{r}, s47, v{ac+1+2*n}")
            else:
                a.e(f"v_lshlrev_b32 v4, 16, v{r}")
                a.e(f"v_and_b32 v5, 0xffff0000, v{r}")
                a.e(f"v_add_f32 v{ac+2*n}, v{ac+2*n}, v4")
                a.e(f"v_add_f32 v{ac+2*n+1}, v{ac+2*n+1}, v5")
    if o["dot"]: a.e("s_nop 2")
    for n in range(4): a.e(f"v_cvt_pk_bf16_f32 v{base+n}, v{ac+2*n}, v{ac+1+2*n}")
    a.e(f"buffer_store_dwordx4 {v(base,4)}, v2, {sq(S_OUT)}, s42 offen{pol(o['outpol'])}")


def gen_tail(a, o):
    a.label("L_red")
    lane_id(a, 0)
    a.e(f"s_lshl_b32 s44, s{S_BR}, 4")
    a.e(f"s_add_u32 s44, s44, s{S_B}")
    a.e("s_lshl_b32 s45, s44, 10")
    a.e(f"s_add_u32 s45, s45, {FLAGS}")
    a.e(f"s_lshl_b32 s46, s{S_HG}, 7")
    a.e("s_add_u32 s46, s46, s45")
    a.e(f"s_lshl_b32 s40, s{S_WAVE}, 2")
    a.e(f"s_add_u32 s40, s40, {EB}")
    a.e("v_mov_b32 v3, s40")
    a.e("v_and_b32 v28, 7, v0")
    a.e("v_lshlrev_b32 v29, 7, v28")
    a.e("v_lshlrev_b32 v1, 4, v0")
    a.e("v_lshlrev_b32 v28, 2, v28")
    a.e(f"s_cmp_lg_u32 s{S_WAVE}, 4")
    a.e("s_barrier")
    a.branch("s_cbranch_scc1 L_go")
    stamp(a, o, 10)
    a.e(f"v_add_u32 v{A_FO}, 1, v{A_FO}")
    a.e("s_mov_b64 exec, 0xff")
    a.e(f"buffer_store_dword v{A_FO}, v29, {sq(S_WS)}, s47 offen sc1")
    a.e("s_mov_b64 exec, -1")
    a.label("L_go")
    a.e(f"s_cmp_eq_u32 s{S_WAVE}, s{S_HG}")
    a.branch("s_cbranch_scc0 L_fetch")
    a.e(f"v_add_u32 v5, {EB}, v28")
    a.e("ds_read_b32 v4, v5")
    a.e("s_mov_b64 exec, 0xff")
    spin(a, "poll", f"buffer_load_dword v30, v28, {sq(S_WS)}, s46 offen sc1",
         ["v_cmp_ne_u32 vcc, v30, v4", "v_cndmask_b32 v6, 0, 1, vcc", "ds_write_b32 v5, v6 offset:256",
          f"s_bitset1_b32 vcc_lo, s{S_HG}", "s_cmp_eq_u32 vcc_lo, 0xff"], o["nap"])
    a.e("s_mov_b64 exec, -1")
    a.branch("s_branch L_staged")
    a.label("L_fetch")
    a.e("s_lshl_b32 s45, s44, 3")
    a.e(f"s_add_u32 s45, s45, s{S_WAVE}")
    a.e("s_mul_i32 s45, s45, 81920")
    a.e(f"s_mul_i32 s43, s{S_HG}, 10240")
    a.e("s_add_u32 s45, s45, s43")
    a.e(f"s_mul_i32 s43, s{S_WAVE}, 10240")
    a.e(f"s_add_u32 s43, s43, {WB}")
    spin(a, "seen", "ds_read_b32 v4, v3 offset:256", ["v_readfirstlane_b32 s41, v4", "s_cmp_lg_u32 s41, 0"], 1, 0x400000)
    a.e("v_add_u32 v3, s43, v1")
    for k in range(10):
        a.e(f"buffer_load_dwordx4 {v(8+4*k,4)}, v1, {sq(S_WS)}, s45 offen offset:{(k&3)*1024}{pol(o['ldpol'])}")
        if k & 3 == 3: a.e("s_add_u32 s45, s45, 4096")
    for k in range(10):
        a.e(f"s_waitcnt vmcnt({9-k})")
        a.e(f"ds_write_b128 v3, {v(8+4*k,4)} offset:{k*1024}")
    a.label("L_staged")
    a.e("v_and_b32 v2, 31, v0")
    a.e("v_mul_u32_u24 v2, 2560, v2")
    a.e("v_lshrrev_b32 v3, 5, v0")
    a.e("v_lshl_add_u32 v2, v3, 4, v2")
    a.e(f"s_mov_b32 s45, s{S_WAVE}")
    a.e("s_mov_b32 s40, 0x3f80")
    a.e("s_mov_b32 s47, 0x3f800000")
    a.e("s_barrier")
    stamp(a, o, 11)
    reduce_chunk(a, o, 45, 8)
    a.e(f"s_cmp_lt_u32 s{S_WAVE}, 2")
    a.branch("s_cbranch_scc0 L_fin")
    a.e("s_add_u32 s45, s45, 8")
    reduce_chunk(a, o, 45, 48)


def gen_main(a, o):
    a.raw(f".globl {KN}\n.p2align 8\n.type {KN},@function\n{KN}:")
    a.e(f"s_cmp_ge_u32 s2, {o['nact']}")
    a.e("s_cbranch_scc1 L_end")
    if o["dbgt"]: a.e("s_memrealtime s[90:91]")
    if o["stamps"]:
        a.e("s_memrealtime s[90:91]")
        a.e("s_memtime s[86:87]")
    a.e("s_load_dwordx2 s[34:35], s[0:1], 96")
    a.e("s_load_dwordx4 s[64:67], s[0:1], 80")
    a.e("s_and_b32 s3, s2, 7")
    a.e("s_lshr_b32 s5, s3, 2")
    a.e("s_mul_i32 s32, s5, 40")
    a.e("s_add_u32 s0, s0, s32")
    a.e("s_addc_u32 s1, s1, 0")
    a.e("s_load_dwordx4 s[44:47], s[0:1], 24")
    a.e("s_load_dwordx2 s[36:37], s[0:1], 0")
    a.e("s_load_dwordx4 s[40:43], s[0:1], 8")
    a.e("v_lshrrev_b32 v1, 6, v0")
    a.e("v_and_b32 v0, 63, v0")
    a.e("v_readfirstlane_b32 s32, v1")
    a.e("s_lshr_b32 s4, s2, 3")
    a.e("s_and_b32 s7, s4, 15")
    a.e("s_lshr_b32 s4, s4, 4")
    a.e("s_and_b32 s6, s3, 3")
    a.e("s_lshl_b32 s6, s6, 1")
    a.e("s_add_u32 s6, s6, s4")
    if o["stamps"] >= 2:
        a.e("s_waitcnt lgkmcnt(0)")
        for i in range(16): a.e(f"s_mov_b32 s{70+i}, s90")
        stamp(a, o, 1, "start")
    entry_touches(a, o)
    stamp(a, o, 9, "start")
    a.e("s_and_b32 s33, s32, 3")
    a.e("s_cmp_lt_u32 s32, 4")
    a.branch("s_cbranch_scc1 L_P")
    gen_A(a, o)
    gen_tail(a, o)
    a.label("L_fin")
    if o["dbgt"] == 2:
        a.comment("diagnostic build: doubles the in-kernel span so that launch overhead and span can be separated")
        a.e("s_memrealtime s[92:93]")
        a.e("s_waitcnt lgkmcnt(0)")
        a.e("s_sub_u32 s94, s92, s90")
        a.e("s_min_u32 s94, s94, 20000")
        a.label("L_dbl")
        a.e("s_memrealtime s[90:91]")
        a.e("s_waitcnt lgkmcnt(0)")
        a.e("s_sub_u32 s95, s90, s92")
        a.e("s_cmp_lt_u32 s95, s94")
        a.branch("s_cbranch_scc1 L_dbl")
    if o["dbgt"] == 1:
        a.e("s_memrealtime s[92:93]")
        a.e("s_waitcnt lgkmcnt(0)")
        a.e("s_sub_u32 s92, s92, s90")
        a.e("s_lshl_b32 s40, s2, 3"); a.e("s_add_u32 s40, s40, 4")
        a.e("s_cmp_eq_u32 s32, 0"); a.e(f"s_cselect_b32 s40, s40, {OOB}")
        a.e("v_mov_b32 v4, s92"); a.e("v_mov_b32 v1, 0")
        a.e("s_mov_b64 exec, 1")
        a.e(f"buffer_store_dword v4, v1, {sq(S_DBG)}, s40 offen")
    if o["stamps"]:
        a.e("s_memrealtime s[92:93]")
        a.e("s_memtime s[88:89]")
        a.e("s_waitcnt lgkmcnt(0)")
        a.e("s_sub_u32 s85, s88, s86")
        a.e("s_getreg_b32 s84, hwreg(HW_REG_XCC_ID, 0, 4)")
        a.e("s_getreg_b32 s83, hwreg(HW_REG_HW_ID)")
        a.e("v_mov_b32 v4, s90"); a.e("v_mov_b32 v5, s91"); a.e("v_mov_b32 v6, s92"); a.e("v_mov_b32 v7, s93")
        a.e("s_lshl_b32 s40, s2, 3"); a.e("s_add_u32 s40, s40, s32"); a.e("s_lshl_b32 s40, s40, 4")
        a.e("s_add_u32 s40, s40, 0x2000000")
        a.e("v_mov_b32 v1, 0")
        a.e(f"buffer_store_dwordx4 v[4:7], v1, {sq(S_WS)}, s40 offen")
        if o["stamps"] >= 2:
            a.e("s_lshl_b32 s40, s2, 3"); a.e("s_add_u32 s40, s40, s32"); a.e("s_lshl_b32 s40, s40, 6")
            a.e("s_add_u32 s40, s40, 0x2100000")
            for k in range(4):
                for i in range(4): a.e(f"v_mov_b32 v{8+4*k+i}, s{70+4*k+i}")
                a.e(f"buffer_store_dwordx4 v[{8+4*k}:{11+4*k}], v1, {sq(S_WS)}, s40 offen offset:{16*k}")
    a.e("s_endpgm")
    gen_P(a, o)
    a.label("L_end")
    a.e("s_endpgm")


def droppings(t, d):
    keep = []; cnt = cnt2 = cnt3 = 0; role = ""
    for l in t.split("\n"):
        if l.startswith(("L_PQa", "L_PO:", "L_PQb")): role = "P"
        if l.startswith(("L_Ptail", "L_Aend", "L_Pcyc")): role = ""
        if l.startswith("L_Aper"): role = "A"
        if l.startswith("L_Ppro"): role = "p"
        if l.startswith("L_Apro"): role = "a"
        if "x" in d and role == "p" and l.strip().startswith(("v_", "ds_")): continue
        if "y" in d and role == "a" and l.strip().startswith("buffer_load_dwordx4") and "s[8:11]" not in l: continue
        if "z" in d and role == "a" and l.strip().startswith("buffer_load_dwordx4") and "s[8:11]" in l: continue
        x = l.strip()
        if "k" in d and role == "A" and x.startswith("buffer_load"): continue
        if "w" in d and role == "P" and x.startswith("buffer_load"): continue
        if "a" in d and role == "A" and x.startswith(("v_", "ds_")) and not x.startswith("v_mov_b32"): continue
        if "p" in d and role == "P" and x.startswith(("v_", "ds_")): continue
        if "m" in d and role in ("A", "P") and x.startswith("v_mfma"): continue
        if "r" in d and role in ("A", "P") and x.startswith("ds_read"): continue
        if "h" in d and role == "A" and x.startswith("ds_read"):
            cnt += 1
            if (cnt // (2 if "tr" in x else 1)) % 2: continue
        if "g" in d and role == "P" and x.startswith("ds_read_b64_tr"):
            cnt2 += 1
            if (cnt2 // 2) % 2: continue
        if "T" in d and x.startswith("buffer_store_dwordx4") and "s[28:31]" in x and "sc1" in x: continue
        if "L" in d and x.startswith("buffer_load_dwordx4") and "s[28:31]" in x: continue
        if "v" in d and role == "A" and x.startswith(("v_exp", "v_fma", "v_add_f32", "v_max3")): continue
        if "A" in d and role == "A" and x.startswith("v_mfma"): continue
        if "P" in d and role == "P" and x.startswith("v_mfma"): continue
        if ("s" in d or "S" in d) and role == "P" and x.startswith("v_mfma_f32_32x32x16"):
            m = re.match(r"v_mfma_f32_32x32x16_bf16 v\[(\d+):\d+\], (v\[\d+:\d+\]), (v\[\d+:\d+\]), (.*)", x)
            cnt3 += 1
            for k in range(2):
                b = int(m.group(1)) + 4 * k + 8 * (cnt3 & 1)
                bo = m.group(3) if (k == 0 or "S" not in d) else {"v[16:19]": "v[20:23]", "v[20:23]": "v[16:19]"}[m.group(3)]
                keep.append(f"    v_mfma_f32_16x16x32_bf16 v[{b}:{b+3}], {m.group(2)}, {bo}, v[{b}:{b+3}]")
            continue
        keep.append(l)
    return "\n".join(keep)


def gen(**kw):
    o = dict(DEFAULTS); o.update(kw)
    a = Asm()
    if o["stamps"]: a.raw(f"; stamps={8*o['nact']} @0x2000000")
    a.raw(f"; @launch grid=(256,1,1) block=(512,1,1) lds={LDS}")
    a.raw('.amdgcn_target "amdgcn-amd-amdhsa--gfx950"\n.text')
    gen_main(a, o)
    a.raw(f""".section .rodata,"a"
.p2align 6
.amdhsa_kernel {KN}
  .amdhsa_next_free_vgpr 256
  .amdhsa_next_free_sgpr 102
  .amdhsa_accum_offset 256
  .amdhsa_group_segment_fixed_size 0
  .amdhsa_kernarg_size 104
  .amdhsa_user_sgpr_count 2
  .amdhsa_user_sgpr_kernarg_segment_ptr 1
  .amdhsa_system_sgpr_workgroup_id_x 1
.end_amdhsa_kernel""")
    t = a.text()
    return droppings(t, o["drop"]) if o["drop"] else t


if __name__ == "__main__":
    out = sys.argv[1]
    kw = {}
    for x in sys.argv[2:]:
        k, val = x.split("=")
        kw[k] = int(val) if val.lstrip("-").isdigit() else val.replace("+", " ")
    open(out, "w").write(gen(**kw))
```

```python
import sys, math, struct, re
from asmlib import Asm

NAME = "concat_heads__gqa_block_cached__gqa_block_cached__near_ridge"
KN = NAME + "_kernel"
WB, XB, EB, LDS = 49152, 131072, 155648, 163840
KV_BYTES, W_BYTES, X_BYTES, OUT_BYTES, WS_BYTES = 100663296, 7864320, 1310720, 2621440, 64 << 20
OOB = 0x40000000
FLAGS = 0x1800000
CSCALE = struct.unpack("<I", struct.pack("<f", math.log2(math.e) / math.sqrt(192.0)))[0]

DEFAULTS = dict(kvpol="nt", wpol="", pfpol="", xpol="", stpol="sc1", ldpol="sc1", outpol="", stamps=0, prio=0,
                adepth=8, pq=12, po=9, pdma=2, drop="", nact=256, k0=5, k1=7, k0b=-1, k1b=7, kbit=3, kt=7, kp=-1, kpb=-1, kpn=48, prod=12, codepf=0, pfa=5, pfo=9, pfb=4, kvx=0, warm=65536, xbar=11, vspan=9, adma=0, sprio=0, nap=4, tst=1, rot=0, kord=1, dbgt=0, tk0=0, tkp=0, tkg=2, ows=3, owf=1, t16=2, vweave=0, tx=1, dot=1, tq=1, psplit=2, kvw=3)

S_HALF, S_BR, S_HG, S_B = 4, 5, 6, 7
S_K, S_V, S_WQ, S_WO, S_XI, S_WS, S_OUT = 8, 12, 16, 20, 24, 28, 64
S_WAVE, S_W, S_DBG, S_T, S_T2 = 32, 33, 36, 57, 59


def v(a, n=1):
    return f"v{a}" if n == 1 else f"v[{a}:{a+n-1}]"


def sq(a):
    return f"s[{a}:{a+3}]"


def pol(s):
    return (" " + s) if s else ""


class Rec:
    def __init__(self): self.t = []
    def e(self, x): self.t.append(x)


def rec(fn, *args):
    r = Rec(); fn(r, *args); return r.t


def srd(a, base, src, size):
    if src != base: a.e(f"s_mov_b32 s{base}, s{src}")
    a.e(f"s_and_b32 s{base+1}, s{src+1}, 0xffff")
    a.e(f"s_mov_b32 s{base+2}, {size}")
    a.e(f"s_mov_b32 s{base+3}, 0x20000")


def entry_touches(a, o):
    pp = pol(o["pfpol"])
    a.e(f"s_lshl_b32 s{S_T}, s{S_WAVE}, 4")
    a.e(f"v_add_u32 v2, s{S_T}, v0")
    a.e("v_mul_u32_u24 v3, 21846, v2")
    a.e("v_mul_u32_u24 v6, 1280, v0")
    a.e("v_lshrrev_b32 v3, 16, v3")
    a.e(f"v_mul_u32_u24 v7, {o['warm']}, v0")
    a.e("v_mul_u32_u24 v4, 3, v3")
    a.e("v_mul_u32_u24 v3, 12288, v3")
    a.e("v_sub_u32 v4, v2, v4")
    a.e(f"s_mul_i32 s48, s{S_B}, {40*12288}")
    a.e("v_lshl_add_u32 v3, v4, 7, v3")
    a.e(f"s_mul_i32 s{S_T}, s{S_HG}, 1536")
    a.e(f"s_add_u32 s48, s48, s{S_T}")
    a.e(f"s_cmp_eq_u32 s{S_WAVE}, 7")
    a.e("s_cselect_b32 s49, 8, 16")
    a.e("s_bfm_b32 s49, s49, 0")
    a.e(f"s_mul_i32 s50, s{S_B}, 81920")
    a.e(f"s_lshl_b32 s51, s{S_B}, 3"); a.e(f"s_add_u32 s51, s51, s{S_HG}")
    a.e(f"s_mul_i32 s51, s51, 786432")
    a.e(f"s_cmp_eq_u32 s{S_WAVE}, 0"); a.e(f"s_cselect_b32 s50, s50, {OOB}")
    a.e(f"s_cmp_eq_u32 s{S_WAVE}, {1 if o['kvw'] & 1 else 9}"); a.e(f"s_cselect_b32 s52, s51, {OOB}")
    a.e(f"s_cmp_eq_u32 s{S_WAVE}, {2 if o['kvw'] & 2 else 9}"); a.e(f"s_cselect_b32 s53, s51, {OOB}")
    a.e("s_mov_b32 exec_hi, 0")
    a.e("s_mov_b32 exec_lo, s49")
    a.e("s_waitcnt lgkmcnt(0)")
    srd(a, S_WQ, 44, W_BYTES)
    a.e(f"buffer_load_dword v255, v3, {sq(S_WQ)}, s48 offen{pp}")
    a.e("s_mov_b64 exec, -1")
    srd(a, S_XI, 36, X_BYTES)
    a.e(f"buffer_load_dword v255, v6, {sq(S_XI)}, s50 offen{pp}")
    a.e(f"s_mov_b64 exec, {(1 << (786432 // o['warm'])) - 1}")
    srd(a, S_K, 40, KV_BYTES)
    a.e(f"buffer_load_dword v255, v7, {sq(S_K)}, s52 offen nt")
    srd(a, S_V, 42, KV_BYTES)
    a.e(f"buffer_load_dword v255, v7, {sq(S_V)}, s53 offen nt")
    a.e("s_mov_b64 exec, -1")
    srd(a, S_WO, 46, W_BYTES); srd(a, S_WS, 34, WS_BYTES)
    srd(a, S_DBG, 66, 256)
    srd(a, S_OUT, 64, OUT_BYTES)


def pipe(a, reads, mfmas, fill, depth, span=None, skip=0):
    n = len(mfmas)
    span = span or n
    for i in range(min(depth, n)):
        for t in reads[i]: a.e(t)
    done = 0
    for i in range(n):
        for t in ([mfmas[i]] if isinstance(mfmas[i], str) else mfmas[i]): a.e(t)
        if i + depth < n:
            for t in reads[i + depth]: a.e(t)
        upto = len(fill) * max(min(i + 1, span) - skip, 0) // (span - skip)
        for t in fill[done:upto]: a.e(t)
        done = upto


def interleave(a, chains):
    for i in range(max(map(len, chains))):
        for c in chains:
            if i < len(c): a.e(c[i])


def div24(a, dst_row, dst_rem, src, tmp):
    a.e(f"v_mul_u32_u24 {tmp}, 2731, {src}")
    a.e(f"v_lshrrev_b32 {dst_row}, 16, {tmp}")
    a.e(f"v_mul_u32_u24 {tmp}, 24, {dst_row}")
    a.e(f"v_sub_u32 {dst_rem}, {src}, {tmp}")


def stamp(a, o, k, tag=''):
    if {2: "", 3: "pro", 4: "tail", 5: "start", 6: "tick", 7: "s1"}.get(o["stamps"]) != tag: return
    a.e("s_waitcnt lgkmcnt(0)")
    a.e("s_memrealtime s[94:95]")
    a.e("s_waitcnt lgkmcnt(0)")
    if isinstance(k, int): a.e(f"s_mov_b32 s{70+k}, s94")
    else:
        base, reg, n = k[:3]
        for i in range(k[3] if len(k) > 3 else 0, n):
            a.e(f"s_cmp_eq_u32 s{reg}, {i}")
            a.e(f"s_cselect_b32 s{70+base+i}, s94, s{70+base+i}")


def endstep(a, vm=None):
    a.e("s_waitcnt lgkmcnt(0)" if vm is None else f"s_waitcnt vmcnt({vm}) lgkmcnt(0)")
    a.e("s_barrier")


def idle(a, tag, n):
    if n <= 2:
        for _ in range(n): a.e("s_barrier")
        return
    a.e(f"s_mov_b32 s{S_T}, {n}")
    a.label(f"L_{tag}")
    a.e("s_barrier")
    a.e(f"s_sub_u32 s{S_T}, s{S_T}, 1")
    a.e(f"s_cmp_lg_u32 s{S_T}, 0")
    a.branch(f"s_cbranch_scc1 L_{tag}")


def idle_steps(a, o, tag, r0, r1):
    n = sum(1 + (r == 17) + (o["pdma"] == 3 and r % 2 == 0) for r in range(r0, r1))
    idle(a, tag, n)


def lane_id(a, r):
    a.e(f"v_mbcnt_lo_u32_b32 v{r}, -1, 0")
    a.e(f"v_mbcnt_hi_u32_b32 v{r}, -1, v{r}")


def dma_offsets_q(a, vq, vx, t):
    chains = []
    for j in range(3):
        r = Rec()
        T0, T1, T2, T3 = (f"v{t+4*j+k}" for k in range(4))
        r.e(f"v_add_u32 {T0}, {64*j}, v0")
        div24(r, T1, T2, T0, T3)
        r.e(f"v_and_or_b32 {T3}, {T1}, 2, s{S_T}")
        r.e(f"v_xor_b32 {T2}, {T2}, {T3}")
        r.e(f"v_mul_u32_u24 {T1}, 12288, {T1}")
        r.e(f"v_lshl_add_u32 {T1}, {T2}, 4, {T1}")
        r.e(f"v_subrev_u32 v{vq+j}, {1024*j}, {T1}")
        chains.append(r.t)
    T0, T1 = f"v{t+12}", f"v{t+13}"
    a.e(f"s_and_b32 s{S_T}, s{S_W}, 1")
    a.e(f"s_lshl_b32 s{S_T}, s{S_T}, 2")
    chains.append([f"v_lshrrev_b32 {T0}, 3, v0", f"v_and_b32 {T0}, 6, {T0}", f"v_and_b32 {T1}, 7, v0",
                   f"v_xor_b32 {T0}, {T0}, {T1}", f"v_lshrrev_b32 {T1}, 3, v0", f"v_mul_u32_u24 {T1}, 1280, {T1}",
                   f"v_lshl_add_u32 v{vx}, {T0}, 4, {T1}"])
    interleave(a, chains)


def wq_share(a, dst, T0, T1, T2):
    a.e(f"s_and_b32 s{S_T}, s{S_W}, 1")
    a.e(f"s_lshl_b32 s{S_T}, s{S_T}, 6")
    a.e(f"v_add_u32 {T0}, s{S_T}, v0")
    a.e(f"v_mul_u32_u24 {T1}, 21846, {T0}")
    a.e(f"v_lshrrev_b32 {T1}, 16, {T1}")
    a.e(f"v_mul_u32_u24 {T2}, 3, {T1}")
    a.e(f"v_sub_u32 {T2}, {T0}, {T2}")
    a.e(f"v_mul_u32_u24 {T1}, 12288, {T1}")
    a.e(f"v_lshl_add_u32 {dst}, {T2}, 7, {T1}")


def scalars_q(a, mq, mx, oq, ox, head):
    a.e(f"s_mul_i32 s{mq}, s{S_W}, 3072")
    a.e(f"s_lshl_b32 s{mx}, s{S_W}, 10")
    a.e(f"s_mul_i32 s{oq}, s{S_HG}, 1536")
    a.e(f"s_mul_i32 s{S_T}, s{S_W}, {8*12288}")
    a.e(f"s_add_u32 s{oq}, s{oq}, s{S_T}")
    if head: a.e(f"s_add_u32 s{oq}, s{oq}, {384*head}")
    a.e(f"s_mul_i32 s{ox}, s{S_B}, 81920")
    a.e(f"s_mul_i32 s{S_T}, s{S_W}, {8*1280}")
    a.e(f"s_add_u32 s{ox}, s{ox}, s{S_T}")


def burst_q(a, o, R, la, lx, lb):
    vq, vx, mq, mx, oq, ox = R
    wp, xp = pol(o["wpol"]), pol(o["xpol"])
    a.e(f"s_add_u32 m0, s{mq}, {la}")
    a.e(f"s_add_u32 s{S_T}, s{ox}, {32*1280}")
    for j in range(3):
        a.e(f"buffer_load_dwordx4 v{vq+j}, {sq(S_WQ)}, s{oq} offen offset:{1024*j}{wp} lds")
    a.e(f"s_add_u32 m0, s{mx}, {lx}")
    a.e(f"s_add_u32 s{oq}, s{oq}, {32*12288}")
    a.e(f"buffer_load_dwordx4 v{vx}, {sq(S_XI)}, s{ox} offen{xp} lds")
    a.e(f"s_add_u32 m0, s{mx}, {lx+4096}")
    a.e(f"s_add_u32 s{ox}, s{ox}, 128")
    a.e(f"buffer_load_dwordx4 v{vx}, {sq(S_XI)}, s{S_T} offen{xp} lds")
    a.e(f"s_add_u32 m0, s{mq}, {lb}")
    a.e("s_nop 0")
    for j in range(3):
        a.e(f"buffer_load_dwordx4 v{vq+j}, {sq(S_WQ)}, s{oq} offen offset:{1024*j}{wp} lds")
    a.e(f"s_add_u32 s{oq}, s{oq}, {32*12288}")


def tail_slot(n):
    k = n % 5
    return WB + k * 24576 if k < 3 else (k - 3) * 24576


def tail_offsets(a, vt, mt, ot, lane, T):
    T0, T1 = T
    a.e(f"v_lshrrev_b32 {T0}, 3, {lane}")
    a.e(f"v_and_b32 {T0}, 2, {T0}")
    a.e(f"v_and_b32 {T1}, 7, {lane}")
    a.e(f"v_xor_b32 {T0}, {T0}, {T1}")
    a.e(f"v_lshrrev_b32 {T1}, 3, {lane}")
    a.e(f"v_mul_u32_u24 {T1}, 1280, {T1}")
    a.e(f"v_lshl_add_u32 v{vt}, {T0}, 4, {T1}")
    a.e(f"v_xor_b32 v{vt+1}, 64, v{vt}")
    a.e(f"s_mul_i32 s{mt}, s{S_W}, 6144")
    a.e(f"s_mul_i32 s{ot}, s{S_HG}, {4*245760}")
    a.e(f"s_mul_i32 s{S_T2}, s{S_W}, {48*1280}")
    a.e(f"s_add_u32 s{ot}, s{ot}, s{S_T2}")
    a.e(f"s_add_u32 s{ot}, s{ot}, {3*245760}")


def tail_tile(a, o, vt, mt, ot, n):
    for j in range(6):
        a.e(f"s_add_u32 m0, s{mt}, {tail_slot(n) + 1024*j}")
        a.e(f"s_add_u32 s{S_T2}, s{ot}, {128*n + 8*1280*j}")
        a.e(f"buffer_load_dwordx4 v{vt+(j&1)}, {sq(S_WO)}, s{S_T2} offen{pol(o['wpol'])} lds")


PRO_W, PRO_X = 24576, 122880
PRO_XO = (8192, 16384, 0, 32768)


PY, PQ, PFA, PFB = 96, 48, 36, 20
P_T0, P_VQ, P_VX, P_VO, P_AQ, P_AW, P_AX, P_AO, P_T1, P_QW, P_DUM = 0, 1, 4, 5, 10, 13, 15, 16, 17, 18, 19
S_C, S_MQ, S_MX, S_MO, S_OQ, S_OX, S_OO, S_P, S_OWN = 50, 51, 52, 53, 54, 55, 56, 58, 49
PR = (P_VQ, P_VX, S_MQ, S_MX, S_OQ, S_OX)


def p_burst_q(a, o, D):
    b = WB + D * 40960
    burst_q(a, o, PR, b, b + 32768, b + 20480)
    return 8


def p_burst_o(a, o, D):
    wp = pol(o["wpol"])
    for h in range(2):
        b = WB + D * 40960 + h * 20480
        a.e(f"s_add_u32 m0, s{S_MO}, {b}")
        a.e(f"s_add_u32 s{S_T}, s{S_OO}, 4096")
        for j in range(4):
            a.e(f"buffer_load_dwordx4 v{P_VO+j}, {sq(S_WO)}, s{S_OO} offen offset:{1024*j}{wp} lds")
        a.e(f"s_add_u32 m0, s{S_MO}, {b+4096}")
        a.e(f"s_add_u32 s{S_OO}, s{S_OO}, 20480")
        a.e(f"buffer_load_dwordx4 v{P_VO+4}, {sq(S_WO)}, s{S_T} offen{wp} lds")
    return 10


def p_toggle(a, regs, D):
    for r in regs:
        a.e(f"v_add_u32 v{r}, 40960, v{r}" if D == 0 else f"v_subrev_u32 v{r}, 40960, v{r}")


def tr_pair(f, addr, off, delta):
    return [f"ds_read_b64_tr_b16 {v(f,2)}, v{addr} offset:{off}", f"ds_read_b64_tr_b16 {v(f+2,2)}, v{addr} offset:{off+delta}"]


def mfma16(acc, fa, fb, zero=False):
    return f"v_mfma_f32_16x16x32_bf16 {v(acc,4)}, {v(fa,4)}, {v(fb,4)}, {'0' if zero else v(acc,4)}"


def quad(reads, mf, rd, acc, f, fb, zero=False):
    for qs in range(4):
        reads.append(rd if qs == 0 else [])
        mf.append(mfma16(acc + 4 * qs, f, fb + 4 * qs, zero))


def p_qstep(a, o, qs, fill=(), pre=()):
    h = qs & 1
    reads, mf = [], []
    for i in range(3):
        quad(reads, mf, tr_pair(PFA + 4 * i, P_AQ + i, h * 20480, 1536), PQ + 16 * i, PFA + 4 * i, PFB, qs == 0)
    ax = P_AX
    if h:
        a.e(f"v_xor_b32 v{P_T0}, 64, v{P_AX}"); ax = P_T0
    xr = [f"ds_read_b128 {v(PFB+4*k,4)}, v{ax} offset:{2048*k}" for k in range(4)]
    reads[0] = xr[:1] + reads[0] + xr[1:]
    if qs == 5: mf[o["xbar"]] = [mf[o["xbar"]], "s_barrier"]
    hoist(a, reads, o["pq"], pre)
    pipe(a, reads, mf, list(fill), o["pq"])
    if h: p_toggle(a, [P_AQ, P_AQ + 1, P_AQ + 2, P_AX], (qs >> 1) & 1)


def p_oreads(a, dst, tau, tmp):
    ao = P_AO
    if tau & 1:
        a.e(f"v_xor_b32 v{tmp}, 64, v{P_AO}"); ao = tmp
    return [f"ds_read_b128 {v(dst+4*k,4)}, v{ao} offset:{6144*k + (tau>>1)*128}" for k in range(4)]


def p_ostep(a, o, s, fill=(), pre=()):
    h = s & 1
    reads, mf = [], []
    for i in range(5):
        T = 5 * h + i
        f = PFA + 4 * (i % 3)
        quad(reads, mf, tr_pair(f, P_AW + (T & 1), (T >> 1) * 256, 5120), PY + 16 * T, f, PFB)
    if not h:
        xr = p_oreads(a, PFB, s >> 1, P_T0)
        reads[0] = xr[:1] + reads[0] + xr[1:]
    hoist(a, reads, o["po"], pre)
    pipe(a, reads, mf, list(fill), o["po"])
    if h: p_toggle(a, [P_AW, P_AW + 1], (s >> 1) & 1)


def p_even(a, o, step, idx, burst, D):
    r = Rec(); n = burst(r, o, D)
    if o["pdma"] == 1:
        for x in r.t: a.e(x)
        step(a, o, idx)
    elif o["pdma"] == 2: step(a, o, idx, r.t)
    elif o["pdma"] == 4: step(a, o, idx, pre=r.t)
    elif o["pdma"] == 5:
        k = len(r.t) * o["psplit"] // 4
        step(a, o, idx, r.t[k:], pre=r.t[:k])
    else:
        step(a, o, idx)
        if o["pdma"] == 3: a.e("s_barrier")
        for x in r.t: a.e(x)
    endstep(a, n)


def p_choice(a, o, tag, cond, first, second):
    if o["pdma"] == 3: a.e("s_barrier")
    if tag == "Pa": stamp(a, o, (4 - 2, S_C, 3, 2), "s1")
    a.e(cond)
    a.branch(f"s_cbranch_scc1 L_{tag}_b")
    a.e(f"s_waitcnt vmcnt({first()})")
    a.branch(f"s_branch L_{tag}_j")
    a.label(f"L_{tag}_b")
    n2 = second()
    if tag == "Pa": stamp(a, o, (5 - 2, S_C, 3, 2), "s1")
    a.e(f"s_waitcnt vmcnt({n2})")
    if tag == "Pa": stamp(a, o, (6 - 2, S_C, 3, 2), "s1")
    a.label(f"L_{tag}_j")
    endstep(a)


PRO_AQ, PRO_AX = 168, 174


def p_prologue(a, o):
    XF, F = 96, 144
    reads, mf = [], []
    for n in range(10):
        s = (n + 2) & 3
        for h in range(2):
            xf = XF + 16 * ((2 * n + h) % 3)
            xr = [f"ds_read_b128 {v(xf+4*k,4)}, v{PRO_AX+h} offset:{PRO_XO[s] + 2048*k}" for k in range(4)]
            for i in range(3):
                f = F + 4 * ((len(mf) // 4) % 6)
                rd = tr_pair(f, PRO_AQ + 3 * (s >> 1) + i, (s & 1) * 24576 + h * 12288, 1536)
                if i == 0: rd = xr[:1] + rd + xr[1:]
                if i == 0 and h == 0 and n: rd = ["s_barrier"] + rd
                quad(reads, mf, rd, PQ + 16 * i, f, xf, n == 0 and h == 0)
    pipe(a, reads, mf, [], o["prod"])


def p_pack_block(a, i):
    y = PY + 16 * i
    for k in range(8): a.e(f"v_cvt_pk_bf16_f32 v{y+k}, v{y+2*k}, v{y+2*k+1}")
    for t in range(2):
        a.e(f"v_permlane16_swap_b32 v{y+4*t}, v{y+4*t+2}")
        a.e(f"v_permlane16_swap_b32 v{y+4*t+1}, v{y+4*t+3}")


def p_store_block(a, o, i):
    a.e(f"s_add_u32 s{S_T}, s{S_OWN}, {4*i}")
    a.e(f"s_cmp_lt_u32 s{S_T}, 5")
    a.e(f"s_cselect_b32 s{S_T}, {OOB}, s{S_P}")
    for t in range(2):
        a.e(f"buffer_store_dwordx4 {v(PY+16*i+4*t,4)}, v1, {sq(S_WS)}, s{S_T} offen offset:{t*1024}{pol(o['stpol'])}")
    a.e(f"s_add_u32 s{S_P}, s{S_P}, 8192")


def p_keep_block(a, i):
    a.e(f"s_add_u32 s{S_T}, s{S_OWN}, {4*i}")
    a.e(f"s_cmp_lt_u32 s{S_T}, 5")
    a.branch(f"s_cbranch_scc0 L_keep{i}")
    a.e(f"s_lshl_b32 s{S_T}, s{S_T}, 11")
    a.e(f"v_add_u32 v3, s{S_T}, v2")
    for t in range(2):
        a.e(f"ds_write_b128 v3, {v(PY+16*i+4*t,4)} offset:{t*1024}")
    a.label(f"L_keep{i}")


def tr_lane_parts(a, lane, G1, RR, ROW, C1, B8):
    a.e(f"v_lshrrev_b32 {ROW}, 4, {lane}")
    a.e(f"v_and_b32 {G1}, 1, {ROW}")
    a.e(f"v_bfe_u32 {RR}, {lane}, 2, 2")
    a.e(f"v_lshl_add_u32 {ROW}, {ROW}, 3, {RR}")
    a.e(f"v_bfe_u32 {C1}, {lane}, 1, 1")
    a.e(f"v_and_b32 {B8}, 1, {lane}")
    a.e(f"v_lshlrev_b32 {B8}, 3, {B8}")


def gen_P(a, o):
    a.label("L_P")
    if o["prio"] == 1: a.e("s_setprio 1")
    T0, T1, T2, T3, T4, T5, T6 = (f"v{20+k}" for k in range(7))
    stamp(a, o, 2, "start")
    G1, RR, ROW, C1, B8 = T0, T1, T2, T3, T4
    tr_lane_parts(a, "v0", G1, RR, ROW, C1, B8)
    a.e(f"v_and_b32 {T5}, 2, {RR}")
    a.e(f"v_lshl_or_b32 {T5}, {G1}, 2, {T5}")
    a.e(f"v_mul_u32_u24 v27, 384, {ROW}")
    a.e(f"v_add_u32 v27, v27, {B8}")
    for i in range(3):
        a.e(f"s_mul_i32 s{S_T}, s{S_W}, 6")
        a.e(f"s_add_u32 s{S_T}, s{S_T}, {2*i}")
        a.e(f"v_add_u32 {T6}, s{S_T}, {C1}")
        a.e(f"v_xor_b32 {T6}, {T6}, {T5}")
        a.e(f"v_lshl_add_u32 {T6}, {T6}, 4, v27")
        a.e(f"v_add_u32 v{P_AQ+i}, {WB}, {T6}")
        a.e(f"v_add_u32 v{PRO_AQ+i}, {PRO_W}, {T6}")
        a.e(f"v_add_u32 v{PRO_AQ+3+i}, {PRO_W+49152}, {T6}")
    a.e(f"v_lshl_or_b32 {T5}, {G1}, 2, {RR}")
    a.e(f"v_lshlrev_b32 {T5}, 1, {T5}")
    a.e(f"v_mul_u32_u24 v27, 1280, {ROW}")
    a.e(f"v_add_u32 v27, v27, {B8}")
    a.e(f"s_lshl_b32 s{S_T}, s{S_W}, 1")
    a.e(f"v_add_u32 {T6}, s{S_T}, {C1}")
    a.e(f"v_xor_b32 {T6}, {T6}, {T5}")
    a.e(f"v_lshl_add_u32 {T6}, {T6}, 4, v27")
    a.e(f"v_add_u32 v{P_AW}, {WB}, {T6}")
    a.e(f"v_xor_b32 v{P_AW+1}, 128, v{P_AW}")
    a.e(f"v_and_b32 {T0}, 15, v0")
    a.e(f"v_lshrrev_b32 {T1}, 4, v0")
    a.e(f"v_and_b32 {T2}, 6, {T0}")
    a.e(f"v_xor_b32 {T3}, {T2}, {T1}")
    a.e(f"v_lshlrev_b32 {T3}, 4, {T3}")
    a.e(f"v_lshl_add_u32 {T4}, {T0}, 7, {T3}")
    a.e(f"v_add_u32 v{P_AX}, {WB+32768}, {T4}")
    a.e(f"v_add_u32 v{PRO_AX}, {PRO_X}, {T4}")
    a.e(f"v_xor_b32 v{PRO_AX+1}, 64, v{PRO_AX}")
    a.e(f"v_mul_u32_u24 {T0}, 384, {T0}")
    a.e(f"v_add_u32 {T0}, {XB}, {T0}")
    a.e(f"v_bfe_u32 {T2}, v0, 1, 3")
    a.e(f"v_xor_b32 {T3}, {T2}, {T1}")
    a.e(f"v_lshl_add_u32 v{P_AO}, {T3}, 4, {T0}")
    a.e(f"v_lshrrev_b32 {T3}, 1, {T1}")
    a.e(f"v_xor_b32 {T3}, {T3}, {T2}")
    a.e(f"v_lshl_add_u32 {T3}, {T3}, 4, {T0}")
    a.e(f"v_and_b32 {T1}, 1, {T1}")
    a.e(f"v_lshl_add_u32 v{P_QW}, {T1}, 3, {T3}")
    dma_offsets_q(a, P_VQ, P_VX, 28)
    a.e(f"s_lshr_b32 s{S_T}, s{S_W}, 1")
    a.e(f"s_lshl_b32 s{S_T}, s{S_T}, 2")
    for j in range(5):
        a.e(f"v_add_u32 {T0}, {64*j}, v0")
        a.e(f"v_mul_u32_u24 {T0}, 820, {T0}")
        a.e(f"v_lshrrev_b32 {T0}, 16, {T0}")
        a.e(f"v_or_b32 {T0}, s{S_T}, {T0}")
        a.e(f"v_lshlrev_b32 {T0}, 1, {T0}")
        a.e(f"v_xor_b32 {T0}, {T0}, v0")
        a.e(f"v_lshlrev_b32 v{P_VO+j}, 4, {T0}")
    scalars_q(a, S_MQ, S_MX, S_OQ, S_OX, 1)
    a.e(f"s_mul_i32 s{S_MO}, s{S_W}, 5120")
    a.e(f"s_mul_i32 s{S_OO}, s{S_HG}, {4*245760}")
    a.e(f"s_add_u32 s{S_OO}, s{S_OO}, s{S_MO}")
    a.e(f"s_mov_b32 s{S_C}, 1")
    stamp(a, o, 3, "start")
    a.e("s_barrier")
    stamp(a, o, 1)
    a.raw("L_Ppro:")
    p_prologue(a, o)

    a.label("L_Pcyc")
    for i in range(24):
        a.e(f"v_cvt_pk_bf16_f32 v{PQ+i}, v{PQ+2*i}, v{PQ+2*i+1}")
    for i in range(3):
        a.e(f"s_mul_i32 s{S_T}, s{S_W}, 3")
        a.e(f"s_add_u32 s{S_T}, s{S_T}, {i}")
        a.e(f"s_and_b32 s{S_T2}, s{S_T}, 3")
        a.e(f"s_lshl_b32 s{S_T2}, s{S_T2}, 5")
        a.e(f"s_lshr_b32 s{S_T}, s{S_T}, 2")
        a.e(f"s_lshl_b32 s{S_T}, s{S_T}, 7")
        t = (P_T0, P_T1)[i & 1]
        a.e(f"v_xor_b32 v{t}, s{S_T2}, v{P_QW}")
        a.e(f"v_add_u32 v{t}, s{S_T}, v{t}")
        for k in range(4):
            a.e(f"ds_write_b64 v{t}, {v(PQ+8*i+2*k,2)} offset:{6144*k}")
    a.e("s_waitcnt lgkmcnt(0)")
    a.e(f"s_cmp_eq_u32 s{S_C}, 4")
    a.branch("s_cbranch_scc0 L_Pc3")
    idle_steps(a, o, "Pi4", 0, 4)
    a.branch("s_branch L_PO")
    a.label("L_Pc3")
    a.e(f"s_cmp_eq_u32 s{S_C}, 1")
    a.branch("s_cbranch_scc0 L_PQa")
    a.e("s_barrier")
    p_burst_q(a, o, 0)
    idle_steps(a, o, "Pi2", 1, 3)
    endstep(a, 3)

    a.label("L_PQa")
    for qs in range(4):
        if qs == 0:
            p_even(a, o, p_qstep, 0, p_burst_q, 1); continue
        p_qstep(a, o, qs)
        if qs == 2: p_choice(a, o, "Pa", f"s_cmp_ge_u32 s{S_C}, 2", lambda: p_burst_q(a, o, 0), lambda: p_burst_o(a, o, 0))
        else: endstep(a, 3 if qs == 1 else 0)
    a.e(f"s_cmp_ge_u32 s{S_C}, 2")
    a.branch("s_cbranch_scc1 L_PO")
    for i in range(160): a.e(f"v_mov_b32 v{PY+i}, 0")
    idle_steps(a, o, "Pi10", 8, 16)
    a.branch("s_branch L_PQb")

    a.label("L_PO")
    stamp(a, o, (2, S_C, 5))
    for s in range(12):
        if s < 10 and s % 2 == 0:
            p_even(a, o, p_ostep, s, p_burst_o, ((s >> 1) + 1) & 1); continue
        p_ostep(a, o, s)
        if s == 10: p_choice(a, o, "Po", f"s_cmp_eq_u32 s{S_C}, 4", lambda: p_burst_q(a, o, 0), lambda: 0)
        elif s == 11: endstep(a, 3)
        else: endstep(a, 0)
    a.e(f"s_cmp_eq_u32 s{S_C}, 4")
    a.branch("s_cbranch_scc1 L_Ptail")

    a.label("L_PQb")
    for qs in range(4, 20):
        if qs < 18 and qs % 2 == 0:
            p_even(a, o, p_qstep, qs, p_burst_q, ((qs >> 1) + 1) & 1); continue
        p_qstep(a, o, qs)
        if qs == 18:
            a.e(f"s_add_u32 s{S_OQ}, s{S_OQ}, {(384 - 640*12288) & 0xffffffff}")
            a.e(f"s_sub_u32 s{S_OX}, s{S_OX}, 1280")
            p_choice(a, o, "Pb", f"s_cmp_eq_u32 s{S_C}, 3", lambda: p_burst_q(a, o, 0), lambda: p_burst_o(a, o, 0))
        else: endstep(a, 0 if qs == 19 else 3)
    a.e(f"s_add_u32 s{S_C}, s{S_C}, 1")
    a.branch("s_branch L_Pcyc")

    a.label("L_Ptail")
    VT, TA = 2, 4
    lane_id(a, 5)
    tail_offsets(a, VT, S_MO, S_OO, "v5", ("v6", "v7"))
    tr_lane_parts(a, "v5", "v6", "v7", "v8", "v9", "v10")
    a.e("v_and_b32 v7, 2, v7")
    a.e("v_lshl_or_b32 v7, v6, 2, v7")
    a.e(f"s_lshl_b32 s{S_T}, s{S_W}, 1")
    a.e(f"v_add_u32 v9, s{S_T}, v9")
    a.e("v_xor_b32 v9, v9, v7")
    a.e("v_lshl_add_u32 v9, v9, 4, v10")
    a.e(f"v_lshl_add_u32 v{TA}, v8, 7, v9")
    a.e("v_lshlrev_b32 v1, 4, v5")
    a.e(f"s_lshl_b32 s{S_P}, s{S_BR}, 4"); a.e(f"s_add_u32 s{S_P}, s{S_P}, s{S_B}")
    a.e(f"s_lshl_b32 s{S_P}, s{S_P}, 3"); a.e(f"s_add_u32 s{S_P}, s{S_P}, s{S_HG}")
    a.e(f"s_mul_i32 s{S_P}, s{S_P}, 81920")
    a.e(f"s_lshl_b32 s{S_T}, s{S_W}, 11"); a.e(f"s_add_u32 s{S_P}, s{S_P}, s{S_T}")
    a.e(f"s_mul_i32 s{S_T}, s{S_HG}, 5"); a.e(f"s_sub_u32 s{S_OWN}, s{S_W}, s{S_T}")
    for n in range(3):
        tail_tile(a, o, VT, S_MO, S_OO, n)
        idle_steps(a, o, f"Pt{n}", 16 + 2 * n, 18 + 2 * n)
    idle_steps(a, o, "Pt3", 22, 31)
    tail_tile(a, o, VT, S_MO, S_OO, 3)
    idle_steps(a, o, "Pt4", 31, 32)
    if o["pdma"] == 3: a.e("s_barrier")
    endstep(a, 0)
    stamp(a, o, 7)
    SB, F = 8, 24
    a.e(f"v_xor_b32 v{P_T0}, 64, v{P_AO}")
    a.e(f"v_mov_b32 v7, v{P_AO}")
    ob = lambda dst, tau: [f"ds_read_b128 {v(dst+4*k,4)}, v{P_T0 if tau & 1 else 7} offset:{6144*k + (tau>>1)*128}" for k in range(4)]
    order = (3, 0, 4, 1, 5, 2)
    for t in ob(SB, 3): a.e(t)
    addr = lambda p, k: f"v_add_u32 v{5+k}, {tail_slot(2*p+k)}, v{TA}"
    pairs = []
    for p in range(5):
        reads, mf = [], []
        for gi, tau in enumerate(order):
            for k in range(2):
                f = F + 4 * ((len(mf) // 4) % 6)
                rd = tr_pair(f, 5 + k, tau * 4096, 512)
                if gi == 0: rd = [addr(p, k)] + rd
                if p == 0 and tau < 3 and k == 0: rd = ob(PQ + 16 * tau, tau) + rd
                quad(reads, mf, rd, PY + 16 * (2 * p + k), f, PQ + 16 * tau if tau < 3 else SB)
            if o["tq"] and tau >= 3 and (p or gi):
                mf[-8] = [f"need {v(SB,16)}", mf[-8]]
            if tau >= 3 and not (p == 4 and tau == 5):
                nxt = ob(SB, 3 if tau == 5 else tau + 1)
                if o["tq"]:
                    for k in range(4): mf[k - 4] = [mf[k - 4], nxt[k]]
                else: mf[-1] = [mf[-1]] + nxt
        pairs.append((reads, mf))
    for p, h in ((0, 3), (1, 1)):
        for q_ in range(h if o["tx"] else 0):
            pairs[p][1][41 + 2 * q_] = [pairs[p][1][41 + 2 * q_]] + pairs[p + 1][0][4 * q_]
            pairs[p + 1][0][4 * q_] = []
    for p, (reads, mf) in enumerate(pairs):
        fill = []
        if p: fill = rec(p_pack_block, 2 * p - 2) + rec(p_pack_block, 2 * p - 1)
        for m in TAIL_STORES[o["tst"]].get(p, []): fill += rec(p_store_block, o, m)
        pipe(a, reads, mf, fill, 16, skip=6)
        if p < 4: a.e("s_barrier")
    stamp(a, o, 8)
    for m in TAIL_STORES[o["tst"]][5]:
        if m >= 8: p_pack_block(a, m)
        p_store_block(a, o, m)
    a.e(f"s_mul_i32 s{S_T}, s{S_HG}, 10240")
    a.e(f"s_add_u32 s{S_T}, s{S_T}, {WB}")
    a.e(f"v_add_u32 v2, s{S_T}, v1")
    for m in range(10): p_keep_block(a, m)
    a.e("s_waitcnt vmcnt(0)")
    a.branch("s_branch L_red")


TAIL_STORES = [{3: [0, 1, 2, 3, 4, 5], 4: [6, 7], 5: [8, 9]},
               {3: [0, 1, 2], 4: [3, 4, 5, 6], 5: [7, 8, 9]},
               {2: [0, 1], 3: [2, 3, 4], 4: [5, 6, 7], 5: [8, 9]},
               {1: [0, 1], 2: [2, 3], 3: [4, 5], 4: [6, 7], 5: [8, 9]}]


AS, AR_, AP, AF = 128, 80, 56, 24
A_VD, A_AK, A_AV, A_M, A_L, A_R, A_T0, A_T1, A_PF, A_DUM = 1, 4, 6, 14, 16, 18, 20, 21, 22, 23
A_XQ, A_XO, A_EW, A_ER, A_FI, A_FO = 48, 50, 52, 53, 54, 55
S_SP, S_PER, S_MK, S_OK, S_OV, S_CS, S_PFO, S_PFS, S_PF = 49, 50, 51, 52, 53, 54, 55, 56, 60
AR = (128, 131, 68, 69, 96, 97)
S_PFM = 100
S_LK, S_LV = 48, 58


def pf_sites(o):
    return {b + k for b in (1, o["pfa"], o["pfo"]) for k in range(4)}


def a_burst(a, o, D, srdreg, off, last=False):
    kp = pol(o["kvpol"])
    for h in range(2):
        a.e(f"s_add_u32 m0, s{S_MK}, {D*24576+h*12288}")
        if h: a.e(f"s_add_u32 s{off}, s{off}, 12288")
        else: a.e("s_nop 0")
        for j in range(3):
            a.e(f"buffer_load_dwordx4 v{A_VD+j}, {sq(srdreg)}, s{off} offen offset:{1024*j}{kp} lds")
    a.e(f"s_add_u32 s{off}, s{off}, 12288")
    if o["rot"]:
        lim = S_LK if off == S_OK else S_LV
        a.e(f"s_cmp_eq_u32 s{off}, s{lim}")
        a.e(f"s_cselect_b32 s{S_T}, 196608, 0")
        a.e(f"s_sub_u32 s{off}, s{off}, s{S_T}")
        if last:
            a.e(f"s_add_u32 s{off}, s{off}, 196608")
            a.e(f"s_add_u32 s{lim}, s{lim}, 196608")


def soft_chunk(j):
    b = AS + 8 * j
    t = []
    for i in range(8): t.append(f"v_fma_f32 v{b+i}, v{b+i}, s{S_CS}, -v{A_M+(i>>2)}")
    for i in range(8): t.append(f"v_exp_f32 v{b+i}, v{b+i}")
    for i in (0, 4, 1, 5, 2, 6, 3, 7):
        if j == 0 and i % 4 == 0: t.append(f"v_mov_b32 v{A_L+(i>>2)}, v{b+i}")
        else: t.append(f"v_add_f32 v{A_L+(i>>2)}, v{A_L+(i>>2)}, v{b+i}")
    for qs in range(2):
        for i in range(2): t.append(f"v_cvt_pk_bf16_f32 v{b+4*qs+i}, v{b+4*qs+2*i}, v{b+4*qs+2*i+1}")
    for qs in range(2):
        t.append(f"ds_write_b64 v{A_EW}, {v(b+4*qs,2)} offset:{(j&1)*4096 + qs*512}")
    return t


def max_chunk(s):
    b = AS + 8 * s
    t = []
    for i in range(2):
        for qs in range(2):
            r = b + 4 * qs + 2 * i
            if s == 0 and i == 0: t.append(f"v_max_f32 v{A_M+qs}, v{r}, v{r+1}")
            else: t.append(f"v_max3_f32 v{A_M+qs}, v{A_M+qs}, v{r}, v{r+1}")
    return t


def xlane2(a, reg, op):
    for sw in ("v_permlane32_swap_b32", "v_permlane16_swap_b32"):
        for k in range(2): a.e(f"v_mov_b32 v{A_T0+k}, v{reg+k}")
        for k in range(2): a.e(f"{sw} v{reg+k}, v{A_T0+k}")
        for k in range(2): a.e(f"{op} v{reg+k}, v{reg+k}, v{A_T0+k}")


def a_rowsum(a):
    xlane2(a, A_L, "v_add_f32")
    a.e(f"s_mov_b32 s{S_T}, {WB + 40960 + 12288 - EB & 0xffffffff}")
    a.e(f"s_cmp_eq_u32 s{S_PER}, 3")
    a.e(f"s_cselect_b32 s{S_T}, {WB + 73728 - EB & 0xffffffff}, s{S_T}")
    a.e(f"s_lshl_b32 s{S_T2}, s{S_W}, 9")
    a.e(f"s_sub_u32 s{S_T}, s{S_T}, s{S_T2}")
    a.e(f"v_add_u32 v{A_R}, s{S_T}, v{A_EW}")
    a.e(f"v_xor_b32 v{A_R+1}, 512, v{A_R}")
    a.e(f"ds_write_b64 v{A_R}, {v(A_L,2)}")


def a_qread(ks):
    return [f"ds_read_b128 {v(AR_+8*ks+4*qs,4)}, v{A_XQ+(ks&1)} offset:{qs*6144 + (ks>>1)*128}" for qs in range(2)]


def a_owrite(i):
    t = [f"v_xor_b32 v{A_T0+(i&1)}, {32*(i&3)}, v{A_XO+(1 if i in (2, 3) else 0)}"]
    for qs in range(2):
        t.append(f"ds_write_b64 v{A_T0+(i&1)}, {v(AP+4*i+2*qs,2)} offset:{qs*6144 + (i>>2)*128}")
    return t


def a_onorm(i):
    t = []
    for qs in range(2):
        r = AR_ + 8 * i + 4 * qs
        for k in range(4): t.append(f"v_mul_f32 v{r+k}, v{r+k}, v{A_R+qs}")
    for qs in range(2):
        r = AR_ + 8 * i + 4 * qs
        for k in range(2): t.append(f"v_cvt_pk_bf16_f32 v{AP+4*i+2*qs+k}, v{r+2*k}, v{r+2*k+1}")
    return t


def weave(pre, work):
    n = sum(t.startswith("buffer_load_dwordx4") for t in pre)
    out, k = [], 0
    for t in pre:
        out.append(t)
        if t.startswith("buffer_load_dwordx4"):
            k += 1
            out += work[len(work) * (k - 1) // n:len(work) * k // n]
    return out


def hoist(a, reads, depth, pre):
    if not pre: return
    for i in range(min(depth, len(reads))):
        for t in reads[i]: a.e(t)
        reads[i] = []
    for t in pre: a.e(t)


def a_kstep(a, o, s, extra=(), pre=()):
    reads, mf = [], []
    for i in range(12):
        ks, qs = divmod(i, 2) if not o["kord"] else (i % 6, i // 6)
        f = AF + 4 * ks
        reads.append([] if qs else [f"ds_read_b128 {v(f,4)}, v{A_AK+(ks&1)} offset:{(s&3)*12288 + (ks>>1)*128}"])
        mf.append(mfma16(AS + 8 * s + 4 * qs, f, AR_ + 8 * ks + 4 * qs, ks == 0))
    hoist(a, reads, o["adepth"], pre)
    pipe(a, reads, mf, (max_chunk(s - 1) if s else []) + list(extra), o["adepth"])
    if s == 15:
        for t in max_chunk(15): a.e(t)
        xlane2(a, A_M, "v_max_f32")
        a.e(f"ds_write_b64 v{A_EW}, {v(A_M,2)} offset:4096")


def a_vstep(a, o, j, pre=()):
    s = 16 + j
    b = AS + 8 * j
    reads, mf = [], []
    for n in range(12):
        i, qs = divmod(n, 2)
        f = AF + 4 * i
        off = (s & 3) * 12288 + (i >> 2) * 128
        reads.append([] if qs else [f"ds_read_b64_tr_b16 {v(f,2)}, v{A_AV+(i&3)} offset:{off}",
                                    f"ds_read_b64_tr_b16 {v(f+2,2)}, v{A_AV+4+(i&3)} offset:{off}"])
        mf.append(mfma16(AR_ + 8 * i + 4 * qs, f, b + 4 * qs, j == 0))
    if j == 0:
        a.e(f"ds_read_b64 {v(A_T0,2)}, v{A_ER} offset:4096")
        for n in range(0, 12, 2):
            for t in reads[n]: a.e(t)
            reads[n] = []
        work = [f"v_max_f32 v{A_M+k}, v{A_M+k}, v{A_T0+k}" for k in range(2)]
        work += [f"v_mul_f32 v{A_M+k}, s{S_CS}, v{A_M+k}" for k in range(2)] + soft_chunk(0)
        for t in (weave(list(pre), work) if o["t16"] == 2 else list(pre) + work): a.e(t)
        pre = ()
        endstep(a)
    for qs in range(2):
        a.e(f"ds_read_b64 {v(b+4*qs+2,2)}, v{A_ER} offset:{(j&1)*4096 + qs*512}")
    if j == 15:
        a.e(f"ds_read_b64 {v(A_T0,2)}, v{A_R+1}")
        mf[1] = [mf[1]] + [f"v_add_f32 v{A_L+k}, v{A_L+k}, v{A_T0+k}" for k in range(2)]
        mf[2] = [mf[2]] + [f"v_rcp_f32 v{A_R+k}, v{A_L+k}" for k in range(2)]
        for i in range(4): mf[2 * i + 5] = [mf[2 * i + 5]] + a_onorm(i)
    fill = soft_chunk(j + 1) + (rec(a_rowsum) if j == 14 else []) if j < 15 else []
    if pre and o["vweave"] and pre != ["s_barrier"]:
        k = len(fill) * o["vweave"] // 4
        pre, fill = weave(list(pre), fill[:k]), fill[k:]
    hoist(a, reads, o["adepth"], pre)
    pipe(a, reads, mf, fill, o["adepth"], 12 if j == 14 else o["vspan"])
    if j == 15:
        for t in a_onorm(4) + a_onorm(5): a.e(t)
        a.e(f"s_cmp_eq_u32 s{S_PER}, 3")
        a.branch("s_cbranch_scc0 L_A31")
        for i in range(6):
            for t in a_owrite(i): a.e(t)
        a.label("L_A31")


def spin(a, tag, load, test, nap=0, bound=0x20000):
    a.e("s_mov_b32 s40, 0")
    a.label(f"L_{tag}")
    a.e(load)
    a.e("s_add_u32 s40, s40, 1")
    a.e("s_waitcnt vmcnt(0) lgkmcnt(0)")
    for t in test: a.e(t)
    a.branch(f"s_cbranch_scc1 L_{tag}_ok")
    if nap: a.e(f"s_sleep {nap}")
    a.e(f"s_cmp_lt_u32 s40, {bound}")
    a.branch(f"s_cbranch_scc1 L_{tag}")
    a.label(f"L_{tag}_ok")


def gen_A(a, o):
    a.comment("attention waves: 16 query rows each; they also feed the first and the last projection")
    if o["prio"] == 2: a.e("s_setprio 1")
    if o["sprio"]: a.e("s_setprio 3")
    T0, T1, T2, T3 = "v24", "v25", "v26", "v27"
    dma_offsets_q(a, AR[0], AR[1], 32)
    scalars_q(a, *AR[2:], 0)
    chains = []
    for j in range(3):
        r = Rec()
        U0, U1, U2, U3 = (f"v{32+4*j+k}" for k in range(4))
        r.e(f"v_add_u32 {U0}, {64*j}, v0")
        r.e(f"v_mul_u32_u24 {U1}, 2731, {U0}")
        r.e(f"v_lshrrev_b32 {U1}, 16, {U1}")
        r.e(f"v_and_b32 {U1}, 6, {U1}")
        r.e(f"v_xor_b32 {U1}, {U1}, v0")
        r.e(f"v_lshlrev_b32 v{A_VD+j}, 4, {U1}")
        chains.append(r.t)
    kv_offsets = chains
    a.e(f"s_mul_i32 s98, s{S_B}, 81920")
    a.e(f"s_mul_i32 s{S_T}, s{S_HALF}, 40960"); a.e(f"s_add_u32 s98, s98, s{S_T}")
    a.e(f"s_mul_i32 s{S_T}, s{S_W}, 10240"); a.e(f"s_add_u32 s98, s98, s{S_T}")
    a.e(f"v_lshlrev_b32 v28, 7, v0")
    a.e(f"v_add_u32 v29, 8192, v28")
    a.e(f"v_mov_b32 {T2}, {OOB}")
    a.e(f"v_cmp_gt_u32 vcc, 16, v0")
    a.e(f"v_cndmask_b32 v29, {T2}, v29, vcc")
    stamp(a, o, 2, "start")
    pp = pol(o["pfpol"])
    vm = ["t"] * 4

    def W(n):
        s = (n + 2) & 3
        burst_q(a, o, AR, PRO_W + s * 24576, PRO_X + PRO_XO[s], PRO_W + s * 24576 + 12288)
        vm.extend([("W", n)] * 8)

    def K0():
        a_burst(a, o, 0, S_K, S_OK); vm.extend([("K", 0)] * 3 + [("K", 1)] * 3)

    def late_touches():
        a.e(f"s_cmp_eq_u32 s99, 0")
        a.e(f"s_cselect_b32 s{S_T}, {OOB}, s{S_PFO}")
        a.e(f"buffer_load_dword v{A_DUM}, v{A_PF}, {sq(S_PF)}, s{S_T} offen{pp}"); vm.append("t")
        a.e(f"s_add_u32 s{S_PFO}, s{S_PFO}, s99")
        a.e(f"s_cmp_eq_u32 s{S_W}, 0")
        a.e(f"s_cselect_b32 s{S_T}, s46, {OOB}")
        a.e(f"s_cselect_b32 s{S_T2}, s47, {OOB}")
        a.e(f"buffer_load_dword v{A_FI}, v28, {sq(S_WS)}, s{S_T} offen sc1"); vm.append("f")
        a.e(f"buffer_load_dword v{A_FO}, v29, {sq(S_WS)}, s{S_T2} offen sc1"); vm.append("f")

    def wait_for(tag):
        last = max(i for i, x in enumerate(vm) if x == tag)
        return min(63, len(vm) - 1 - last)

    stamp(a, o, 3, "start")
    W(0)
    stamp(a, o, 4, "start")
    if o["sprio"]: a.e(f"s_setprio {1 if o['prio'] == 2 else 0}")
    interleave(a, kv_offsets)
    a.e(f"s_mul_i32 s{S_MK}, s{S_W}, 3072")
    a.e(f"s_lshl_b32 s{S_OK}, s{S_B}, 3"); a.e(f"s_add_u32 s{S_OK}, s{S_OK}, s{S_HG}")
    a.e(f"s_mul_i32 s{S_OK}, s{S_OK}, 786432"); a.e(f"s_add_u32 s{S_OK}, s{S_OK}, s{S_MK}")
    if o["rot"]:
        a.e(f"s_add_u32 s{S_LK}, s{S_OK}, 196608")
        a.e(f"s_mov_b32 s{S_LV}, s{S_LK}")
        a.e(f"s_mul_i32 s{S_T}, s2, {o['rot']}")
        a.e(f"s_lshr_b32 s{S_T}, s{S_T}, 3")
        a.e(f"s_add_u32 s{S_T}, s{S_T}, s2")
        a.e(f"s_and_b32 s{S_T}, s{S_T}, 7")
        a.e(f"s_mul_i32 s{S_T}, s{S_T}, 24576")
        a.e(f"s_add_u32 s{S_OK}, s{S_OK}, s{S_T}")
    a.e(f"s_mov_b32 s{S_OV}, s{S_OK}")
    a.e(f"buffer_load_dword v{A_DUM}, v28, {sq(S_XI)}, s98 offen{pp}"); vm.append("t")
    a.e(f"buffer_load_dword v{A_DUM}, v29, {sq(S_XI)}, s98 offen{pp}"); vm.append("t")
    stamp(a, o, 5, "start")
    if o["k0"] < 0: K0()
    if o["codepf"]:
        a.e("s_getpc_b64 s[100:101]")
        a.raw("L_pc:")
        a.e(f"s_sub_u32 s100, s100, L_pc-{KN}")
        a.e("s_subb_u32 s101, s101, 0")
        a.e("s_lshr_b32 s98, s2, 3")
        a.e(f"s_lshl_b32 s98, s98, 2")
        a.e(f"s_add_u32 s98, s98, s{S_W}")
        a.e(f"s_lshl_b32 s98, s98, 9")
        a.e("v_and_b32 v30, 3, v0")
        a.e("v_lshlrev_b32 v30, 7, v30")
        a.e("v_add_u32 v30, s98, v30")
        a.e(f"v_min_u32 v30, L_end-{KN}, v30")
        a.e(f"global_load_dword v{A_DUM}, v30, s[100:101]"); vm.append("t")
    a.e(f"s_lshl_b32 s44, s{S_BR}, 4")
    a.e(f"s_add_u32 s44, s44, s{S_B}")
    a.e("s_lshl_b32 s45, s44, 10")
    a.e(f"s_add_u32 s45, s45, {FLAGS}")
    a.e(f"s_lshl_b32 s46, s{S_HG}, 7")
    a.e(f"s_add_u32 s46, s46, s45")
    a.e(f"s_lshl_b32 s47, s{S_HG}, 2")
    a.e(f"s_add_u32 s47, s47, s45")
    wq_share(a, T1, T0, T1, T2)
    a.e(f"v_lshlrev_b32 {T2}, 7, {T0}")
    a.e(f"s_mov_b32 s{S_PFS}, 384")
    a.e(f"s_mov_b32 s{S_T}, {40*12288}")
    a.e(f"s_cmp_ge_u32 s{S_W}, 2")
    a.e(f"s_cselect_b64 vcc, -1, 0")
    a.e(f"s_cselect_b32 s{S_PFS}, 245760, s{S_PFS}")
    a.e(f"s_cselect_b32 s{S_T}, 15360, s{S_T}")
    a.e(f"s_cselect_b32 s{S_PF}, s{S_WO}, s{S_WQ}")
    a.e(f"s_cselect_b32 s{S_PF+1}, s{S_WO+1}, s{S_WQ+1}")
    a.e(f"s_cselect_b32 s99, 0, 384")
    a.e(f"s_mov_b32 s{S_PF+2}, {W_BYTES}")
    a.e(f"s_mov_b32 s{S_PF+3}, 0x20000")
    a.e(f"v_cndmask_b32 {T1}, {T1}, {T2}, vcc")
    a.e(f"v_mov_b32 {T2}, {OOB}")
    a.e(f"v_cmp_gt_u32 vcc, 120, {T0}")
    a.e(f"v_cndmask_b32 v{A_PF}, {T2}, {T1}, vcc")
    a.e(f"s_mul_i32 s{S_PFO}, s{S_T}, s{S_B}")
    a.e(f"s_mul_i32 s{S_T}, s{S_PFS}, s{S_HG}")
    a.e(f"s_lshl_b32 s{S_T}, s{S_T}, 2")
    a.e(f"s_add_u32 s{S_PFO}, s{S_PFO}, s{S_T}")
    a.e(f"s_add_u32 s{S_PFO}, s{S_PFO}, s99")
    bits = lambda *pp_: sum(3 << (16 * p + k) for p, k in pp_)
    ka, ko = o["pfa"], o["pfo"]
    mA, mB, mO = bits((0, ka), (1, ka)), bits((0, 1), (1, 1), (2, 1)), bits((0, ko), (1, ko), (2, ko), (3, 1))
    a.e(f"s_mov_b32 s{S_PFM}, {mB & 0xffffffff}")
    a.e(f"s_mov_b32 s{S_PFM+1}, {mB >> 32}")
    a.e(f"s_cmp_lt_u32 s{S_B}, {o['pfb']}")
    a.e(f"s_cselect_b32 s{S_PFM}, {mA & 0xffffffff}, s{S_PFM}")
    a.e(f"s_cselect_b32 s{S_PFM+1}, {mA >> 32}, s{S_PFM+1}")
    a.e(f"s_cselect_b32 s99, s99, 0")
    a.e(f"s_cmp_ge_u32 s{S_W}, 2")
    a.e(f"s_cselect_b32 s{S_PFM}, {mO & 0xffffffff}, s{S_PFM}")
    a.e(f"s_cselect_b32 s{S_PFM+1}, {mO >> 32}, s{S_PFM+1}")
    a.e(f"s_and_b32 s{S_T}, s{S_W}, 1")
    a.e(f"s_lshl_b32 s{S_T}, s{S_T}, 1")
    a.e(f"s_lshl_b64 s[{S_PFM}:{S_PFM+1}], s[{S_PFM}:{S_PFM+1}], s{S_T}")
    a.e(f"s_and_b32 s{S_SP}, s{S_W}, 1")
    a.e(f"s_lshr_b32 s{S_T2}, s{S_W}, 1")
    a.e(f"s_mul_i32 s{S_T2}, s{S_T2}, 12288")
    a.e(f"s_add_u32 s{S_T2}, s{S_T2}, {XB}")
    a.e(f"s_mul_i32 s{S_T}, s{S_SP}, 6144")
    a.e(f"v_and_b32 {T0}, 15, v0")
    a.e(f"v_lshrrev_b32 {T1}, 4, v0")
    a.e(f"v_and_b32 {T2}, 6, {T0}")
    a.e(f"v_xor_b32 {T3}, {T2}, {T1}")
    a.e(f"v_mul_u32_u24 {T0}, 384, {T0}")
    a.e(f"v_lshl_add_u32 {T3}, {T3}, 4, {T0}")
    a.e(f"v_add_u32 v{A_AK}, s{S_T}, {T3}")
    a.e(f"v_xor_b32 v{A_AK+1}, 64, v{A_AK}")
    a.e(f"v_bfe_u32 {T2}, v0, 1, 3")
    a.e(f"v_xor_b32 {T3}, {T2}, {T1}")
    a.e(f"v_lshl_add_u32 {T3}, {T3}, 4, {T0}")
    a.e(f"v_add_u32 v{A_XQ}, s{S_T2}, {T3}")
    a.e(f"v_xor_b32 v{A_XQ+1}, 64, v{A_XQ}")
    a.e(f"v_lshrrev_b32 {T3}, 1, {T1}")
    a.e(f"v_xor_b32 {T3}, {T3}, {T2}")
    a.e(f"v_lshl_add_u32 {T3}, {T3}, 4, {T0}")
    a.e(f"v_and_b32 {T2}, 1, {T1}")
    a.e(f"v_lshl_add_u32 {T3}, {T2}, 3, {T3}")
    a.e(f"v_add_u32 {T3}, s{S_T2}, {T3}")
    a.e(f"s_lshl_b32 s{S_T2}, s{S_SP}, 6")
    a.e(f"v_xor_b32 {T3}, s{S_T2}, {T3}")
    a.e(f"s_lshl_b32 s{S_T2}, s{S_SP}, 7")
    a.e(f"v_add_u32 v{A_XO}, s{S_T2}, {T3}")
    a.e(f"v_add_u32 v{A_XO+1}, s{S_T2}, v{A_XO}")
    a.e(f"v_lshrrev_b32 {T0}, 2, v0")
    a.e(f"v_and_b32 {T1}, 6, {T0}")
    a.e(f"v_bfe_u32 {T2}, v0, 1, 1")
    a.e(f"v_xor_b32 {T1}, {T1}, {T2}")
    a.e(f"v_mul_u32_u24 {T0}, 384, {T0}")
    a.e(f"v_lshl_add_u32 {T1}, {T1}, 4, {T0}")
    a.e(f"v_and_b32 {T2}, 1, v0")
    a.e(f"v_lshl_add_u32 {T1}, {T2}, 3, {T1}")
    a.e(f"s_lshl_b32 s{S_T2}, s{S_SP}, 6")
    a.e(f"v_xor_b32 {T1}, s{S_T2}, {T1}")
    for d in range(4):
        a.e(f"v_xor_b32 {T2}, {32*d}, {T1}")
        a.e(f"s_lshl_b32 s{S_T2}, s{S_SP}, {8 if d >= 2 else 7}")
        a.e(f"v_add_u32 {T2}, s{S_T2}, {T2}")
        a.e(f"v_add_u32 v{A_AV+d}, s{S_T}, {T2}")
        a.e(f"s_sub_u32 s{S_T2}, 6144, s{S_T}")
        a.e(f"v_add_u32 v{A_AV+4+d}, s{S_T2}, {T2}")
    a.e(f"v_lshlrev_b32 {T0}, 3, v0")
    a.e(f"s_lshl_b32 s{S_T}, s{S_W}, 10")
    a.e(f"s_add_u32 s{S_T}, s{S_T}, {EB}")
    a.e(f"v_add_u32 v{A_EW}, s{S_T}, {T0}")
    a.e(f"v_xor_b32 v{A_ER}, 1024, v{A_EW}")
    a.e("v_and_b32 v28, 7, v0")
    a.e("v_lshlrev_b32 v29, 7, v28")
    a.e("v_lshlrev_b32 v28, 2, v28")
    a.e(f"s_mov_b32 s{S_CS}, {CSCALE:#x}")
    a.e(f"s_mov_b32 s{S_PER}, 0")
    stamp(a, o, 6, "start")
    W(1)
    stamp(a, o, 12, "pro")
    stamp(a, o, 7, "start")
    endstep(a, wait_for(("W", 0)))
    stamp(a, o, 8, "start")
    stamp(a, o, 1, "pro")
    a.raw("L_Apro:")
    head = list(vm)
    first = dict(s0=6, s1=3)
    classes = [(o["k0"], o["k1"])] + ([(o["k0b"], o["k1b"])] if o["k0b"] >= 0 else [])
    if len(classes) > 1:
        a.e(f"s_bitcmp1_b32 s2, {o['kbit']}")
        a.branch("s_cbranch_scc1 L_Apro1")
    for ci, (k0, k1) in enumerate(classes):
        if ci: a.label("L_Apro1")
        vm[:] = head
        W(2)
        for n in range(9):
            endstep(a, wait_for(("W", n + 1)))
            stamp(a, o, n + 2, "pro")
            if n + 3 < 10: W(n + 3)
            if n == o["kt"]: late_touches()
            if n == (o["kp"], o["kpb"])[ci]:
                a.e(f"s_mul_i32 s{S_T}, s{S_W}, {o['kpn'] * 128 - 3072}")
                a.e(f"s_add_u32 s{S_T}, s{S_T}, s{S_OV}")
                a.e(f"s_add_u32 s{S_T}, s{S_T}, 49152")
                a.e("v_lshlrev_b32 v30, 7, v0")
                for k in range(0, o["kpn"], 64):
                    m = min(64, o["kpn"] - k)
                    if m < 64: a.e(f"s_mov_b32 exec_hi, {((1 << m) - 1) >> 32}")
                    a.e(f"buffer_load_dword v{A_DUM}, v30, {sq(S_K)}, s{S_T} offen"); vm.append("t")
                    a.e(f"s_add_u32 s{S_T}, s{S_T}, 8192")
                a.e("s_mov_b64 exec, -1")
            if n == k0: K0()
            if n == k1:
                a_burst(a, o, 1, S_K, S_OK); vm.extend([("K", 2)] * 3 + [("K", 3)] * 3)
        endstep(a, wait_for(("K", 0)))
        first = dict(s0=min(first["s0"], wait_for(("K", 1))), s1=min(first["s1"], wait_for(("K", 2))))
        if ci == 0 and len(classes) > 1: a.branch("s_branch L_Aper")

    a.label("L_Aper")
    stamp(a, o, (1, S_PER, 4))
    for s in range(32):
        a.comment(f"A step {s}")
        if s == 16: stamp(a, o, (5, S_PER, 4))
        g_ = o["tkg"]
        if s % g_ == 0 and o["tk0"] <= s < o["tk0"] + 12 * g_: stamp(a, o, (1 + (s - o["tk0"]) // g_ - o["tkp"], S_PER, o["tkp"] + 1, o["tkp"]), "tick")
        vmw = 4 if ((s - 1) >> 1) in pf_sites(o) else 3
        bt = []
        if s == 0:
            a.e(f"s_cmp_eq_u32 s{S_PER}, 0")
            a.branch("s_cbranch_scc1 L_A0")
            a_burst(a, o, 1, S_K, S_OK)
            a.label("L_A0")
            for ks in range(6):
                for t in a_qread(ks): a.e(t)
            vmw = min(6, first["s0"])
        elif s == 1:
            vmw = min(3, first["s1"])
        elif s == 30:
            a.e(f"s_cmp_eq_u32 s{S_PER}, 3")
            a.branch("s_cbranch_scc1 L_A30")
            a_burst(a, o, 0, S_K, S_OK)
            a.label("L_A30")
            vmw = 6
        elif s % 2 == 0:
            vmw = 6
            D = ((s >> 1) + 1) & 1
            bt = rec(a_burst, o, D, *((S_K, S_OK) if s < 14 else (S_V, S_OV)), s in (12, 28))
            if (s >> 1) in pf_sites(o):
                high = (s >> 1) % 2 == 0
                bt.append(f"s_lshl_b32 s{S_T}, s{S_PER}, 4")
                bt.append(f"s_add_u32 s{S_T}, s{S_T}, {s>>1}")
                bt.append(f"s_bitcmp1_b64 s[{S_PFM}:{S_PFM+1}], s{S_T}")
                bt.append(f"s_cselect_b32 s{S_T}, s{S_PFO}, {OOB}")
                if high: bt.append(f"s_cselect_b32 s{S_T2}, s{S_PFS}, 0")
                bt.append(f"s_mov_b32 {'exec_lo' if high else 'exec_hi'}, 0")
                bt.append(f"buffer_load_dword v{A_DUM}, v{A_PF}, {sq(S_PF)}, s{S_T} offen{pp}")
                bt.append("s_mov_b64 exec, -1")
                if high: bt.append(f"s_add_u32 s{S_PFO}, s{S_PFO}, s{S_T2}")
                vmw = 7
            if o["adma"] == 0 and not (s == 16 and o["t16"]) and not (s > 16 and o["vweave"]):
                for t in bt: a.e(t)
                bt = []
        if s == 5:
            a.comment("the entry reads have landed: count this workgroup in (d_debug word of the group)")
            a.e(f"s_and_b32 s{S_T}, s{S_HG}, 3")
            a.e(f"s_xor_b32 s{S_T}, s{S_T}, s{S_PER}")
            a.e(f"s_or_b32 s{S_T}, s{S_T}, s{S_W}")
            a.branch("s_cbranch_scc1 L_sy1")
            a.e("s_lshl_b32 s45, s44, 3")
            a.e(f"v_mov_b32 v{A_T0}, s45")
            a.e(f"v_mov_b32 v{A_T1}, 1")
            a.e("s_mov_b64 exec, 1")
            a.e(f"buffer_atomic_add v{A_T1}, v{A_T0}, {sq(S_DBG)}, 0 offen")
            a.e("s_mov_b64 exec, -1")
            a.label("L_sy1")
        if o["pdma"] == 3 and s % 2: bt = ["s_barrier"]
        if s in (1, 2):
            ow = sum((a_owrite(i) for i in (range(o["ows"]) if s == 1 else range(o["ows"], 6))), [])
            if o["owf"]: a_kstep(a, o, s, ow, pre=bt)
            else:
                a_kstep(a, o, s, pre=bt)
                for t in ow: a.e(t)
        elif s < 16: a_kstep(a, o, s, pre=bt)
        else: a_vstep(a, o, s - 16, pre=bt)
        if s == 30:
            a.e(f"s_cmp_eq_u32 s{S_PER}, 3")
            a.branch("s_cbranch_scc0 L_A30j")
            a.e("s_waitcnt vmcnt(0)")
            a.label("L_A30j")
        if o["stamps"] == 7 and s in (0, 1, 2, 3):
            stamp(a, o, (1 + 3 * s - 1, S_PER, 2, 1), "s1")
            a.e(f"s_waitcnt vmcnt({vmw})")
            stamp(a, o, (2 + 3 * s - 1, S_PER, 2, 1), "s1")
            a.e("s_barrier")
            stamp(a, o, (3 + 3 * s - 1, S_PER, 2, 1), "s1")
            continue
        endstep(a, vmw + o["kvx"])
    a.e(f"s_add_u32 s{S_PER}, s{S_PER}, 1")
    a.e(f"s_cmp_lt_u32 s{S_PER}, 4")
    a.branch("s_cbranch_scc1 L_Aper")
    a.label("L_Aend")
    stamp(a, o, 9)
    stamp(a, o, 1, "tail")
    tail_offsets(a, 128, S_MK, S_OK, "v0", (T0, T1))
    tail_tile(a, o, 128, S_MK, S_OK, 4)
    stamp(a, o, 2, "tail")
    for p in range(4):
        a.e(f"s_waitcnt vmcnt({6 if p in (1, 2) else 0})")
        a.e("s_barrier")
        stamp(a, o, p + 3, "tail")
        for n in ([5, 6], [7, 8], [9], [])[p]: tail_tile(a, o, 128, S_MK, S_OK, n)
    a.e(f"s_cmp_lg_u32 s{S_W}, 0")
    a.branch("s_cbranch_scc1 L_red")
    a.e("s_lshl_b32 s45, s44, 3")
    a.e("v_mov_b32 v28, s45")
    spin(a, "in", f"buffer_load_dword v29, v28, {sq(S_DBG)}, 0 offen sc1", ["v_readfirstlane_b32 s41, v29", "s_cmp_ge_u32 s41, 8"])
    a.e("v_lshlrev_b32 v28, 2, v0")
    a.e(f"v_add_u32 v28, {EB}, v28")
    a.e(f"ds_write_b32 v28, v{A_FI}")
    a.e("v_mov_b32 v29, 0")
    a.e("ds_write_b32 v28, v29 offset:256")


def reduce_chunk(a, o, k, base):
    a.e(f"s_lshl_b32 s41, s{k}, 10")
    a.e(f"s_add_u32 s41, s41, {WB}")
    a.e(f"v_add_u32 v3, s41, v1")
    a.e(f"v_add_u32 v6, 40960, v3")
    for i in range(8):
        a.e(f"ds_read_b128 {v(base+4*i,4)}, v{3 if i < 4 else 6} offset:{(i&3)*10240}")
    a.e(f"s_mul_i32 s43, s{S_HG}, 10")
    a.e(f"s_add_u32 s43, s43, s{k}")
    a.e("s_and_b32 s41, s43, 1")
    a.e("s_lshl_b32 s41, s41, 5")
    a.e("s_lshr_b32 s43, s43, 1")
    a.e(f"s_lshl_b32 s42, s{S_B}, 6")
    a.e("s_add_u32 s42, s42, s41")
    a.e("s_mul_i32 s42, s42, 2560")
    a.e(f"s_mul_i32 s41, s{S_BR}, 1280")
    a.e("s_add_u32 s42, s42, s41")
    a.e("s_lshl_b32 s43, s43, 5")
    a.e("s_add_u32 s42, s42, s43")
    ac = base + 32
    for i in range(8):
        for n in range(4):
            r = base + 4 * i + n
            if i == 0:
                a.e(f"v_lshlrev_b32 v{ac+2*n}, 16, v{r}")
                a.e(f"v_and_b32 v{ac+1+2*n}, 0xffff0000, v{r}")
            elif o["dot"]:
                a.e(f"v_dot2_f32_bf16 v{ac+2*n}, v{r}, s40, v{ac+2*n}")
                a.e(f"v_dot2_f32_bf16 v{ac+1+2*n}, v{r}, s47, v{ac+1+2*n}")
            else:
                a.e(f"v_lshlrev_b32 v4, 16, v{r}")
                a.e(f"v_and_b32 v5, 0xffff0000, v{r}")
                a.e(f"v_add_f32 v{ac+2*n}, v{ac+2*n}, v4")
                a.e(f"v_add_f32 v{ac+2*n+1}, v{ac+2*n+1}, v5")
    if o["dot"]: a.e("s_nop 2")
    for n in range(4): a.e(f"v_cvt_pk_bf16_f32 v{base+n}, v{ac+2*n}, v{ac+1+2*n}")
    a.e(f"buffer_store_dwordx4 {v(base,4)}, v2, {sq(S_OUT)}, s42 offen{pol(o['outpol'])}")


def gen_tail(a, o):
    a.label("L_red")
    lane_id(a, 0)
    a.e(f"s_lshl_b32 s44, s{S_BR}, 4")
    a.e(f"s_add_u32 s44, s44, s{S_B}")
    a.e("s_lshl_b32 s45, s44, 10")
    a.e(f"s_add_u32 s45, s45, {FLAGS}")
    a.e(f"s_lshl_b32 s46, s{S_HG}, 7")
    a.e("s_add_u32 s46, s46, s45")
    a.e(f"s_lshl_b32 s40, s{S_WAVE}, 2")
    a.e(f"s_add_u32 s40, s40, {EB}")
    a.e("v_mov_b32 v3, s40")
    a.e("v_and_b32 v28, 7, v0")
    a.e("v_lshlrev_b32 v29, 7, v28")
    a.e("v_lshlrev_b32 v1, 4, v0")
    a.e("v_lshlrev_b32 v28, 2, v28")
    a.e(f"s_cmp_lg_u32 s{S_WAVE}, 4")
    a.e("s_barrier")
    a.branch("s_cbranch_scc1 L_go")
    stamp(a, o, 10)
    a.e(f"v_add_u32 v{A_FO}, 1, v{A_FO}")
    a.e("s_mov_b64 exec, 0xff")
    a.e(f"buffer_store_dword v{A_FO}, v29, {sq(S_WS)}, s47 offen sc1")
    a.e("s_mov_b64 exec, -1")
    a.label("L_go")
    a.e(f"s_cmp_eq_u32 s{S_WAVE}, s{S_HG}")
    a.branch("s_cbranch_scc0 L_fetch")
    a.e(f"v_add_u32 v5, {EB}, v28")
    a.e("ds_read_b32 v4, v5")
    a.e("s_mov_b64 exec, 0xff")
    spin(a, "poll", f"buffer_load_dword v30, v28, {sq(S_WS)}, s46 offen sc1",
         ["v_cmp_ne_u32 vcc, v30, v4", "v_cndmask_b32 v6, 0, 1, vcc", "ds_write_b32 v5, v6 offset:256",
          f"s_bitset1_b32 vcc_lo, s{S_HG}", "s_cmp_eq_u32 vcc_lo, 0xff"], o["nap"])
    a.e("s_mov_b64 exec, -1")
    a.branch("s_branch L_staged")
    a.label("L_fetch")
    a.e("s_lshl_b32 s45, s44, 3")
    a.e(f"s_add_u32 s45, s45, s{S_WAVE}")
    a.e("s_mul_i32 s45, s45, 81920")
    a.e(f"s_mul_i32 s43, s{S_HG}, 10240")
    a.e("s_add_u32 s45, s45, s43")
    a.e(f"s_mul_i32 s43, s{S_WAVE}, 10240")
    a.e(f"s_add_u32 s43, s43, {WB}")
    spin(a, "seen", "ds_read_b32 v4, v3 offset:256", ["v_readfirstlane_b32 s41, v4", "s_cmp_lg_u32 s41, 0"], 1, 0x400000)
    a.e("v_add_u32 v3, s43, v1")
    for k in range(10):
        a.e(f"buffer_load_dwordx4 {v(8+4*k,4)}, v1, {sq(S_WS)}, s45 offen offset:{(k&3)*1024}{pol(o['ldpol'])}")
        if k & 3 == 3: a.e("s_add_u32 s45, s45, 4096")
    for k in range(10):
        a.e(f"s_waitcnt vmcnt({9-k})")
        a.e(f"ds_write_b128 v3, {v(8+4*k,4)} offset:{k*1024}")
    a.label("L_staged")
    a.e("v_and_b32 v2, 31, v0")
    a.e("v_mul_u32_u24 v2, 2560, v2")
    a.e("v_lshrrev_b32 v3, 5, v0")
    a.e("v_lshl_add_u32 v2, v3, 4, v2")
    a.e(f"s_mov_b32 s45, s{S_WAVE}")
    a.e("s_mov_b32 s40, 0x3f80")
    a.e("s_mov_b32 s47, 0x3f800000")
    a.e("s_barrier")
    stamp(a, o, 11)
    reduce_chunk(a, o, 45, 8)
    a.e(f"s_cmp_lt_u32 s{S_WAVE}, 2")
    a.branch("s_cbranch_scc0 L_fin")
    a.e("s_add_u32 s45, s45, 8")
    reduce_chunk(a, o, 45, 48)


def gen_main(a, o):
    a.raw(f".globl {KN}\n.p2align 8\n.type {KN},@function\n{KN}:")
    a.e(f"s_cmp_ge_u32 s2, {o['nact']}")
    a.e("s_cbranch_scc1 L_end")
    if o["dbgt"]: a.e("s_memrealtime s[90:91]")
    if o["stamps"]:
        a.e("s_memrealtime s[90:91]")
        a.e("s_memtime s[86:87]")
    a.e("s_load_dwordx2 s[34:35], s[0:1], 96")
    a.e("s_load_dwordx4 s[64:67], s[0:1], 80")
    a.e("s_and_b32 s3, s2, 7")
    a.e("s_lshr_b32 s5, s3, 2")
    a.e("s_mul_i32 s32, s5, 40")
    a.e("s_add_u32 s0, s0, s32")
    a.e("s_addc_u32 s1, s1, 0")
    a.e("s_load_dwordx4 s[44:47], s[0:1], 24")
    a.e("s_load_dwordx2 s[36:37], s[0:1], 0")
    a.e("s_load_dwordx4 s[40:43], s[0:1], 8")
    a.e("v_lshrrev_b32 v1, 6, v0")
    a.e("v_and_b32 v0, 63, v0")
    a.e("v_readfirstlane_b32 s32, v1")
    a.e("s_lshr_b32 s4, s2, 3")
    a.e("s_and_b32 s7, s4, 15")
    a.e("s_lshr_b32 s4, s4, 4")
    a.e("s_and_b32 s6, s3, 3")
    a.e("s_lshl_b32 s6, s6, 1")
    a.e("s_add_u32 s6, s6, s4")
    if o["stamps"] >= 2:
        a.e("s_waitcnt lgkmcnt(0)")
        for i in range(16): a.e(f"s_mov_b32 s{70+i}, s90")
        stamp(a, o, 1, "start")
    entry_touches(a, o)
    stamp(a, o, 9, "start")
    a.e("s_and_b32 s33, s32, 3")
    a.e("s_cmp_lt_u32 s32, 4")
    a.branch("s_cbranch_scc1 L_P")
    gen_A(a, o)
    gen_tail(a, o)
    a.label("L_fin")
    if o["dbgt"] == 2:
        a.comment("diagnostic build: doubles the in-kernel span so that launch overhead and span can be separated")
        a.e("s_memrealtime s[92:93]")
        a.e("s_waitcnt lgkmcnt(0)")
        a.e("s_sub_u32 s94, s92, s90")
        a.e("s_min_u32 s94, s94, 20000")
        a.label("L_dbl")
        a.e("s_memrealtime s[90:91]")
        a.e("s_waitcnt lgkmcnt(0)")
        a.e("s_sub_u32 s95, s90, s92")
        a.e("s_cmp_lt_u32 s95, s94")
        a.branch("s_cbranch_scc1 L_dbl")
    if o["dbgt"] == 1:
        a.e("s_memrealtime s[92:93]")
        a.e("s_waitcnt lgkmcnt(0)")
        a.e("s_sub_u32 s92, s92, s90")
        a.e("s_lshl_b32 s40, s2, 3"); a.e("s_add_u32 s40, s40, 4")
        a.e("s_cmp_eq_u32 s32, 0"); a.e(f"s_cselect_b32 s40, s40, {OOB}")
        a.e("v_mov_b32 v4, s92"); a.e("v_mov_b32 v1, 0")
        a.e("s_mov_b64 exec, 1")
        a.e(f"buffer_store_dword v4, v1, {sq(S_DBG)}, s40 offen")
    if o["stamps"]:
        a.e("s_memrealtime s[92:93]")
        a.e("s_memtime s[88:89]")
        a.e("s_waitcnt lgkmcnt(0)")
        a.e("s_sub_u32 s85, s88, s86")
        a.e("s_getreg_b32 s84, hwreg(HW_REG_XCC_ID, 0, 4)")
        a.e("s_getreg_b32 s83, hwreg(HW_REG_HW_ID)")
        a.e("v_mov_b32 v4, s90"); a.e("v_mov_b32 v5, s91"); a.e("v_mov_b32 v6, s92"); a.e("v_mov_b32 v7, s93")
        a.e("s_lshl_b32 s40, s2, 3"); a.e("s_add_u32 s40, s40, s32"); a.e("s_lshl_b32 s40, s40, 4")
        a.e("s_add_u32 s40, s40, 0x2000000")
        a.e("v_mov_b32 v1, 0")
        a.e(f"buffer_store_dwordx4 v[4:7], v1, {sq(S_WS)}, s40 offen")
        if o["stamps"] >= 2:
            a.e("s_lshl_b32 s40, s2, 3"); a.e("s_add_u32 s40, s40, s32"); a.e("s_lshl_b32 s40, s40, 6")
            a.e("s_add_u32 s40, s40, 0x2100000")
            for k in range(4):
                for i in range(4): a.e(f"v_mov_b32 v{8+4*k+i}, s{70+4*k+i}")
                a.e(f"buffer_store_dwordx4 v[{8+4*k}:{11+4*k}], v1, {sq(S_WS)}, s40 offen offset:{16*k}")
    a.e("s_endpgm")
    gen_P(a, o)
    a.label("L_end")
    a.e("s_endpgm")


def droppings(t, d):
    keep = []; cnt = cnt2 = cnt3 = 0; role = ""
    for l in t.split("\n"):
        if l.startswith(("L_PQa", "L_PO:", "L_PQb")): role = "P"
        if l.startswith(("L_Ptail", "L_Aend", "L_Pcyc")): role = ""
        if l.startswith("L_Aper"): role = "A"
        if l.startswith("L_Ppro"): role = "p"
        if l.startswith("L_Apro"): role = "a"
        if "x" in d and role == "p" and l.strip().startswith(("v_", "ds_")): continue
        if "y" in d and role == "a" and l.strip().startswith("buffer_load_dwordx4") and "s[8:11]" not in l: continue
        if "z" in d and role == "a" and l.strip().startswith("buffer_load_dwordx4") and "s[8:11]" in l: continue
        x = l.strip()
        if "k" in d and role == "A" and x.startswith("buffer_load"): continue
        if "w" in d and role == "P" and x.startswith("buffer_load"): continue
        if "a" in d and role == "A" and x.startswith(("v_", "ds_")) and not x.startswith("v_mov_b32"): continue
        if "p" in d and role == "P" and x.startswith(("v_", "ds_")): continue
        if "m" in d and role in ("A", "P") and x.startswith("v_mfma"): continue
        if "r" in d and role in ("A", "P") and x.startswith("ds_read"): continue
        if "h" in d and role == "A" and x.startswith("ds_read"):
            cnt += 1
            if (cnt // (2 if "tr" in x else 1)) % 2: continue
        if "g" in d and role == "P" and x.startswith("ds_read_b64_tr"):
            cnt2 += 1
            if (cnt2 // 2) % 2: continue
        if "T" in d and x.startswith("buffer_store_dwordx4") and "s[28:31]" in x and "sc1" in x: continue
        if "L" in d and x.startswith("buffer_load_dwordx4") and "s[28:31]" in x: continue
        if "v" in d and role == "A" and x.startswith(("v_exp", "v_fma", "v_add_f32", "v_max3")): continue
        if "A" in d and role == "A" and x.startswith("v_mfma"): continue
        if "P" in d and role == "P" and x.startswith("v_mfma"): continue
        if ("s" in d or "S" in d) and role == "P" and x.startswith("v_mfma_f32_32x32x16"):
            m = re.match(r"v_mfma_f32_32x32x16_bf16 v\[(\d+):\d+\], (v\[\d+:\d+\]), (v\[\d+:\d+\]), (.*)", x)
            cnt3 += 1
            for k in range(2):
                b = int(m.group(1)) + 4 * k + 8 * (cnt3 & 1)
                bo = m.group(3) if (k == 0 or "S" not in d) else {"v[16:19]": "v[20:23]", "v[20:23]": "v[16:19]"}[m.group(3)]
                keep.append(f"    v_mfma_f32_16x16x32_bf16 v[{b}:{b+3}], {m.group(2)}, {bo}, v[{b}:{b+3}]")
            continue
        keep.append(l)
    return "\n".join(keep)


HEADER = """; Fused Q-projection / attention / O-projection for both branches in one launch.
; Workgroup = (branch, batch, group of 4 heads); ids with equal id % 8 share the weight slices.
;   waves 4-7: attention. K/V stream through a 4-tile LDS ring (LDS-DMA, 32 keys per step); S^T = K Q^T is kept
;   waves 0-3: projections. wq/x and wo stream through a second ring; Q for the next head and the running
; stores, per-consumer hand-off words compared with their value on entry) and each reduces one column slice."""


def gen(**kw):
    o = dict(DEFAULTS); o.update(kw)
    a = Asm()
    if o["stamps"]: a.raw(f"; stamps={8*o['nact']} @0x2000000")
    a.raw(f"; @launch grid=(256,1,1) block=(512,1,1) lds={LDS}")
    a.raw(HEADER)
    a.raw('.amdgcn_target "amdgcn-amd-amdhsa--gfx950"\n.text')
    gen_main(a, o)
    a.raw(f""".section .rodata,"a"
.p2align 6
.amdhsa_kernel {KN}
  .amdhsa_next_free_vgpr 256
  .amdhsa_next_free_sgpr 102
  .amdhsa_accum_offset 256
  .amdhsa_group_segment_fixed_size 0
  .amdhsa_kernarg_size 104
  .amdhsa_user_sgpr_count 2
  .amdhsa_user_sgpr_kernarg_segment_ptr 1
  .amdhsa_system_sgpr_workgroup_id_x 1
.end_amdhsa_kernel""")
    t = a.text()
    return droppings(t, o["drop"]) if o["drop"] else t


if __name__ == "__main__":
    out = sys.argv[1]
    kw = {}
    for x in sys.argv[2:]:
        k, val = x.split("=")
        kw[k] = int(val) if val.lstrip("-").isdigit() else val.replace("+", " ")
    open(out, "w").write(gen(**kw))
```

```python
import sys, math, struct, re
from asmlib import Asm

NAME = "concat_heads__gqa_block_cached__gqa_block_cached__near_ridge"
KN = NAME + "_kernel"
WB, XB, EB, LDS = 49152, 131072, 155648, 163840
KV_BYTES, W_BYTES, X_BYTES, OUT_BYTES, WS_BYTES = 100663296, 7864320, 1310720, 2621440, 64 << 20
OOB = 0x40000000
FLAGS = 0x1800000
CSCALE = struct.unpack("<I", struct.pack("<f", math.log2(math.e) / math.sqrt(192.0)))[0]

DEFAULTS = dict(kvpol="nt", wpol="", pfpol="", xpol="", stpol="sc1", ldpol="sc1", outpol="", stamps=0, prio=0,
                adepth=8, pq=12, po=9, pdma=2, drop="", nact=256, k0=5, k1=7, k0b=-1, k1b=7, kbit=3, kt=7, kp=-1, kpb=-1, kpn=48, prod=12, codepf=0, pfa=5, pfo=9, pfb=4, kvx=0, warm=65536, xbar=11, vspan=9, adma=0, sprio=0, nap=4, tst=1, rot=0, kord=1, dbgt=0, tk0=0, tkp=0, tkg=2, ows=3, owf=1, t16=2, vweave=0, tx=1, dot=1, tq=1, psplit=2, kvw=3, k2=0)

S_HALF, S_BR, S_HG, S_B = 4, 5, 6, 7
S_K, S_V, S_WQ, S_WO, S_XI, S_WS, S_OUT = 8, 12, 16, 20, 24, 28, 64
S_WAVE, S_W, S_DBG, S_T, S_T2 = 32, 33, 36, 57, 59


def v(a, n=1):
    return f"v{a}" if n == 1 else f"v[{a}:{a+n-1}]"


def sq(a):
    return f"s[{a}:{a+3}]"


def pol(s):
    return (" " + s) if s else ""


class Rec:
    def __init__(self): self.t = []
    def e(self, x): self.t.append(x)


def rec(fn, *args):
    r = Rec(); fn(r, *args); return r.t


def srd(a, base, src, size):
    if src != base: a.e(f"s_mov_b32 s{base}, s{src}")
    a.e(f"s_and_b32 s{base+1}, s{src+1}, 0xffff")
    a.e(f"s_mov_b32 s{base+2}, {size}")
    a.e(f"s_mov_b32 s{base+3}, 0x20000")


def entry_touches(a, o):
    pp = pol(o["pfpol"])
    a.e(f"s_lshl_b32 s{S_T}, s{S_WAVE}, 4")
    a.e(f"v_add_u32 v2, s{S_T}, v0")
    a.e("v_mul_u32_u24 v3, 21846, v2")
    a.e("v_mul_u32_u24 v6, 1280, v0")
    a.e("v_lshrrev_b32 v3, 16, v3")
    a.e(f"v_mul_u32_u24 v7, {o['warm']}, v0")
    a.e("v_mul_u32_u24 v4, 3, v3")
    a.e("v_mul_u32_u24 v3, 12288, v3")
    a.e("v_sub_u32 v4, v2, v4")
    a.e(f"s_mul_i32 s48, s{S_B}, {40*12288}")
    a.e("v_lshl_add_u32 v3, v4, 7, v3")
    a.e(f"s_mul_i32 s{S_T}, s{S_HG}, 1536")
    a.e(f"s_add_u32 s48, s48, s{S_T}")
    a.e(f"s_cmp_eq_u32 s{S_WAVE}, 7")
    a.e("s_cselect_b32 s49, 8, 16")
    a.e("s_bfm_b32 s49, s49, 0")
    a.e(f"s_mul_i32 s50, s{S_B}, 81920")
    a.e(f"s_lshl_b32 s51, s{S_B}, 3"); a.e(f"s_add_u32 s51, s51, s{S_HG}")
    a.e(f"s_mul_i32 s51, s51, 786432")
    a.e(f"s_cmp_eq_u32 s{S_WAVE}, 0"); a.e(f"s_cselect_b32 s50, s50, {OOB}")
    a.e(f"s_cmp_eq_u32 s{S_WAVE}, {1 if o['kvw'] & 1 else 9}"); a.e(f"s_cselect_b32 s52, s51, {OOB}")
    a.e(f"s_cmp_eq_u32 s{S_WAVE}, {2 if o['kvw'] & 2 else 9}"); a.e(f"s_cselect_b32 s53, s51, {OOB}")
    a.e("s_mov_b32 exec_hi, 0")
    a.e("s_mov_b32 exec_lo, s49")
    a.e("s_waitcnt lgkmcnt(0)")
    srd(a, S_WQ, 44, W_BYTES)
    a.e(f"buffer_load_dword v255, v3, {sq(S_WQ)}, s48 offen{pp}")
    a.e("s_mov_b64 exec, -1")
    srd(a, S_XI, 36, X_BYTES)
    a.e(f"buffer_load_dword v255, v6, {sq(S_XI)}, s50 offen{pp}")
    a.e(f"s_mov_b64 exec, {(1 << (786432 // o['warm'])) - 1}")
    srd(a, S_K, 40, KV_BYTES)
    a.e(f"buffer_load_dword v255, v7, {sq(S_K)}, s52 offen nt")
    srd(a, S_V, 42, KV_BYTES)
    a.e(f"buffer_load_dword v255, v7, {sq(S_V)}, s53 offen nt")
    a.e("s_mov_b64 exec, -1")
    srd(a, S_WO, 46, W_BYTES); srd(a, S_WS, 34, WS_BYTES)
    srd(a, S_DBG, 66, 256)
    srd(a, S_OUT, 64, OUT_BYTES)


def pipe(a, reads, mfmas, fill, depth, span=None, skip=0):
    n = len(mfmas)
    span = span or n
    for i in range(min(depth, n)):
        for t in reads[i]: a.e(t)
    done = 0
    for i in range(n):
        for t in ([mfmas[i]] if isinstance(mfmas[i], str) else mfmas[i]): a.e(t)
        if i + depth < n:
            for t in reads[i + depth]: a.e(t)
        upto = len(fill) * max(min(i + 1, span) - skip, 0) // (span - skip)
        for t in fill[done:upto]: a.e(t)
        done = upto


def interleave(a, chains):
    for i in range(max(map(len, chains))):
        for c in chains:
            if i < len(c): a.e(c[i])


def div24(a, dst_row, dst_rem, src, tmp):
    a.e(f"v_mul_u32_u24 {tmp}, 2731, {src}")
    a.e(f"v_lshrrev_b32 {dst_row}, 16, {tmp}")
    a.e(f"v_mul_u32_u24 {tmp}, 24, {dst_row}")
    a.e(f"v_sub_u32 {dst_rem}, {src}, {tmp}")


def stamp(a, o, k, tag=''):
    if {2: "", 3: "pro", 4: "tail", 5: "start", 6: "tick", 7: "s1"}.get(o["stamps"]) != tag: return
    a.e("s_waitcnt lgkmcnt(0)")
    a.e("s_memrealtime s[94:95]")
    a.e("s_waitcnt lgkmcnt(0)")
    if isinstance(k, int): a.e(f"s_mov_b32 s{70+k}, s94")
    else:
        base, reg, n = k[:3]
        for i in range(k[3] if len(k) > 3 else 0, n):
            a.e(f"s_cmp_eq_u32 s{reg}, {i}")
            a.e(f"s_cselect_b32 s{70+base+i}, s94, s{70+base+i}")


def endstep(a, vm=None):
    a.e("s_waitcnt lgkmcnt(0)" if vm is None else f"s_waitcnt vmcnt({vm}) lgkmcnt(0)")
    a.e("s_barrier")


def idle(a, tag, n):
    if n <= 2:
        for _ in range(n): a.e("s_barrier")
        return
    a.e(f"s_mov_b32 s{S_T}, {n}")
    a.label(f"L_{tag}")
    a.e("s_barrier")
    a.e(f"s_sub_u32 s{S_T}, s{S_T}, 1")
    a.e(f"s_cmp_lg_u32 s{S_T}, 0")
    a.branch(f"s_cbranch_scc1 L_{tag}")


def idle_steps(a, o, tag, r0, r1):
    n = sum(1 + (r == 17) + (o["pdma"] == 3 and r % 2 == 0) for r in range(r0, r1))
    idle(a, tag, n)


def lane_id(a, r):
    a.e(f"v_mbcnt_lo_u32_b32 v{r}, -1, 0")
    a.e(f"v_mbcnt_hi_u32_b32 v{r}, -1, v{r}")


def dma_offsets_q(a, vq, vx, t):
    chains = []
    for j in range(3):
        r = Rec()
        T0, T1, T2, T3 = (f"v{t+4*j+k}" for k in range(4))
        r.e(f"v_add_u32 {T0}, {64*j}, v0")
        div24(r, T1, T2, T0, T3)
        r.e(f"v_and_or_b32 {T3}, {T1}, 2, s{S_T}")
        r.e(f"v_xor_b32 {T2}, {T2}, {T3}")
        r.e(f"v_mul_u32_u24 {T1}, 12288, {T1}")
        r.e(f"v_lshl_add_u32 {T1}, {T2}, 4, {T1}")
        r.e(f"v_subrev_u32 v{vq+j}, {1024*j}, {T1}")
        chains.append(r.t)
    T0, T1 = f"v{t+12}", f"v{t+13}"
    a.e(f"s_and_b32 s{S_T}, s{S_W}, 1")
    a.e(f"s_lshl_b32 s{S_T}, s{S_T}, 2")
    chains.append([f"v_lshrrev_b32 {T0}, 3, v0", f"v_and_b32 {T0}, 6, {T0}", f"v_and_b32 {T1}, 7, v0",
                   f"v_xor_b32 {T0}, {T0}, {T1}", f"v_lshrrev_b32 {T1}, 3, v0", f"v_mul_u32_u24 {T1}, 1280, {T1}",
                   f"v_lshl_add_u32 v{vx}, {T0}, 4, {T1}"])
    interleave(a, chains)


def wq_share(a, dst, T0, T1, T2):
    a.e(f"s_and_b32 s{S_T}, s{S_W}, 1")
    a.e(f"s_lshl_b32 s{S_T}, s{S_T}, 6")
    a.e(f"v_add_u32 {T0}, s{S_T}, v0")
    a.e(f"v_mul_u32_u24 {T1}, 21846, {T0}")
    a.e(f"v_lshrrev_b32 {T1}, 16, {T1}")
    a.e(f"v_mul_u32_u24 {T2}, 3, {T1}")
    a.e(f"v_sub_u32 {T2}, {T0}, {T2}")
    a.e(f"v_mul_u32_u24 {T1}, 12288, {T1}")
    a.e(f"v_lshl_add_u32 {dst}, {T2}, 7, {T1}")


def scalars_q(a, mq, mx, oq, ox, head):
    a.e(f"s_mul_i32 s{mq}, s{S_W}, 3072")
    a.e(f"s_lshl_b32 s{mx}, s{S_W}, 10")
    a.e(f"s_mul_i32 s{oq}, s{S_HG}, 1536")
    a.e(f"s_mul_i32 s{S_T}, s{S_W}, {8*12288}")
    a.e(f"s_add_u32 s{oq}, s{oq}, s{S_T}")
    if head: a.e(f"s_add_u32 s{oq}, s{oq}, {384*head}")
    a.e(f"s_mul_i32 s{ox}, s{S_B}, 81920")
    a.e(f"s_mul_i32 s{S_T}, s{S_W}, {8*1280}")
    a.e(f"s_add_u32 s{ox}, s{ox}, s{S_T}")


def burst_q(a, o, R, la, lx, lb):
    vq, vx, mq, mx, oq, ox = R
    wp, xp = pol(o["wpol"]), pol(o["xpol"])
    a.e(f"s_add_u32 m0, s{mq}, {la}")
    a.e(f"s_add_u32 s{S_T}, s{ox}, {32*1280}")
    for j in range(3):
        a.e(f"buffer_load_dwordx4 v{vq+j}, {sq(S_WQ)}, s{oq} offen offset:{1024*j}{wp} lds")
    a.e(f"s_add_u32 m0, s{mx}, {lx}")
    a.e(f"s_add_u32 s{oq}, s{oq}, {32*12288}")
    a.e(f"buffer_load_dwordx4 v{vx}, {sq(S_XI)}, s{ox} offen{xp} lds")
    a.e(f"s_add_u32 m0, s{mx}, {lx+4096}")
    a.e(f"s_add_u32 s{ox}, s{ox}, 128")
    a.e(f"buffer_load_dwordx4 v{vx}, {sq(S_XI)}, s{S_T} offen{xp} lds")
    a.e(f"s_add_u32 m0, s{mq}, {lb}")
    a.e("s_nop 0")
    for j in range(3):
        a.e(f"buffer_load_dwordx4 v{vq+j}, {sq(S_WQ)}, s{oq} offen offset:{1024*j}{wp} lds")
    a.e(f"s_add_u32 s{oq}, s{oq}, {32*12288}")


def tail_slot(n):
    k = n % 5
    return WB + k * 24576 if k < 3 else (k - 3) * 24576


def tail_offsets(a, vt, mt, ot, lane, T):
    T0, T1 = T
    a.e(f"v_lshrrev_b32 {T0}, 3, {lane}")
    a.e(f"v_and_b32 {T0}, 2, {T0}")
    a.e(f"v_and_b32 {T1}, 7, {lane}")
    a.e(f"v_xor_b32 {T0}, {T0}, {T1}")
    a.e(f"v_lshrrev_b32 {T1}, 3, {lane}")
    a.e(f"v_mul_u32_u24 {T1}, 1280, {T1}")
    a.e(f"v_lshl_add_u32 v{vt}, {T0}, 4, {T1}")
    a.e(f"v_xor_b32 v{vt+1}, 64, v{vt}")
    a.e(f"s_mul_i32 s{mt}, s{S_W}, 6144")
    a.e(f"s_mul_i32 s{ot}, s{S_HG}, {4*245760}")
    a.e(f"s_mul_i32 s{S_T2}, s{S_W}, {48*1280}")
    a.e(f"s_add_u32 s{ot}, s{ot}, s{S_T2}")
    a.e(f"s_add_u32 s{ot}, s{ot}, {3*245760}")


def tail_tile(a, o, vt, mt, ot, n):
    for j in range(6):
        a.e(f"s_add_u32 m0, s{mt}, {tail_slot(n) + 1024*j}")
        a.e(f"s_add_u32 s{S_T2}, s{ot}, {128*n + 8*1280*j}")
        a.e(f"buffer_load_dwordx4 v{vt+(j&1)}, {sq(S_WO)}, s{S_T2} offen{pol(o['wpol'])} lds")


PRO_W, PRO_X = 24576, 122880
PRO_XO = (8192, 16384, 0, 32768)


PY, PQ, PFA, PFB = 96, 48, 36, 20
P_T0, P_VQ, P_VX, P_VO, P_AQ, P_AW, P_AX, P_AO, P_T1, P_QW, P_DUM = 0, 1, 4, 5, 10, 13, 15, 16, 17, 18, 19
S_C, S_MQ, S_MX, S_MO, S_OQ, S_OX, S_OO, S_P, S_OWN = 50, 51, 52, 53, 54, 55, 56, 58, 49
PR = (P_VQ, P_VX, S_MQ, S_MX, S_OQ, S_OX)


def p_burst_q(a, o, D):
    b = WB + D * 40960
    burst_q(a, o, PR, b, b + 32768, b + 20480)
    return 8


def p_burst_o(a, o, D):
    wp = pol(o["wpol"])
    for h in range(2):
        b = WB + D * 40960 + h * 20480
        a.e(f"s_add_u32 m0, s{S_MO}, {b}")
        a.e(f"s_add_u32 s{S_T}, s{S_OO}, 4096")
        for j in range(4):
            a.e(f"buffer_load_dwordx4 v{P_VO+j}, {sq(S_WO)}, s{S_OO} offen offset:{1024*j}{wp} lds")
        a.e(f"s_add_u32 m0, s{S_MO}, {b+4096}")
        a.e(f"s_add_u32 s{S_OO}, s{S_OO}, 20480")
        a.e(f"buffer_load_dwordx4 v{P_VO+4}, {sq(S_WO)}, s{S_T} offen{wp} lds")
    return 10


def p_toggle(a, regs, D):
    for r in regs:
        a.e(f"v_add_u32 v{r}, 40960, v{r}" if D == 0 else f"v_subrev_u32 v{r}, 40960, v{r}")


def tr_pair(f, addr, off, delta):
    return [f"ds_read_b64_tr_b16 {v(f,2)}, v{addr} offset:{off}", f"ds_read_b64_tr_b16 {v(f+2,2)}, v{addr} offset:{off+delta}"]


def mfma16(acc, fa, fb, zero=False):
    return f"v_mfma_f32_16x16x32_bf16 {v(acc,4)}, {v(fa,4)}, {v(fb,4)}, {'0' if zero else v(acc,4)}"


def quad(reads, mf, rd, acc, f, fb, zero=False):
    for qs in range(4):
        reads.append(rd if qs == 0 else [])
        mf.append(mfma16(acc + 4 * qs, f, fb + 4 * qs, zero))


def p_qstep(a, o, qs, fill=(), pre=()):
    h = qs & 1
    reads, mf = [], []
    for i in range(3):
        quad(reads, mf, tr_pair(PFA + 4 * i, P_AQ + i, h * 20480, 1536), PQ + 16 * i, PFA + 4 * i, PFB, qs == 0)
    ax = P_AX
    if h:
        a.e(f"v_xor_b32 v{P_T0}, 64, v{P_AX}"); ax = P_T0
    xr = [f"ds_read_b128 {v(PFB+4*k,4)}, v{ax} offset:{2048*k}" for k in range(4)]
    reads[0] = xr[:1] + reads[0] + xr[1:]
    if qs == 5: mf[o["xbar"]] = [mf[o["xbar"]], "s_barrier"]
    hoist(a, reads, o["pq"], pre)
    pipe(a, reads, mf, list(fill), o["pq"])
    if h: p_toggle(a, [P_AQ, P_AQ + 1, P_AQ + 2, P_AX], (qs >> 1) & 1)


def p_oreads(a, dst, tau, tmp):
    ao = P_AO
    if tau & 1:
        a.e(f"v_xor_b32 v{tmp}, 64, v{P_AO}"); ao = tmp
    return [f"ds_read_b128 {v(dst+4*k,4)}, v{ao} offset:{6144*k + (tau>>1)*128}" for k in range(4)]


def p_ostep(a, o, s, fill=(), pre=()):
    h = s & 1
    reads, mf = [], []
    for i in range(5):
        T = 5 * h + i
        f = PFA + 4 * (i % 3)
        quad(reads, mf, tr_pair(f, P_AW + (T & 1), (T >> 1) * 256, 5120), PY + 16 * T, f, PFB)
    if not h:
        xr = p_oreads(a, PFB, s >> 1, P_T0)
        reads[0] = xr[:1] + reads[0] + xr[1:]
    hoist(a, reads, o["po"], pre)
    pipe(a, reads, mf, list(fill), o["po"])
    if h: p_toggle(a, [P_AW, P_AW + 1], (s >> 1) & 1)


def p_even(a, o, step, idx, burst, D):
    r = Rec(); n = burst(r, o, D)
    if o["pdma"] == 1:
        for x in r.t: a.e(x)
        step(a, o, idx)
    elif o["pdma"] == 2: step(a, o, idx, r.t)
    elif o["pdma"] == 4: step(a, o, idx, pre=r.t)
    elif o["pdma"] == 5:
        k = len(r.t) * o["psplit"] // 4
        step(a, o, idx, r.t[k:], pre=r.t[:k])
    else:
        step(a, o, idx)
        if o["pdma"] == 3: a.e("s_barrier")
        for x in r.t: a.e(x)
    endstep(a, n)


def p_choice(a, o, tag, cond, first, second):
    if o["pdma"] == 3: a.e("s_barrier")
    if tag == "Pa": stamp(a, o, (4 - 2, S_C, 3, 2), "s1")
    a.e(cond)
    a.branch(f"s_cbranch_scc1 L_{tag}_b")
    a.e(f"s_waitcnt vmcnt({first()})")
    a.branch(f"s_branch L_{tag}_j")
    a.label(f"L_{tag}_b")
    n2 = second()
    if tag == "Pa": stamp(a, o, (5 - 2, S_C, 3, 2), "s1")
    a.e(f"s_waitcnt vmcnt({n2})")
    if tag == "Pa": stamp(a, o, (6 - 2, S_C, 3, 2), "s1")
    a.label(f"L_{tag}_j")
    endstep(a)


PRO_AQ, PRO_AX = 168, 174


def p_prologue(a, o):
    XF, F = 96, 144
    reads, mf = [], []
    for n in range(10):
        s = (n + 2) & 3
        for h in range(2):
            xf = XF + 16 * ((2 * n + h) % 3)
            xr = [f"ds_read_b128 {v(xf+4*k,4)}, v{PRO_AX+h} offset:{PRO_XO[s] + 2048*k}" for k in range(4)]
            for i in range(3):
                f = F + 4 * ((len(mf) // 4) % 6)
                rd = tr_pair(f, PRO_AQ + 3 * (s >> 1) + i, (s & 1) * 24576 + h * 12288, 1536)
                if i == 0: rd = xr[:1] + rd + xr[1:]
                if i == 0 and h == 0 and n: rd = ["s_barrier"] + rd
                quad(reads, mf, rd, PQ + 16 * i, f, xf, n == 0 and h == 0)
    pipe(a, reads, mf, [], o["prod"])


def p_pack_block(a, i):
    y = PY + 16 * i
    for k in range(8): a.e(f"v_cvt_pk_bf16_f32 v{y+k}, v{y+2*k}, v{y+2*k+1}")
    for t in range(2):
        a.e(f"v_permlane16_swap_b32 v{y+4*t}, v{y+4*t+2}")
        a.e(f"v_permlane16_swap_b32 v{y+4*t+1}, v{y+4*t+3}")


def p_store_block(a, o, i):
    a.e(f"s_add_u32 s{S_T}, s{S_OWN}, {4*i}")
    a.e(f"s_cmp_lt_u32 s{S_T}, 5")
    a.e(f"s_cselect_b32 s{S_T}, {OOB}, s{S_P}")
    for t in range(2):
        a.e(f"buffer_store_dwordx4 {v(PY+16*i+4*t,4)}, v1, {sq(S_WS)}, s{S_T} offen offset:{t*1024}{pol(o['stpol'])}")
    a.e(f"s_add_u32 s{S_P}, s{S_P}, 8192")


def p_keep_block(a, i):
    a.e(f"s_add_u32 s{S_T}, s{S_OWN}, {4*i}")
    a.e(f"s_cmp_lt_u32 s{S_T}, 5")
    a.branch(f"s_cbranch_scc0 L_keep{i}")
    a.e(f"s_lshl_b32 s{S_T}, s{S_T}, 11")
    a.e(f"v_add_u32 v3, s{S_T}, v2")
    for t in range(2):
        a.e(f"ds_write_b128 v3, {v(PY+16*i+4*t,4)} offset:{t*1024}")
    a.label(f"L_keep{i}")


def tr_lane_parts(a, lane, G1, RR, ROW, C1, B8):
    a.e(f"v_lshrrev_b32 {ROW}, 4, {lane}")
    a.e(f"v_and_b32 {G1}, 1, {ROW}")
    a.e(f"v_bfe_u32 {RR}, {lane}, 2, 2")
    a.e(f"v_lshl_add_u32 {ROW}, {ROW}, 3, {RR}")
    a.e(f"v_bfe_u32 {C1}, {lane}, 1, 1")
    a.e(f"v_and_b32 {B8}, 1, {lane}")
    a.e(f"v_lshlrev_b32 {B8}, 3, {B8}")


def gen_P(a, o):
    a.label("L_P")
    if o["prio"] == 1: a.e("s_setprio 1")
    T0, T1, T2, T3, T4, T5, T6 = (f"v{20+k}" for k in range(7))
    stamp(a, o, 2, "start")
    G1, RR, ROW, C1, B8 = T0, T1, T2, T3, T4
    tr_lane_parts(a, "v0", G1, RR, ROW, C1, B8)
    a.e(f"v_and_b32 {T5}, 2, {RR}")
    a.e(f"v_lshl_or_b32 {T5}, {G1}, 2, {T5}")
    a.e(f"v_mul_u32_u24 v27, 384, {ROW}")
    a.e(f"v_add_u32 v27, v27, {B8}")
    for i in range(3):
        a.e(f"s_mul_i32 s{S_T}, s{S_W}, 6")
        a.e(f"s_add_u32 s{S_T}, s{S_T}, {2*i}")
        a.e(f"v_add_u32 {T6}, s{S_T}, {C1}")
        a.e(f"v_xor_b32 {T6}, {T6}, {T5}")
        a.e(f"v_lshl_add_u32 {T6}, {T6}, 4, v27")
        a.e(f"v_add_u32 v{P_AQ+i}, {WB}, {T6}")
        a.e(f"v_add_u32 v{PRO_AQ+i}, {PRO_W}, {T6}")
        a.e(f"v_add_u32 v{PRO_AQ+3+i}, {PRO_W+49152}, {T6}")
    a.e(f"v_lshl_or_b32 {T5}, {G1}, 2, {RR}")
    a.e(f"v_lshlrev_b32 {T5}, 1, {T5}")
    a.e(f"v_mul_u32_u24 v27, 1280, {ROW}")
    a.e(f"v_add_u32 v27, v27, {B8}")
    a.e(f"s_lshl_b32 s{S_T}, s{S_W}, 1")
    a.e(f"v_add_u32 {T6}, s{S_T}, {C1}")
    a.e(f"v_xor_b32 {T6}, {T6}, {T5}")
    a.e(f"v_lshl_add_u32 {T6}, {T6}, 4, v27")
    a.e(f"v_add_u32 v{P_AW}, {WB}, {T6}")
    a.e(f"v_xor_b32 v{P_AW+1}, 128, v{P_AW}")
    a.e(f"v_and_b32 {T0}, 15, v0")
    a.e(f"v_lshrrev_b32 {T1}, 4, v0")
    a.e(f"v_and_b32 {T2}, 6, {T0}")
    a.e(f"v_xor_b32 {T3}, {T2}, {T1}")
    a.e(f"v_lshlrev_b32 {T3}, 4, {T3}")
    a.e(f"v_lshl_add_u32 {T4}, {T0}, 7, {T3}")
    a.e(f"v_add_u32 v{P_AX}, {WB+32768}, {T4}")
    a.e(f"v_add_u32 v{PRO_AX}, {PRO_X}, {T4}")
    a.e(f"v_xor_b32 v{PRO_AX+1}, 64, v{PRO_AX}")
    a.e(f"v_mul_u32_u24 {T0}, 384, {T0}")
    a.e(f"v_add_u32 {T0}, {XB}, {T0}")
    a.e(f"v_bfe_u32 {T2}, v0, 1, 3")
    a.e(f"v_xor_b32 {T3}, {T2}, {T1}")
    a.e(f"v_lshl_add_u32 v{P_AO}, {T3}, 4, {T0}")
    a.e(f"v_lshrrev_b32 {T3}, 1, {T1}")
    a.e(f"v_xor_b32 {T3}, {T3}, {T2}")
    a.e(f"v_lshl_add_u32 {T3}, {T3}, 4, {T0}")
    a.e(f"v_and_b32 {T1}, 1, {T1}")
    a.e(f"v_lshl_add_u32 v{P_QW}, {T1}, 3, {T3}")
    dma_offsets_q(a, P_VQ, P_VX, 28)
    a.e(f"s_lshr_b32 s{S_T}, s{S_W}, 1")
    a.e(f"s_lshl_b32 s{S_T}, s{S_T}, 2")
    for j in range(5):
        a.e(f"v_add_u32 {T0}, {64*j}, v0")
        a.e(f"v_mul_u32_u24 {T0}, 820, {T0}")
        a.e(f"v_lshrrev_b32 {T0}, 16, {T0}")
        a.e(f"v_or_b32 {T0}, s{S_T}, {T0}")
        a.e(f"v_lshlrev_b32 {T0}, 1, {T0}")
        a.e(f"v_xor_b32 {T0}, {T0}, v0")
        a.e(f"v_lshlrev_b32 v{P_VO+j}, 4, {T0}")
    scalars_q(a, S_MQ, S_MX, S_OQ, S_OX, 1)
    a.e(f"s_mul_i32 s{S_MO}, s{S_W}, 5120")
    a.e(f"s_mul_i32 s{S_OO}, s{S_HG}, {4*245760}")
    a.e(f"s_add_u32 s{S_OO}, s{S_OO}, s{S_MO}")
    a.e(f"s_mov_b32 s{S_C}, 1")
    stamp(a, o, 3, "start")
    a.e("s_barrier")
    stamp(a, o, 1)
    a.raw("L_Ppro:")
    p_prologue(a, o)

    a.label("L_Pcyc")
    for i in range(24):
        a.e(f"v_cvt_pk_bf16_f32 v{PQ+i}, v{PQ+2*i}, v{PQ+2*i+1}")
    for i in range(3):
        a.e(f"s_mul_i32 s{S_T}, s{S_W}, 3")
        a.e(f"s_add_u32 s{S_T}, s{S_T}, {i}")
        a.e(f"s_and_b32 s{S_T2}, s{S_T}, 3")
        a.e(f"s_lshl_b32 s{S_T2}, s{S_T2}, 5")
        a.e(f"s_lshr_b32 s{S_T}, s{S_T}, 2")
        a.e(f"s_lshl_b32 s{S_T}, s{S_T}, 7")
        t = (P_T0, P_T1)[i & 1]
        a.e(f"v_xor_b32 v{t}, s{S_T2}, v{P_QW}")
        a.e(f"v_add_u32 v{t}, s{S_T}, v{t}")
        for k in range(4):
            a.e(f"ds_write_b64 v{t}, {v(PQ+8*i+2*k,2)} offset:{6144*k}")
    a.e("s_waitcnt lgkmcnt(0)")
    a.e(f"s_cmp_eq_u32 s{S_C}, 4")
    a.branch("s_cbranch_scc0 L_Pc3")
    idle_steps(a, o, "Pi4", 0, 4)
    a.branch("s_branch L_PO")
    a.label("L_Pc3")
    a.e(f"s_cmp_eq_u32 s{S_C}, 1")
    a.branch("s_cbranch_scc0 L_PQa")
    a.e("s_barrier")
    r0 = 8 if o["k2"] else 1
    if o["k2"]:
        for i in range(160): a.e(f"v_mov_b32 v{PY+i}, 0")
        idle_steps(a, o, "Pi1", 1, r0)
    p_burst_q(a, o, 0)
    idle_steps(a, o, "Pi2", r0, 9 if o["k2"] else 3)
    endstep(a, 3)

    a.label("L_PQa")
    for qs in range(4):
        if qs == 0:
            p_even(a, o, p_qstep, 0, p_burst_q, 1); continue
        p_qstep(a, o, qs)
        if qs == 2: p_choice(a, o, "Pa", f"s_cmp_ge_u32 s{S_C}, 2", lambda: p_burst_q(a, o, 0), lambda: p_burst_o(a, o, 0))
        else: endstep(a, 3 if qs == 1 else 0)
    a.e(f"s_cmp_ge_u32 s{S_C}, 2")
    a.branch("s_cbranch_scc1 L_PO")
    if not o["k2"]:
        for i in range(160): a.e(f"v_mov_b32 v{PY+i}, 0")
    idle_steps(a, o, "Pi10", 14 if o["k2"] else 8, 16)
    a.branch("s_branch L_PQb")

    a.label("L_PO")
    stamp(a, o, (2, S_C, 5))
    for s in range(12):
        if s < 10 and s % 2 == 0:
            p_even(a, o, p_ostep, s, p_burst_o, ((s >> 1) + 1) & 1); continue
        p_ostep(a, o, s)
        if s == 10: p_choice(a, o, "Po", f"s_cmp_eq_u32 s{S_C}, 4", lambda: p_burst_q(a, o, 0), lambda: 0)
        elif s == 11: endstep(a, 3)
        else: endstep(a, 0)
    a.e(f"s_cmp_eq_u32 s{S_C}, 4")
    a.branch("s_cbranch_scc1 L_Ptail")

    a.label("L_PQb")
    for qs in range(4, 20):
        if qs < 18 and qs % 2 == 0:
            p_even(a, o, p_qstep, qs, p_burst_q, ((qs >> 1) + 1) & 1); continue
        p_qstep(a, o, qs)
        if qs == 18:
            a.e(f"s_add_u32 s{S_OQ}, s{S_OQ}, {(384 - 640*12288) & 0xffffffff}")
            a.e(f"s_sub_u32 s{S_OX}, s{S_OX}, 1280")
            p_choice(a, o, "Pb", f"s_cmp_eq_u32 s{S_C}, 3", lambda: p_burst_q(a, o, 0), lambda: p_burst_o(a, o, 0))
        else: endstep(a, 0 if qs == 19 else 3)
    a.e(f"s_add_u32 s{S_C}, s{S_C}, 1")
    a.branch("s_branch L_Pcyc")

    a.label("L_Ptail")
    VT, TA = 2, 4
    lane_id(a, 5)
    tail_offsets(a, VT, S_MO, S_OO, "v5", ("v6", "v7"))
    tr_lane_parts(a, "v5", "v6", "v7", "v8", "v9", "v10")
    a.e("v_and_b32 v7, 2, v7")
    a.e("v_lshl_or_b32 v7, v6, 2, v7")
    a.e(f"s_lshl_b32 s{S_T}, s{S_W}, 1")
    a.e(f"v_add_u32 v9, s{S_T}, v9")
    a.e("v_xor_b32 v9, v9, v7")
    a.e("v_lshl_add_u32 v9, v9, 4, v10")
    a.e(f"v_lshl_add_u32 v{TA}, v8, 7, v9")
    a.e("v_lshlrev_b32 v1, 4, v5")
    a.e(f"s_lshl_b32 s{S_P}, s{S_BR}, 4"); a.e(f"s_add_u32 s{S_P}, s{S_P}, s{S_B}")
    a.e(f"s_lshl_b32 s{S_P}, s{S_P}, 3"); a.e(f"s_add_u32 s{S_P}, s{S_P}, s{S_HG}")
    a.e(f"s_mul_i32 s{S_P}, s{S_P}, 81920")
    a.e(f"s_lshl_b32 s{S_T}, s{S_W}, 11"); a.e(f"s_add_u32 s{S_P}, s{S_P}, s{S_T}")
    a.e(f"s_mul_i32 s{S_T}, s{S_HG}, 5"); a.e(f"s_sub_u32 s{S_OWN}, s{S_W}, s{S_T}")
    for n in range(3):
        tail_tile(a, o, VT, S_MO, S_OO, n)
        idle_steps(a, o, f"Pt{n}", 16 + 2 * n, 18 + 2 * n)
    idle_steps(a, o, "Pt3", 22, 31)
    tail_tile(a, o, VT, S_MO, S_OO, 3)
    idle_steps(a, o, "Pt4", 31, 32)
    if o["pdma"] == 3: a.e("s_barrier")
    endstep(a, 0)
    stamp(a, o, 7)
    SB, F = 8, 24
    a.e(f"v_xor_b32 v{P_T0}, 64, v{P_AO}")
    a.e(f"v_mov_b32 v7, v{P_AO}")
    ob = lambda dst, tau: [f"ds_read_b128 {v(dst+4*k,4)}, v{P_T0 if tau & 1 else 7} offset:{6144*k + (tau>>1)*128}" for k in range(4)]
    order = (3, 0, 4, 1, 5, 2)
    for t in ob(SB, 3): a.e(t)
    addr = lambda p, k: f"v_add_u32 v{5+k}, {tail_slot(2*p+k)}, v{TA}"
    pairs = []
    for p in range(5):
        reads, mf = [], []
        for gi, tau in enumerate(order):
            for k in range(2):
                f = F + 4 * ((len(mf) // 4) % 6)
                rd = tr_pair(f, 5 + k, tau * 4096, 512)
                if gi == 0: rd = [addr(p, k)] + rd
                if p == 0 and tau < 3 and k == 0: rd = ob(PQ + 16 * tau, tau) + rd
                quad(reads, mf, rd, PY + 16 * (2 * p + k), f, PQ + 16 * tau if tau < 3 else SB)
            if o["tq"] and tau >= 3 and (p or gi):
                mf[-8] = [f"need {v(SB,16)}", mf[-8]]
            if tau >= 3 and not (p == 4 and tau == 5):
                nxt = ob(SB, 3 if tau == 5 else tau + 1)
                if o["tq"]:
                    for k in range(4): mf[k - 4] = [mf[k - 4], nxt[k]]
                else: mf[-1] = [mf[-1]] + nxt
        pairs.append((reads, mf))
    for p, h in ((0, 3), (1, 1)):
        for q_ in range(h if o["tx"] else 0):
            pairs[p][1][41 + 2 * q_] = [pairs[p][1][41 + 2 * q_]] + pairs[p + 1][0][4 * q_]
            pairs[p + 1][0][4 * q_] = []
    for p, (reads, mf) in enumerate(pairs):
        fill = []
        if p: fill = rec(p_pack_block, 2 * p - 2) + rec(p_pack_block, 2 * p - 1)
        for m in TAIL_STORES[o["tst"]].get(p, []): fill += rec(p_store_block, o, m)
        pipe(a, reads, mf, fill, 16, skip=6)
        if p < 4: a.e("s_barrier")
    stamp(a, o, 8)
    for m in TAIL_STORES[o["tst"]][5]:
        if m >= 8: p_pack_block(a, m)
        p_store_block(a, o, m)
    a.e(f"s_mul_i32 s{S_T}, s{S_HG}, 10240")
    a.e(f"s_add_u32 s{S_T}, s{S_T}, {WB}")
    a.e(f"v_add_u32 v2, s{S_T}, v1")
    for m in range(10): p_keep_block(a, m)
    a.e("s_waitcnt vmcnt(0)")
    a.branch("s_branch L_red")


TAIL_STORES = [{3: [0, 1, 2, 3, 4, 5], 4: [6, 7], 5: [8, 9]},
               {3: [0, 1, 2], 4: [3, 4, 5, 6], 5: [7, 8, 9]},
               {2: [0, 1], 3: [2, 3, 4], 4: [5, 6, 7], 5: [8, 9]},
               {1: [0, 1], 2: [2, 3], 3: [4, 5], 4: [6, 7], 5: [8, 9]}]


AS, AR_, AP, AF = 128, 80, 56, 24
A_VD, A_AK, A_AV, A_M, A_L, A_R, A_T0, A_T1, A_PF, A_DUM = 1, 4, 6, 14, 16, 18, 20, 21, 22, 23
A_XQ, A_XO, A_EW, A_ER, A_FI, A_FO = 48, 50, 52, 53, 54, 55
S_SP, S_PER, S_MK, S_OK, S_OV, S_CS, S_PFO, S_PFS, S_PF = 49, 50, 51, 52, 53, 54, 55, 56, 60
AR = (128, 131, 68, 69, 96, 97)
S_PFM = 100
S_LK, S_LV = 48, 58


def pf_sites(o):
    return {b + k for b in (1, o["pfa"], o["pfo"]) for k in range(4)}


def a_burst(a, o, D, srdreg, off, last=False):
    kp = pol(o["kvpol"])
    for h in range(2):
        a.e(f"s_add_u32 m0, s{S_MK}, {D*24576+h*12288}")
        if h: a.e(f"s_add_u32 s{off}, s{off}, 12288")
        else: a.e("s_nop 0")
        for j in range(3):
            a.e(f"buffer_load_dwordx4 v{A_VD+j}, {sq(srdreg)}, s{off} offen offset:{1024*j}{kp} lds")
    a.e(f"s_add_u32 s{off}, s{off}, 12288")
    if o["rot"]:
        lim = S_LK if off == S_OK else S_LV
        a.e(f"s_cmp_eq_u32 s{off}, s{lim}")
        a.e(f"s_cselect_b32 s{S_T}, 196608, 0")
        a.e(f"s_sub_u32 s{off}, s{off}, s{S_T}")
        if last:
            a.e(f"s_add_u32 s{off}, s{off}, 196608")
            a.e(f"s_add_u32 s{lim}, s{lim}, 196608")


def soft_chunk(j):
    b = AS + 8 * j
    t = []
    for i in range(8): t.append(f"v_fma_f32 v{b+i}, v{b+i}, s{S_CS}, -v{A_M+(i>>2)}")
    for i in range(8): t.append(f"v_exp_f32 v{b+i}, v{b+i}")
    for i in (0, 4, 1, 5, 2, 6, 3, 7):
        if j == 0 and i % 4 == 0: t.append(f"v_mov_b32 v{A_L+(i>>2)}, v{b+i}")
        else: t.append(f"v_add_f32 v{A_L+(i>>2)}, v{A_L+(i>>2)}, v{b+i}")
    for qs in range(2):
        for i in range(2): t.append(f"v_cvt_pk_bf16_f32 v{b+4*qs+i}, v{b+4*qs+2*i}, v{b+4*qs+2*i+1}")
    for qs in range(2):
        t.append(f"ds_write_b64 v{A_EW}, {v(b+4*qs,2)} offset:{(j&1)*4096 + qs*512}")
    return t


def max_chunk(s):
    b = AS + 8 * s
    t = []
    for i in range(2):
        for qs in range(2):
            r = b + 4 * qs + 2 * i
            if s == 0 and i == 0: t.append(f"v_max_f32 v{A_M+qs}, v{r}, v{r+1}")
            else: t.append(f"v_max3_f32 v{A_M+qs}, v{A_M+qs}, v{r}, v{r+1}")
    return t


def xlane2(a, reg, op):
    for sw in ("v_permlane32_swap_b32", "v_permlane16_swap_b32"):
        for k in range(2): a.e(f"v_mov_b32 v{A_T0+k}, v{reg+k}")
        for k in range(2): a.e(f"{sw} v{reg+k}, v{A_T0+k}")
        for k in range(2): a.e(f"{op} v{reg+k}, v{reg+k}, v{A_T0+k}")


def a_rowsum(a):
    xlane2(a, A_L, "v_add_f32")
    a.e(f"s_mov_b32 s{S_T}, {WB + 40960 + 12288 - EB & 0xffffffff}")
    a.e(f"s_cmp_eq_u32 s{S_PER}, 3")
    a.e(f"s_cselect_b32 s{S_T}, {WB + 73728 - EB & 0xffffffff}, s{S_T}")
    a.e(f"s_lshl_b32 s{S_T2}, s{S_W}, 9")
    a.e(f"s_sub_u32 s{S_T}, s{S_T}, s{S_T2}")
    a.e(f"v_add_u32 v{A_R}, s{S_T}, v{A_EW}")
    a.e(f"v_xor_b32 v{A_R+1}, 512, v{A_R}")
    a.e(f"ds_write_b64 v{A_R}, {v(A_L,2)}")


def a_qread(ks):
    return [f"ds_read_b128 {v(AR_+8*ks+4*qs,4)}, v{A_XQ+(ks&1)} offset:{qs*6144 + (ks>>1)*128}" for qs in range(2)]


def a_owrite(i):
    t = [f"v_xor_b32 v{A_T0+(i&1)}, {32*(i&3)}, v{A_XO+(1 if i in (2, 3) else 0)}"]
    for qs in range(2):
        t.append(f"ds_write_b64 v{A_T0+(i&1)}, {v(AP+4*i+2*qs,2)} offset:{qs*6144 + (i>>2)*128}")
    return t


def a_onorm(i):
    t = []
    for qs in range(2):
        r = AR_ + 8 * i + 4 * qs
        for k in range(4): t.append(f"v_mul_f32 v{r+k}, v{r+k}, v{A_R+qs}")
    for qs in range(2):
        r = AR_ + 8 * i + 4 * qs
        for k in range(2): t.append(f"v_cvt_pk_bf16_f32 v{AP+4*i+2*qs+k}, v{r+2*k}, v{r+2*k+1}")
    return t


def weave(pre, work):
    n = sum(t.startswith("buffer_load_dwordx4") for t in pre)
    out, k = [], 0
    for t in pre:
        out.append(t)
        if t.startswith("buffer_load_dwordx4"):
            k += 1
            out += work[len(work) * (k - 1) // n:len(work) * k // n]
    return out


def hoist(a, reads, depth, pre):
    if not pre: return
    for i in range(min(depth, len(reads))):
        for t in reads[i]: a.e(t)
        reads[i] = []
    for t in pre: a.e(t)


def a_kstep(a, o, s, extra=(), pre=()):
    reads, mf = [], []
    for i in range(12):
        ks, qs = divmod(i, 2) if not o["kord"] else (i % 6, i // 6)
        f = AF + 4 * ks
        reads.append([] if qs else [f"ds_read_b128 {v(f,4)}, v{A_AK+(ks&1)} offset:{(s&3)*12288 + (ks>>1)*128}"])
        mf.append(mfma16(AS + 8 * s + 4 * qs, f, AR_ + 8 * ks + 4 * qs, ks == 0))
    hoist(a, reads, o["adepth"], pre)
    pipe(a, reads, mf, (max_chunk(s - 1) if s else []) + list(extra), o["adepth"])
    if s == 15:
        for t in max_chunk(15): a.e(t)
        xlane2(a, A_M, "v_max_f32")
        a.e(f"ds_write_b64 v{A_EW}, {v(A_M,2)} offset:4096")


def a_vstep(a, o, j, pre=()):
    s = 16 + j
    b = AS + 8 * j
    reads, mf = [], []
    for n in range(12):
        i, qs = divmod(n, 2)
        f = AF + 4 * i
        off = (s & 3) * 12288 + (i >> 2) * 128
        reads.append([] if qs else [f"ds_read_b64_tr_b16 {v(f,2)}, v{A_AV+(i&3)} offset:{off}",
                                    f"ds_read_b64_tr_b16 {v(f+2,2)}, v{A_AV+4+(i&3)} offset:{off}"])
        mf.append(mfma16(AR_ + 8 * i + 4 * qs, f, b + 4 * qs, j == 0))
    if j == 0:
        a.e(f"ds_read_b64 {v(A_T0,2)}, v{A_ER} offset:4096")
        for n in range(0, 12, 2):
            for t in reads[n]: a.e(t)
            reads[n] = []
        work = [f"v_max_f32 v{A_M+k}, v{A_M+k}, v{A_T0+k}" for k in range(2)]
        work += [f"v_mul_f32 v{A_M+k}, s{S_CS}, v{A_M+k}" for k in range(2)] + soft_chunk(0)
        for t in (weave(list(pre), work) if o["t16"] == 2 else list(pre) + work): a.e(t)
        pre = ()
        endstep(a)
    for qs in range(2):
        a.e(f"ds_read_b64 {v(b+4*qs+2,2)}, v{A_ER} offset:{(j&1)*4096 + qs*512}")
    if j == 15:
        a.e(f"ds_read_b64 {v(A_T0,2)}, v{A_R+1}")
        mf[1] = [mf[1]] + [f"v_add_f32 v{A_L+k}, v{A_L+k}, v{A_T0+k}" for k in range(2)]
        mf[2] = [mf[2]] + [f"v_rcp_f32 v{A_R+k}, v{A_L+k}" for k in range(2)]
        for i in range(4): mf[2 * i + 5] = [mf[2 * i + 5]] + a_onorm(i)
    fill = soft_chunk(j + 1) + (rec(a_rowsum) if j == 14 else []) if j < 15 else []
    if pre and o["vweave"] and pre != ["s_barrier"]:
        k = len(fill) * o["vweave"] // 4
        pre, fill = weave(list(pre), fill[:k]), fill[k:]
    hoist(a, reads, o["adepth"], pre)
    pipe(a, reads, mf, fill, o["adepth"], 12 if j == 14 else o["vspan"])
    if j == 15:
        for t in a_onorm(4) + a_onorm(5): a.e(t)
        a.e(f"s_cmp_eq_u32 s{S_PER}, 3")
        a.branch("s_cbranch_scc0 L_A31")
        for i in range(6):
            for t in a_owrite(i): a.e(t)
        a.label("L_A31")


def spin(a, tag, load, test, nap=0, bound=0x20000):
    a.e("s_mov_b32 s40, 0")
    a.label(f"L_{tag}")
    a.e(load)
    a.e("s_add_u32 s40, s40, 1")
    a.e("s_waitcnt vmcnt(0) lgkmcnt(0)")
    for t in test: a.e(t)
    a.branch(f"s_cbranch_scc1 L_{tag}_ok")
    if nap: a.e(f"s_sleep {nap}")
    a.e(f"s_cmp_lt_u32 s40, {bound}")
    a.branch(f"s_cbranch_scc1 L_{tag}")
    a.label(f"L_{tag}_ok")


def gen_A(a, o):
    a.comment("attention waves: 16 query rows each; they also feed the first and the last projection")
    if o["prio"] == 2: a.e("s_setprio 1")
    if o["sprio"]: a.e("s_setprio 3")
    T0, T1, T2, T3 = "v24", "v25", "v26", "v27"
    dma_offsets_q(a, AR[0], AR[1], 32)
    scalars_q(a, *AR[2:], 0)
    chains = []
    for j in range(3):
        r = Rec()
        U0, U1, U2, U3 = (f"v{32+4*j+k}" for k in range(4))
        r.e(f"v_add_u32 {U0}, {64*j}, v0")
        r.e(f"v_mul_u32_u24 {U1}, 2731, {U0}")
        r.e(f"v_lshrrev_b32 {U1}, 16, {U1}")
        r.e(f"v_and_b32 {U1}, 6, {U1}")
        r.e(f"v_xor_b32 {U1}, {U1}, v0")
        r.e(f"v_lshlrev_b32 v{A_VD+j}, 4, {U1}")
        chains.append(r.t)
    kv_offsets = chains
    a.e(f"s_mul_i32 s98, s{S_B}, 81920")
    a.e(f"s_mul_i32 s{S_T}, s{S_HALF}, 40960"); a.e(f"s_add_u32 s98, s98, s{S_T}")
    a.e(f"s_mul_i32 s{S_T}, s{S_W}, 10240"); a.e(f"s_add_u32 s98, s98, s{S_T}")
    a.e(f"v_lshlrev_b32 v28, 7, v0")
    a.e(f"v_add_u32 v29, 8192, v28")
    a.e(f"v_mov_b32 {T2}, {OOB}")
    a.e(f"v_cmp_gt_u32 vcc, 16, v0")
    a.e(f"v_cndmask_b32 v29, {T2}, v29, vcc")
    stamp(a, o, 2, "start")
    pp = pol(o["pfpol"])
    vm = ["t"] * 4

    def W(n):
        s = (n + 2) & 3
        burst_q(a, o, AR, PRO_W + s * 24576, PRO_X + PRO_XO[s], PRO_W + s * 24576 + 12288)
        vm.extend([("W", n)] * 8)

    def K0():
        a_burst(a, o, 0, S_K, S_OK); vm.extend([("K", 0)] * 3 + [("K", 1)] * 3)

    def late_touches():
        a.e(f"s_cmp_eq_u32 s99, 0")
        a.e(f"s_cselect_b32 s{S_T}, {OOB}, s{S_PFO}")
        a.e(f"buffer_load_dword v{A_DUM}, v{A_PF}, {sq(S_PF)}, s{S_T} offen{pp}"); vm.append("t")
        a.e(f"s_add_u32 s{S_PFO}, s{S_PFO}, s99")
        a.e(f"s_cmp_eq_u32 s{S_W}, 0")
        a.e(f"s_cselect_b32 s{S_T}, s46, {OOB}")
        a.e(f"s_cselect_b32 s{S_T2}, s47, {OOB}")
        a.e(f"buffer_load_dword v{A_FI}, v28, {sq(S_WS)}, s{S_T} offen sc1"); vm.append("f")
        a.e(f"buffer_load_dword v{A_FO}, v29, {sq(S_WS)}, s{S_T2} offen sc1"); vm.append("f")

    def wait_for(tag):
        last = max(i for i, x in enumerate(vm) if x == tag)
        return min(63, len(vm) - 1 - last)

    stamp(a, o, 3, "start")
    W(0)
    stamp(a, o, 4, "start")
    if o["sprio"]: a.e(f"s_setprio {1 if o['prio'] == 2 else 0}")
    interleave(a, kv_offsets)
    a.e(f"s_mul_i32 s{S_MK}, s{S_W}, 3072")
    a.e(f"s_lshl_b32 s{S_OK}, s{S_B}, 3"); a.e(f"s_add_u32 s{S_OK}, s{S_OK}, s{S_HG}")
    a.e(f"s_mul_i32 s{S_OK}, s{S_OK}, 786432"); a.e(f"s_add_u32 s{S_OK}, s{S_OK}, s{S_MK}")
    if o["rot"]:
        a.e(f"s_add_u32 s{S_LK}, s{S_OK}, 196608")
        a.e(f"s_mov_b32 s{S_LV}, s{S_LK}")
        a.e(f"s_mul_i32 s{S_T}, s2, {o['rot']}")
        a.e(f"s_lshr_b32 s{S_T}, s{S_T}, 3")
        a.e(f"s_add_u32 s{S_T}, s{S_T}, s2")
        a.e(f"s_and_b32 s{S_T}, s{S_T}, 7")
        a.e(f"s_mul_i32 s{S_T}, s{S_T}, 24576")
        a.e(f"s_add_u32 s{S_OK}, s{S_OK}, s{S_T}")
    a.e(f"s_mov_b32 s{S_OV}, s{S_OK}")
    a.e(f"buffer_load_dword v{A_DUM}, v28, {sq(S_XI)}, s98 offen{pp}"); vm.append("t")
    a.e(f"buffer_load_dword v{A_DUM}, v29, {sq(S_XI)}, s98 offen{pp}"); vm.append("t")
    stamp(a, o, 5, "start")
    if o["k0"] < 0: K0()
    if o["codepf"]:
        a.e("s_getpc_b64 s[100:101]")
        a.raw("L_pc:")
        a.e(f"s_sub_u32 s100, s100, L_pc-{KN}")
        a.e("s_subb_u32 s101, s101, 0")
        a.e("s_lshr_b32 s98, s2, 3")
        a.e(f"s_lshl_b32 s98, s98, 2")
        a.e(f"s_add_u32 s98, s98, s{S_W}")
        a.e(f"s_lshl_b32 s98, s98, 9")
        a.e("v_and_b32 v30, 3, v0")
        a.e("v_lshlrev_b32 v30, 7, v30")
        a.e("v_add_u32 v30, s98, v30")
        a.e(f"v_min_u32 v30, L_end-{KN}, v30")
        a.e(f"global_load_dword v{A_DUM}, v30, s[100:101]"); vm.append("t")
    a.e(f"s_lshl_b32 s44, s{S_BR}, 4")
    a.e(f"s_add_u32 s44, s44, s{S_B}")
    a.e("s_lshl_b32 s45, s44, 10")
    a.e(f"s_add_u32 s45, s45, {FLAGS}")
    a.e(f"s_lshl_b32 s46, s{S_HG}, 7")
    a.e(f"s_add_u32 s46, s46, s45")
    a.e(f"s_lshl_b32 s47, s{S_HG}, 2")
    a.e(f"s_add_u32 s47, s47, s45")
    wq_share(a, T1, T0, T1, T2)
    a.e(f"v_lshlrev_b32 {T2}, 7, {T0}")
    a.e(f"s_mov_b32 s{S_PFS}, 384")
    a.e(f"s_mov_b32 s{S_T}, {40*12288}")
    a.e(f"s_cmp_ge_u32 s{S_W}, 2")
    a.e(f"s_cselect_b64 vcc, -1, 0")
    a.e(f"s_cselect_b32 s{S_PFS}, 245760, s{S_PFS}")
    a.e(f"s_cselect_b32 s{S_T}, 15360, s{S_T}")
    a.e(f"s_cselect_b32 s{S_PF}, s{S_WO}, s{S_WQ}")
    a.e(f"s_cselect_b32 s{S_PF+1}, s{S_WO+1}, s{S_WQ+1}")
    a.e(f"s_cselect_b32 s99, 0, 384")
    a.e(f"s_mov_b32 s{S_PF+2}, {W_BYTES}")
    a.e(f"s_mov_b32 s{S_PF+3}, 0x20000")
    a.e(f"v_cndmask_b32 {T1}, {T1}, {T2}, vcc")
    a.e(f"v_mov_b32 {T2}, {OOB}")
    a.e(f"v_cmp_gt_u32 vcc, 120, {T0}")
    a.e(f"v_cndmask_b32 v{A_PF}, {T2}, {T1}, vcc")
    a.e(f"s_mul_i32 s{S_PFO}, s{S_T}, s{S_B}")
    a.e(f"s_mul_i32 s{S_T}, s{S_PFS}, s{S_HG}")
    a.e(f"s_lshl_b32 s{S_T}, s{S_T}, 2")
    a.e(f"s_add_u32 s{S_PFO}, s{S_PFO}, s{S_T}")
    a.e(f"s_add_u32 s{S_PFO}, s{S_PFO}, s99")
    bits = lambda *pp_: sum(3 << (16 * p + k) for p, k in pp_)
    ka, ko = o["pfa"], o["pfo"]
    mA, mB, mO = bits((0, ka), (1, ka)), bits((0, 1), (1, 1), (2, 1)), bits((0, ko), (1, ko), (2, ko), (3, 1))
    a.e(f"s_mov_b32 s{S_PFM}, {mB & 0xffffffff}")
    a.e(f"s_mov_b32 s{S_PFM+1}, {mB >> 32}")
    a.e(f"s_cmp_lt_u32 s{S_B}, {o['pfb']}")
    a.e(f"s_cselect_b32 s{S_PFM}, {mA & 0xffffffff}, s{S_PFM}")
    a.e(f"s_cselect_b32 s{S_PFM+1}, {mA >> 32}, s{S_PFM+1}")
    a.e(f"s_cselect_b32 s99, s99, 0")
    a.e(f"s_cmp_ge_u32 s{S_W}, 2")
    a.e(f"s_cselect_b32 s{S_PFM}, {mO & 0xffffffff}, s{S_PFM}")
    a.e(f"s_cselect_b32 s{S_PFM+1}, {mO >> 32}, s{S_PFM+1}")
    a.e(f"s_and_b32 s{S_T}, s{S_W}, 1")
    a.e(f"s_lshl_b32 s{S_T}, s{S_T}, 1")
    a.e(f"s_lshl_b64 s[{S_PFM}:{S_PFM+1}], s[{S_PFM}:{S_PFM+1}], s{S_T}")
    a.e(f"s_and_b32 s{S_SP}, s{S_W}, 1")
    a.e(f"s_lshr_b32 s{S_T2}, s{S_W}, 1")
    a.e(f"s_mul_i32 s{S_T2}, s{S_T2}, 12288")
    a.e(f"s_add_u32 s{S_T2}, s{S_T2}, {XB}")
    a.e(f"s_mul_i32 s{S_T}, s{S_SP}, 6144")
    a.e(f"v_and_b32 {T0}, 15, v0")
    a.e(f"v_lshrrev_b32 {T1}, 4, v0")
    a.e(f"v_and_b32 {T2}, 6, {T0}")
    a.e(f"v_xor_b32 {T3}, {T2}, {T1}")
    a.e(f"v_mul_u32_u24 {T0}, 384, {T0}")
    a.e(f"v_lshl_add_u32 {T3}, {T3}, 4, {T0}")
    a.e(f"v_add_u32 v{A_AK}, s{S_T}, {T3}")
    a.e(f"v_xor_b32 v{A_AK+1}, 64, v{A_AK}")
    a.e(f"v_bfe_u32 {T2}, v0, 1, 3")
    a.e(f"v_xor_b32 {T3}, {T2}, {T1}")
    a.e(f"v_lshl_add_u32 {T3}, {T3}, 4, {T0}")
    a.e(f"v_add_u32 v{A_XQ}, s{S_T2}, {T3}")
    a.e(f"v_xor_b32 v{A_XQ+1}, 64, v{A_XQ}")
    a.e(f"v_lshrrev_b32 {T3}, 1, {T1}")
    a.e(f"v_xor_b32 {T3}, {T3}, {T2}")
    a.e(f"v_lshl_add_u32 {T3}, {T3}, 4, {T0}")
    a.e(f"v_and_b32 {T2}, 1, {T1}")
    a.e(f"v_lshl_add_u32 {T3}, {T2}, 3, {T3}")
    a.e(f"v_add_u32 {T3}, s{S_T2}, {T3}")
    a.e(f"s_lshl_b32 s{S_T2}, s{S_SP}, 6")
    a.e(f"v_xor_b32 {T3}, s{S_T2}, {T3}")
    a.e(f"s_lshl_b32 s{S_T2}, s{S_SP}, 7")
    a.e(f"v_add_u32 v{A_XO}, s{S_T2}, {T3}")
    a.e(f"v_add_u32 v{A_XO+1}, s{S_T2}, v{A_XO}")
    a.e(f"v_lshrrev_b32 {T0}, 2, v0")
    a.e(f"v_and_b32 {T1}, 6, {T0}")
    a.e(f"v_bfe_u32 {T2}, v0, 1, 1")
    a.e(f"v_xor_b32 {T1}, {T1}, {T2}")
    a.e(f"v_mul_u32_u24 {T0}, 384, {T0}")
    a.e(f"v_lshl_add_u32 {T1}, {T1}, 4, {T0}")
    a.e(f"v_and_b32 {T2}, 1, v0")
    a.e(f"v_lshl_add_u32 {T1}, {T2}, 3, {T1}")
    a.e(f"s_lshl_b32 s{S_T2}, s{S_SP}, 6")
    a.e(f"v_xor_b32 {T1}, s{S_T2}, {T1}")
    for d in range(4):
        a.e(f"v_xor_b32 {T2}, {32*d}, {T1}")
        a.e(f"s_lshl_b32 s{S_T2}, s{S_SP}, {8 if d >= 2 else 7}")
        a.e(f"v_add_u32 {T2}, s{S_T2}, {T2}")
        a.e(f"v_add_u32 v{A_AV+d}, s{S_T}, {T2}")
        a.e(f"s_sub_u32 s{S_T2}, 6144, s{S_T}")
        a.e(f"v_add_u32 v{A_AV+4+d}, s{S_T2}, {T2}")
    a.e(f"v_lshlrev_b32 {T0}, 3, v0")
    a.e(f"s_lshl_b32 s{S_T}, s{S_W}, 10")
    a.e(f"s_add_u32 s{S_T}, s{S_T}, {EB}")
    a.e(f"v_add_u32 v{A_EW}, s{S_T}, {T0}")
    a.e(f"v_xor_b32 v{A_ER}, 1024, v{A_EW}")
    a.e("v_and_b32 v28, 7, v0")
    a.e("v_lshlrev_b32 v29, 7, v28")
    a.e("v_lshlrev_b32 v28, 2, v28")
    a.e(f"s_mov_b32 s{S_CS}, {CSCALE:#x}")
    a.e(f"s_mov_b32 s{S_PER}, 0")
    stamp(a, o, 6, "start")
    W(1)
    stamp(a, o, 12, "pro")
    stamp(a, o, 7, "start")
    endstep(a, wait_for(("W", 0)))
    stamp(a, o, 8, "start")
    stamp(a, o, 1, "pro")
    a.raw("L_Apro:")
    head = list(vm)
    first = dict(s0=6, s1=3)
    classes = [(o["k0"], o["k1"])] + ([(o["k0b"], o["k1b"])] if o["k0b"] >= 0 else [])
    if len(classes) > 1:
        a.e(f"s_bitcmp1_b32 s2, {o['kbit']}")
        a.branch("s_cbranch_scc1 L_Apro1")
    for ci, (k0, k1) in enumerate(classes):
        if ci: a.label("L_Apro1")
        vm[:] = head
        W(2)
        for n in range(9):
            endstep(a, wait_for(("W", n + 1)))
            stamp(a, o, n + 2, "pro")
            if n + 3 < 10: W(n + 3)
            if n == o["kt"]: late_touches()
            if n == (o["kp"], o["kpb"])[ci]:
                a.e(f"s_mul_i32 s{S_T}, s{S_W}, {o['kpn'] * 128 - 3072}")
                a.e(f"s_add_u32 s{S_T}, s{S_T}, s{S_OV}")
                a.e(f"s_add_u32 s{S_T}, s{S_T}, 49152")
                a.e("v_lshlrev_b32 v30, 7, v0")
                for k in range(0, o["kpn"], 64):
                    m = min(64, o["kpn"] - k)
                    if m < 64: a.e(f"s_mov_b32 exec_hi, {((1 << m) - 1) >> 32}")
                    a.e(f"buffer_load_dword v{A_DUM}, v30, {sq(S_K)}, s{S_T} offen"); vm.append("t")
                    a.e(f"s_add_u32 s{S_T}, s{S_T}, 8192")
                a.e("s_mov_b64 exec, -1")
            if n == k0: K0()
            if n == k1:
                a_burst(a, o, 1, S_K, S_OK); vm.extend([("K", 2)] * 3 + [("K", 3)] * 3)
        if o["k2"]:
            a_burst(a, o, 2, S_K, S_OK); vm.extend([("K", 4)] * 3 + [("K", 5)] * 3)
        endstep(a, wait_for(("K", 0)))
        w01 = (wait_for(("K", 1)), wait_for(("K", 2)))
        first = dict(s0=min(first["s0"], wait_for(("K", 1))), s1=min(first["s1"], wait_for(("K", 2))))
        if ci == 0 and len(classes) > 1: a.branch("s_branch L_Aper")

    a.label("L_Aper")
    stamp(a, o, (1, S_PER, 4))
    for s in range(32):
        a.comment(f"A step {s}")
        if s == 16: stamp(a, o, (5, S_PER, 4))
        g_ = o["tkg"]
        if s % g_ == 0 and o["tk0"] <= s < o["tk0"] + 12 * g_: stamp(a, o, (1 + (s - o["tk0"]) // g_ - o["tkp"], S_PER, o["tkp"] + 1, o["tkp"]), "tick")
        vmw = 4 if ((s - 1) >> 1) in pf_sites(o) else 3
        bt = []
        if s == 0:
            a.e(f"s_cmp_eq_u32 s{S_PER}, 0")
            a.branch("s_cbranch_scc1 L_A0")
            a_burst(a, o, 1, S_K, S_OK)
            a.label("L_A0")
            for ks in range(6):
                for t in a_qread(ks): a.e(t)
            vmw = 6 if o["k2"] else min(6, first["s0"])
        elif s == 1:
            vmw = 3 if o["k2"] else min(3, first["s1"])
        elif s == 30:
            a.e(f"s_cmp_eq_u32 s{S_PER}, 3")
            a.branch("s_cbranch_scc1 L_A30")
            a_burst(a, o, 0, S_K, S_OK)
            a.label("L_A30")
            vmw = 6
        elif s % 2 == 0:
            vmw = 6
            D = ((s >> 1) + 1) & 1
            bt = rec(a_burst, o, D, *((S_K, S_OK) if s < 14 else (S_V, S_OV)), s in (12, 28))
            if (s >> 1) in pf_sites(o):
                high = (s >> 1) % 2 == 0
                bt.append(f"s_lshl_b32 s{S_T}, s{S_PER}, 4")
                bt.append(f"s_add_u32 s{S_T}, s{S_T}, {s>>1}")
                bt.append(f"s_bitcmp1_b64 s[{S_PFM}:{S_PFM+1}], s{S_T}")
                bt.append(f"s_cselect_b32 s{S_T}, s{S_PFO}, {OOB}")
                if high: bt.append(f"s_cselect_b32 s{S_T2}, s{S_PFS}, 0")
                bt.append(f"s_mov_b32 {'exec_lo' if high else 'exec_hi'}, 0")
                bt.append(f"buffer_load_dword v{A_DUM}, v{A_PF}, {sq(S_PF)}, s{S_T} offen{pp}")
                bt.append("s_mov_b64 exec, -1")
                if high: bt.append(f"s_add_u32 s{S_PFO}, s{S_PFO}, s{S_T2}")
                vmw = 7
            if o["k2"] and s == 2:
                nb_ = max(i for i, t in enumerate(bt) if t.startswith("buffer_load_dwordx4")) + 2
                a.e(f"s_cmp_eq_u32 s{S_PER}, 0")
                a.branch("s_cbranch_scc1 L_A2")
                for t in bt[:nb_]: a.e(t)
                a.label("L_A2")
                bt = bt[nb_:]
            if o["adma"] == 0 and not (s == 16 and o["t16"]) and not (s > 16 and o["vweave"]):
                for t in bt: a.e(t)
                bt = []
            if o["k2"] and s in (4, 6):
                a.e(f"s_cmp_eq_u32 s{S_PER}, 0")
                a.e(f"s_cselect_b32 s{S_T}, {WB}, 0")
                for k in range(2): a.e(f"{'v_add_u32' if s == 4 else 'v_subrev_u32'} v{A_AK+k}, s{S_T}, v{A_AK+k}")
        if s == 5:
            a.comment("the entry reads have landed: count this workgroup in (d_debug word of the group)")
            a.e(f"s_and_b32 s{S_T}, s{S_HG}, 3")
            a.e(f"s_xor_b32 s{S_T}, s{S_T}, s{S_PER}")
            a.e(f"s_or_b32 s{S_T}, s{S_T}, s{S_W}")
            a.branch("s_cbranch_scc1 L_sy1")
            a.e("s_lshl_b32 s45, s44, 3")
            a.e(f"v_mov_b32 v{A_T0}, s45")
            a.e(f"v_mov_b32 v{A_T1}, 1")
            a.e("s_mov_b64 exec, 1")
            a.e(f"buffer_atomic_add v{A_T1}, v{A_T0}, {sq(S_DBG)}, 0 offen")
            a.e("s_mov_b64 exec, -1")
            a.label("L_sy1")
        if o["pdma"] == 3 and s % 2: bt = ["s_barrier"]
        if s in (1, 2):
            ow = sum((a_owrite(i) for i in (range(o["ows"]) if s == 1 else range(o["ows"], 6))), [])
            if o["owf"]: a_kstep(a, o, s, ow, pre=bt)
            else:
                a_kstep(a, o, s, pre=bt)
                for t in ow: a.e(t)
        elif s < 16: a_kstep(a, o, s, pre=bt)
        else: a_vstep(a, o, s - 16, pre=bt)
        if s == 30:
            a.e(f"s_cmp_eq_u32 s{S_PER}, 3")
            a.branch("s_cbranch_scc0 L_A30j")
            a.e("s_waitcnt vmcnt(0)")
            a.label("L_A30j")
        if o["stamps"] == 7 and s in (0, 1, 2, 3):
            stamp(a, o, (1 + 3 * s - 1, S_PER, 2, 1), "s1")
            a.e(f"s_waitcnt vmcnt({vmw})")
            stamp(a, o, (2 + 3 * s - 1, S_PER, 2, 1), "s1")
            a.e("s_barrier")
            stamp(a, o, (3 + 3 * s - 1, S_PER, 2, 1), "s1")
            continue
        if o["k2"] and s < 2:
            a.e(f"s_cmp_eq_u32 s{S_PER}, 0")
            a.branch(f"s_cbranch_scc1 L_Aw{s}")
            a.e(f"s_waitcnt vmcnt({vmw})")
            a.label(f"L_Aw{s}")
            vmw = w01[s]
        endstep(a, vmw + o["kvx"])
    a.e(f"s_add_u32 s{S_PER}, s{S_PER}, 1")
    a.e(f"s_cmp_lt_u32 s{S_PER}, 4")
    a.branch("s_cbranch_scc1 L_Aper")
    a.label("L_Aend")
    stamp(a, o, 9)
    stamp(a, o, 1, "tail")
    tail_offsets(a, 128, S_MK, S_OK, "v0", (T0, T1))
    tail_tile(a, o, 128, S_MK, S_OK, 4)
    stamp(a, o, 2, "tail")
    for p in range(4):
        a.e(f"s_waitcnt vmcnt({6 if p in (1, 2) else 0})")
        a.e("s_barrier")
        stamp(a, o, p + 3, "tail")
        for n in ([5, 6], [7, 8], [9], [])[p]: tail_tile(a, o, 128, S_MK, S_OK, n)
    a.e(f"s_cmp_lg_u32 s{S_W}, 0")
    a.branch("s_cbranch_scc1 L_red")
    a.e("s_lshl_b32 s45, s44, 3")
    a.e("v_mov_b32 v28, s45")
    spin(a, "in", f"buffer_load_dword v29, v28, {sq(S_DBG)}, 0 offen sc1", ["v_readfirstlane_b32 s41, v29", "s_cmp_ge_u32 s41, 8"])
    a.e("v_lshlrev_b32 v28, 2, v0")
    a.e(f"v_add_u32 v28, {EB}, v28")
    a.e(f"ds_write_b32 v28, v{A_FI}")
    a.e("v_mov_b32 v29, 0")
    a.e("ds_write_b32 v28, v29 offset:256")


def reduce_chunk(a, o, k, base):
    a.e(f"s_lshl_b32 s41, s{k}, 10")
    a.e(f"s_add_u32 s41, s41, {WB}")
    a.e(f"v_add_u32 v3, s41, v1")
    a.e(f"v_add_u32 v6, 40960, v3")
    for i in range(8):
        a.e(f"ds_read_b128 {v(base+4*i,4)}, v{3 if i < 4 else 6} offset:{(i&3)*10240}")
    a.e(f"s_mul_i32 s43, s{S_HG}, 10")
    a.e(f"s_add_u32 s43, s43, s{k}")
    a.e("s_and_b32 s41, s43, 1")
    a.e("s_lshl_b32 s41, s41, 5")
    a.e("s_lshr_b32 s43, s43, 1")
    a.e(f"s_lshl_b32 s42, s{S_B}, 6")
    a.e("s_add_u32 s42, s42, s41")
    a.e("s_mul_i32 s42, s42, 2560")
    a.e(f"s_mul_i32 s41, s{S_BR}, 1280")
    a.e("s_add_u32 s42, s42, s41")
    a.e("s_lshl_b32 s43, s43, 5")
    a.e("s_add_u32 s42, s42, s43")
    ac = base + 32
    for i in range(8):
        for n in range(4):
            r = base + 4 * i + n
            if i == 0:
                a.e(f"v_lshlrev_b32 v{ac+2*n}, 16, v{r}")
                a.e(f"v_and_b32 v{ac+1+2*n}, 0xffff0000, v{r}")
            elif o["dot"]:
                a.e(f"v_dot2_f32_bf16 v{ac+2*n}, v{r}, s40, v{ac+2*n}")
                a.e(f"v_dot2_f32_bf16 v{ac+1+2*n}, v{r}, s47, v{ac+1+2*n}")
            else:
                a.e(f"v_lshlrev_b32 v4, 16, v{r}")
                a.e(f"v_and_b32 v5, 0xffff0000, v{r}")
                a.e(f"v_add_f32 v{ac+2*n}, v{ac+2*n}, v4")
                a.e(f"v_add_f32 v{ac+2*n+1}, v{ac+2*n+1}, v5")
    if o["dot"]: a.e("s_nop 2")
    for n in range(4): a.e(f"v_cvt_pk_bf16_f32 v{base+n}, v{ac+2*n}, v{ac+1+2*n}")
    a.e(f"buffer_store_dwordx4 {v(base,4)}, v2, {sq(S_OUT)}, s42 offen{pol(o['outpol'])}")


def gen_tail(a, o):
    a.label("L_red")
    lane_id(a, 0)
    a.e(f"s_lshl_b32 s44, s{S_BR}, 4")
    a.e(f"s_add_u32 s44, s44, s{S_B}")
    a.e("s_lshl_b32 s45, s44, 10")
    a.e(f"s_add_u32 s45, s45, {FLAGS}")
    a.e(f"s_lshl_b32 s46, s{S_HG}, 7")
    a.e("s_add_u32 s46, s46, s45")
    a.e(f"s_lshl_b32 s40, s{S_WAVE}, 2")
    a.e(f"s_add_u32 s40, s40, {EB}")
    a.e("v_mov_b32 v3, s40")
    a.e("v_and_b32 v28, 7, v0")
    a.e("v_lshlrev_b32 v29, 7, v28")
    a.e("v_lshlrev_b32 v1, 4, v0")
    a.e("v_lshlrev_b32 v28, 2, v28")
    a.e(f"s_cmp_lg_u32 s{S_WAVE}, 4")
    a.e("s_barrier")
    a.branch("s_cbranch_scc1 L_go")
    stamp(a, o, 10)
    a.e(f"v_add_u32 v{A_FO}, 1, v{A_FO}")
    a.e("s_mov_b64 exec, 0xff")
    a.e(f"buffer_store_dword v{A_FO}, v29, {sq(S_WS)}, s47 offen sc1")
    a.e("s_mov_b64 exec, -1")
    a.label("L_go")
    a.e(f"s_cmp_eq_u32 s{S_WAVE}, s{S_HG}")
    a.branch("s_cbranch_scc0 L_fetch")
    a.e(f"v_add_u32 v5, {EB}, v28")
    a.e("ds_read_b32 v4, v5")
    a.e("s_mov_b64 exec, 0xff")
    spin(a, "poll", f"buffer_load_dword v30, v28, {sq(S_WS)}, s46 offen sc1",
         ["v_cmp_ne_u32 vcc, v30, v4", "v_cndmask_b32 v6, 0, 1, vcc", "ds_write_b32 v5, v6 offset:256",
          f"s_bitset1_b32 vcc_lo, s{S_HG}", "s_cmp_eq_u32 vcc_lo, 0xff"], o["nap"])
    a.e("s_mov_b64 exec, -1")
    a.branch("s_branch L_staged")
    a.label("L_fetch")
    a.e("s_lshl_b32 s45, s44, 3")
    a.e(f"s_add_u32 s45, s45, s{S_WAVE}")
    a.e("s_mul_i32 s45, s45, 81920")
    a.e(f"s_mul_i32 s43, s{S_HG}, 10240")
    a.e("s_add_u32 s45, s45, s43")
    a.e(f"s_mul_i32 s43, s{S_WAVE}, 10240")
    a.e(f"s_add_u32 s43, s43, {WB}")
    spin(a, "seen", "ds_read_b32 v4, v3 offset:256", ["v_readfirstlane_b32 s41, v4", "s_cmp_lg_u32 s41, 0"], 1, 0x400000)
    a.e("v_add_u32 v3, s43, v1")
    for k in range(10):
        a.e(f"buffer_load_dwordx4 {v(8+4*k,4)}, v1, {sq(S_WS)}, s45 offen offset:{(k&3)*1024}{pol(o['ldpol'])}")
        if k & 3 == 3: a.e("s_add_u32 s45, s45, 4096")
    for k in range(10):
        a.e(f"s_waitcnt vmcnt({9-k})")
        a.e(f"ds_write_b128 v3, {v(8+4*k,4)} offset:{k*1024}")
    a.label("L_staged")
    a.e("v_and_b32 v2, 31, v0")
    a.e("v_mul_u32_u24 v2, 2560, v2")
    a.e("v_lshrrev_b32 v3, 5, v0")
    a.e("v_lshl_add_u32 v2, v3, 4, v2")
    a.e(f"s_mov_b32 s45, s{S_WAVE}")
    a.e("s_mov_b32 s40, 0x3f80")
    a.e("s_mov_b32 s47, 0x3f800000")
    a.e("s_barrier")
    stamp(a, o, 11)
    reduce_chunk(a, o, 45, 8)
    a.e(f"s_cmp_lt_u32 s{S_WAVE}, 2")
    a.branch("s_cbranch_scc0 L_fin")
    a.e("s_add_u32 s45, s45, 8")
    reduce_chunk(a, o, 45, 48)


def gen_main(a, o):
    a.raw(f".globl {KN}\n.p2align 8\n.type {KN},@function\n{KN}:")
    a.e(f"s_cmp_ge_u32 s2, {o['nact']}")
    a.e("s_cbranch_scc1 L_end")
    if o["dbgt"]: a.e("s_memrealtime s[90:91]")
    if o["stamps"]:
        a.e("s_memrealtime s[90:91]")
        a.e("s_memtime s[86:87]")
    a.e("s_load_dwordx2 s[34:35], s[0:1], 96")
    a.e("s_load_dwordx4 s[64:67], s[0:1], 80")
    a.e("s_and_b32 s3, s2, 7")
    a.e("s_lshr_b32 s5, s3, 2")
    a.e("s_mul_i32 s32, s5, 40")
    a.e("s_add_u32 s0, s0, s32")
    a.e("s_addc_u32 s1, s1, 0")
    a.e("s_load_dwordx4 s[44:47], s[0:1], 24")
    a.e("s_load_dwordx2 s[36:37], s[0:1], 0")
    a.e("s_load_dwordx4 s[40:43], s[0:1], 8")
    a.e("v_lshrrev_b32 v1, 6, v0")
    a.e("v_and_b32 v0, 63, v0")
    a.e("v_readfirstlane_b32 s32, v1")
    a.e("s_lshr_b32 s4, s2, 3")
    a.e("s_and_b32 s7, s4, 15")
    a.e("s_lshr_b32 s4, s4, 4")
    a.e("s_and_b32 s6, s3, 3")
    a.e("s_lshl_b32 s6, s6, 1")
    a.e("s_add_u32 s6, s6, s4")
    if o["stamps"] >= 2:
        a.e("s_waitcnt lgkmcnt(0)")
        for i in range(16): a.e(f"s_mov_b32 s{70+i}, s90")
        stamp(a, o, 1, "start")
    entry_touches(a, o)
    stamp(a, o, 9, "start")
    a.e("s_and_b32 s33, s32, 3")
    a.e("s_cmp_lt_u32 s32, 4")
    a.branch("s_cbranch_scc1 L_P")
    gen_A(a, o)
    gen_tail(a, o)
    a.label("L_fin")
    if o["dbgt"] == 2:
        a.comment("diagnostic build: doubles the in-kernel span so that launch overhead and span can be separated")
        a.e("s_memrealtime s[92:93]")
        a.e("s_waitcnt lgkmcnt(0)")
        a.e("s_sub_u32 s94, s92, s90")
        a.e("s_min_u32 s94, s94, 20000")
        a.label("L_dbl")
        a.e("s_memrealtime s[90:91]")
        a.e("s_waitcnt lgkmcnt(0)")
        a.e("s_sub_u32 s95, s90, s92")
        a.e("s_cmp_lt_u32 s95, s94")
        a.branch("s_cbranch_scc1 L_dbl")
    if o["dbgt"] == 1:
        a.e("s_memrealtime s[92:93]")
        a.e("s_waitcnt lgkmcnt(0)")
        a.e("s_sub_u32 s92, s92, s90")
        a.e("s_lshl_b32 s40, s2, 3"); a.e("s_add_u32 s40, s40, 4")
        a.e("s_cmp_eq_u32 s32, 0"); a.e(f"s_cselect_b32 s40, s40, {OOB}")
        a.e("v_mov_b32 v4, s92"); a.e("v_mov_b32 v1, 0")
        a.e("s_mov_b64 exec, 1")
        a.e(f"buffer_store_dword v4, v1, {sq(S_DBG)}, s40 offen")
    if o["stamps"]:
        a.e("s_memrealtime s[92:93]")
        a.e("s_memtime s[88:89]")
        a.e("s_waitcnt lgkmcnt(0)")
        a.e("s_sub_u32 s85, s88, s86")
        a.e("s_getreg_b32 s84, hwreg(HW_REG_XCC_ID, 0, 4)")
        a.e("s_getreg_b32 s83, hwreg(HW_REG_HW_ID)")
        a.e("v_mov_b32 v4, s90"); a.e("v_mov_b32 v5, s91"); a.e("v_mov_b32 v6, s92"); a.e("v_mov_b32 v7, s93")
        a.e("s_lshl_b32 s40, s2, 3"); a.e("s_add_u32 s40, s40, s32"); a.e("s_lshl_b32 s40, s40, 4")
        a.e("s_add_u32 s40, s40, 0x2000000")
        a.e("v_mov_b32 v1, 0")
        a.e(f"buffer_store_dwordx4 v[4:7], v1, {sq(S_WS)}, s40 offen")
        if o["stamps"] >= 2:
            a.e("s_lshl_b32 s40, s2, 3"); a.e("s_add_u32 s40, s40, s32"); a.e("s_lshl_b32 s40, s40, 6")
            a.e("s_add_u32 s40, s40, 0x2100000")
            for k in range(4):
                for i in range(4): a.e(f"v_mov_b32 v{8+4*k+i}, s{70+4*k+i}")
                a.e(f"buffer_store_dwordx4 v[{8+4*k}:{11+4*k}], v1, {sq(S_WS)}, s40 offen offset:{16*k}")
    a.e("s_endpgm")
    gen_P(a, o)
    a.label("L_end")
    a.e("s_endpgm")


def droppings(t, d):
    keep = []; cnt = cnt2 = cnt3 = 0; role = ""
    for l in t.split("\n"):
        if l.startswith(("L_PQa", "L_PO:", "L_PQb")): role = "P"
        if l.startswith(("L_Ptail", "L_Aend", "L_Pcyc")): role = ""
        if l.startswith("L_Aper"): role = "A"
        if l.startswith("L_Ppro"): role = "p"
        if l.startswith("L_Apro"): role = "a"
        if "x" in d and role == "p" and l.strip().startswith(("v_", "ds_")): continue
        if "y" in d and role == "a" and l.strip().startswith("buffer_load_dwordx4") and "s[8:11]" not in l: continue
        if "z" in d and role == "a" and l.strip().startswith("buffer_load_dwordx4") and "s[8:11]" in l: continue
        x = l.strip()
        if "k" in d and role == "A" and x.startswith("buffer_load"): continue
        if "w" in d and role == "P" and x.startswith("buffer_load"): continue
        if "a" in d and role == "A" and x.startswith(("v_", "ds_")) and not x.startswith("v_mov_b32"): continue
        if "p" in d and role == "P" and x.startswith(("v_", "ds_")): continue
        if "m" in d and role in ("A", "P") and x.startswith("v_mfma"): continue
        if "r" in d and role in ("A", "P") and x.startswith("ds_read"): continue
        if "h" in d and role == "A" and x.startswith("ds_read"):
            cnt += 1
            if (cnt // (2 if "tr" in x else 1)) % 2: continue
        if "g" in d and role == "P" and x.startswith("ds_read_b64_tr"):
            cnt2 += 1
            if (cnt2 // 2) % 2: continue
        if "T" in d and x.startswith("buffer_store_dwordx4") and "s[28:31]" in x and "sc1" in x: continue
        if "L" in d and x.startswith("buffer_load_dwordx4") and "s[28:31]" in x: continue
        if "v" in d and role == "A" and x.startswith(("v_exp", "v_fma", "v_add_f32", "v_max3")): continue
        if "A" in d and role == "A" and x.startswith("v_mfma"): continue
        if "P" in d and role == "P" and x.startswith("v_mfma"): continue
        if ("s" in d or "S" in d) and role == "P" and x.startswith("v_mfma_f32_32x32x16"):
            m = re.match(r"v_mfma_f32_32x32x16_bf16 v\[(\d+):\d+\], (v\[\d+:\d+\]), (v\[\d+:\d+\]), (.*)", x)
            cnt3 += 1
            for k in range(2):
                b = int(m.group(1)) + 4 * k + 8 * (cnt3 & 1)
                bo = m.group(3) if (k == 0 or "S" not in d) else {"v[16:19]": "v[20:23]", "v[20:23]": "v[16:19]"}[m.group(3)]
                keep.append(f"    v_mfma_f32_16x16x32_bf16 v[{b}:{b+3}], {m.group(2)}, {bo}, v[{b}:{b+3}]")
            continue
        keep.append(l)
    return "\n".join(keep)


HEADER = """; Fused Q-projection / attention / O-projection for both branches in one launch.
; Workgroup = (branch, batch, group of 4 heads); ids with equal id % 8 share the weight slices.
;   waves 4-7: attention. K/V stream through a 4-tile LDS ring (LDS-DMA, 32 keys per step); S^T = K Q^T is kept
;   waves 0-3: projections. wq/x and wo stream through a second ring; Q for the next head and the running
; stores, per-consumer hand-off words compared with their value on entry) and each reduces one column slice."""


def gen(**kw):
    o = dict(DEFAULTS); o.update(kw)
    a = Asm()
    if o["stamps"]: a.raw(f"; stamps={8*o['nact']} @0x2000000")
    a.raw(f"; @launch grid=(256,1,1) block=(512,1,1) lds={LDS}")
    a.raw(HEADER)
    a.raw('.amdgcn_target "amdgcn-amd-amdhsa--gfx950"\n.text')
    gen_main(a, o)
    a.raw(f""".section .rodata,"a"
.p2align 6
.amdhsa_kernel {KN}
  .amdhsa_next_free_vgpr 256
  .amdhsa_next_free_sgpr 102
  .amdhsa_accum_offset 256
  .amdhsa_group_segment_fixed_size 0
  .amdhsa_kernarg_size 104
  .amdhsa_user_sgpr_count 2
  .amdhsa_user_sgpr_kernarg_segment_ptr 1
  .amdhsa_system_sgpr_workgroup_id_x 1
.end_amdhsa_kernel""")
    t = a.text()
    return droppings(t, o["drop"]) if o["drop"] else t


if __name__ == "__main__":
    out = sys.argv[1]
    kw = {}
    for x in sys.argv[2:]:
        k, val = x.split("=")
        kw[k] = int(val) if val.lstrip("-").isdigit() else val.replace("+", " ")
    open(out, "w").write(gen(**kw))
```

```python
import sys, math, struct, re
from asmlib import Asm

NAME = "concat_heads__gqa_block_cached__gqa_block_cached__near_ridge"
KN = NAME + "_kernel"
WB, XB, EB, LDS = 49152, 131072, 155648, 163840
KV_BYTES, W_BYTES, X_BYTES, OUT_BYTES, WS_BYTES = 100663296, 7864320, 1310720, 2621440, 64 << 20
OOB = 0x40000000
FLAGS = 0x1800000
CSCALE = struct.unpack("<I", struct.pack("<f", math.log2(math.e) / math.sqrt(192.0)))[0]

DEFAULTS = dict(kvpol="nt", wpol="", pfpol="", xpol="", stpol="sc1", ldpol="sc1", outpol="", stamps=0, prio=0,
                adepth=8, pq=12, po=9, pdma=5, drop="", nact=256, k0=5, k1=7, k0b=-1, k1b=7, kbit=3, kt=7, kp=-1, kpb=-1, kpn=48, prod=12, codepf=0, pfa=5, pfo=9, pfb=4, kvx=0, warm=65536, xbar=11, vspan=9, adma=0, sprio=0, nap=4, tst=1, rot=0, kord=1, dbgt=0, tk0=0, tkp=0, tkg=2, ows=3, owf=1, t16=2, vweave=0, tx=1, dot=1, tq=1, psplit=2, kvw=3, k2=0)

S_HALF, S_BR, S_HG, S_B = 4, 5, 6, 7
S_K, S_V, S_WQ, S_WO, S_XI, S_WS, S_OUT = 8, 12, 16, 20, 24, 28, 64
S_WAVE, S_W, S_DBG, S_T, S_T2 = 32, 33, 36, 57, 59


def v(a, n=1):
    return f"v{a}" if n == 1 else f"v[{a}:{a+n-1}]"


def sq(a):
    return f"s[{a}:{a+3}]"


def pol(s):
    return (" " + s) if s else ""


class Rec:
    def __init__(self): self.t = []
    def e(self, x): self.t.append(x)


def rec(fn, *args):
    r = Rec(); fn(r, *args); return r.t


def srd(a, base, src, size):
    if src != base: a.e(f"s_mov_b32 s{base}, s{src}")
    a.e(f"s_and_b32 s{base+1}, s{src+1}, 0xffff")
    a.e(f"s_mov_b32 s{base+2}, {size}")
    a.e(f"s_mov_b32 s{base+3}, 0x20000")


def entry_touches(a, o):
    pp = pol(o["pfpol"])
    a.e(f"s_lshl_b32 s{S_T}, s{S_WAVE}, 4")
    a.e(f"v_add_u32 v2, s{S_T}, v0")
    a.e("v_mul_u32_u24 v3, 21846, v2")
    a.e("v_mul_u32_u24 v6, 1280, v0")
    a.e("v_lshrrev_b32 v3, 16, v3")
    a.e(f"v_mul_u32_u24 v7, {o['warm']}, v0")
    a.e("v_mul_u32_u24 v4, 3, v3")
    a.e("v_mul_u32_u24 v3, 12288, v3")
    a.e("v_sub_u32 v4, v2, v4")
    a.e(f"s_mul_i32 s48, s{S_B}, {40*12288}")
    a.e("v_lshl_add_u32 v3, v4, 7, v3")
    a.e(f"s_mul_i32 s{S_T}, s{S_HG}, 1536")
    a.e(f"s_add_u32 s48, s48, s{S_T}")
    a.e(f"s_cmp_eq_u32 s{S_WAVE}, 7")
    a.e("s_cselect_b32 s49, 8, 16")
    a.e("s_bfm_b32 s49, s49, 0")
    a.e(f"s_mul_i32 s50, s{S_B}, 81920")
    a.e(f"s_lshl_b32 s51, s{S_B}, 3"); a.e(f"s_add_u32 s51, s51, s{S_HG}")
    a.e(f"s_mul_i32 s51, s51, 786432")
    a.e(f"s_cmp_eq_u32 s{S_WAVE}, 0"); a.e(f"s_cselect_b32 s50, s50, {OOB}")
    a.e(f"s_cmp_eq_u32 s{S_WAVE}, {1 if o['kvw'] & 1 else 9}"); a.e(f"s_cselect_b32 s52, s51, {OOB}")
    a.e(f"s_cmp_eq_u32 s{S_WAVE}, {2 if o['kvw'] & 2 else 9}"); a.e(f"s_cselect_b32 s53, s51, {OOB}")
    a.e("s_mov_b32 exec_hi, 0")
    a.e("s_mov_b32 exec_lo, s49")
    a.e("s_waitcnt lgkmcnt(0)")
    srd(a, S_WQ, 44, W_BYTES)
    a.e(f"buffer_load_dword v255, v3, {sq(S_WQ)}, s48 offen{pp}")
    a.e("s_mov_b64 exec, -1")
    srd(a, S_XI, 36, X_BYTES)
    a.e(f"buffer_load_dword v255, v6, {sq(S_XI)}, s50 offen{pp}")
    a.e(f"s_mov_b64 exec, {(1 << (786432 // o['warm'])) - 1}")
    srd(a, S_K, 40, KV_BYTES)
    a.e(f"buffer_load_dword v255, v7, {sq(S_K)}, s52 offen nt")
    srd(a, S_V, 42, KV_BYTES)
    a.e(f"buffer_load_dword v255, v7, {sq(S_V)}, s53 offen nt")
    a.e("s_mov_b64 exec, -1")
    srd(a, S_WO, 46, W_BYTES); srd(a, S_WS, 34, WS_BYTES)
    srd(a, S_DBG, 66, 256)
    srd(a, S_OUT, 64, OUT_BYTES)


def pipe(a, reads, mfmas, fill, depth, span=None, skip=0):
    n = len(mfmas)
    span = span or n
    for i in range(min(depth, n)):
        for t in reads[i]: a.e(t)
    done = 0
    for i in range(n):
        for t in ([mfmas[i]] if isinstance(mfmas[i], str) else mfmas[i]): a.e(t)
        if i + depth < n:
            for t in reads[i + depth]: a.e(t)
        upto = len(fill) * max(min(i + 1, span) - skip, 0) // (span - skip)
        for t in fill[done:upto]: a.e(t)
        done = upto


def interleave(a, chains):
    for i in range(max(map(len, chains))):
        for c in chains:
            if i < len(c): a.e(c[i])


def div24(a, dst_row, dst_rem, src, tmp):
    a.e(f"v_mul_u32_u24 {tmp}, 2731, {src}")
    a.e(f"v_lshrrev_b32 {dst_row}, 16, {tmp}")
    a.e(f"v_mul_u32_u24 {tmp}, 24, {dst_row}")
    a.e(f"v_sub_u32 {dst_rem}, {src}, {tmp}")


def stamp(a, o, k, tag=''):
    if {2: "", 3: "pro", 4: "tail", 5: "start", 6: "tick", 7: "s1"}.get(o["stamps"]) != tag: return
    a.e("s_waitcnt lgkmcnt(0)")
    a.e("s_memrealtime s[94:95]")
    a.e("s_waitcnt lgkmcnt(0)")
    if isinstance(k, int): a.e(f"s_mov_b32 s{70+k}, s94")
    else:
        base, reg, n = k[:3]
        for i in range(k[3] if len(k) > 3 else 0, n):
            a.e(f"s_cmp_eq_u32 s{reg}, {i}")
            a.e(f"s_cselect_b32 s{70+base+i}, s94, s{70+base+i}")


def endstep(a, vm=None):
    a.e("s_waitcnt lgkmcnt(0)" if vm is None else f"s_waitcnt vmcnt({vm}) lgkmcnt(0)")
    a.e("s_barrier")


def idle(a, tag, n):
    if n <= 2:
        for _ in range(n): a.e("s_barrier")
        return
    a.e(f"s_mov_b32 s{S_T}, {n}")
    a.label(f"L_{tag}")
    a.e("s_barrier")
    a.e(f"s_sub_u32 s{S_T}, s{S_T}, 1")
    a.e(f"s_cmp_lg_u32 s{S_T}, 0")
    a.branch(f"s_cbranch_scc1 L_{tag}")


def idle_steps(a, o, tag, r0, r1):
    n = sum(1 + (r == 17) + (o["pdma"] == 3 and r % 2 == 0) for r in range(r0, r1))
    idle(a, tag, n)


def lane_id(a, r):
    a.e(f"v_mbcnt_lo_u32_b32 v{r}, -1, 0")
    a.e(f"v_mbcnt_hi_u32_b32 v{r}, -1, v{r}")


def dma_offsets_q(a, vq, vx, t):
    chains = []
    for j in range(3):
        r = Rec()
        T0, T1, T2, T3 = (f"v{t+4*j+k}" for k in range(4))
        r.e(f"v_add_u32 {T0}, {64*j}, v0")
        div24(r, T1, T2, T0, T3)
        r.e(f"v_and_or_b32 {T3}, {T1}, 2, s{S_T}")
        r.e(f"v_xor_b32 {T2}, {T2}, {T3}")
        r.e(f"v_mul_u32_u24 {T1}, 12288, {T1}")
        r.e(f"v_lshl_add_u32 {T1}, {T2}, 4, {T1}")
        r.e(f"v_subrev_u32 v{vq+j}, {1024*j}, {T1}")
        chains.append(r.t)
    T0, T1 = f"v{t+12}", f"v{t+13}"
    a.e(f"s_and_b32 s{S_T}, s{S_W}, 1")
    a.e(f"s_lshl_b32 s{S_T}, s{S_T}, 2")
    chains.append([f"v_lshrrev_b32 {T0}, 3, v0", f"v_and_b32 {T0}, 6, {T0}", f"v_and_b32 {T1}, 7, v0",
                   f"v_xor_b32 {T0}, {T0}, {T1}", f"v_lshrrev_b32 {T1}, 3, v0", f"v_mul_u32_u24 {T1}, 1280, {T1}",
                   f"v_lshl_add_u32 v{vx}, {T0}, 4, {T1}"])
    interleave(a, chains)


def wq_share(a, dst, T0, T1, T2):
    a.e(f"s_and_b32 s{S_T}, s{S_W}, 1")
    a.e(f"s_lshl_b32 s{S_T}, s{S_T}, 6")
    a.e(f"v_add_u32 {T0}, s{S_T}, v0")
    a.e(f"v_mul_u32_u24 {T1}, 21846, {T0}")
    a.e(f"v_lshrrev_b32 {T1}, 16, {T1}")
    a.e(f"v_mul_u32_u24 {T2}, 3, {T1}")
    a.e(f"v_sub_u32 {T2}, {T0}, {T2}")
    a.e(f"v_mul_u32_u24 {T1}, 12288, {T1}")
    a.e(f"v_lshl_add_u32 {dst}, {T2}, 7, {T1}")


def scalars_q(a, mq, mx, oq, ox, head):
    a.e(f"s_mul_i32 s{mq}, s{S_W}, 3072")
    a.e(f"s_lshl_b32 s{mx}, s{S_W}, 10")
    a.e(f"s_mul_i32 s{oq}, s{S_HG}, 1536")
    a.e(f"s_mul_i32 s{S_T}, s{S_W}, {8*12288}")
    a.e(f"s_add_u32 s{oq}, s{oq}, s{S_T}")
    if head: a.e(f"s_add_u32 s{oq}, s{oq}, {384*head}")
    a.e(f"s_mul_i32 s{ox}, s{S_B}, 81920")
    a.e(f"s_mul_i32 s{S_T}, s{S_W}, {8*1280}")
    a.e(f"s_add_u32 s{ox}, s{ox}, s{S_T}")


def burst_q(a, o, R, la, lx, lb):
    vq, vx, mq, mx, oq, ox = R
    wp, xp = pol(o["wpol"]), pol(o["xpol"])
    a.e(f"s_add_u32 m0, s{mq}, {la}")
    a.e(f"s_add_u32 s{S_T}, s{ox}, {32*1280}")
    for j in range(3):
        a.e(f"buffer_load_dwordx4 v{vq+j}, {sq(S_WQ)}, s{oq} offen offset:{1024*j}{wp} lds")
    a.e(f"s_add_u32 m0, s{mx}, {lx}")
    a.e(f"s_add_u32 s{oq}, s{oq}, {32*12288}")
    a.e(f"buffer_load_dwordx4 v{vx}, {sq(S_XI)}, s{ox} offen{xp} lds")
    a.e(f"s_add_u32 m0, s{mx}, {lx+4096}")
    a.e(f"s_add_u32 s{ox}, s{ox}, 128")
    a.e(f"buffer_load_dwordx4 v{vx}, {sq(S_XI)}, s{S_T} offen{xp} lds")
    a.e(f"s_add_u32 m0, s{mq}, {lb}")
    a.e("s_nop 0")
    for j in range(3):
        a.e(f"buffer_load_dwordx4 v{vq+j}, {sq(S_WQ)}, s{oq} offen offset:{1024*j}{wp} lds")
    a.e(f"s_add_u32 s{oq}, s{oq}, {32*12288}")


def tail_slot(n):
    k = n % 5
    return WB + k * 24576 if k < 3 else (k - 3) * 24576


def tail_offsets(a, vt, mt, ot, lane, T):
    T0, T1 = T
    a.e(f"v_lshrrev_b32 {T0}, 3, {lane}")
    a.e(f"v_and_b32 {T0}, 2, {T0}")
    a.e(f"v_and_b32 {T1}, 7, {lane}")
    a.e(f"v_xor_b32 {T0}, {T0}, {T1}")
    a.e(f"v_lshrrev_b32 {T1}, 3, {lane}")
    a.e(f"v_mul_u32_u24 {T1}, 1280, {T1}")
    a.e(f"v_lshl_add_u32 v{vt}, {T0}, 4, {T1}")
    a.e(f"v_xor_b32 v{vt+1}, 64, v{vt}")
    a.e(f"s_mul_i32 s{mt}, s{S_W}, 6144")
    a.e(f"s_mul_i32 s{ot}, s{S_HG}, {4*245760}")
    a.e(f"s_mul_i32 s{S_T2}, s{S_W}, {48*1280}")
    a.e(f"s_add_u32 s{ot}, s{ot}, s{S_T2}")
    a.e(f"s_add_u32 s{ot}, s{ot}, {3*245760}")


def tail_tile(a, o, vt, mt, ot, n):
    for j in range(6):
        a.e(f"s_add_u32 m0, s{mt}, {tail_slot(n) + 1024*j}")
        a.e(f"s_add_u32 s{S_T2}, s{ot}, {128*n + 8*1280*j}")
        a.e(f"buffer_load_dwordx4 v{vt+(j&1)}, {sq(S_WO)}, s{S_T2} offen{pol(o['wpol'])} lds")


PRO_W, PRO_X = 24576, 122880
PRO_XO = (8192, 16384, 0, 32768)


PY, PQ, PFA, PFB = 96, 48, 36, 20
P_T0, P_VQ, P_VX, P_VO, P_AQ, P_AW, P_AX, P_AO, P_T1, P_QW, P_DUM = 0, 1, 4, 5, 10, 13, 15, 16, 17, 18, 19
S_C, S_MQ, S_MX, S_MO, S_OQ, S_OX, S_OO, S_P, S_OWN = 50, 51, 52, 53, 54, 55, 56, 58, 49
PR = (P_VQ, P_VX, S_MQ, S_MX, S_OQ, S_OX)


def p_burst_q(a, o, D):
    b = WB + D * 40960
    burst_q(a, o, PR, b, b + 32768, b + 20480)
    return 8


def p_burst_o(a, o, D):
    wp = pol(o["wpol"])
    for h in range(2):
        b = WB + D * 40960 + h * 20480
        a.e(f"s_add_u32 m0, s{S_MO}, {b}")
        a.e(f"s_add_u32 s{S_T}, s{S_OO}, 4096")
        for j in range(4):
            a.e(f"buffer_load_dwordx4 v{P_VO+j}, {sq(S_WO)}, s{S_OO} offen offset:{1024*j}{wp} lds")
        a.e(f"s_add_u32 m0, s{S_MO}, {b+4096}")
        a.e(f"s_add_u32 s{S_OO}, s{S_OO}, 20480")
        a.e(f"buffer_load_dwordx4 v{P_VO+4}, {sq(S_WO)}, s{S_T} offen{wp} lds")
    return 10


def p_toggle(a, regs, D):
    for r in regs:
        a.e(f"v_add_u32 v{r}, 40960, v{r}" if D == 0 else f"v_subrev_u32 v{r}, 40960, v{r}")


def tr_pair(f, addr, off, delta):
    return [f"ds_read_b64_tr_b16 {v(f,2)}, v{addr} offset:{off}", f"ds_read_b64_tr_b16 {v(f+2,2)}, v{addr} offset:{off+delta}"]


def mfma16(acc, fa, fb, zero=False):
    return f"v_mfma_f32_16x16x32_bf16 {v(acc,4)}, {v(fa,4)}, {v(fb,4)}, {'0' if zero else v(acc,4)}"


def quad(reads, mf, rd, acc, f, fb, zero=False):
    for qs in range(4):
        reads.append(rd if qs == 0 else [])
        mf.append(mfma16(acc + 4 * qs, f, fb + 4 * qs, zero))


def p_qstep(a, o, qs, fill=(), pre=()):
    h = qs & 1
    reads, mf = [], []
    for i in range(3):
        quad(reads, mf, tr_pair(PFA + 4 * i, P_AQ + i, h * 20480, 1536), PQ + 16 * i, PFA + 4 * i, PFB, qs == 0)
    ax = P_AX
    if h:
        a.e(f"v_xor_b32 v{P_T0}, 64, v{P_AX}"); ax = P_T0
    xr = [f"ds_read_b128 {v(PFB+4*k,4)}, v{ax} offset:{2048*k}" for k in range(4)]
    reads[0] = xr[:1] + reads[0] + xr[1:]
    if qs == 5: mf[o["xbar"]] = [mf[o["xbar"]], "s_barrier"]
    hoist(a, reads, o["pq"], pre)
    pipe(a, reads, mf, list(fill), o["pq"])
    if h: p_toggle(a, [P_AQ, P_AQ + 1, P_AQ + 2, P_AX], (qs >> 1) & 1)


def p_oreads(a, dst, tau, tmp):
    ao = P_AO
    if tau & 1:
        a.e(f"v_xor_b32 v{tmp}, 64, v{P_AO}"); ao = tmp
    return [f"ds_read_b128 {v(dst+4*k,4)}, v{ao} offset:{6144*k + (tau>>1)*128}" for k in range(4)]


def p_ostep(a, o, s, fill=(), pre=()):
    h = s & 1
    reads, mf = [], []
    for i in range(5):
        T = 5 * h + i
        f = PFA + 4 * (i % 3)
        quad(reads, mf, tr_pair(f, P_AW + (T & 1), (T >> 1) * 256, 5120), PY + 16 * T, f, PFB)
    if not h:
        xr = p_oreads(a, PFB, s >> 1, P_T0)
        reads[0] = xr[:1] + reads[0] + xr[1:]
    hoist(a, reads, o["po"], pre)
    pipe(a, reads, mf, list(fill), o["po"])
    if h: p_toggle(a, [P_AW, P_AW + 1], (s >> 1) & 1)


def p_even(a, o, step, idx, burst, D):
    r = Rec(); n = burst(r, o, D)
    if o["pdma"] == 1:
        for x in r.t: a.e(x)
        step(a, o, idx)
    elif o["pdma"] == 2: step(a, o, idx, r.t)
    elif o["pdma"] == 4: step(a, o, idx, pre=r.t)
    elif o["pdma"] == 5:
        k = len(r.t) * o["psplit"] // 4
        step(a, o, idx, r.t[k:], pre=r.t[:k])
    else:
        step(a, o, idx)
        if o["pdma"] == 3: a.e("s_barrier")
        for x in r.t: a.e(x)
    endstep(a, n)


def p_choice(a, o, tag, cond, first, second):
    if o["pdma"] == 3: a.e("s_barrier")
    if tag == "Pa": stamp(a, o, (4 - 2, S_C, 3, 2), "s1")
    a.e(cond)
    a.branch(f"s_cbranch_scc1 L_{tag}_b")
    a.e(f"s_waitcnt vmcnt({first()})")
    a.branch(f"s_branch L_{tag}_j")
    a.label(f"L_{tag}_b")
    n2 = second()
    if tag == "Pa": stamp(a, o, (5 - 2, S_C, 3, 2), "s1")
    a.e(f"s_waitcnt vmcnt({n2})")
    if tag == "Pa": stamp(a, o, (6 - 2, S_C, 3, 2), "s1")
    a.label(f"L_{tag}_j")
    endstep(a)


PRO_AQ, PRO_AX = 168, 174


def p_prologue(a, o):
    XF, F = 96, 144
    reads, mf = [], []
    for n in range(10):
        s = (n + 2) & 3
        for h in range(2):
            xf = XF + 16 * ((2 * n + h) % 3)
            xr = [f"ds_read_b128 {v(xf+4*k,4)}, v{PRO_AX+h} offset:{PRO_XO[s] + 2048*k}" for k in range(4)]
            for i in range(3):
                f = F + 4 * ((len(mf) // 4) % 6)
                rd = tr_pair(f, PRO_AQ + 3 * (s >> 1) + i, (s & 1) * 24576 + h * 12288, 1536)
                if i == 0: rd = xr[:1] + rd + xr[1:]
                if i == 0 and h == 0 and n: rd = ["s_barrier"] + rd
                quad(reads, mf, rd, PQ + 16 * i, f, xf, n == 0 and h == 0)
    pipe(a, reads, mf, [], o["prod"])


def p_pack_block(a, i):
    y = PY + 16 * i
    for k in range(8): a.e(f"v_cvt_pk_bf16_f32 v{y+k}, v{y+2*k}, v{y+2*k+1}")
    for t in range(2):
        a.e(f"v_permlane16_swap_b32 v{y+4*t}, v{y+4*t+2}")
        a.e(f"v_permlane16_swap_b32 v{y+4*t+1}, v{y+4*t+3}")


def p_store_block(a, o, i):
    a.e(f"s_add_u32 s{S_T}, s{S_OWN}, {4*i}")
    a.e(f"s_cmp_lt_u32 s{S_T}, 5")
    a.e(f"s_cselect_b32 s{S_T}, {OOB}, s{S_P}")
    for t in range(2):
        a.e(f"buffer_store_dwordx4 {v(PY+16*i+4*t,4)}, v1, {sq(S_WS)}, s{S_T} offen offset:{t*1024}{pol(o['stpol'])}")
    a.e(f"s_add_u32 s{S_P}, s{S_P}, 8192")


def p_keep_block(a, i):
    a.e(f"s_add_u32 s{S_T}, s{S_OWN}, {4*i}")
    a.e(f"s_cmp_lt_u32 s{S_T}, 5")
    a.branch(f"s_cbranch_scc0 L_keep{i}")
    a.e(f"s_lshl_b32 s{S_T}, s{S_T}, 11")
    a.e(f"v_add_u32 v3, s{S_T}, v2")
    for t in range(2):
        a.e(f"ds_write_b128 v3, {v(PY+16*i+4*t,4)} offset:{t*1024}")
    a.label(f"L_keep{i}")


def tr_lane_parts(a, lane, G1, RR, ROW, C1, B8):
    a.e(f"v_lshrrev_b32 {ROW}, 4, {lane}")
    a.e(f"v_and_b32 {G1}, 1, {ROW}")
    a.e(f"v_bfe_u32 {RR}, {lane}, 2, 2")
    a.e(f"v_lshl_add_u32 {ROW}, {ROW}, 3, {RR}")
    a.e(f"v_bfe_u32 {C1}, {lane}, 1, 1")
    a.e(f"v_and_b32 {B8}, 1, {lane}")
    a.e(f"v_lshlrev_b32 {B8}, 3, {B8}")


def gen_P(a, o):
    a.label("L_P")
    if o["prio"] == 1: a.e("s_setprio 1")
    T0, T1, T2, T3, T4, T5, T6 = (f"v{20+k}" for k in range(7))
    stamp(a, o, 2, "start")
    G1, RR, ROW, C1, B8 = T0, T1, T2, T3, T4
    tr_lane_parts(a, "v0", G1, RR, ROW, C1, B8)
    a.e(f"v_and_b32 {T5}, 2, {RR}")
    a.e(f"v_lshl_or_b32 {T5}, {G1}, 2, {T5}")
    a.e(f"v_mul_u32_u24 v27, 384, {ROW}")
    a.e(f"v_add_u32 v27, v27, {B8}")
    for i in range(3):
        a.e(f"s_mul_i32 s{S_T}, s{S_W}, 6")
        a.e(f"s_add_u32 s{S_T}, s{S_T}, {2*i}")
        a.e(f"v_add_u32 {T6}, s{S_T}, {C1}")
        a.e(f"v_xor_b32 {T6}, {T6}, {T5}")
        a.e(f"v_lshl_add_u32 {T6}, {T6}, 4, v27")
        a.e(f"v_add_u32 v{P_AQ+i}, {WB}, {T6}")
        a.e(f"v_add_u32 v{PRO_AQ+i}, {PRO_W}, {T6}")
        a.e(f"v_add_u32 v{PRO_AQ+3+i}, {PRO_W+49152}, {T6}")
    a.e(f"v_lshl_or_b32 {T5}, {G1}, 2, {RR}")
    a.e(f"v_lshlrev_b32 {T5}, 1, {T5}")
    a.e(f"v_mul_u32_u24 v27, 1280, {ROW}")
    a.e(f"v_add_u32 v27, v27, {B8}")
    a.e(f"s_lshl_b32 s{S_T}, s{S_W}, 1")
    a.e(f"v_add_u32 {T6}, s{S_T}, {C1}")
    a.e(f"v_xor_b32 {T6}, {T6}, {T5}")
    a.e(f"v_lshl_add_u32 {T6}, {T6}, 4, v27")
    a.e(f"v_add_u32 v{P_AW}, {WB}, {T6}")
    a.e(f"v_xor_b32 v{P_AW+1}, 128, v{P_AW}")
    a.e(f"v_and_b32 {T0}, 15, v0")
    a.e(f"v_lshrrev_b32 {T1}, 4, v0")
    a.e(f"v_and_b32 {T2}, 6, {T0}")
    a.e(f"v_xor_b32 {T3}, {T2}, {T1}")
    a.e(f"v_lshlrev_b32 {T3}, 4, {T3}")
    a.e(f"v_lshl_add_u32 {T4}, {T0}, 7, {T3}")
    a.e(f"v_add_u32 v{P_AX}, {WB+32768}, {T4}")
    a.e(f"v_add_u32 v{PRO_AX}, {PRO_X}, {T4}")
    a.e(f"v_xor_b32 v{PRO_AX+1}, 64, v{PRO_AX}")
    a.e(f"v_mul_u32_u24 {T0}, 384, {T0}")
    a.e(f"v_add_u32 {T0}, {XB}, {T0}")
    a.e(f"v_bfe_u32 {T2}, v0, 1, 3")
    a.e(f"v_xor_b32 {T3}, {T2}, {T1}")
    a.e(f"v_lshl_add_u32 v{P_AO}, {T3}, 4, {T0}")
    a.e(f"v_lshrrev_b32 {T3}, 1, {T1}")
    a.e(f"v_xor_b32 {T3}, {T3}, {T2}")
    a.e(f"v_lshl_add_u32 {T3}, {T3}, 4, {T0}")
    a.e(f"v_and_b32 {T1}, 1, {T1}")
    a.e(f"v_lshl_add_u32 v{P_QW}, {T1}, 3, {T3}")
    dma_offsets_q(a, P_VQ, P_VX, 28)
    a.e(f"s_lshr_b32 s{S_T}, s{S_W}, 1")
    a.e(f"s_lshl_b32 s{S_T}, s{S_T}, 2")
    for j in range(5):
        a.e(f"v_add_u32 {T0}, {64*j}, v0")
        a.e(f"v_mul_u32_u24 {T0}, 820, {T0}")
        a.e(f"v_lshrrev_b32 {T0}, 16, {T0}")
        a.e(f"v_or_b32 {T0}, s{S_T}, {T0}")
        a.e(f"v_lshlrev_b32 {T0}, 1, {T0}")
        a.e(f"v_xor_b32 {T0}, {T0}, v0")
        a.e(f"v_lshlrev_b32 v{P_VO+j}, 4, {T0}")
    scalars_q(a, S_MQ, S_MX, S_OQ, S_OX, 1)
    a.e(f"s_mul_i32 s{S_MO}, s{S_W}, 5120")
    a.e(f"s_mul_i32 s{S_OO}, s{S_HG}, {4*245760}")
    a.e(f"s_add_u32 s{S_OO}, s{S_OO}, s{S_MO}")
    a.e(f"s_mov_b32 s{S_C}, 1")
    stamp(a, o, 3, "start")
    a.e("s_barrier")
    stamp(a, o, 1)
    a.raw("L_Ppro:")
    p_prologue(a, o)

    a.label("L_Pcyc")
    for i in range(24):
        a.e(f"v_cvt_pk_bf16_f32 v{PQ+i}, v{PQ+2*i}, v{PQ+2*i+1}")
    for i in range(3):
        a.e(f"s_mul_i32 s{S_T}, s{S_W}, 3")
        a.e(f"s_add_u32 s{S_T}, s{S_T}, {i}")
        a.e(f"s_and_b32 s{S_T2}, s{S_T}, 3")
        a.e(f"s_lshl_b32 s{S_T2}, s{S_T2}, 5")
        a.e(f"s_lshr_b32 s{S_T}, s{S_T}, 2")
        a.e(f"s_lshl_b32 s{S_T}, s{S_T}, 7")
        t = (P_T0, P_T1)[i & 1]
        a.e(f"v_xor_b32 v{t}, s{S_T2}, v{P_QW}")
        a.e(f"v_add_u32 v{t}, s{S_T}, v{t}")
        for k in range(4):
            a.e(f"ds_write_b64 v{t}, {v(PQ+8*i+2*k,2)} offset:{6144*k}")
    a.e("s_waitcnt lgkmcnt(0)")
    a.e(f"s_cmp_eq_u32 s{S_C}, 4")
    a.branch("s_cbranch_scc0 L_Pc3")
    idle_steps(a, o, "Pi4", 0, 4)
    a.branch("s_branch L_PO")
    a.label("L_Pc3")
    a.e(f"s_cmp_eq_u32 s{S_C}, 1")
    a.branch("s_cbranch_scc0 L_PQa")
    a.e("s_barrier")
    r0 = 8 if o["k2"] else 1
    if o["k2"]:
        for i in range(160): a.e(f"v_mov_b32 v{PY+i}, 0")
        idle_steps(a, o, "Pi1", 1, r0)
    p_burst_q(a, o, 0)
    idle_steps(a, o, "Pi2", r0, 9 if o["k2"] else 3)
    endstep(a, 3)

    a.label("L_PQa")
    for qs in range(4):
        if qs == 0:
            p_even(a, o, p_qstep, 0, p_burst_q, 1); continue
        p_qstep(a, o, qs)
        if qs == 2: p_choice(a, o, "Pa", f"s_cmp_ge_u32 s{S_C}, 2", lambda: p_burst_q(a, o, 0), lambda: p_burst_o(a, o, 0))
        else: endstep(a, 3 if qs == 1 else 0)
    a.e(f"s_cmp_ge_u32 s{S_C}, 2")
    a.branch("s_cbranch_scc1 L_PO")
    if not o["k2"]:
        for i in range(160): a.e(f"v_mov_b32 v{PY+i}, 0")
    idle_steps(a, o, "Pi10", 14 if o["k2"] else 8, 16)
    a.branch("s_branch L_PQb")

    a.label("L_PO")
    stamp(a, o, (2, S_C, 5))
    for s in range(12):
        if s < 10 and s % 2 == 0:
            p_even(a, o, p_ostep, s, p_burst_o, ((s >> 1) + 1) & 1); continue
        p_ostep(a, o, s)
        if s == 10: p_choice(a, o, "Po", f"s_cmp_eq_u32 s{S_C}, 4", lambda: p_burst_q(a, o, 0), lambda: 0)
        elif s == 11: endstep(a, 3)
        else: endstep(a, 0)
    a.e(f"s_cmp_eq_u32 s{S_C}, 4")
    a.branch("s_cbranch_scc1 L_Ptail")

    a.label("L_PQb")
    for qs in range(4, 20):
        if qs < 18 and qs % 2 == 0:
            p_even(a, o, p_qstep, qs, p_burst_q, ((qs >> 1) + 1) & 1); continue
        p_qstep(a, o, qs)
        if qs == 18:
            a.e(f"s_add_u32 s{S_OQ}, s{S_OQ}, {(384 - 640*12288) & 0xffffffff}")
            a.e(f"s_sub_u32 s{S_OX}, s{S_OX}, 1280")
            p_choice(a, o, "Pb", f"s_cmp_eq_u32 s{S_C}, 3", lambda: p_burst_q(a, o, 0), lambda: p_burst_o(a, o, 0))
        else: endstep(a, 0 if qs == 19 else 3)
    a.e(f"s_add_u32 s{S_C}, s{S_C}, 1")
    a.branch("s_branch L_Pcyc")

    a.label("L_Ptail")
    VT, TA = 2, 4
    lane_id(a, 5)
    tail_offsets(a, VT, S_MO, S_OO, "v5", ("v6", "v7"))
    tr_lane_parts(a, "v5", "v6", "v7", "v8", "v9", "v10")
    a.e("v_and_b32 v7, 2, v7")
    a.e("v_lshl_or_b32 v7, v6, 2, v7")
    a.e(f"s_lshl_b32 s{S_T}, s{S_W}, 1")
    a.e(f"v_add_u32 v9, s{S_T}, v9")
    a.e("v_xor_b32 v9, v9, v7")
    a.e("v_lshl_add_u32 v9, v9, 4, v10")
    a.e(f"v_lshl_add_u32 v{TA}, v8, 7, v9")
    a.e("v_lshlrev_b32 v1, 4, v5")
    a.e(f"s_lshl_b32 s{S_P}, s{S_BR}, 4"); a.e(f"s_add_u32 s{S_P}, s{S_P}, s{S_B}")
    a.e(f"s_lshl_b32 s{S_P}, s{S_P}, 3"); a.e(f"s_add_u32 s{S_P}, s{S_P}, s{S_HG}")
    a.e(f"s_mul_i32 s{S_P}, s{S_P}, 81920")
    a.e(f"s_lshl_b32 s{S_T}, s{S_W}, 11"); a.e(f"s_add_u32 s{S_P}, s{S_P}, s{S_T}")
    a.e(f"s_mul_i32 s{S_T}, s{S_HG}, 5"); a.e(f"s_sub_u32 s{S_OWN}, s{S_W}, s{S_T}")
    for n in range(3):
        tail_tile(a, o, VT, S_MO, S_OO, n)
        idle_steps(a, o, f"Pt{n}", 16 + 2 * n, 18 + 2 * n)
    idle_steps(a, o, "Pt3", 22, 31)
    tail_tile(a, o, VT, S_MO, S_OO, 3)
    idle_steps(a, o, "Pt4", 31, 32)
    if o["pdma"] == 3: a.e("s_barrier")
    endstep(a, 0)
    stamp(a, o, 7)
    SB, F = 8, 24
    a.e(f"v_xor_b32 v{P_T0}, 64, v{P_AO}")
    a.e(f"v_mov_b32 v7, v{P_AO}")
    ob = lambda dst, tau: [f"ds_read_b128 {v(dst+4*k,4)}, v{P_T0 if tau & 1 else 7} offset:{6144*k + (tau>>1)*128}" for k in range(4)]
    order = (3, 0, 4, 1, 5, 2)
    for t in ob(SB, 3): a.e(t)
    addr = lambda p, k: f"v_add_u32 v{5+k}, {tail_slot(2*p+k)}, v{TA}"
    pairs = []
    for p in range(5):
        reads, mf = [], []
        for gi, tau in enumerate(order):
            for k in range(2):
                f = F + 4 * ((len(mf) // 4) % 6)
                rd = tr_pair(f, 5 + k, tau * 4096, 512)
                if gi == 0: rd = [addr(p, k)] + rd
                if p == 0 and tau < 3 and k == 0: rd = ob(PQ + 16 * tau, tau) + rd
                quad(reads, mf, rd, PY + 16 * (2 * p + k), f, PQ + 16 * tau if tau < 3 else SB)
            if o["tq"] and tau >= 3 and (p or gi):
                mf[-8] = [f"need {v(SB,16)}", mf[-8]]
            if tau >= 3 and not (p == 4 and tau == 5):
                nxt = ob(SB, 3 if tau == 5 else tau + 1)
                if o["tq"]:
                    for k in range(4): mf[k - 4] = [mf[k - 4], nxt[k]]
                else: mf[-1] = [mf[-1]] + nxt
        pairs.append((reads, mf))
    for p, h in ((0, 3), (1, 1)):
        for q_ in range(h if o["tx"] else 0):
            pairs[p][1][41 + 2 * q_] = [pairs[p][1][41 + 2 * q_]] + pairs[p + 1][0][4 * q_]
            pairs[p + 1][0][4 * q_] = []
    for p, (reads, mf) in enumerate(pairs):
        fill = []
        if p: fill = rec(p_pack_block, 2 * p - 2) + rec(p_pack_block, 2 * p - 1)
        for m in TAIL_STORES[o["tst"]].get(p, []): fill += rec(p_store_block, o, m)
        pipe(a, reads, mf, fill, 16, skip=6)
        if p < 4: a.e("s_barrier")
    stamp(a, o, 8)
    for m in TAIL_STORES[o["tst"]][5]:
        if m >= 8: p_pack_block(a, m)
        p_store_block(a, o, m)
    a.e(f"s_mul_i32 s{S_T}, s{S_HG}, 10240")
    a.e(f"s_add_u32 s{S_T}, s{S_T}, {WB}")
    a.e(f"v_add_u32 v2, s{S_T}, v1")
    for m in range(10): p_keep_block(a, m)
    a.e("s_waitcnt vmcnt(0)")
    a.branch("s_branch L_red")


TAIL_STORES = [{3: [0, 1, 2, 3, 4, 5], 4: [6, 7], 5: [8, 9]},
               {3: [0, 1, 2], 4: [3, 4, 5, 6], 5: [7, 8, 9]},
               {2: [0, 1], 3: [2, 3, 4], 4: [5, 6, 7], 5: [8, 9]},
               {1: [0, 1], 2: [2, 3], 3: [4, 5], 4: [6, 7], 5: [8, 9]}]


AS, AR_, AP, AF = 128, 80, 56, 24
A_VD, A_AK, A_AV, A_M, A_L, A_R, A_T0, A_T1, A_PF, A_DUM = 1, 4, 6, 14, 16, 18, 20, 21, 22, 23
A_XQ, A_XO, A_EW, A_ER, A_FI, A_FO = 48, 50, 52, 53, 54, 55
S_SP, S_PER, S_MK, S_OK, S_OV, S_CS, S_PFO, S_PFS, S_PF = 49, 50, 51, 52, 53, 54, 55, 56, 60
AR = (128, 131, 68, 69, 96, 97)
S_PFM = 100
S_LK, S_LV = 48, 58


def pf_sites(o):
    return {b + k for b in (1, o["pfa"], o["pfo"]) for k in range(4)}


def a_burst(a, o, D, srdreg, off, last=False):
    kp = pol(o["kvpol"])
    for h in range(2):
        a.e(f"s_add_u32 m0, s{S_MK}, {D*24576+h*12288}")
        if h: a.e(f"s_add_u32 s{off}, s{off}, 12288")
        else: a.e("s_nop 0")
        for j in range(3):
            a.e(f"buffer_load_dwordx4 v{A_VD+j}, {sq(srdreg)}, s{off} offen offset:{1024*j}{kp} lds")
    a.e(f"s_add_u32 s{off}, s{off}, 12288")
    if o["rot"]:
        lim = S_LK if off == S_OK else S_LV
        a.e(f"s_cmp_eq_u32 s{off}, s{lim}")
        a.e(f"s_cselect_b32 s{S_T}, 196608, 0")
        a.e(f"s_sub_u32 s{off}, s{off}, s{S_T}")
        if last:
            a.e(f"s_add_u32 s{off}, s{off}, 196608")
            a.e(f"s_add_u32 s{lim}, s{lim}, 196608")


def soft_chunk(j):
    b = AS + 8 * j
    t = []
    for i in range(8): t.append(f"v_fma_f32 v{b+i}, v{b+i}, s{S_CS}, -v{A_M+(i>>2)}")
    for i in range(8): t.append(f"v_exp_f32 v{b+i}, v{b+i}")
    for i in (0, 4, 1, 5, 2, 6, 3, 7):
        if j == 0 and i % 4 == 0: t.append(f"v_mov_b32 v{A_L+(i>>2)}, v{b+i}")
        else: t.append(f"v_add_f32 v{A_L+(i>>2)}, v{A_L+(i>>2)}, v{b+i}")
    for qs in range(2):
        for i in range(2): t.append(f"v_cvt_pk_bf16_f32 v{b+4*qs+i}, v{b+4*qs+2*i}, v{b+4*qs+2*i+1}")
    for qs in range(2):
        t.append(f"ds_write_b64 v{A_EW}, {v(b+4*qs,2)} offset:{(j&1)*4096 + qs*512}")
    return t


def max_chunk(s):
    b = AS + 8 * s
    t = []
    for i in range(2):
        for qs in range(2):
            r = b + 4 * qs + 2 * i
            if s == 0 and i == 0: t.append(f"v_max_f32 v{A_M+qs}, v{r}, v{r+1}")
            else: t.append(f"v_max3_f32 v{A_M+qs}, v{A_M+qs}, v{r}, v{r+1}")
    return t


def xlane2(a, reg, op):
    for sw in ("v_permlane32_swap_b32", "v_permlane16_swap_b32"):
        for k in range(2): a.e(f"v_mov_b32 v{A_T0+k}, v{reg+k}")
        for k in range(2): a.e(f"{sw} v{reg+k}, v{A_T0+k}")
        for k in range(2): a.e(f"{op} v{reg+k}, v{reg+k}, v{A_T0+k}")


def a_rowsum(a):
    xlane2(a, A_L, "v_add_f32")
    a.e(f"s_mov_b32 s{S_T}, {WB + 40960 + 12288 - EB & 0xffffffff}")
    a.e(f"s_cmp_eq_u32 s{S_PER}, 3")
    a.e(f"s_cselect_b32 s{S_T}, {WB + 73728 - EB & 0xffffffff}, s{S_T}")
    a.e(f"s_lshl_b32 s{S_T2}, s{S_W}, 9")
    a.e(f"s_sub_u32 s{S_T}, s{S_T}, s{S_T2}")
    a.e(f"v_add_u32 v{A_R}, s{S_T}, v{A_EW}")
    a.e(f"v_xor_b32 v{A_R+1}, 512, v{A_R}")
    a.e(f"ds_write_b64 v{A_R}, {v(A_L,2)}")


def a_qread(ks):
    return [f"ds_read_b128 {v(AR_+8*ks+4*qs,4)}, v{A_XQ+(ks&1)} offset:{qs*6144 + (ks>>1)*128}" for qs in range(2)]


def a_owrite(i):
    t = [f"v_xor_b32 v{A_T0+(i&1)}, {32*(i&3)}, v{A_XO+(1 if i in (2, 3) else 0)}"]
    for qs in range(2):
        t.append(f"ds_write_b64 v{A_T0+(i&1)}, {v(AP+4*i+2*qs,2)} offset:{qs*6144 + (i>>2)*128}")
    return t


def a_onorm(i):
    t = []
    for qs in range(2):
        r = AR_ + 8 * i + 4 * qs
        for k in range(4): t.append(f"v_mul_f32 v{r+k}, v{r+k}, v{A_R+qs}")
    for qs in range(2):
        r = AR_ + 8 * i + 4 * qs
        for k in range(2): t.append(f"v_cvt_pk_bf16_f32 v{AP+4*i+2*qs+k}, v{r+2*k}, v{r+2*k+1}")
    return t


def weave(pre, work):
    n = sum(t.startswith("buffer_load_dwordx4") for t in pre)
    out, k = [], 0
    for t in pre:
        out.append(t)
        if t.startswith("buffer_load_dwordx4"):
            k += 1
            out += work[len(work) * (k - 1) // n:len(work) * k // n]
    return out


def hoist(a, reads, depth, pre):
    if not pre: return
    for i in range(min(depth, len(reads))):
        for t in reads[i]: a.e(t)
        reads[i] = []
    for t in pre: a.e(t)


def a_kstep(a, o, s, extra=(), pre=()):
    reads, mf = [], []
    for i in range(12):
        ks, qs = divmod(i, 2) if not o["kord"] else (i % 6, i // 6)
        f = AF + 4 * ks
        reads.append([] if qs else [f"ds_read_b128 {v(f,4)}, v{A_AK+(ks&1)} offset:{(s&3)*12288 + (ks>>1)*128}"])
        mf.append(mfma16(AS + 8 * s + 4 * qs, f, AR_ + 8 * ks + 4 * qs, ks == 0))
    hoist(a, reads, o["adepth"], pre)
    pipe(a, reads, mf, (max_chunk(s - 1) if s else []) + list(extra), o["adepth"])
    if s == 15:
        for t in max_chunk(15): a.e(t)
        xlane2(a, A_M, "v_max_f32")
        a.e(f"ds_write_b64 v{A_EW}, {v(A_M,2)} offset:4096")


def a_vstep(a, o, j, pre=()):
    s = 16 + j
    b = AS + 8 * j
    reads, mf = [], []
    for n in range(12):
        i, qs = divmod(n, 2)
        f = AF + 4 * i
        off = (s & 3) * 12288 + (i >> 2) * 128
        reads.append([] if qs else [f"ds_read_b64_tr_b16 {v(f,2)}, v{A_AV+(i&3)} offset:{off}",
                                    f"ds_read_b64_tr_b16 {v(f+2,2)}, v{A_AV+4+(i&3)} offset:{off}"])
        mf.append(mfma16(AR_ + 8 * i + 4 * qs, f, b + 4 * qs, j == 0))
    if j == 0:
        a.e(f"ds_read_b64 {v(A_T0,2)}, v{A_ER} offset:4096")
        for n in range(0, 12, 2):
            for t in reads[n]: a.e(t)
            reads[n] = []
        work = [f"v_max_f32 v{A_M+k}, v{A_M+k}, v{A_T0+k}" for k in range(2)]
        work += [f"v_mul_f32 v{A_M+k}, s{S_CS}, v{A_M+k}" for k in range(2)] + soft_chunk(0)
        for t in (weave(list(pre), work) if o["t16"] == 2 else list(pre) + work): a.e(t)
        pre = ()
        endstep(a)
    for qs in range(2):
        a.e(f"ds_read_b64 {v(b+4*qs+2,2)}, v{A_ER} offset:{(j&1)*4096 + qs*512}")
    if j == 15:
        a.e(f"ds_read_b64 {v(A_T0,2)}, v{A_R+1}")
        mf[1] = [mf[1]] + [f"v_add_f32 v{A_L+k}, v{A_L+k}, v{A_T0+k}" for k in range(2)]
        mf[2] = [mf[2]] + [f"v_rcp_f32 v{A_R+k}, v{A_L+k}" for k in range(2)]
        for i in range(4): mf[2 * i + 5] = [mf[2 * i + 5]] + a_onorm(i)
    fill = soft_chunk(j + 1) + (rec(a_rowsum) if j == 14 else []) if j < 15 else []
    if pre and o["vweave"] and pre != ["s_barrier"]:
        k = len(fill) * o["vweave"] // 4
        pre, fill = weave(list(pre), fill[:k]), fill[k:]
    hoist(a, reads, o["adepth"], pre)
    pipe(a, reads, mf, fill, o["adepth"], 12 if j == 14 else o["vspan"])
    if j == 15:
        for t in a_onorm(4) + a_onorm(5): a.e(t)
        a.e(f"s_cmp_eq_u32 s{S_PER}, 3")
        a.branch("s_cbranch_scc0 L_A31")
        for i in range(6):
            for t in a_owrite(i): a.e(t)
        a.label("L_A31")


def spin(a, tag, load, test, nap=0, bound=0x20000):
    a.e("s_mov_b32 s40, 0")
    a.label(f"L_{tag}")
    a.e(load)
    a.e("s_add_u32 s40, s40, 1")
    a.e("s_waitcnt vmcnt(0) lgkmcnt(0)")
    for t in test: a.e(t)
    a.branch(f"s_cbranch_scc1 L_{tag}_ok")
    if nap: a.e(f"s_sleep {nap}")
    a.e(f"s_cmp_lt_u32 s40, {bound}")
    a.branch(f"s_cbranch_scc1 L_{tag}")
    a.label(f"L_{tag}_ok")


def gen_A(a, o):
    a.comment("attention waves: 16 query rows each; they also feed the first and the last projection")
    if o["prio"] == 2: a.e("s_setprio 1")
    if o["sprio"]: a.e("s_setprio 3")
    T0, T1, T2, T3 = "v24", "v25", "v26", "v27"
    dma_offsets_q(a, AR[0], AR[1], 32)
    scalars_q(a, *AR[2:], 0)
    chains = []
    for j in range(3):
        r = Rec()
        U0, U1, U2, U3 = (f"v{32+4*j+k}" for k in range(4))
        r.e(f"v_add_u32 {U0}, {64*j}, v0")
        r.e(f"v_mul_u32_u24 {U1}, 2731, {U0}")
        r.e(f"v_lshrrev_b32 {U1}, 16, {U1}")
        r.e(f"v_and_b32 {U1}, 6, {U1}")
        r.e(f"v_xor_b32 {U1}, {U1}, v0")
        r.e(f"v_lshlrev_b32 v{A_VD+j}, 4, {U1}")
        chains.append(r.t)
    kv_offsets = chains
    a.e(f"s_mul_i32 s98, s{S_B}, 81920")
    a.e(f"s_mul_i32 s{S_T}, s{S_HALF}, 40960"); a.e(f"s_add_u32 s98, s98, s{S_T}")
    a.e(f"s_mul_i32 s{S_T}, s{S_W}, 10240"); a.e(f"s_add_u32 s98, s98, s{S_T}")
    a.e(f"v_lshlrev_b32 v28, 7, v0")
    a.e(f"v_add_u32 v29, 8192, v28")
    a.e(f"v_mov_b32 {T2}, {OOB}")
    a.e(f"v_cmp_gt_u32 vcc, 16, v0")
    a.e(f"v_cndmask_b32 v29, {T2}, v29, vcc")
    stamp(a, o, 2, "start")
    pp = pol(o["pfpol"])
    vm = ["t"] * 4

    def W(n):
        s = (n + 2) & 3
        burst_q(a, o, AR, PRO_W + s * 24576, PRO_X + PRO_XO[s], PRO_W + s * 24576 + 12288)
        vm.extend([("W", n)] * 8)

    def K0():
        a_burst(a, o, 0, S_K, S_OK); vm.extend([("K", 0)] * 3 + [("K", 1)] * 3)

    def late_touches():
        a.e(f"s_cmp_eq_u32 s99, 0")
        a.e(f"s_cselect_b32 s{S_T}, {OOB}, s{S_PFO}")
        a.e(f"buffer_load_dword v{A_DUM}, v{A_PF}, {sq(S_PF)}, s{S_T} offen{pp}"); vm.append("t")
        a.e(f"s_add_u32 s{S_PFO}, s{S_PFO}, s99")
        a.e(f"s_cmp_eq_u32 s{S_W}, 0")
        a.e(f"s_cselect_b32 s{S_T}, s46, {OOB}")
        a.e(f"s_cselect_b32 s{S_T2}, s47, {OOB}")
        a.e(f"buffer_load_dword v{A_FI}, v28, {sq(S_WS)}, s{S_T} offen sc1"); vm.append("f")
        a.e(f"buffer_load_dword v{A_FO}, v29, {sq(S_WS)}, s{S_T2} offen sc1"); vm.append("f")

    def wait_for(tag):
        last = max(i for i, x in enumerate(vm) if x == tag)
        return min(63, len(vm) - 1 - last)

    stamp(a, o, 3, "start")
    W(0)
    stamp(a, o, 4, "start")
    if o["sprio"]: a.e(f"s_setprio {1 if o['prio'] == 2 else 0}")
    interleave(a, kv_offsets)
    a.e(f"s_mul_i32 s{S_MK}, s{S_W}, 3072")
    a.e(f"s_lshl_b32 s{S_OK}, s{S_B}, 3"); a.e(f"s_add_u32 s{S_OK}, s{S_OK}, s{S_HG}")
    a.e(f"s_mul_i32 s{S_OK}, s{S_OK}, 786432"); a.e(f"s_add_u32 s{S_OK}, s{S_OK}, s{S_MK}")
    if o["rot"]:
        a.e(f"s_add_u32 s{S_LK}, s{S_OK}, 196608")
        a.e(f"s_mov_b32 s{S_LV}, s{S_LK}")
        a.e(f"s_mul_i32 s{S_T}, s2, {o['rot']}")
        a.e(f"s_lshr_b32 s{S_T}, s{S_T}, 3")
        a.e(f"s_add_u32 s{S_T}, s{S_T}, s2")
        a.e(f"s_and_b32 s{S_T}, s{S_T}, 7")
        a.e(f"s_mul_i32 s{S_T}, s{S_T}, 24576")
        a.e(f"s_add_u32 s{S_OK}, s{S_OK}, s{S_T}")
    a.e(f"s_mov_b32 s{S_OV}, s{S_OK}")
    a.e(f"buffer_load_dword v{A_DUM}, v28, {sq(S_XI)}, s98 offen{pp}"); vm.append("t")
    a.e(f"buffer_load_dword v{A_DUM}, v29, {sq(S_XI)}, s98 offen{pp}"); vm.append("t")
    stamp(a, o, 5, "start")
    if o["k0"] < 0: K0()
    if o["codepf"]:
        a.e("s_getpc_b64 s[100:101]")
        a.raw("L_pc:")
        a.e(f"s_sub_u32 s100, s100, L_pc-{KN}")
        a.e("s_subb_u32 s101, s101, 0")
        a.e("s_lshr_b32 s98, s2, 3")
        a.e(f"s_lshl_b32 s98, s98, 2")
        a.e(f"s_add_u32 s98, s98, s{S_W}")
        a.e(f"s_lshl_b32 s98, s98, 9")
        a.e("v_and_b32 v30, 3, v0")
        a.e("v_lshlrev_b32 v30, 7, v30")
        a.e("v_add_u32 v30, s98, v30")
        a.e(f"v_min_u32 v30, L_end-{KN}, v30")
        a.e(f"global_load_dword v{A_DUM}, v30, s[100:101]"); vm.append("t")
    a.e(f"s_lshl_b32 s44, s{S_BR}, 4")
    a.e(f"s_add_u32 s44, s44, s{S_B}")
    a.e("s_lshl_b32 s45, s44, 10")
    a.e(f"s_add_u32 s45, s45, {FLAGS}")
    a.e(f"s_lshl_b32 s46, s{S_HG}, 7")
    a.e(f"s_add_u32 s46, s46, s45")
    a.e(f"s_lshl_b32 s47, s{S_HG}, 2")
    a.e(f"s_add_u32 s47, s47, s45")
    wq_share(a, T1, T0, T1, T2)
    a.e(f"v_lshlrev_b32 {T2}, 7, {T0}")
    a.e(f"s_mov_b32 s{S_PFS}, 384")
    a.e(f"s_mov_b32 s{S_T}, {40*12288}")
    a.e(f"s_cmp_ge_u32 s{S_W}, 2")
    a.e(f"s_cselect_b64 vcc, -1, 0")
    a.e(f"s_cselect_b32 s{S_PFS}, 245760, s{S_PFS}")
    a.e(f"s_cselect_b32 s{S_T}, 15360, s{S_T}")
    a.e(f"s_cselect_b32 s{S_PF}, s{S_WO}, s{S_WQ}")
    a.e(f"s_cselect_b32 s{S_PF+1}, s{S_WO+1}, s{S_WQ+1}")
    a.e(f"s_cselect_b32 s99, 0, 384")
    a.e(f"s_mov_b32 s{S_PF+2}, {W_BYTES}")
    a.e(f"s_mov_b32 s{S_PF+3}, 0x20000")
    a.e(f"v_cndmask_b32 {T1}, {T1}, {T2}, vcc")
    a.e(f"v_mov_b32 {T2}, {OOB}")
    a.e(f"v_cmp_gt_u32 vcc, 120, {T0}")
    a.e(f"v_cndmask_b32 v{A_PF}, {T2}, {T1}, vcc")
    a.e(f"s_mul_i32 s{S_PFO}, s{S_T}, s{S_B}")
    a.e(f"s_mul_i32 s{S_T}, s{S_PFS}, s{S_HG}")
    a.e(f"s_lshl_b32 s{S_T}, s{S_T}, 2")
    a.e(f"s_add_u32 s{S_PFO}, s{S_PFO}, s{S_T}")
    a.e(f"s_add_u32 s{S_PFO}, s{S_PFO}, s99")
    bits = lambda *pp_: sum(3 << (16 * p + k) for p, k in pp_)
    ka, ko = o["pfa"], o["pfo"]
    mA, mB, mO = bits((0, ka), (1, ka)), bits((0, 1), (1, 1), (2, 1)), bits((0, ko), (1, ko), (2, ko), (3, 1))
    a.e(f"s_mov_b32 s{S_PFM}, {mB & 0xffffffff}")
    a.e(f"s_mov_b32 s{S_PFM+1}, {mB >> 32}")
    a.e(f"s_cmp_lt_u32 s{S_B}, {o['pfb']}")
    a.e(f"s_cselect_b32 s{S_PFM}, {mA & 0xffffffff}, s{S_PFM}")
    a.e(f"s_cselect_b32 s{S_PFM+1}, {mA >> 32}, s{S_PFM+1}")
    a.e(f"s_cselect_b32 s99, s99, 0")
    a.e(f"s_cmp_ge_u32 s{S_W}, 2")
    a.e(f"s_cselect_b32 s{S_PFM}, {mO & 0xffffffff}, s{S_PFM}")
    a.e(f"s_cselect_b32 s{S_PFM+1}, {mO >> 32}, s{S_PFM+1}")
    a.e(f"s_and_b32 s{S_T}, s{S_W}, 1")
    a.e(f"s_lshl_b32 s{S_T}, s{S_T}, 1")
    a.e(f"s_lshl_b64 s[{S_PFM}:{S_PFM+1}], s[{S_PFM}:{S_PFM+1}], s{S_T}")
    a.e(f"s_and_b32 s{S_SP}, s{S_W}, 1")
    a.e(f"s_lshr_b32 s{S_T2}, s{S_W}, 1")
    a.e(f"s_mul_i32 s{S_T2}, s{S_T2}, 12288")
    a.e(f"s_add_u32 s{S_T2}, s{S_T2}, {XB}")
    a.e(f"s_mul_i32 s{S_T}, s{S_SP}, 6144")
    a.e(f"v_and_b32 {T0}, 15, v0")
    a.e(f"v_lshrrev_b32 {T1}, 4, v0")
    a.e(f"v_and_b32 {T2}, 6, {T0}")
    a.e(f"v_xor_b32 {T3}, {T2}, {T1}")
    a.e(f"v_mul_u32_u24 {T0}, 384, {T0}")
    a.e(f"v_lshl_add_u32 {T3}, {T3}, 4, {T0}")
    a.e(f"v_add_u32 v{A_AK}, s{S_T}, {T3}")
    a.e(f"v_xor_b32 v{A_AK+1}, 64, v{A_AK}")
    a.e(f"v_bfe_u32 {T2}, v0, 1, 3")
    a.e(f"v_xor_b32 {T3}, {T2}, {T1}")
    a.e(f"v_lshl_add_u32 {T3}, {T3}, 4, {T0}")
    a.e(f"v_add_u32 v{A_XQ}, s{S_T2}, {T3}")
    a.e(f"v_xor_b32 v{A_XQ+1}, 64, v{A_XQ}")
    a.e(f"v_lshrrev_b32 {T3}, 1, {T1}")
    a.e(f"v_xor_b32 {T3}, {T3}, {T2}")
    a.e(f"v_lshl_add_u32 {T3}, {T3}, 4, {T0}")
    a.e(f"v_and_b32 {T2}, 1, {T1}")
    a.e(f"v_lshl_add_u32 {T3}, {T2}, 3, {T3}")
    a.e(f"v_add_u32 {T3}, s{S_T2}, {T3}")
    a.e(f"s_lshl_b32 s{S_T2}, s{S_SP}, 6")
    a.e(f"v_xor_b32 {T3}, s{S_T2}, {T3}")
    a.e(f"s_lshl_b32 s{S_T2}, s{S_SP}, 7")
    a.e(f"v_add_u32 v{A_XO}, s{S_T2}, {T3}")
    a.e(f"v_add_u32 v{A_XO+1}, s{S_T2}, v{A_XO}")
    a.e(f"v_lshrrev_b32 {T0}, 2, v0")
    a.e(f"v_and_b32 {T1}, 6, {T0}")
    a.e(f"v_bfe_u32 {T2}, v0, 1, 1")
    a.e(f"v_xor_b32 {T1}, {T1}, {T2}")
    a.e(f"v_mul_u32_u24 {T0}, 384, {T0}")
    a.e(f"v_lshl_add_u32 {T1}, {T1}, 4, {T0}")
    a.e(f"v_and_b32 {T2}, 1, v0")
    a.e(f"v_lshl_add_u32 {T1}, {T2}, 3, {T1}")
    a.e(f"s_lshl_b32 s{S_T2}, s{S_SP}, 6")
    a.e(f"v_xor_b32 {T1}, s{S_T2}, {T1}")
    for d in range(4):
        a.e(f"v_xor_b32 {T2}, {32*d}, {T1}")
        a.e(f"s_lshl_b32 s{S_T2}, s{S_SP}, {8 if d >= 2 else 7}")
        a.e(f"v_add_u32 {T2}, s{S_T2}, {T2}")
        a.e(f"v_add_u32 v{A_AV+d}, s{S_T}, {T2}")
        a.e(f"s_sub_u32 s{S_T2}, 6144, s{S_T}")
        a.e(f"v_add_u32 v{A_AV+4+d}, s{S_T2}, {T2}")
    a.e(f"v_lshlrev_b32 {T0}, 3, v0")
    a.e(f"s_lshl_b32 s{S_T}, s{S_W}, 10")
    a.e(f"s_add_u32 s{S_T}, s{S_T}, {EB}")
    a.e(f"v_add_u32 v{A_EW}, s{S_T}, {T0}")
    a.e(f"v_xor_b32 v{A_ER}, 1024, v{A_EW}")
    a.e("v_and_b32 v28, 7, v0")
    a.e("v_lshlrev_b32 v29, 7, v28")
    a.e("v_lshlrev_b32 v28, 2, v28")
    a.e(f"s_mov_b32 s{S_CS}, {CSCALE:#x}")
    a.e(f"s_mov_b32 s{S_PER}, 0")
    stamp(a, o, 6, "start")
    W(1)
    stamp(a, o, 12, "pro")
    stamp(a, o, 7, "start")
    endstep(a, wait_for(("W", 0)))
    stamp(a, o, 8, "start")
    stamp(a, o, 1, "pro")
    a.raw("L_Apro:")
    head = list(vm)
    first = dict(s0=6, s1=3)
    classes = [(o["k0"], o["k1"])] + ([(o["k0b"], o["k1b"])] if o["k0b"] >= 0 else [])
    if len(classes) > 1:
        a.e(f"s_bitcmp1_b32 s2, {o['kbit']}")
        a.branch("s_cbranch_scc1 L_Apro1")
    for ci, (k0, k1) in enumerate(classes):
        if ci: a.label("L_Apro1")
        vm[:] = head
        W(2)
        for n in range(9):
            endstep(a, wait_for(("W", n + 1)))
            stamp(a, o, n + 2, "pro")
            if n + 3 < 10: W(n + 3)
            if n == o["kt"]: late_touches()
            if n == (o["kp"], o["kpb"])[ci]:
                a.e(f"s_mul_i32 s{S_T}, s{S_W}, {o['kpn'] * 128 - 3072}")
                a.e(f"s_add_u32 s{S_T}, s{S_T}, s{S_OV}")
                a.e(f"s_add_u32 s{S_T}, s{S_T}, 49152")
                a.e("v_lshlrev_b32 v30, 7, v0")
                for k in range(0, o["kpn"], 64):
                    m = min(64, o["kpn"] - k)
                    if m < 64: a.e(f"s_mov_b32 exec_hi, {((1 << m) - 1) >> 32}")
                    a.e(f"buffer_load_dword v{A_DUM}, v30, {sq(S_K)}, s{S_T} offen"); vm.append("t")
                    a.e(f"s_add_u32 s{S_T}, s{S_T}, 8192")
                a.e("s_mov_b64 exec, -1")
            if n == k0: K0()
            if n == k1:
                a_burst(a, o, 1, S_K, S_OK); vm.extend([("K", 2)] * 3 + [("K", 3)] * 3)
        if o["k2"]:
            a_burst(a, o, 2, S_K, S_OK); vm.extend([("K", 4)] * 3 + [("K", 5)] * 3)
        endstep(a, wait_for(("K", 0)))
        w01 = (wait_for(("K", 1)), wait_for(("K", 2)))
        first = dict(s0=min(first["s0"], wait_for(("K", 1))), s1=min(first["s1"], wait_for(("K", 2))))
        if ci == 0 and len(classes) > 1: a.branch("s_branch L_Aper")

    a.label("L_Aper")
    stamp(a, o, (1, S_PER, 4))
    for s in range(32):
        a.comment(f"A step {s}")
        if s == 16: stamp(a, o, (5, S_PER, 4))
        g_ = o["tkg"]
        if s % g_ == 0 and o["tk0"] <= s < o["tk0"] + 12 * g_: stamp(a, o, (1 + (s - o["tk0"]) // g_ - o["tkp"], S_PER, o["tkp"] + 1, o["tkp"]), "tick")
        vmw = 4 if ((s - 1) >> 1) in pf_sites(o) else 3
        bt = []
        if s == 0:
            a.e(f"s_cmp_eq_u32 s{S_PER}, 0")
            a.branch("s_cbranch_scc1 L_A0")
            a_burst(a, o, 1, S_K, S_OK)
            a.label("L_A0")
            for ks in range(6):
                for t in a_qread(ks): a.e(t)
            vmw = 6 if o["k2"] else min(6, first["s0"])
        elif s == 1:
            vmw = 3 if o["k2"] else min(3, first["s1"])
        elif s == 30:
            a.e(f"s_cmp_eq_u32 s{S_PER}, 3")
            a.branch("s_cbranch_scc1 L_A30")
            a_burst(a, o, 0, S_K, S_OK)
            a.label("L_A30")
            vmw = 6
        elif s % 2 == 0:
            vmw = 6
            D = ((s >> 1) + 1) & 1
            bt = rec(a_burst, o, D, *((S_K, S_OK) if s < 14 else (S_V, S_OV)), s in (12, 28))
            if (s >> 1) in pf_sites(o):
                high = (s >> 1) % 2 == 0
                bt.append(f"s_lshl_b32 s{S_T}, s{S_PER}, 4")
                bt.append(f"s_add_u32 s{S_T}, s{S_T}, {s>>1}")
                bt.append(f"s_bitcmp1_b64 s[{S_PFM}:{S_PFM+1}], s{S_T}")
                bt.append(f"s_cselect_b32 s{S_T}, s{S_PFO}, {OOB}")
                if high: bt.append(f"s_cselect_b32 s{S_T2}, s{S_PFS}, 0")
                bt.append(f"s_mov_b32 {'exec_lo' if high else 'exec_hi'}, 0")
                bt.append(f"buffer_load_dword v{A_DUM}, v{A_PF}, {sq(S_PF)}, s{S_T} offen{pp}")
                bt.append("s_mov_b64 exec, -1")
                if high: bt.append(f"s_add_u32 s{S_PFO}, s{S_PFO}, s{S_T2}")
                vmw = 7
            if o["k2"] and s == 2:
                nb_ = max(i for i, t in enumerate(bt) if t.startswith("buffer_load_dwordx4")) + 2
                a.e(f"s_cmp_eq_u32 s{S_PER}, 0")
                a.branch("s_cbranch_scc1 L_A2")
                for t in bt[:nb_]: a.e(t)
                a.label("L_A2")
                bt = bt[nb_:]
            if o["adma"] == 0 and not (s == 16 and o["t16"]) and not (s > 16 and o["vweave"]):
                for t in bt: a.e(t)
                bt = []
            if o["k2"] and s in (4, 6):
                a.e(f"s_cmp_eq_u32 s{S_PER}, 0")
                a.e(f"s_cselect_b32 s{S_T}, {WB}, 0")
                for k in range(2): a.e(f"{'v_add_u32' if s == 4 else 'v_subrev_u32'} v{A_AK+k}, s{S_T}, v{A_AK+k}")
        if s == 5:
            a.comment("the entry reads have landed: count this workgroup in (d_debug word of the group)")
            a.e(f"s_and_b32 s{S_T}, s{S_HG}, 3")
            a.e(f"s_xor_b32 s{S_T}, s{S_T}, s{S_PER}")
            a.e(f"s_or_b32 s{S_T}, s{S_T}, s{S_W}")
            a.branch("s_cbranch_scc1 L_sy1")
            a.e("s_lshl_b32 s45, s44, 3")
            a.e(f"v_mov_b32 v{A_T0}, s45")
            a.e(f"v_mov_b32 v{A_T1}, 1")
            a.e("s_mov_b64 exec, 1")
            a.e(f"buffer_atomic_add v{A_T1}, v{A_T0}, {sq(S_DBG)}, 0 offen")
            a.e("s_mov_b64 exec, -1")
            a.label("L_sy1")
        if o["pdma"] == 3 and s % 2: bt = ["s_barrier"]
        if s in (1, 2):
            ow = sum((a_owrite(i) for i in (range(o["ows"]) if s == 1 else range(o["ows"], 6))), [])
            if o["owf"]: a_kstep(a, o, s, ow, pre=bt)
            else:
                a_kstep(a, o, s, pre=bt)
                for t in ow: a.e(t)
        elif s < 16: a_kstep(a, o, s, pre=bt)
        else: a_vstep(a, o, s - 16, pre=bt)
        if s == 30:
            a.e(f"s_cmp_eq_u32 s{S_PER}, 3")
            a.branch("s_cbranch_scc0 L_A30j")
            a.e("s_waitcnt vmcnt(0)")
            a.label("L_A30j")
        if o["stamps"] == 7 and s in (0, 1, 2, 3):
            stamp(a, o, (1 + 3 * s - 1, S_PER, 2, 1), "s1")
            a.e(f"s_waitcnt vmcnt({vmw})")
            stamp(a, o, (2 + 3 * s - 1, S_PER, 2, 1), "s1")
            a.e("s_barrier")
            stamp(a, o, (3 + 3 * s - 1, S_PER, 2, 1), "s1")
            continue
        if o["k2"] and s < 2:
            a.e(f"s_cmp_eq_u32 s{S_PER}, 0")
            a.branch(f"s_cbranch_scc1 L_Aw{s}")
            a.e(f"s_waitcnt vmcnt({vmw})")
            a.label(f"L_Aw{s}")
            vmw = w01[s]
        endstep(a, vmw + o["kvx"])
    a.e(f"s_add_u32 s{S_PER}, s{S_PER}, 1")
    a.e(f"s_cmp_lt_u32 s{S_PER}, 4")
    a.branch("s_cbranch_scc1 L_Aper")
    a.label("L_Aend")
    stamp(a, o, 9)
    stamp(a, o, 1, "tail")
    tail_offsets(a, 128, S_MK, S_OK, "v0", (T0, T1))
    tail_tile(a, o, 128, S_MK, S_OK, 4)
    stamp(a, o, 2, "tail")
    for p in range(4):
        a.e(f"s_waitcnt vmcnt({6 if p in (1, 2) else 0})")
        a.e("s_barrier")
        stamp(a, o, p + 3, "tail")
        for n in ([5, 6], [7, 8], [9], [])[p]: tail_tile(a, o, 128, S_MK, S_OK, n)
    a.e(f"s_cmp_lg_u32 s{S_W}, 0")
    a.branch("s_cbranch_scc1 L_red")
    a.e("s_lshl_b32 s45, s44, 3")
    a.e("v_mov_b32 v28, s45")
    spin(a, "in", f"buffer_load_dword v29, v28, {sq(S_DBG)}, 0 offen sc1", ["v_readfirstlane_b32 s41, v29", "s_cmp_ge_u32 s41, 8"])
    a.e("v_lshlrev_b32 v28, 2, v0")
    a.e(f"v_add_u32 v28, {EB}, v28")
    a.e(f"ds_write_b32 v28, v{A_FI}")
    a.e("v_mov_b32 v29, 0")
    a.e("ds_write_b32 v28, v29 offset:256")


def out_offset(a, dst, k):
    a.e(f"s_mul_i32 s43, s{S_HG}, 10")
    a.e(f"s_add_u32 s43, s43, s{k}")
    a.e("s_and_b32 s41, s43, 1")
    a.e("s_lshl_b32 s41, s41, 5")
    a.e("s_lshr_b32 s43, s43, 1")
    a.e(f"s_lshl_b32 s{dst}, s{S_B}, 6")
    a.e(f"s_add_u32 s{dst}, s{dst}, s41")
    a.e(f"s_mul_i32 s{dst}, s{dst}, 2560")
    a.e(f"s_mul_i32 s41, s{S_BR}, 1280")
    a.e(f"s_add_u32 s{dst}, s{dst}, s41")
    a.e("s_lshl_b32 s43, s43, 5")
    a.e(f"s_add_u32 s{dst}, s{dst}, s43")


def reduce_setup(a):
    a.e("v_and_b32 v62, 31, v0")
    a.e("v_mul_u32_u24 v62, 2560, v62")
    a.e("v_lshrrev_b32 v63, 5, v0")
    a.e("v_lshl_add_u32 v62, v63, 4, v62")
    a.e(f"s_and_b32 s41, s{S_WAVE}, 3")
    a.e("s_lshl_b32 s41, s41, 4")
    a.e("v_lshrrev_b32 v64, 2, v0")
    a.e("v_add_u32 v64, s41, v64")
    a.e("v_and_b32 v65, 31, v64")
    a.e("v_mul_u32_u24 v65, 2560, v65")
    a.e("v_lshrrev_b32 v64, 5, v64")
    a.e("v_lshl_add_u32 v65, v64, 4, v65")
    a.e("v_and_b32 v64, 3, v0")
    a.e("v_lshl_add_u32 v67, v64, 2, v65")
    a.e(f"s_lshl_b32 s41, s{S_WAVE}, 10")
    a.e(f"s_add_u32 s41, s41, {WB}")
    a.e("v_add_u32 v63, s41, v1")
    a.e("v_add_u32 v66, 40960, v63")
    a.e(f"s_lshl_b32 s41, s{S_WAVE}, 8")
    a.e(f"s_add_u32 s41, s41, {WB+8192}")
    a.e("v_lshlrev_b32 v64, 2, v0")
    a.e("v_add_u32 v64, s41, v64")
    a.e("v_add_u32 v65, 40960, v64")
    out_offset(a, 52, S_WAVE)
    a.e(f"s_lshr_b32 s54, s{S_WAVE}, 2")
    a.e("s_add_u32 s54, s54, 8")
    out_offset(a, 53, 54)
    a.e("s_mov_b32 s50, 0x3f80")
    a.e("s_mov_b32 s51, 0x3f800000")


def reduce_run(a, o):
    B, E, AC = 8, 40, 48
    for i in range(8):
        a.e(f"ds_read_b128 {v(B+4*i,4)}, v{63 if i < 4 else 66} offset:{(i&3)*10240}")
        a.e(f"ds_read_b32 v{E+i}, v{64 if i < 4 else 65} offset:{(i&3)*10240}")
    for i in range(8):
        for n in range(5):
            r = B + 4 * i + n if n < 4 else E + i
            if i == 0:
                a.e(f"v_lshlrev_b32 v{AC+2*n}, 16, v{r}")
                a.e(f"v_and_b32 v{AC+1+2*n}, 0xffff0000, v{r}")
            else:
                a.e(f"v_dot2_f32_bf16 v{AC+2*n}, v{r}, s50, v{AC+2*n}")
                a.e(f"v_dot2_f32_bf16 v{AC+1+2*n}, v{r}, s51, v{AC+1+2*n}")
    a.e("s_nop 2")
    for n in range(5): a.e(f"v_cvt_pk_bf16_f32 v{B+n}, v{AC+2*n}, v{AC+1+2*n}")
    a.e(f"buffer_store_dwordx4 {v(B,4)}, v62, {sq(S_OUT)}, s52 offen{pol(o['outpol'])}")
    a.e(f"buffer_store_dword v{B+4}, v67, {sq(S_OUT)}, s53 offen{pol(o['outpol'])}")


def gen_tail(a, o):
    a.label("L_red")
    lane_id(a, 0)
    a.e(f"s_lshl_b32 s44, s{S_BR}, 4")
    a.e(f"s_add_u32 s44, s44, s{S_B}")
    a.e("s_lshl_b32 s45, s44, 10")
    a.e(f"s_add_u32 s45, s45, {FLAGS}")
    a.e(f"s_lshl_b32 s46, s{S_HG}, 7")
    a.e("s_add_u32 s46, s46, s45")
    a.e(f"s_lshl_b32 s40, s{S_WAVE}, 2")
    a.e(f"s_add_u32 s40, s40, {EB}")
    a.e("v_mov_b32 v3, s40")
    a.e("v_and_b32 v28, 7, v0")
    a.e("v_lshlrev_b32 v29, 7, v28")
    a.e("v_lshlrev_b32 v1, 4, v0")
    a.e("v_lshlrev_b32 v28, 2, v28")
    a.e(f"s_cmp_lg_u32 s{S_WAVE}, 4")
    a.e("s_barrier")
    a.branch("s_cbranch_scc1 L_go")
    stamp(a, o, 10)
    a.e(f"v_add_u32 v{A_FO}, 1, v{A_FO}")
    a.e("s_mov_b64 exec, 0xff")
    a.e(f"buffer_store_dword v{A_FO}, v29, {sq(S_WS)}, s47 offen sc1")
    a.e("s_mov_b64 exec, -1")
    a.label("L_go")
    a.e(f"s_cmp_eq_u32 s{S_WAVE}, s{S_HG}")
    a.branch("s_cbranch_scc0 L_fetch")
    a.e(f"v_add_u32 v5, {EB}, v28")
    a.e("ds_read_b32 v4, v5")
    a.e("s_mov_b64 exec, 0xff")
    spin(a, "poll", f"buffer_load_dword v30, v28, {sq(S_WS)}, s46 offen sc1",
         ["v_cmp_ne_u32 vcc, v30, v4", "v_cndmask_b32 v6, 0, 1, vcc", "ds_write_b32 v5, v6 offset:256",
          f"s_bitset1_b32 vcc_lo, s{S_HG}", "s_cmp_eq_u32 vcc_lo, 0xff"], o["nap"])
    a.e("s_mov_b64 exec, -1")
    reduce_setup(a)
    a.branch("s_branch L_staged")
    a.label("L_fetch")
    a.e("s_lshl_b32 s45, s44, 3")
    a.e(f"s_add_u32 s45, s45, s{S_WAVE}")
    a.e("s_mul_i32 s45, s45, 81920")
    a.e(f"s_mul_i32 s43, s{S_HG}, 10240")
    a.e("s_add_u32 s45, s45, s43")
    a.e(f"s_mul_i32 s43, s{S_WAVE}, 10240")
    a.e(f"s_add_u32 s43, s43, {WB}")
    spin(a, "seen", "ds_read_b32 v4, v3 offset:256", ["v_readfirstlane_b32 s41, v4", "s_cmp_lg_u32 s41, 0"], 1, 0x400000)
    a.e("v_add_u32 v3, s43, v1")
    for k in range(10):
        a.e(f"buffer_load_dwordx4 {v(8+4*k,4)}, v1, {sq(S_WS)}, s45 offen offset:{(k&3)*1024}{pol(o['ldpol'])}")
        if k & 3 == 3: a.e("s_add_u32 s45, s45, 4096")
    reduce_setup(a)
    for k in range(10):
        a.e(f"s_waitcnt vmcnt({9-k})")
        a.e(f"ds_write_b128 v3, {v(8+4*k,4)} offset:{k*1024}")
    a.label("L_staged")
    a.e("s_barrier")
    stamp(a, o, 11)
    reduce_run(a, o)


def gen_main(a, o):
    a.raw(f".globl {KN}\n.p2align 8\n.type {KN},@function\n{KN}:")
    a.e(f"s_cmp_ge_u32 s2, {o['nact']}")
    a.e("s_cbranch_scc1 L_end")
    if o["dbgt"]: a.e("s_memrealtime s[90:91]")
    if o["stamps"]:
        a.e("s_memrealtime s[90:91]")
        a.e("s_memtime s[86:87]")
    a.e("s_load_dwordx2 s[34:35], s[0:1], 96")
    a.e("s_load_dwordx4 s[64:67], s[0:1], 80")
    a.e("s_and_b32 s3, s2, 7")
    a.e("s_lshr_b32 s5, s3, 2")
    a.e("s_mul_i32 s32, s5, 40")
    a.e("s_add_u32 s0, s0, s32")
    a.e("s_addc_u32 s1, s1, 0")
    a.e("s_load_dwordx4 s[44:47], s[0:1], 24")
    a.e("s_load_dwordx2 s[36:37], s[0:1], 0")
    a.e("s_load_dwordx4 s[40:43], s[0:1], 8")
    a.e("v_lshrrev_b32 v1, 6, v0")
    a.e("v_and_b32 v0, 63, v0")
    a.e("v_readfirstlane_b32 s32, v1")
    a.e("s_lshr_b32 s4, s2, 3")
    a.e("s_and_b32 s7, s4, 15")
    a.e("s_lshr_b32 s4, s4, 4")
    a.e("s_and_b32 s6, s3, 3")
    a.e("s_lshl_b32 s6, s6, 1")
    a.e("s_add_u32 s6, s6, s4")
    if o["stamps"] >= 2:
        a.e("s_waitcnt lgkmcnt(0)")
        for i in range(16): a.e(f"s_mov_b32 s{70+i}, s90")
        stamp(a, o, 1, "start")
    entry_touches(a, o)
    stamp(a, o, 9, "start")
    a.e("s_and_b32 s33, s32, 3")
    a.e("s_cmp_lt_u32 s32, 4")
    a.branch("s_cbranch_scc1 L_P")
    gen_A(a, o)
    gen_tail(a, o)
    a.label("L_fin")
    if o["dbgt"] == 2:
        a.comment("diagnostic build: doubles the in-kernel span so that launch overhead and span can be separated")
        a.e("s_memrealtime s[92:93]")
        a.e("s_waitcnt lgkmcnt(0)")
        a.e("s_sub_u32 s94, s92, s90")
        a.e("s_min_u32 s94, s94, 20000")
        a.label("L_dbl")
        a.e("s_memrealtime s[90:91]")
        a.e("s_waitcnt lgkmcnt(0)")
        a.e("s_sub_u32 s95, s90, s92")
        a.e("s_cmp_lt_u32 s95, s94")
        a.branch("s_cbranch_scc1 L_dbl")
    if o["dbgt"] == 1:
        a.e("s_memrealtime s[92:93]")
        a.e("s_waitcnt lgkmcnt(0)")
        a.e("s_sub_u32 s92, s92, s90")
        a.e("s_lshl_b32 s40, s2, 3"); a.e("s_add_u32 s40, s40, 4")
        a.e("s_cmp_eq_u32 s32, 0"); a.e(f"s_cselect_b32 s40, s40, {OOB}")
        a.e("v_mov_b32 v4, s92"); a.e("v_mov_b32 v1, 0")
        a.e("s_mov_b64 exec, 1")
        a.e(f"buffer_store_dword v4, v1, {sq(S_DBG)}, s40 offen")
    if o["stamps"]:
        a.e("s_memrealtime s[92:93]")
        a.e("s_memtime s[88:89]")
        a.e("s_waitcnt lgkmcnt(0)")
        a.e("s_sub_u32 s85, s88, s86")
        a.e("s_getreg_b32 s84, hwreg(HW_REG_XCC_ID, 0, 4)")
        a.e("s_getreg_b32 s83, hwreg(HW_REG_HW_ID)")
        a.e("v_mov_b32 v4, s90"); a.e("v_mov_b32 v5, s91"); a.e("v_mov_b32 v6, s92"); a.e("v_mov_b32 v7, s93")
        a.e("s_lshl_b32 s40, s2, 3"); a.e("s_add_u32 s40, s40, s32"); a.e("s_lshl_b32 s40, s40, 4")
        a.e("s_add_u32 s40, s40, 0x2000000")
        a.e("v_mov_b32 v1, 0")
        a.e(f"buffer_store_dwordx4 v[4:7], v1, {sq(S_WS)}, s40 offen")
        if o["stamps"] >= 2:
            a.e("s_lshl_b32 s40, s2, 3"); a.e("s_add_u32 s40, s40, s32"); a.e("s_lshl_b32 s40, s40, 6")
            a.e("s_add_u32 s40, s40, 0x2100000")
            for k in range(4):
                for i in range(4): a.e(f"v_mov_b32 v{8+4*k+i}, s{70+4*k+i}")
                a.e(f"buffer_store_dwordx4 v[{8+4*k}:{11+4*k}], v1, {sq(S_WS)}, s40 offen offset:{16*k}")
    a.e("s_endpgm")
    gen_P(a, o)
    a.label("L_end")
    a.e("s_endpgm")


def droppings(t, d):
    keep = []; cnt = cnt2 = cnt3 = 0; role = ""
    for l in t.split("\n"):
        if l.startswith(("L_PQa", "L_PO:", "L_PQb")): role = "P"
        if l.startswith(("L_Ptail", "L_Aend", "L_Pcyc")): role = ""
        if l.startswith("L_Aper"): role = "A"
        if l.startswith("L_Ppro"): role = "p"
        if l.startswith("L_Apro"): role = "a"
        if "x" in d and role == "p" and l.strip().startswith(("v_", "ds_")): continue
        if "y" in d and role == "a" and l.strip().startswith("buffer_load_dwordx4") and "s[8:11]" not in l: continue
        if "z" in d and role == "a" and l.strip().startswith("buffer_load_dwordx4") and "s[8:11]" in l: continue
        x = l.strip()
        if "k" in d and role == "A" and x.startswith("buffer_load"): continue
        if "w" in d and role == "P" and x.startswith("buffer_load"): continue
        if "a" in d and role == "A" and x.startswith(("v_", "ds_")) and not x.startswith("v_mov_b32"): continue
        if "p" in d and role == "P" and x.startswith(("v_", "ds_")): continue
        if "m" in d and role in ("A", "P") and x.startswith("v_mfma"): continue
        if "r" in d and role in ("A", "P") and x.startswith("ds_read"): continue
        if "h" in d and role == "A" and x.startswith("ds_read"):
            cnt += 1
            if (cnt // (2 if "tr" in x else 1)) % 2: continue
        if "g" in d and role == "P" and x.startswith("ds_read_b64_tr"):
            cnt2 += 1
            if (cnt2 // 2) % 2: continue
        if "T" in d and x.startswith("buffer_store_dwordx4") and "s[28:31]" in x and "sc1" in x: continue
        if "L" in d and x.startswith("buffer_load_dwordx4") and "s[28:31]" in x: continue
        if "v" in d and role == "A" and x.startswith(("v_exp", "v_fma", "v_add_f32", "v_max3")): continue
        if "A" in d and role == "A" and x.startswith("v_mfma"): continue
        if "P" in d and role == "P" and x.startswith("v_mfma"): continue
        if ("s" in d or "S" in d) and role == "P" and x.startswith("v_mfma_f32_32x32x16"):
            m = re.match(r"v_mfma_f32_32x32x16_bf16 v\[(\d+):\d+\], (v\[\d+:\d+\]), (v\[\d+:\d+\]), (.*)", x)
            cnt3 += 1
            for k in range(2):
                b = int(m.group(1)) + 4 * k + 8 * (cnt3 & 1)
                bo = m.group(3) if (k == 0 or "S" not in d) else {"v[16:19]": "v[20:23]", "v[20:23]": "v[16:19]"}[m.group(3)]
                keep.append(f"    v_mfma_f32_16x16x32_bf16 v[{b}:{b+3}], {m.group(2)}, {bo}, v[{b}:{b+3}]")
            continue
        keep.append(l)
    return "\n".join(keep)


HEADER = """; Fused Q-projection / attention / O-projection for both branches in one launch.
; Workgroup = (branch, batch, group of 4 heads); ids with equal id % 8 share the weight slices.
;   waves 4-7: attention. K/V stream through a 4-tile LDS ring (LDS-DMA, 32 keys per step); S^T = K Q^T is kept
;   waves 0-3: projections. wq/x and wo stream through a second ring; Q for the next head and the running
; stores, per-consumer hand-off words compared with their value on entry) and each reduces one column slice."""


def gen(**kw):
    o = dict(DEFAULTS); o.update(kw)
    a = Asm()
    if o["stamps"]: a.raw(f"; stamps={8*o['nact']} @0x2000000")
    a.raw(f"; @launch grid=(256,1,1) block=(512,1,1) lds={LDS}")
    a.raw(HEADER)
    a.raw('.amdgcn_target "amdgcn-amd-amdhsa--gfx950"\n.text')
    gen_main(a, o)
    a.raw(f""".section .rodata,"a"
.p2align 6
.amdhsa_kernel {KN}
  .amdhsa_next_free_vgpr 256
  .amdhsa_next_free_sgpr 102
  .amdhsa_accum_offset 256
  .amdhsa_group_segment_fixed_size 0
  .amdhsa_kernarg_size 104
  .amdhsa_user_sgpr_count 2
  .amdhsa_user_sgpr_kernarg_segment_ptr 1
  .amdhsa_system_sgpr_workgroup_id_x 1
.end_amdhsa_kernel""")
    t = a.text()
    return droppings(t, o["drop"]) if o["drop"] else t


if __name__ == "__main__":
    out = sys.argv[1]
    kw = {}
    for x in sys.argv[2:]:
        k, val = x.split("=")
        kw[k] = int(val) if val.lstrip("-").isdigit() else val.replace("+", " ")
    open(out, "w").write(gen(**kw))
```
